```python
import torch

def _softmax(x, axis=-1):
    return torch.softmax(x, dim=axis)
def _gelu(x):
    return torch.nn.functional.gelu(x, approximate="tanh")
def _silu(x):
    return torch.nn.functional.silu(x)
def _sigmoid(x):
    return torch.sigmoid(x)
def _layernorm(x, axis=-1, eps=1e-5):
    m = x.mean(dim=axis, keepdim=True)
    v = x.var(dim=axis, keepdim=True, unbiased=False)
    return (x - m) / torch.sqrt(v + eps)
def _scatter_add(tgt, idx, src, axis=0):
    return tgt.clone().index_add_(axis, idx, src)
def _segment_sum(src, seg, n):
    out = torch.zeros((n,) + src.shape[1:], dtype=src.dtype)
    return out.index_add_(0, seg, src)
def _pad(x, pw):
    flat = tuple(v for pair in reversed(pw) for v in pair)
    return torch.nn.functional.pad(x, flat)

kernel_name = 'gated_mix__mha_block__moe_arch_mod__prompt'

def setup_inputs():

    _w = (lambda a: (lambda t: t.to(torch.bfloat16) if t.is_floating_point() else t)(torch.as_tensor(a)))
    def _A_setup():
        B, S, D, H = 1, 2048, 576, 32
        return {
            "x": _w((lambda *s: torch.randn(*s, dtype=torch.bfloat16) * 0.05)(B, S, D)),
            "wqkv": _w((lambda *s: torch.randn(*s, dtype=torch.bfloat16) * 0.8)(D, 3 * D)),
            "wo": _w((lambda *s: torch.randn(*s, dtype=torch.bfloat16) * 0.1)(D, D)),
        }
    _A_in = _A_setup()

    def _B_setup():
        B, S, D, F, C = 1, 2048, 576, 4608, 2
        return {
            "x": _w((lambda *s: torch.randn(*s, dtype=torch.bfloat16) * 0.05)(B, S, D)),
            "w_r": _w((lambda *s: torch.randn(*s, dtype=torch.bfloat16) * 3.2)(D)),
            "w_gate": _w((lambda *s: torch.randn(*s, dtype=torch.bfloat16) * 0.2)(D, F)),
            "w_up": _w((lambda *s: torch.randn(*s, dtype=torch.bfloat16) * 0.2)(D, F)),
            "w_down": _w((lambda *s: torch.randn(*s, dtype=torch.bfloat16) * 0.2)(F, D)),
        }
    _B_in = _B_setup()

    return {
        "A_x": _A_in["x"],
        "A_wqkv": _A_in["wqkv"],
        "A_wo": _A_in["wo"],
        "B_x": _B_in["x"],
        "B_w_r": _B_in["w_r"],
        "B_w_gate": _B_in["w_gate"],
        "B_w_up": _B_in["w_up"],
        "B_w_down": _B_in["w_down"],
        "gate_w": _w((lambda *s: torch.randn(*s, dtype=torch.bfloat16) * 0.05)(576) * 16.0),
    }

def reference(A_x, A_wqkv, A_wo, B_x, B_w_r, B_w_gate, B_w_up, B_w_down, gate_w):
    def _A_ref(x, wqkv, wo):
        B, S, D = x.shape
        H = 32
        Dh = D // H
        qkv = (lambda x, *d: x.permute(*d))((x @ wqkv).reshape(B, S, 3, H, Dh), 2, 0, 3, 1, 4)
        q, k, v = qkv[0], qkv[1], qkv[2]
        scores = torch.einsum("bhqd,bhkd->bhqk", q, k) * (Dh ** -0.5)
        p = _softmax(scores, axis=-1)
        o = torch.einsum("bhqk,bhkd->bhqd", p, v)
        return (lambda x, *d: x.permute(*d))(o, 0, 2, 1, 3).reshape(B, S, D) @ wo

    def _B_ref(x, w_r, w_gate, w_up, w_down):
        B, S, D = x.shape
        C = 2
        r = x @ w_r
        idx = torch.argsort(-r, axis=-1)[:, :C]
        idx_e = (lambda x, n, axis: torch.repeat_interleave(x, n, dim=axis))(idx.reshape(B, C, 1), D, axis=2)
        x_sel = (lambda x, i, axis: torch.take_along_dim(x, i, dim=axis))(x, idx_e, axis=1)
        g = _silu(x_sel @ w_gate)
        u = x_sel @ w_up
        y = (g * u) @ w_down
        r_sel = _sigmoid((lambda x, i, axis: torch.take_along_dim(x, i, dim=axis))(r, idx, axis=1))
        y = y * r_sel.reshape(B, C, 1)
        b_off = (torch.arange(B) * S).reshape(B, 1)
        flat_idx = (idx + b_off).reshape(B * C)
        zero = (x * 0.0).reshape(B * S, D)
        upd = _scatter_add(zero, flat_idx, y.reshape(B * C, D), axis=0)
        return x + upd.reshape(B, S, D)

    x = A_x
    g = _sigmoid((x * gate_w).sum(-1, keepdims=True))
    a = _A_ref(x, A_wqkv, A_wo)
    b = _B_ref(x, B_w_r, B_w_gate, B_w_up, B_w_down)
    return g * a + (1 - g) * b
```

```python
class Asm:
    def __init__(self):
        self.lines = []

    def __call__(self, s):
        for l in s.strip("\n").split("\n"):
            l = l.strip()
            if not l:
                continue
            if l.endswith(":") or l.startswith("."):
                self.lines.append(l)
            else:
                self.lines.append("    " + l)

    def raw(self, s):
        self.lines.append(s)

    def c(self, s):
        self.lines.append("    ; " + s)

    def text(self):
        return "\n".join(self.lines) + "\n"


def vr(a, n=1):
    return f"v{a}" if n == 1 else f"v[{a}:{a+n-1}]"


def ar(a, n=1):
    return f"a{a}" if n == 1 else f"a[{a}:{a+n-1}]"


def sr(a, n=1):
    return f"s{a}" if n == 1 else f"s[{a}:{a+n-1}]"


def off(o):
    return f" offset:{o}" if o else ""


def kernel_head(A, name):
    A(f".globl {name}")
    A(".p2align 8")
    A(f".type {name},@function")
    A(f"{name}:")


def descriptor(name, vgpr, accum, sgpr=102):
    return f""".amdhsa_kernel {name}
  .amdhsa_next_free_vgpr {vgpr}
  .amdhsa_next_free_sgpr {sgpr}
  .amdhsa_accum_offset {accum}
  .amdhsa_group_segment_fixed_size 0
  .amdhsa_kernarg_size 96
  .amdhsa_user_sgpr_count 2
  .amdhsa_user_sgpr_kernarg_segment_ptr 1
  .amdhsa_system_sgpr_workgroup_id_x 1
.end_amdhsa_kernel
"""


def srd(A, s, karg_off, nbytes):
    A(f"s_load_dwordx2 s[{s}:{s+1}], s[0:1], {karg_off}")
    A(f"s_mov_b32 s{s+2}, {nbytes}")
    A(f"s_mov_b32 s{s+3}, 0x00020000")


def wave_max_u32(A, v, t, sdst):
    A(f"s_nop 1")
    A(f"v_max_u32_dpp v{t}, v{v}, v{v} quad_perm:[1,0,3,2] row_mask:0xf bank_mask:0xf")
    A(f"s_nop 1")
    A(f"v_max_u32_dpp v{t}, v{t}, v{t} quad_perm:[2,3,0,1] row_mask:0xf bank_mask:0xf")
    A(f"s_nop 1")
    A(f"v_max_u32_dpp v{t}, v{t}, v{t} row_half_mirror row_mask:0xf bank_mask:0xf")
    A(f"s_nop 1")
    A(f"v_max_u32_dpp v{t}, v{t}, v{t} row_mirror row_mask:0xf bank_mask:0xf")
    A(f"s_nop 1")
    A(f"v_max_u32_dpp v{t}, v{t}, v{t} row_bcast:15 row_mask:0xa bank_mask:0xf")
    A(f"s_nop 1")
    A(f"v_max_u32_dpp v{t}, v{t}, v{t} row_bcast:31 row_mask:0xc bank_mask:0xf")
    A(f"s_nop 1")
    A(f"v_readlane_b32 s{sdst}, v{t}, 63")


def wave_top2_u32(A, v, t, s1, s2):
    wave_max_u32(A, v, t, s1)
    A("s_nop 1")
    A(f"v_cmp_ne_u32 vcc, s{s1}, v{v}")
    A("s_nop 1")
    A(f"v_cndmask_b32 v{v}, 0, v{v}, vcc")
    wave_max_u32(A, v, t, s2)
```

```python
import sys, struct, math
sys.path.insert(0, "gen")
from asmlib import *

QK = 0x000000
EXT = 0x400000
VB = 0x480000
GB = 0x6C0000
RC = 0x6C2000
TOP = 0x6C3000
OB = 0x700000
YP = 0x940000
WS_SIZE = 0x1000000
XB = 2048 * 1152


def f32bits(x):
    return struct.unpack("<I", struct.pack("<f", x))[0]


QSCALE = f32bits(math.log2(math.e) / math.sqrt(18.0))
LOG2E = f32bits(math.log2(math.e))


def mfma(d, a, b, c):
    return f"v_mfma_f32_32x32x16_bf16 {d}, {a}, {b}, {c}"


def k1(A):
    kernel_head(A, "k1_kernel")
    sX, sW, sWS, sR, sG = 16, 20, 24, 28, 32
    A("s_cmp_ge_u32 s2, 256")
    A("s_cbranch_scc1 K1_end")
    srd(A, sX, 0, XB)
    srd(A, sW, 8, 576 * 3456)
    srd(A, sWS, 88, WS_SIZE)
    srd(A, sR, 32, 1152)
    srd(A, sG, 64, 1152)
    A("""
    v_lshrrev_b32 v1, 6, v0
    v_and_b32 v0, 63, v0
    v_readfirstlane_b32 s38, v1
    s_cmp_ge_u32 s2, 224
    s_cbranch_scc1 K1_rg
    s_and_b32 s3, s2, 3
    s_lshl_b32 s3, s3, 2
    s_bfe_u32 s4, s2, 0x20003
    s_add_u32 s36, s3, s4
    s_bfe_u32 s3, s2, 0x10002
    s_mul_i32 s3, s3, 7
    s_lshr_b32 s4, s2, 5
    s_add_u32 s37, s3, s4
    s_cmp_lt_u32 s38, 4
    s_cbranch_scc1 K1_compute
    """)
    A.c("---- loader waves: s36 = token block, s37 = channel block")
    A("""
    s_sub_u32 s38, s38, 4
    v_lshrrev_b32 v2, 3, v0
    v_and_b32 v3, 7, v0
    v_lshrrev_b32 v4, 4, v0
    s_lshl_b32 s3, s38, 2
    v_add_u32 v5, s3, v4
    v_and_b32 v6, 7, v5
    v_xor_b32 v3, v3, v6
    s_lshl_b32 s4, s36, 7
    s_lshl_b32 s5, s38, 3
    s_add_u32 s4, s4, s5
    v_add_u32 v2, s4, v2
    v_mul_u32_u24 v2, 1152, v2
    v_lshl_add_u32 v10, v3, 4, v2
    v_mul_u32_u24 v5, 3456, v5
    v_and_b32 v6, 15, v0
    v_lshlrev_b32 v7, 2, v4
    v_xor_b32 v6, v6, v7
    v_lshl_add_u32 v5, v6, 4, v5
    s_lshl_b32 s4, s37, 8
    v_add_u32 v11, s4, v5
    s_lshl_b32 s39, s38, 10
    s_waitcnt lgkmcnt(0)
    """)

    def issue(c):
        slot = c % 5
        for u in range(4):
            A(f"s_add_u32 m0, s39, {slot*32768 + 16384 + u*4096}")
            A(f"s_mov_b32 s40, {(64*c + 16*u)*3456}")
            A(f"buffer_load_dwordx4 v11, s[{sW}:{sW+3}], s40 offen lds")
            A(f"s_add_u32 m0, s39, {slot*32768 + u*4096}")
            A(f"s_mov_b32 s41, {c*128 + u*36864}")
            A(f"buffer_load_dwordx4 v10, s[{sX}:{sX+3}], s41 offen lds")

    PRE = 3
    issued = 0
    for c in range(PRE):
        issue(c); issued += 1
    for c in range(9):
        A(f"s_waitcnt vmcnt({8*(issued - c - 1)})")
        A("s_barrier")
        if issued < 9 and issued <= c + 3:
            issue(issued); issued += 1
    assert issued == 9
    A("s_endpgm")

    A.c("---- compute waves")
    A("K1_compute:")
    ACC, F, AX, AW, U = 64, 128, 160, 172, 180
    A("""
    s_and_b32 s40, s38, 1
    s_lshr_b32 s41, s38, 1
    v_lshrrev_b32 v1, 5, v0
    v_and_b32 v2, 31, v0
    v_and_b32 v3, 0x13, v2
    v_and_b32 v4, 4, v2
    v_lshl_or_b32 v3, v4, 1, v3
    v_and_b32 v4, 8, v2
    v_lshrrev_b32 v4, 1, v4
    v_or_b32 v3, v3, v4
    s_cmp_ge_u32 s37, 9
    s_cselect_b64 vcc, -1, 0
    v_cndmask_b32 v3, v2, v3, vcc
    v_bfe_u32 v4, v3, 1, 3
    v_xor_b32 v4, v4, v1
    s_lshl_b32 s3, s40, 6
    v_add_u32 v3, s3, v3
    v_lshlrev_b32 v3, 7, v3
    """)
    A(f"v_lshl_add_u32 v{AX}, v4, 4, v3")
    for s in range(1, 4):
        A(f"v_xor_b32 v{AX+s}, {s << 5}, v{AX}")
    A("""
    v_bfe_u32 v3, v0, 2, 2
    v_lshl_add_u32 v4, v1, 3, v3
    v_lshlrev_b32 v4, 8, v4
    s_lshl_b32 s3, s41, 1
    v_xor_b32 v3, s3, v3
    v_lshl_add_u32 v4, v3, 6, v4
    v_bfe_u32 v3, v0, 4, 1
    v_lshl_add_u32 v4, v3, 5, v4
    v_and_b32 v3, 3, v0
    v_lshl_add_u32 v4, v3, 3, v4
    """)
    A(f"v_add_u32 v{AW}, 16384, v4")
    A(f"v_xor_b32 v{AW+1}, 64, v{AW}")
    for k in (1, 2):
        for s in range(4):
            A(f"v_add_u32 v{AX+4*k+s}, {65536*k}, v{AX+s}")
        for s in range(2):
            A(f"v_add_u32 v{AW+2*k+s}, {65536*k}, v{AW+s}")
    A("s_waitcnt lgkmcnt(0)")
    A("s_cmp_ge_u32 s37, 9")
    A("s_cbranch_scc1 K1_v")

    def reads(n):
        c, s = divmod(n, 4)
        slot = c % 5
        k, o = divmod(slot, 2)
        o *= 32768
        f = F + 16 * (n % 2)
        xa = f"ds_read_b128 {vr(f,4)}, v{AX+4*k+s}{off(o)}"
        xb = f"ds_read_b128 {vr(f+4,4)}, v{AX+4*k+s}{off(o+4096)}"
        w = [[f"ds_read_b64_tr_b16 {vr(f+8+4*T+2*a,2)}, v{AW+2*k+T}{off(o+(16*s+4*a)*256)}" for a in range(2)] for T in range(2)]
        return [xa, w[0][0], w[0][1], w[1][0], w[1][1], xb]

    def mainloop(vmode):
        A("s_barrier")
        for r in reads(0):
            A(r)
        for n in range(36):
            f = F + 16 * (n % 2)
            R = reads(n + 1) if n < 35 else []

            def M(a, T):
                d = vr(ACC + 16 * (2 * a + T), 16)
                x, w = vr(f + 4 * a, 4), vr(f + 8 + 4 * T, 4)
                c = "0" if n == 0 else d
                A(mfma(d, x, w, c) if vmode else mfma(d, w, x, c))
            A("s_waitcnt lgkmcnt(3)")
            M(0, 0)
            if n % 4 == 3 and n < 35:
                A("s_barrier")
            for r in R[0:3]: A(r)
            A(f"s_waitcnt lgkmcnt({4 if R else 1})")
            M(0, 1)
            for r in R[3:5]: A(r)
            A(f"s_waitcnt lgkmcnt({5 if R else 0})")
            M(1, 0)
            for r in R[5:6]: A(r)
            M(1, 1)
        A("s_nop 9")

    A.c("---- q/k blocks: D = W^T x^T (lane = token, registers = channels)")
    A("""
    s_lshl_b32 s3, s36, 2
    s_lshl_b32 s4, s40, 1
    s_add_u32 s3, s3, s4
    s_lshl_b32 s3, s3, 10
    v_lshl_add_u32 v5, v2, 4, s3
    s_lshl_b32 s3, s36, 10
    s_lshl_b32 s4, s40, 9
    s_add_u32 s3, s3, s4
    """)
    A(f"s_add_u32 s3, s3, {EXT}")
    A("""
    v_lshl_add_u32 v6, v2, 4, s3
    s_lshl_b32 s3, s37, 5
    s_lshl_b32 s4, s41, 4
    s_add_u32 s3, s3, s4
    v_add_u32 v7, s3, v1
    v_mov_b32 v8, 1024
    s_cmp_lt_u32 s3, 144
    """)
    A(f"s_cselect_b32 s42, {QSCALE}, 1.0")
    A("s_mov_b32 s43, s42")
    for q in range(8):
        A(f"""
        v_add_u32 v9, {2*q}, v7
        v_mul_u32_u24 v10, 7282, v9
        v_lshrrev_b32 v10, 16, v10
        v_mul_u32_u24 v11, 9, v10
        v_sub_u32 v11, v9, v11
        v_cmp_lt_u32 vcc, 4, v11
        v_lshl_add_u32 v15, v10, 14, v6
        s_nop 0
        v_cndmask_b32_e64 v12, 0, 1, vcc
        v_mad_i32_i24 v13, v12, -5, v11
        v_lshl_add_u32 v12, v10, 1, v12
        v_lshl_add_u32 v12, v12, 16, v5
        v_cmp_eq_u32 vcc, 4, v11
        v_lshrrev_b32 v14, 1, v13
        v_lshl_add_u32 v12, v14, 9, v12
        v_and_b32 v14, 1, v13
        v_lshl_add_u32 v12, v14, 3, v12
        v_cndmask_b32 v{U+q}, v12, v15, vcc
        v_cndmask_b32_e64 v14, v8, 8, vcc
        v_add_u32 v{U+8+q}, v{U+q}, v14
        """)
    mainloop(False)
    for a in range(2):
        for T in range(2):
            d = ACC + 16 * (2 * a + T)
            p = F + 8 * (2 * a + T)
            for i in range(8):
                A(f"v_pk_mul_f32 {vr(d+2*i,2)}, {vr(d+2*i,2)}, s[42:43]")
            for i in range(8):
                A(f"v_cvt_pk_bf16_f32 v{p+i}, v{d+2*i}, v{d+2*i+1}")
            for i in range(4):
                A(f"buffer_store_dwordx2 {vr(p+2*i,2)}, v{U+8*a+4*T+i}, s[{sWS}:{sWS+3}], 0 offen")
    A("s_endpgm")

    A.c("---- v blocks: D = x W (lane = channel, registers = tokens)")
    A("K1_v:")
    A("""
    s_sub_u32 s3, s37, 9
    s_lshl_b32 s3, s3, 7
    s_lshl_b32 s4, s41, 6
    s_add_u32 s44, s3, s4
    s_lshl_b32 s3, s36, 2
    s_lshl_b32 s4, s40, 1
    s_add_u32 s3, s3, s4
    s_mul_i32 s3, s3, 1152
    """)
    A(f"s_add_u32 s3, s3, {VB}")
    A("s_mov_b32 s4, 73728")
    A("v_mul_u32_u24 v5, 288, v1")
    A("v_add_u32 v5, s3, v5")
    for T in range(2):
        A(f"""
        v_add_u32 v9, s44, v2
        v_add_u32 v9, {32*T}, v9
        v_mul_u32_u24 v10, 3641, v9
        v_lshrrev_b32 v10, 16, v10
        v_mul_u32_u24 v11, 18, v10
        v_sub_u32 v11, v9, v11
        v_mad_u32_u24 v12, v10, s4, v5
        v_lshl_add_u32 v{U+T}, v11, 4, v12
        """)
    mainloop(True)
    A("s_cmp_ge_u32 s44, 576")
    A("s_cbranch_scc1 K1_end")
    for a in range(2):
        for T in range(2):
            d = ACC + 16 * (2 * a + T)
            p = F + 8 * (2 * a + T)
            for i in range(8):
                A(f"v_cvt_pk_bf16_f32 v{p+i}, v{d+2*i}, v{d+2*i+1}")
            for i2 in range(2):
                A(f"buffer_store_dwordx4 {vr(p+4*i2,4)}, v{U+T}, s[{sWS}:{sWS+3}], 0 offen{off(1152*a+576*i2)}")
    A("s_endpgm")

    A.c("---- router score + mix gate for 64 tokens per workgroup")
    A("K1_rg:")
    A("""
    s_sub_u32 s36, s2, 224
    s_lshl_b32 s3, s36, 6
    s_lshl_b32 s4, s38, 3
    s_add_u32 s3, s3, s4
    v_lshrrev_b32 v1, 3, v0
    v_add_u32 v1, s3, v1
    v_and_b32 v2, 7, v0
    v_lshlrev_b32 v2, 4, v2
    v_mul_u32_u24 v3, 1152, v1
    v_add_u32 v3, v3, v2
    s_waitcnt lgkmcnt(0)
    """)
    for j in range(9):
        A(f"buffer_load_dwordx4 {vr(16+4*j,4)}, v3, s[{sX}:{sX+3}], 0 offen{off(128*j)}")
        A(f"buffer_load_dwordx4 {vr(52+4*j,4)}, v2, s[{sR}:{sR+3}], 0 offen{off(128*j)}")
        A(f"buffer_load_dwordx4 {vr(88+4*j,4)}, v2, s[{sG}:{sG+3}], 0 offen{off(128*j)}")
    A("v_mov_b32 v4, 0")
    A("v_mov_b32 v5, 0")
    A("s_mov_b32 s5, 0xffff0000")
    for j in range(9):
        A(f"s_waitcnt vmcnt({3*(8-j)})")
        for i in range(4):
            x, r, g = 16 + 4 * j + i, 52 + 4 * j + i, 88 + 4 * j + i
            A(f"""
            v_lshlrev_b32 v6, 16, v{x}
            v_lshlrev_b32 v7, 16, v{r}
            v_lshlrev_b32 v8, 16, v{g}
            v_fmac_f32 v4, v6, v7
            v_fmac_f32 v5, v6, v8
            v_and_b32 v6, s5, v{x}
            v_and_b32 v7, s5, v{r}
            v_and_b32 v8, s5, v{g}
            v_fmac_f32 v4, v6, v7
            v_fmac_f32 v5, v6, v8
            """)
    for pat in ("quad_perm:[1,0,3,2]", "quad_perm:[2,3,0,1]", "row_half_mirror"):
        A("s_nop 1")
        A(f"v_add_f32_dpp v4, v4, v4 {pat} row_mask:0xf bank_mask:0xf")
        A(f"v_add_f32_dpp v5, v5, v5 {pat} row_mask:0xf bank_mask:0xf")
    A(f"""
    v_cvt_pk_bf16_f32 v6, v5, v4
    v_lshlrev_b32 v5, 16, v6
    v_mul_f32 v5, {0x80000000 | LOG2E}, v5
    v_exp_f32 v5, v5
    v_ashrrev_i32 v7, 31, v6
    v_add_f32 v5, 1.0, v5
    v_rcp_f32 v5, v5
    v_or_b32 v7, 0x80000000, v7
    v_xor_b32 v6, v6, v7
    v_and_b32 v6, s5, v6
    v_sub_u32 v7, 0xffff, v1
    v_or_b32 v6, v6, v7
    v_cvt_pk_bf16_f32 v5, v5, v5
    v_and_b32 v5, s5, v5
    v_lshlrev_b32 v7, 2, v1
    v_and_b32 v8, 0xff, v7
    ds_write_b32 v8, v6
    s_mov_b32 s3, {GB}
    buffer_store_dword v5, v7, s[{sWS}:{sWS+3}], s3 offen
    s_waitcnt lgkmcnt(0)
    s_barrier
    s_cmp_lg_u32 s38, 0
    s_cbranch_scc1 K1_end
    v_lshlrev_b32 v8, 2, v0
    ds_read_b32 v6, v8
    s_waitcnt lgkmcnt(0)
    """)
    wave_top2_u32(A, 6, 7, 4, 5)
    A(f"""
    s_lshl_b32 s3, s36, 3
    s_add_u32 s3, s3, {RC}
    v_mov_b32 v8, 0
    v_mov_b32 v4, s4
    v_mov_b32 v5, s5
    buffer_store_dwordx2 v[4:5], v8, s[{sWS}:{sWS+3}], s3 offen
    """)
    A("K1_end:")
    A("s_endpgm")


def k2(A):
    kernel_head(A, "k2_kernel")
    sX, sGU, sWS, sD = 16, 20, 24, 28
    S = [0, 32]
    O = [64, 80, 96, 112]
    QM, QE = 128, 144
    KM = [148, 152, 156]
    VV = [160, 168, 176]
    KE = [184, 188]
    IDX, L16, VA = 192, 193, 194
    LANE, CAND, TMP, GUA, DNA, XSA = 195, 196, 197, 198, 199, 200
    T0 = 202
    sK, sV, sKE = 44, 48, 52
    WREG = 16384
    HP = 8 * WREG
    HS = HP + 2048
    ws = f"s[{sWS}:{sWS+3}]"
    A("s_cmp_ge_u32 s2, 256")
    A("s_cbranch_scc1 K2_end")
    srd(A, sWS, 88, WS_SIZE)
    srd(A, sX, 0, XB)
    A("s_load_dwordx4 s[4:7], s[0:1], 40")
    srd(A, sD, 56, 4608 * 1152)
    A(f"""
    s_mov_b32 s{sGU+3}, 0x00020000
    v_lshrrev_b32 v1, 6, v0
    v_and_b32 v{LANE}, 63, v0
    v_readfirstlane_b32 s38, v1
    v_lshlrev_b32 v{L16}, 4, v{LANE}
    s_and_b32 s3, s2, 7
    s_lshl_b32 s36, s3, 2
    s_bfe_u32 s8, s2, 0x20003
    s_add_u32 s36, s36, s8
    s_lshr_b32 s37, s2, 5
    s_and_b32 s39, s38, 1
    s_lshr_b32 s40, s38, 1
    """)
    A.c("s36 head, s37 q block, s38 wave, s39 q group, s40 key quarter")
    A(f"""
    s_lshl_b32 s8, s36, 16
    s_lshl_b32 s9, s37, 1
    s_add_u32 s9, s9, s39
    s_lshl_b32 s10, s9, 12
    s_add_u32 s10, s10, s8
    s_xor_b32 s11, s40, 3
    """)
    for t in range(4):
        A(f"s_xor_b32 s12, s11, {t}")
        A(f"s_lshl_b32 s12, s12, 10")
        A(f"s_add_u32 s{56+t}, s10, s12")
    A(f"""
    s_lshr_b32 s12, s36, 1
    s_lshl_b32 s12, s12, 14
    s_add_u32 s12, s12, {EXT}
    s_lshl_b32 s13, s9, 10
    s_add_u32 s60, s12, s13
    s_lshl_b32 s13, s40, 12
    s_add_u32 s12, s12, s13
    s_add_u32 s{sKE}, s12, {16*16384}
    s_lshl_b32 s13, s40, 14
    s_add_u32 s13, s13, s8
    s_add_u32 s{sK}, s13, {32*65536}
    s_mul_i32 s12, s36, 73728
    s_mul_i32 s13, s40, {16*1152}
    s_add_u32 s12, s12, s13
    s_add_u32 s{sV}, s12, {VB}
    """)
    for g in range(1, 4):
        A(f"s_add_u32 s{sK+g}, s{sK}, {4096*g}")
        A(f"s_add_u32 s{sV+g}, s{sV}, {4608*g}")
    A.c("q ext address: half hh of pair c reads actual tile (c + 2hh) ^ 3 ^ kq")
    A(f"""
    s_lshr_b32 s12, s11, 1
    s_lshl_b32 s12, s12, 9
    s_and_b32 s13, s11, 1
    s_lshl_b32 s13, s13, 3
    s_or_b32 s12, s12, s13
    v_xor_b32 v2, s12, v{L16}
    v_xor_b32 v3, 8, v2
    v_and_b32 v4, 31, v{LANE}
    v_min_u32 v5, 17, v4
    v_lshrrev_b32 v6, 5, v{LANE}
    v_mul_u32_u24 v6, 288, v6
    v_lshl_add_u32 v{VA}, v5, 4, v6
    v_lshlrev_b32 v7, 2, v{LANE}
    s_mov_b32 s62, 0x0011ffff
    s_mov_b32 s63, 0x0011ffff
    s_mov_b32 s61, {RC}
    s_waitcnt lgkmcnt(0)
    """)

    def ldK(j):
        return [f"buffer_load_dwordx4 {vr(KM[j%3],4)}, v{L16}, {ws}, s{sK+j//4} offen{off(1024*(j%4))}"]

    def ldV(j):
        return ["s_mov_b64 exec, s[62:63]"] + \
            [f"buffer_load_dwordx4 {vr(VV[j%3]+4*i,4)}, v{VA}, {ws}, s{sV+j//4} offen{off(1152*(j%4)+576*i)}" for i in range(2)] + \
            ["s_mov_b64 exec, -1"]

    def ldKE(g):
        return [f"buffer_load_dwordx4 {vr(KE[g%2],4)}, v{L16}, {ws}, s{sKE} offen{off(1024*g)}"]

    def group(j):
        return (ldKE(j // 4) if j % 4 == 0 else []) + ldK(j) + ldV(j)

    def nload(j):
        return 0 if j > 15 else 3 + (j % 4 == 0)

    A(f"buffer_load_dwordx2 {vr(QE,2)}, v2, {ws}, s60 offen")
    A(f"buffer_load_dwordx2 {vr(QE+2,2)}, v3, {ws}, s60 offen")
    for t in range(4):
        A(f"buffer_load_dwordx4 {vr(QM+4*t,4)}, v{L16}, {ws}, s{56+t} offen")
    A.c("preset V registers: rows 17 and 21 are the all-ones rows that produce the softmax denominator")
    A(f"""
    v_or_b32 v5, 4, v4
    v_cmp_eq_u32 vcc, 21, v5
    v_mov_b32 v6, 0x3f803f80
    v_mov_b32 v{IDX}, 0xdddddddd
    v_cndmask_b32 v{VV[0]}, 0, v6, vcc
    """)
    for i in range(1, 24):
        A(f"v_mov_b32 v{VV[0]+i}, v{VV[0]}")
    for l in group(0): A(l)
    A(f"buffer_load_dword v{CAND}, v7, {ws}, s61 offen")
    for l in group(1): A(l)
    A.c("MoE: f block s41 (32 columns), only for workgroups with (id >> 3) < 18")
    A(f"""
    s_lshr_b32 s12, s2, 3
    s_mul_i32 s41, s3, 18
    s_add_u32 s41, s41, s12
    s_cmp_lt_u32 s12, 18
    s_cselect_b32 s{sGU+2}, {576*9216}, 0
    s_cselect_b32 s{sD+2}, {4608*1152}, 0
    s_cselect_b32 s64, 1, 0
    s_cmp_eq_u32 s39, 0
    s_cselect_b32 s{sGU}, s4, s6
    s_cselect_b32 s{sGU+1}, s5, s7
    s_lshl_b32 s42, s38, 14
    v_lshrrev_b32 v8, 2, v{LANE}
    v_and_b32 v9, 3, v{LANE}
    v_lshlrev_b32 v9, 4, v9
    s_mul_i32 s12, s40, 144
    v_add_u32 v10, s12, v8
    v_mul_u32_u24 v10, 9216, v10
    s_lshl_b32 s12, s41, 6
    v_add3_u32 v{GUA}, v10, v9, s12
    s_lshl_b32 s12, s41, 5
    v_add_u32 v10, s12, v8
    v_mul_u32_u24 v10, 1152, v10
    s_lshl_b32 s12, s38, 7
    v_add3_u32 v{DNA}, v10, v9, s12
    s_lshl_b32 s13, s39, 6
    s_add_u32 s13, s13, 1024
    s_sub_u32 s65, s13, s12
    s_add_u32 s66, s65, {16*1152}
    s_bitcmp0_b32 s36, 0
    s_cselect_b32 s12, -1, 0
    s_cselect_b32 s13, 0, -1
    """)
    for i in range(64):
        A(f"v_mov_b32 v{O[0]+i}, 0")
    A(f"s_waitcnt vmcnt({nload(1)+1+3+4})")
    A(f"""
    v_and_b32 v{QE}, s12, v{QE}
    v_and_b32 v{QE+1}, s13, v{QE+1}
    v_and_b32 v{QE+2}, s12, v{QE+2}
    v_and_b32 v{QE+3}, s13, v{QE+3}
    s_waitcnt vmcnt({nload(1)+1+2})
    """)

    def m2b(kt, c):
        u = kt % 4
        return (f"v_mfma_f32_32x32x4_2b_bf16 {vr(S[c],32)}, {vr(KE[(kt//4)%2]+2*(u%2),2)}, {vr(QE+2*c,2)}, 0"
                f" cbsz:1 abid:{u//2}")

    def mm(kt, c, b):
        d = vr(S[c] + 16 * b, 16)
        return mfma(d, vr(KM[kt % 3], 4), vr(QM + 4 * (c + 2 * b), 4), d)

    def sm(kt, c, b, i):
        return (f"v_smfmac_f32_32x32x32_bf16 {vr(O[c+2*b],16)}, {vr(VV[kt%3]+4*i,4)}, "
                f"{vr(S[c]+16*b+8*i,8)}, v{IDX}")

    def moe_dma(n):
        if n < 9:
            return [f"s_add_u32 m0, s42, {1024*n}", f"s_mov_b32 s67, {n*16*9216}",
                    f"buffer_load_dwordx4 v{GUA}, s[{sGU}:{sGU+3}], s67 offen lds"]
        n -= 9
        t, hf = divmod(n, 2)
        pre = [f"s_add_u32 m0, s42, {9216+1024*n}"]
        if t < 2:
            return pre + [f"s_mov_b32 s67, {64*t+hf*16*1152}", f"buffer_load_dwordx4 v{DNA}, s[{sD}:{sD+3}], s67 offen lds"]
        return pre + ["s_nop 0", f"buffer_load_dwordx4 v{DNA}, s[{sD}:{sD+3}], s{65+hf} offen lds"]

    xsel_dma = [f"s_add_u32 m0, s42, {15360}", "s_nop 0",
                f"buffer_load_dwordx4 v{XSA}, s[{sX}:{sX+3}], 0 offen lds"]

    A(m2b(0, 0))
    A("s_nop 15")
    A("s_nop 1")
    A(mm(0, 0, 0))
    A(mm(0, 0, 1))
    A("s_nop 10")
    pend = []
    pend += ["g0"] * 2 + ["cand"] + ["g1"] * nload(1)

    def wait_for(tag):
        last = max(i for i, t in enumerate(pend) if t == tag)
        n = len(pend) - 1 - last
        del pend[:last + 1]
        return f"s_waitcnt vmcnt({n})"

    for kt in range(16):
        for c in range(2):
            n = 2 * kt + c
            cur = S[c]
            E = [f"v_exp_f32 v{cur+i}, v{cur+i}" for i in range(32)]
            nxt = (kt, 1) if c == 0 else (kt + 1, 0)
            prv = (kt - 1, 1) if c == 0 else (kt, 0)
            has_next = n < 31
            ins = {}
            def at(p, l): ins.setdefault(p, []).extend(l if isinstance(l, list) else [l])
            if n > 0:
                at(1, sm(prv[0], prv[1], 1, 1))
            if c == 0:
                if kt + 2 <= 15:
                    at(1, group(kt + 2)); pend += [f"g{kt+2}"] * nload(kt + 2)
                if kt < 15:
                    at(1, moe_dma(kt)); pend += ["moe"]
                if kt == 2:
                    at(1, xsel_dma); pend += ["moe"]
            if c == 1 and has_next:
                at(4, wait_for(f"g{kt+1}"))
            if n == 0:
                at(12, wait_for("g0"))
            if has_next:
                at(4, m2b(*nxt))
                at(20, mm(nxt[0], nxt[1], 0))
                at(28, mm(nxt[0], nxt[1], 1))
            at(12, sm(kt, c, 0, 0))
            at(17, sm(kt, c, 0, 1))
            at(25, sm(kt, c, 1, 0))
            if n == 2:
                B = Asm()
                wave_top2_u32(B, CAND, TMP, 68, 69)
                B(f"""
                s_nop 0
                s_not_b32 s70, s68
                s_not_b32 s71, s69
                s_and_b32 s70, s70, 0x7ff
                s_and_b32 s71, s71, 0x7ff
                s_mul_i32 s70, s70, 1152
                s_mul_i32 s71, s71, 1152
                s_sub_u32 s71, s71, 512
                s_mul_i32 s72, s40, 288
                v_mov_b32 v{XSA}, s70
                v_mov_b32 v{TMP}, s71
                v_cmp_gt_u32 vcc, 32, v{LANE}
                s_nop 1
                v_cndmask_b32 v{XSA}, v{TMP}, v{XSA}, vcc
                v_add3_u32 v{XSA}, v{XSA}, v{L16}, s72
                """)
                p = -1
                tail = []
                for l in B.lines:
                    l = l.strip()
                    if l == "s_nop 1" and p + 2 <= 31:
                        p += 2
                    elif p + 2 > 31 or tail:
                        tail.append(l)
                    else:
                        at(p, l)
                at(31, tail)
            for i in range(32):
                A(E[i])
                for l in ins.get(i, []): A(l)
    A("s_nop 1")
    A(sm(15, 1, 1, 1))

    A.c("---- MoE gate/up partial for this wave's k quarter")
    A(f"""
    v_bfe_u32 v{T0}, v{LANE}, 2, 2
    v_lshrrev_b32 v{T0+1}, 5, v{LANE}
    v_lshl_add_u32 v{T0}, v{T0+1}, 3, v{T0}
    v_lshlrev_b32 v{T0}, 6, v{T0}
    v_bfe_u32 v{T0+2}, v{LANE}, 4, 1
    v_lshl_add_u32 v{T0}, v{T0+2}, 5, v{T0}
    v_and_b32 v{T0+2}, 3, v{LANE}
    v_lshl_add_u32 v{T0}, v{T0+2}, 3, v{T0}
    v_add_u32 v{T0}, s42, v{T0}
    v_bfe_u32 v{T0+2}, v{LANE}, 2, 1
    v_lshlrev_b32 v{T0+3}, 9, v{T0+2}
    v_lshl_add_u32 v{T0+3}, v{T0+1}, 4, v{T0+3}
    v_add_u32 v{T0+3}, s42, v{T0+3}
    s_lshl_b32 s12, s38, 7
    s_add_u32 s12, s12, {HS}
    v_lshlrev_b32 v{T0+4}, 6, v{T0+2}
    v_lshl_add_u32 v{T0+4}, v{T0+1}, 4, v{T0+4}
    v_add_u32 v{T0+4}, s12, v{T0+4}
    v_lshl_add_u32 v{T0+5}, v{LANE}, 1, s12
    v_lshlrev_b32 v{T0+6}, 2, v{LANE}
    s_lshl_b32 s12, s38, 8
    s_add_u32 s12, s12, {HP}
    v_add_u32 v{T0+7}, s12, v{T0+6}
    v_add_u32 v{T0+6}, {HP}, v{T0+6}
    v_add_u32 v{T0+8}, s42, v{L16}
    v_lshlrev_b32 v{T0+9}, 3, v{LANE}
    v_add_u32 v{T0+9}, s42, v{T0+9}
    s_waitcnt vmcnt(0)
    s_cmp_eq_u32 s64, 0
    s_cbranch_scc1 K2_nogu
    """)
    G = 128
    fr = [0, 8, 16, 24, 32, 40, 48, 56, 148]
    for u in range(9):
        A(f"ds_read_b128 {vr(fr[u],4)}, v{T0+3} offset:{15360+32*u}")
        A(f"ds_read_b64_tr_b16 {vr(fr[u]+4,2)}, v{T0}{off(1024*u)}")
        A(f"ds_read_b64_tr_b16 {vr(fr[u]+6,2)}, v{T0}{off(1024*u+256)}")
        if u >= 4:
            A("s_waitcnt lgkmcnt(12)")
            k = u - 4
            A(mfma(vr(G, 16), vr(fr[k], 4), vr(fr[k] + 4, 4), "0" if k == 0 else vr(G, 16)))
    for k in range(5, 9):
        A(f"s_waitcnt lgkmcnt({3*(8-k)})")
        A(mfma(vr(G, 16), vr(fr[k], 4), vr(fr[k] + 4, 4), vr(G, 16)))
    A("K2_nogu:")
    A.c("---- publish partial O tiles 0..2 (local tile 3 is this wave's own)")
    for t in range(3):
        A(f"ds_write_b128 v{T0+8}, {vr(O[t],4)}{off(2560*t)}")
        A(f"ds_write_b128 v{T0+8}, {vr(O[t]+4,4)}{off(2560*t+1024)}")
        A(f"ds_write_b64 v{T0+9}, {vr(O[t]+8,2)}{off(2560*t+2048)}")
    A("s_nop 2")
    A(f"ds_write_b32 v{T0+7}, v{G}")
    for t in range(3):
        A(f"v_xor_b32 v{T0+10+t}, {((t ^ 3) << 1) * WREG}, v{T0+8}")
        A(f"v_xor_b32 v{T0+13+t}, {((t ^ 3) << 1) * WREG}, v{T0+9}")
    A("s_waitcnt lgkmcnt(0)")
    A("s_barrier")
    for t in range(3):
        A(f"ds_read_b128 {vr(O[t],4)}, v{T0+10+t}{off(2560*t)}")
        A(f"ds_read_b128 {vr(O[t]+4,4)}, v{T0+10+t}{off(2560*t+1024)}")
        A(f"ds_read_b64 {vr(O[t]+8,2)}, v{T0+13+t}{off(2560*t+2048)}")
    A("s_cmp_eq_u32 s64, 0")
    A("s_cbranch_scc1 K2_nodown")
    A.c("---- MoE: h = silu(gate) * up, then this wave's w_down column tiles")
    for k in range(4):
        A(f"ds_read2st64_b32 {vr(2*k,2)}, v{T0+6} offset0:{2*k} offset1:{2*k+1}")
    A(f"""
    s_waitcnt lgkmcnt(0)
    v_pk_add_f32 v[0:1], v[0:1], v[2:3]
    v_pk_add_f32 v[4:5], v[4:5], v[6:7]
    v_pk_add_f32 v[0:1], v[0:1], v[4:5]
    v_mul_f32 v2, {0x80000000 | LOG2E}, v0
    v_exp_f32 v2, v2
    v_mul_f32 v0, v0, v1
    v_add_f32 v2, 1.0, v2
    v_rcp_f32 v2, v2
    s_nop 0
    v_mul_f32 v0, v0, v2
    v_cvt_pk_bf16_f32 v0, v0, v0
    ds_write_b16 v{T0+5}, v0
    """)
    for t in range(3):
        for s2 in range(2):
            for a in range(2):
                A(f"ds_read_b64_tr_b16 {vr(16+8*t+4*s2+2*a,2)}, v{T0} offset:{9216+2048*t+1024*s2+256*a}")
    A(f"ds_read_b128 v[8:11], v{T0+4}")
    A(f"ds_read_b128 v[12:15], v{T0+4} offset:32")
    A(f"""
    v_lshrrev_b32 v1, 5, v{LANE}
    v_and_b32 v2, 31, v{LANE}
    v_mul_u32_u24 v1, 2304, v1
    v_lshl_add_u32 v1, v2, 2, v1
    s_mul_i32 s12, s41, 4608
    s_add_u32 s12, s12, {YP}
    s_lshl_b32 s13, s38, 8
    s_add_u32 s13, s13, s12
    s_lshl_b32 s14, s39, 7
    s_add_u32 s14, s14, s12
    s_waitcnt lgkmcnt(0)
    """)
    Y = [128, 144, 160]
    for t in range(3):
        A(mfma(vr(Y[t], 16), "v[8:11]", vr(16 + 8 * t, 4), "0"))
        A(mfma(vr(Y[t], 16), "v[12:15]", vr(20 + 8 * t, 4), vr(Y[t], 16)))
    A("s_nop 7")
    A(f"buffer_store_dword v{Y[0]}, v1, {ws}, s13 offen")
    A("s_nop 0")
    A(f"buffer_store_dword v{Y[1]}, v1, {ws}, s13 offen offset:128")
    A("s_nop 0")
    A(f"buffer_store_dword v{Y[2]}, v1, {ws}, s14 offen offset:2048")
    A(f"""
    s_or_b32 s12, s2, s38
    s_cmp_lg_u32 s12, 0
    s_cbranch_scc1 K2_nodown
    v_mov_b32 v2, s68
    v_mov_b32 v3, s69
    v_mov_b32 v4, {TOP}
    buffer_store_dwordx2 v[2:3], v4, {ws}, 0 offen
    """)
    A("K2_nodown:")
    A("s_waitcnt lgkmcnt(0)")
    o = O[3]
    for i in range(5):
        A(f"v_pk_add_f32 {vr(O[0]+2*i,2)}, {vr(O[0]+2*i,2)}, {vr(O[1]+2*i,2)}")
        A(f"v_pk_add_f32 {vr(o+2*i,2)}, {vr(o+2*i,2)}, {vr(O[2]+2*i,2)}")
    for i in range(5):
        A(f"v_pk_add_f32 {vr(o+2*i,2)}, {vr(o+2*i,2)}, {vr(O[0]+2*i,2)}")
    A.c("safety check of the unshifted softmax: denominator in [2^-30, 2^60], numerators finite; else redo with the true max")
    A(f"""
    v_max3_f32 v0, abs(v{o}), abs(v{o+1}), abs(v{o+2})
    v_max3_f32 v1, abs(v{o+3}), abs(v{o+4}), abs(v{o+5})
    v_max3_f32 v2, abs(v{o+6}), abs(v{o+7}), abs(v{o+8})
    v_max3_f32 v0, v0, v1, v2
    v_cmp_gt_f32 vcc, {f32bits(2.0**120)}, v0
    s_mov_b32 s12, {f32bits(2.0**-30)}
    s_mov_b32 s13, {f32bits(2.0**60)}
    v_cmp_le_f32 s[14:15], s12, v{o+9}
    v_cmp_ge_f32 s[8:9], s13, v{o+9}
    s_and_b64 vcc, vcc, s[14:15]
    s_and_b64 vcc, vcc, s[8:9]
    s_cmp_eq_u64 vcc, exec
    s_cbranch_scc0 K2_slow
    """)
    A("K2_fin:")
    A(f"""
    v_rcp_f32 v0, v{o+9}
    s_lshl_b32 s12, s37, 3
    s_lshl_b32 s13, s39, 2
    s_add_u32 s12, s12, s13
    s_add_u32 s12, s12, s40
    s_mul_i32 s12, s12, 36864
    s_add_u32 s12, s12, {OB}
    s_lshl_b32 s13, s36, 10
    s_add_u32 s13, s13, s12
    s_lshr_b32 s14, s36, 2
    s_lshl_b32 s14, s14, 9
    s_add_u32 s12, s12, s14
    s_and_b32 s14, s36, 3
    s_lshl_b32 s14, s14, 2
    s_add_u32 s12, s12, s14
    s_add_u32 s12, s12, 32768
    v_mul_f32 v2, v{o+8}, v0
    v_mul_f32 v3, v{o+8}, v0
    """)
    for i in range(8):
        A(f"v_mul_f32 v{o+i}, v{o+i}, v0")
    A("v_permlane32_swap_b32 v2, v3")
    for i in range(4):
        A(f"v_cvt_pk_bf16_f32 v{4+i}, v{o+2*i}, v{o+2*i+1}")
    A(f"""
    v_cvt_pk_bf16_f32 v2, v2, v3
    v_and_b32 v3, 0x1ff, v{L16}
    buffer_store_dwordx4 v[4:7], v{L16}, {ws}, s13 offen
    buffer_store_dword v2, v3, {ws}, s12 offen
    """)
    A("K2_end:")
    A("s_endpgm")

    A.c("---- slow path: two passes over all keys with the true row maximum (own q tile)")
    A("K2_slow:")
    A(f"""
    s_lshr_b32 s12, s40, 1
    s_lshl_b32 s12, s12, 9
    s_and_b32 s13, s40, 1
    s_lshl_b32 s13, s13, 3
    s_or_b32 s12, s12, s13
    v_and_b32 v{T0}, 0x1ff, v{L16}
    s_add_u32 s12, s12, s60
    buffer_load_dwordx2 {vr(QE,2)}, v{T0}, {ws}, s12 offen
    buffer_load_dwordx4 {vr(QM,4)}, v{L16}, {ws}, s59 offen
    v_and_b32 v4, 31, v{LANE}
    v_or_b32 v5, 4, v4
    v_cmp_eq_u32 vcc, 21, v5
    v_mov_b32 v6, 0x3f803f80
    s_bitcmp0_b32 s36, 0
    v_cndmask_b32 v{VV[0]}, 0, v6, vcc
    s_cselect_b32 s12, -1, 0
    s_cselect_b32 s13, 0, -1
    """)
    for i in range(1, 8):
        A(f"v_mov_b32 v{VV[0]+i}, v{VV[0]}")
    for i in range(16):
        A(f"v_mov_b32 v{o+i}, 0")
    A(f"""
    v_mov_b32 v{T0+1}, 0xff800000
    s_waitcnt vmcnt(0)
    v_and_b32 v{QE}, s12, v{QE}
    v_and_b32 v{QE+1}, s13, v{QE+1}
    s_lshl_b32 s8, s40, 14
    s_sub_u32 s8, s{sK}, s8
    s_lshl_b32 s9, s40, 12
    s_sub_u32 s9, s{sKE}, s9
    s_mul_i32 s10, s40, {16*1152}
    s_sub_u32 s10, s{sV}, s10
    """)
    for pas in range(2):
        A("s_mov_b32 s11, 0")
        A(f"K2_slow{pas}:")
        A(f"""
        s_lshl_b32 s12, s11, 10
        s_add_u32 s12, s12, s8
        s_lshr_b32 s13, s11, 1
        s_lshl_b32 s13, s13, 9
        s_and_b32 s14, s11, 1
        s_lshl_b32 s14, s14, 3
        s_add_u32 s13, s13, s14
        s_add_u32 s13, s13, s9
        buffer_load_dwordx4 {vr(KM[0],4)}, v{L16}, {ws}, s12 offen
        buffer_load_dwordx2 {vr(KE[0],2)}, v{T0}, {ws}, s13 offen
        """)
        if pas:
            A(f"""
            s_mul_i32 s12, s11, 1152
            s_add_u32 s12, s12, s10
            s_mov_b64 exec, s[62:63]
            buffer_load_dwordx4 {vr(VV[0],4)}, v{VA}, {ws}, s12 offen
            buffer_load_dwordx4 {vr(VV[0]+4,4)}, v{VA}, {ws}, s12 offen offset:576
            s_mov_b64 exec, -1
            """)
        A(f"""
        s_waitcnt vmcnt(0)
        v_mfma_f32_32x32x4_2b_bf16 v[0:31], {vr(KE[0],2)}, {vr(QE,2)}, 0
        s_nop 15
        s_nop 3
        {mfma("v[0:15]", vr(KM[0],4), vr(QM,4), "v[0:15]")}
        s_nop 15
        """)
        if not pas:
            for i in range(8):
                A(f"v_max3_f32 v{T0+1}, v{T0+1}, v{2*i}, v{2*i+1}")
        else:
            for i in range(16):
                A(f"v_sub_f32 v{i}, v{i}, v{T0+1}")
            for i in range(16):
                A(f"v_exp_f32 v{i}, v{i}")
            A("s_nop 1")
            A(f"v_smfmac_f32_32x32x32_bf16 {vr(o,16)}, {vr(VV[0],4)}, v[0:7], v{IDX}")
            A(f"v_smfmac_f32_32x32x32_bf16 {vr(o,16)}, {vr(VV[0]+4,4)}, v[8:15], v{IDX}")
            A("s_nop 15")
        A(f"""
        s_add_u32 s11, s11, 1
        s_cmp_lt_u32 s11, 64
        s_cbranch_scc1 K2_slow{pas}
        """)
        if not pas:
            A(f"""
            v_mov_b32 v{T0+2}, v{T0+1}
            s_nop 1
            v_permlane32_swap_b32 v{T0+1}, v{T0+2}
            s_nop 1
            v_max_f32 v{T0+1}, v{T0+1}, v{T0+2}
            """)
    A("s_branch K2_fin")


def k3(A):
    kernel_head(A, "k3_kernel")
    sX, sWO, sWS, sO = 16, 20, 24, 28
    ws = f"s[{sWS}:{sWS+3}]"
    ACC, BX, F, XR, YT = 0, 32, 64, 80, 96
    LANE, L16, WM, WE, XA, GV, AW = 140, 141, 142, 143, 144, 146, 148
    T0 = 152
    YS = 73728
    A("s_cmp_ge_u32 s2, 144")
    A("s_cbranch_scc1 K3_end")
    srd(A, sWS, 88, WS_SIZE)
    srd(A, sWO, 16, 576 * 1152)
    srd(A, sX, 0, XB)
    srd(A, sO, 72, XB)
    A(f"""
    v_lshrrev_b32 v1, 6, v0
    v_and_b32 v{LANE}, 63, v0
    v_readfirstlane_b32 s38, v1
    v_lshlrev_b32 v{L16}, 4, v{LANE}
    s_and_b32 s3, s2, 7
    s_lshl_b32 s36, s3, 1
    s_bfe_u32 s4, s2, 0x10003
    s_add_u32 s36, s36, s4
    s_lshr_b32 s37, s2, 4
    s_lshl_b32 s39, s36, 2
    s_add_u32 s39, s39, s38
    """)
    A.c("s36 token block (128), s37 channel block (64), s38 wave, s39 token tile")
    A(f"""
    v_lshrrev_b32 v2, 3, v{LANE}
    v_and_b32 v3, 7, v{LANE}
    v_and_b32 v4, 2, v2
    v_xor_b32 v3, v3, v4
    s_lshl_b32 s4, s37, 7
    v_lshl_add_u32 v3, v3, 4, s4
    v_and_b32 v4, 4, v2
    v_add_u32 v4, v4, v2
    s_lshr_b32 s5, s38, 1
    s_and_b32 s6, s38, 1
    s_mul_i32 s7, s5, 18
    s_lshl_b32 s8, s6, 2
    s_add_u32 s7, s7, s8
    v_add_u32 v4, s7, v4
    v_mul_u32_u24 v4, 1152, v4
    v_add_u32 v{WM}, v4, v3
    v_lshrrev_b32 v4, 1, v2
    v_mul_u32_u24 v4, 18, v4
    v_and_b32 v5, 1, v2
    s_mul_i32 s7, s38, 72
    s_add_u32 s7, s7, 16
    v_add3_u32 v4, v4, v5, s7
    v_mul_u32_u24 v4, 1152, v4
    v_add_u32 v{WE}, v4, v3
    s_lshl_b32 s40, s38, 10
    s_mul_i32 s41, s39, 36864
    s_add_u32 s41, s41, {OB}
    s_waitcnt lgkmcnt(0)
    """)
    A(f"s_add_u32 s10, s{sWS}, {TOP}")
    A(f"s_addc_u32 s11, s{sWS+1}, 0")
    A("s_load_dwordx2 s[68:69], s[10:11], 0")

    def dma(u):
        A(f"s_add_u32 m0, s40, {4096*u}")
        if u < 16:
            A(f"s_mov_b32 s42, {36*u*1152}")
            A(f"buffer_load_dwordx4 v{WM}, s[{sWO}:{sWO+3}], s42 offen lds")
        else:
            A(f"s_mov_b32 s42, {18*16*(u-16)*1152}")
            A(f"buffer_load_dwordx4 v{WE}, s[{sWO}:{sWO+3}], s42 offen lds")

    def ldO(n):
        if n % 4 == 0:
            A(f"s_add_u32 s43, s41, {1024*n}")
        A(f"buffer_load_dwordx4 {ar(4*n,4)}, v{L16}, {ws}, s43 offen{off(1024*(n%4))}")

    for ch in range(3):
        for u in range(6 * ch, 6 * ch + 6): dma(u)
        for n in range(12 * ch, 12 * ch + 12): ldO(n)
        if ch == 0:
            A(f"""
            v_and_b32 v2, 31, v{LANE}
            s_lshl_b32 s5, s39, 5
            v_add_u32 v{T0}, s5, v2
            v_lshrrev_b32 v3, 5, v{LANE}
            v_mul_u32_u24 v4, 1152, v{T0}
            v_lshl_add_u32 v4, v3, 6, v4
            v_add_u32 v{XA}, s4, v4
            v_lshlrev_b32 v4, 2, v{T0}
            s_mov_b32 s5, {GB}
            buffer_load_dword v{GV}, v4, {ws}, s5 offen
            """)
            for u in range(4):
                A(f"buffer_load_dwordx4 {vr(XR+4*u,4)}, v{XA}, s[{sX}:{sX+3}], 0 offen{off(16*u)}")
    A(f"""
    v_bfe_u32 v2, v{LANE}, 2, 2
    v_lshl_add_u32 v4, v3, 3, v2
    v_lshlrev_b32 v4, 7, v4
    v_lshrrev_b32 v2, 1, v2
    v_lshl_add_u32 v4, v2, 5, v4
    v_and_b32 v2, 1, v{LANE}
    v_lshl_add_u32 v4, v2, 6, v4
    v_bfe_u32 v2, v{LANE}, 4, 1
    v_lshl_add_u32 v4, v2, 4, v4
    v_bfe_u32 v2, v{LANE}, 1, 1
    v_lshl_add_u32 v{AW}, v2, 3, v4
    v_xor_b32 v{AW+1}, 32, v{AW}
    v_add_u32 v{AW+2}, 65536, v{AW}
    v_add_u32 v{AW+3}, 65536, v{AW+1}
    s_waitcnt lgkmcnt(0)
    s_not_b32 s70, s68
    s_not_b32 s71, s69
    s_and_b32 s70, s70, 0x7ff
    s_and_b32 s71, s71, 0x7ff
    s_mov_b32 s5, 0xffff0000
    s_waitcnt vmcnt(36)
    """)
    for i in range(16):
        A(f"v_lshlrev_b32 v{BX+2*i}, 16, v{XR+i}")
        A(f"v_and_b32 v{BX+2*i+1}, s5, v{XR+i}")
    A.c("---- routed tokens inside this workgroup's token block: add sigmoid(r) * y")
    for sel in range(2):
        A(f"""
        s_lshr_b32 s6, s{70+sel}, 7
        s_cmp_lg_u32 s6, s36
        s_cbranch_scc1 K3_nosel{sel}
        v_lshrrev_b32 v2, 4, v{LANE}
        v_mul_u32_u24 v2, 4608, v2
        v_and_b32 v4, 0xff, v{L16}
        v_add_u32 v2, v2, v4
        s_mul_i32 s6, s38, {36*4608}
        s_lshl_b32 s7, s37, 8
        s_add_u32 s6, s6, s7
        s_add_u32 s6, s6, {YP + 2304*sel}
        s_waitcnt vmcnt(0)
        """)
        for u in range(9):
            A(f"buffer_load_dwordx4 {vr(YT+4*u,4)}, v2, {ws}, s6 offen")
            A(f"s_add_u32 s6, s6, {4*4608}")
        for u in range(1, 9):
            A(f"s_waitcnt vmcnt({8-u})")
            A(f"v_pk_add_f32 {vr(YT,2)}, {vr(YT,2)}, {vr(YT+4*u,2)}")
            A(f"v_pk_add_f32 {vr(YT+2,2)}, {vr(YT+2,2)}, {vr(YT+4*u+2,2)}")
        A(f"""
        s_add_u32 s6, s40, {YS + 4096*sel}
        v_add_u32 v2, s6, v{L16}
        ds_write_b128 v2, {vr(YT,4)}
        s_waitcnt lgkmcnt(0)
        s_barrier
        v_lshlrev_b32 v2, 2, v{LANE}
        v_add_u32 v2, {YS + 4096*sel}, v2
        """)
        for k in range(8):
            A(f"ds_read2st64_b32 {vr(YT+2*k,2)}, v2 offset0:{2*k} offset1:{2*k+1}")
        A(f"""
        s_ashr_i32 s6, s{68+sel}, 31
        s_not_b32 s6, s6
        s_or_b32 s6, s6, 0x80000000
        s_xor_b32 s6, s6, s{68+sel}
        s_and_b32 s6, s6, 0xffff0000
        v_mov_b32 v4, {0x80000000 | LOG2E}
        v_mul_f32 v4, s6, v4
        v_exp_f32 v4, v4
        s_nop 0
        v_add_f32 v4, 1.0, v4
        v_rcp_f32 v4, v4
        s_waitcnt lgkmcnt(0)
        """)
        for k in (4, 2, 1):
            for i in range(k):
                A(f"v_pk_add_f32 {vr(YT+2*i,2)}, {vr(YT+2*i,2)}, {vr(YT+2*(i+k),2)}")
        A(f"""
        v_add_f32 v{YT}, v{YT}, v{YT+1}
        v_mul_f32 v{YT}, v{YT}, v4
        s_lshl_b32 s6, s38, 8
        s_add_u32 s6, s6, {YS + 8192}
        v_lshl_add_u32 v2, v{LANE}, 2, s6
        ds_write_b32 v2, v{YT}
        v_lshl_add_u32 v2, v3, 7, s6
        """)
        for k in range(8):
            A(f"ds_read_b128 {vr(YT+4*k,4)}, v2{off(16*k)}")
        A(f"""
        v_cmp_eq_u32 vcc, s{70+sel}, v{T0}
        s_waitcnt lgkmcnt(0)
        s_and_saveexec_b64 s[8:9], vcc
        """)
        for i in range(16):
            A(f"v_pk_add_f32 {vr(BX+2*i,2)}, {vr(BX+2*i,2)}, {vr(YT+2*i,2)}")
        A("s_mov_b64 exec, s[8:9]")
        A(f"K3_nosel{sel}:")
    A(f"v_sub_f32 v{T0+2}, 1.0, v{GV}")
    A(f"v_mov_b32 v{GV+1}, v{GV}")
    A(f"v_mov_b32 v{T0+3}, v{T0+2}")
    for i in range(16):
        A(f"v_pk_mul_f32 {vr(BX+2*i,2)}, {vr(BX+2*i,2)}, {vr(T0+2,2)}")

    def reads(n):
        f = F + 8 * (n % 2)
        k, o = divmod(2048 * n, 65536)
        return [f"ds_read_b64_tr_b16 {vr(f+4*T+2*a,2)}, v{AW+2*k+T}{off(o+512*a)}" for T in range(2) for a in range(2)]

    A("s_barrier")
    for r in reads(0): A(r)
    for n in range(36):
        f = F + 8 * (n % 2)
        R = reads(n + 1) if n < 35 else []
        A("s_waitcnt lgkmcnt(2)")
        A(mfma(vr(ACC, 16), vr(f, 4), ar(4 * n, 4), "0" if n == 0 else vr(ACC, 16)))
        if n == 11:
            A("s_waitcnt vmcnt(18)")
            A("s_barrier")
        if n == 23:
            A("s_waitcnt vmcnt(0)")
            A("s_barrier")
        for r in R[0:2]: A(r)
        A(f"s_waitcnt lgkmcnt({2 if R else 0})")
        A(mfma(vr(ACC + 16, 16), vr(f + 4, 4), ar(4 * n, 4), "0" if n == 0 else vr(ACC + 16, 16)))
        for r in R[2:4]: A(r)
    A("s_nop 11")
    for u in range(4):
        for i in range(4):
            j = 8 * u + 2 * i
            A(f"v_pk_fma_f32 {vr(ACC+j,2)}, {vr(ACC+j,2)}, {vr(GV,2)}, {vr(BX+j,2)}")
        for i in range(4):
            j = 8 * u + 2 * i
            A(f"v_cvt_pk_bf16_f32 v{XR+4*u+i}, v{ACC+j}, v{ACC+j+1}")
        A(f"buffer_store_dwordx4 {vr(XR+4*u,4)}, v{XA}, s[{sO}:{sO+3}], 0 offen{off(16*u)}")
    A("K3_end:")
    A("s_endpgm")


def build():
    A = Asm()
    A.raw("; @launch kernel=k1_kernel grid=(256,1,1) block=(512,1,1) lds=163840")
    A.raw("; @launch kernel=k2_kernel grid=(256,1,1) block=(512,1,1) lds=134144")
    A.raw("; @launch kernel=k3_kernel grid=(144,1,1) block=(256,1,1) lds=82944")
    A('.amdgcn_target "amdgcn-amd-amdhsa--gfx950"')
    A(".text")
    k1(A); k2(A); k3(A)
    A('.section .rodata,"a"')
    A(".p2align 6")
    A.raw(descriptor("k1_kernel", 200, 200))
    A(".p2align 6")
    A.raw(descriptor("k2_kernel", 224, 224))
    A(".p2align 6")
    A.raw(descriptor("k3_kernel", 160 + 144, 160))
    return A.text()


if __name__ == "__main__":
    out = sys.argv[1] if len(sys.argv) > 1 else "gated_mix__mha_block__moe_arch_mod__prompt.s"
    open(out, "w").write(build())
```

```python
import sys, struct, math
sys.path.insert(0, "gen")
from asmlib import *

QK = 0x000000
EXT = 0x400000
VB = 0x480000
GB = 0x6C0000
RC = 0x6C2000
TOP = 0x6C3000
OB = 0x700000
YP = 0x940000
WS_SIZE = 0x1000000
XB = 2048 * 1152


def f32bits(x):
    return struct.unpack("<I", struct.pack("<f", x))[0]


QSCALE = f32bits(math.log2(math.e) / math.sqrt(18.0))
LOG2E = f32bits(math.log2(math.e))


DIAG = False
OPT = {}
class Stamp:
    def __init__(self, A, kidx):
        self.A, self.k = A, kidx
    def t(self, i):
        if DIAG:
            self.A(f"{'s_memrealtime' if OPT.get('rt') else 's_memtime'} s[{80+2*i}:{81+2*i}]")
            if i == 0: self.A("s_memrealtime s[92:93]")
    def flush(self, swave=38, v=250):
        if not DIAG: return
        A = self.A
        A(f"{'s_memrealtime' if OPT.get('rt') else 's_memtime'} s[90:91]")
        A("s_memrealtime s[94:95]")
        A("s_waitcnt lgkmcnt(0)")
        for i in range(8):
            A(f"v_mov_b32 v{v+(i%4)}, s{80+2*i}")
            if i % 4 == 3:
                A(f"s_lshl_b32 s96, s2, 4")
                A(f"s_add_u32 s96, s96, s{swave}")
                A(f"s_lshl_b32 s96, s96, 5")
                A(f"s_add_u32 s96, s96, {0xC00000 + self.k*0x40000 + (i//4)*16}")
                A(f"v_mov_b32 v{v+4}, s96")
                A(f"buffer_store_dwordx4 v[{v}:{v+3}], v{v+4}, s[24:27], 0 offen")
                A("s_nop 2")


def mfma(d, a, b, c):
    return f"v_mfma_f32_32x32x16_bf16 {d}, {a}, {b}, {c}"


def k1(A):
    kernel_head(A, "k1_kernel")
    sX, sW, sWS, sR, sG = 16, 20, 24, 28, 32
    A("s_cmp_ge_u32 s2, 256")
    A("s_cbranch_scc1 K1_end")
    ST = Stamp(A, 0); ST.t(0)
    srd(A, sX, 0, XB)
    srd(A, sW, 8, 576 * 3456)
    srd(A, sWS, 88, WS_SIZE)
    srd(A, sR, 32, 1152)
    srd(A, sG, 64, 1152)
    A("""
    v_lshrrev_b32 v1, 6, v0
    v_and_b32 v0, 63, v0
    v_readfirstlane_b32 s38, v1
    s_cmp_ge_u32 s2, 224
    s_cbranch_scc1 K1_rg
    s_and_b32 s3, s2, 3
    s_lshl_b32 s3, s3, 2
    s_bfe_u32 s4, s2, 0x20003
    s_add_u32 s36, s3, s4
    s_bfe_u32 s3, s2, 0x10002
    s_mul_i32 s3, s3, 7
    s_lshr_b32 s4, s2, 5
    s_add_u32 s37, s3, s4
    s_cmp_lt_u32 s38, 4
    s_cbranch_scc1 K1_compute
    """)
    A.c("---- loader waves: s36 = token block, s37 = channel block")
    A("""
    s_sub_u32 s38, s38, 4
    v_lshrrev_b32 v2, 3, v0
    v_and_b32 v3, 7, v0
    v_lshrrev_b32 v4, 4, v0
    s_lshl_b32 s3, s38, 2
    v_add_u32 v5, s3, v4
    v_and_b32 v6, 7, v5
    v_xor_b32 v3, v3, v6
    s_lshl_b32 s4, s36, 7
    s_lshl_b32 s5, s38, 3
    s_add_u32 s4, s4, s5
    v_add_u32 v2, s4, v2
    v_mul_u32_u24 v2, 1152, v2
    v_lshl_add_u32 v10, v3, 4, v2
    v_mul_u32_u24 v5, 3456, v5
    v_and_b32 v6, 15, v0
    v_lshlrev_b32 v7, 2, v4
    v_xor_b32 v6, v6, v7
    v_lshl_add_u32 v5, v6, 4, v5
    s_lshl_b32 s4, s37, 8
    v_add_u32 v11, s4, v5
    s_lshl_b32 s39, s38, 10
    s_waitcnt lgkmcnt(0)
    """)

    def issue(c):
        slot = c % 5
        for u in range(4):
            A(f"s_add_u32 m0, s39, {slot*32768 + 16384 + u*4096}")
            A(f"s_mov_b32 s40, {(64*c + 16*u)*3456}")
            A(f"buffer_load_dwordx4 v11, s[{sW}:{sW+3}], s40 offen lds")
            A(f"s_add_u32 m0, s39, {slot*32768 + u*4096}")
            A(f"s_mov_b32 s41, {c*128 + u*36864}")
            A(f"buffer_load_dwordx4 v10, s[{sX}:{sX+3}], s41 offen lds")

    PRE = 3
    issued = 0
    ST.t(1)
    for c in range(PRE):
        issue(c); issued += 1
    ST.t(2)
    for c in range(9):
        A(f"s_waitcnt vmcnt({8*(issued - c - 1)})")
        A("s_barrier")
        if issued < 9 and issued <= c + 3:
            issue(issued); issued += 1
    assert issued == 9
    if DIAG: A("s_add_u32 s38, s38, 4")
    ST.flush(v=20)
    A("s_endpgm")

    A.c("---- compute waves")
    A("K1_compute:")
    ACC, F, AX, AW, U = 64, 128, 160, 172, 180
    A("""
    s_and_b32 s40, s38, 1
    s_lshr_b32 s41, s38, 1
    v_lshrrev_b32 v1, 5, v0
    v_and_b32 v2, 31, v0
    v_and_b32 v3, 0x13, v2
    v_and_b32 v4, 4, v2
    v_lshl_or_b32 v3, v4, 1, v3
    v_and_b32 v4, 8, v2
    v_lshrrev_b32 v4, 1, v4
    v_or_b32 v3, v3, v4
    s_cmp_ge_u32 s37, 9
    s_cselect_b64 vcc, -1, 0
    v_cndmask_b32 v3, v2, v3, vcc
    v_bfe_u32 v4, v3, 1, 3
    v_xor_b32 v4, v4, v1
    s_lshl_b32 s3, s40, 6
    v_add_u32 v3, s3, v3
    v_lshlrev_b32 v3, 7, v3
    """)
    A(f"v_lshl_add_u32 v{AX}, v4, 4, v3")
    for s in range(1, 4):
        A(f"v_xor_b32 v{AX+s}, {s << 5}, v{AX}")
    A("""
    v_bfe_u32 v3, v0, 2, 2
    v_lshl_add_u32 v4, v1, 3, v3
    v_lshlrev_b32 v4, 8, v4
    s_lshl_b32 s3, s41, 1
    v_xor_b32 v3, s3, v3
    v_lshl_add_u32 v4, v3, 6, v4
    v_bfe_u32 v3, v0, 4, 1
    v_lshl_add_u32 v4, v3, 5, v4
    v_and_b32 v3, 3, v0
    v_lshl_add_u32 v4, v3, 3, v4
    """)
    A(f"v_add_u32 v{AW}, 16384, v4")
    A(f"v_xor_b32 v{AW+1}, 64, v{AW}")
    for k in (1, 2):
        for s in range(4):
            A(f"v_add_u32 v{AX+4*k+s}, {65536*k}, v{AX+s}")
        for s in range(2):
            A(f"v_add_u32 v{AW+2*k+s}, {65536*k}, v{AW+s}")
    A("s_waitcnt lgkmcnt(0)")
    A("s_cmp_ge_u32 s37, 9")
    A("s_cbranch_scc1 K1_v")

    def reads(n):
        c, s = divmod(n, 4)
        slot = c % 5
        k, o = divmod(slot, 2)
        o *= 32768
        f = F + 16 * (n % 2)
        xa = f"ds_read_b128 {vr(f,4)}, v{AX+4*k+s}{off(o)}"
        xb = f"ds_read_b128 {vr(f+4,4)}, v{AX+4*k+s}{off(o+4096)}"
        w = [[f"ds_read_b64_tr_b16 {vr(f+8+4*T+2*a,2)}, v{AW+2*k+T}{off(o+(16*s+4*a)*256)}" for a in range(2)] for T in range(2)]
        return [xa, w[0][0], w[0][1], w[1][0], w[1][1], xb]

    def mainloop(vmode):
        ST.t(1)
        A("s_barrier")
        ST.t(2)
        for r in reads(0):
            A(r)
        for n in range(36):
            if n == 16: ST.t(3)
            f = F + 16 * (n % 2)
            R = reads(n + 1) if n < 35 else []

            def M(a, T):
                d = vr(ACC + 16 * (2 * a + T), 16)
                x, w = vr(f + 4 * a, 4), vr(f + 8 + 4 * T, 4)
                c = "0" if n == 0 else d
                A(mfma(d, x, w, c) if vmode else mfma(d, w, x, c))
            A("s_waitcnt lgkmcnt(3)")
            M(0, 0)
            if n % 4 == 3 and n < 35:
                A("s_barrier")
            for r in R[0:3]: A(r)
            A(f"s_waitcnt lgkmcnt({4 if R else 1})")
            M(0, 1)
            for r in R[3:5]: A(r)
            A(f"s_waitcnt lgkmcnt({5 if R else 0})")
            M(1, 0)
            for r in R[5:6]: A(r)
            M(1, 1)
        A("s_nop 9")
        ST.t(4)

    A.c("---- q/k blocks: D = W^T x^T (lane = token, registers = channels)")
    A("""
    s_lshl_b32 s3, s36, 2
    s_lshl_b32 s4, s40, 1
    s_add_u32 s3, s3, s4
    s_lshl_b32 s3, s3, 10
    v_lshl_add_u32 v5, v2, 4, s3
    s_lshl_b32 s3, s36, 10
    s_lshl_b32 s4, s40, 9
    s_add_u32 s3, s3, s4
    """)
    A(f"s_add_u32 s3, s3, {EXT}")
    A("""
    v_lshl_add_u32 v6, v2, 4, s3
    s_lshl_b32 s3, s37, 5
    s_lshl_b32 s4, s41, 4
    s_add_u32 s3, s3, s4
    v_add_u32 v7, s3, v1
    v_mov_b32 v8, 1024
    s_cmp_lt_u32 s3, 144
    """)
    A(f"s_cselect_b32 s42, {QSCALE}, 1.0")
    A("s_mov_b32 s43, s42")
    for q in range(8):
        A(f"""
        v_add_u32 v9, {2*q}, v7
        v_mul_u32_u24 v10, 7282, v9
        v_lshrrev_b32 v10, 16, v10
        v_mul_u32_u24 v11, 9, v10
        v_sub_u32 v11, v9, v11
        v_cmp_lt_u32 vcc, 4, v11
        v_lshl_add_u32 v15, v10, 14, v6
        s_nop 0
        v_cndmask_b32_e64 v12, 0, 1, vcc
        v_mad_i32_i24 v13, v12, -5, v11
        v_lshl_add_u32 v12, v10, 1, v12
        v_lshl_add_u32 v12, v12, 16, v5
        v_cmp_eq_u32 vcc, 4, v11
        v_lshrrev_b32 v14, 1, v13
        v_lshl_add_u32 v12, v14, 9, v12
        v_and_b32 v14, 1, v13
        v_lshl_add_u32 v12, v14, 3, v12
        v_cndmask_b32 v{U+q}, v12, v15, vcc
        v_cndmask_b32_e64 v14, v8, 8, vcc
        v_add_u32 v{U+8+q}, v{U+q}, v14
        """)
    mainloop(False)
    for a in range(2):
        for T in range(2):
            d = ACC + 16 * (2 * a + T)
            p = F + 8 * (2 * a + T)
            for i in range(8):
                A(f"v_pk_mul_f32 {vr(d+2*i,2)}, {vr(d+2*i,2)}, s[42:43]")
            for i in range(8):
                A(f"v_cvt_pk_bf16_f32 v{p+i}, v{d+2*i}, v{d+2*i+1}")
            for i in range(4):
                A(f"buffer_store_dwordx2 {vr(p+2*i,2)}, v{U+8*a+4*T+i}, s[{sWS}:{sWS+3}], 0 offen")
    if DIAG: A("s_waitcnt vmcnt(0)")
    ST.flush(v=20)
    A("s_endpgm")

    A.c("---- v blocks: D = x W (lane = channel, registers = tokens)")
    A("K1_v:")
    A("""
    s_sub_u32 s3, s37, 9
    s_lshl_b32 s3, s3, 7
    s_lshl_b32 s4, s41, 6
    s_add_u32 s44, s3, s4
    s_lshl_b32 s3, s36, 2
    s_lshl_b32 s4, s40, 1
    s_add_u32 s3, s3, s4
    s_mul_i32 s3, s3, 1152
    """)
    A(f"s_add_u32 s3, s3, {VB}")
    A("s_mov_b32 s4, 73728")
    A("v_mul_u32_u24 v5, 288, v1")
    A("v_add_u32 v5, s3, v5")
    for T in range(2):
        A(f"""
        v_add_u32 v9, s44, v2
        v_add_u32 v9, {32*T}, v9
        v_mul_u32_u24 v10, 3641, v9
        v_lshrrev_b32 v10, 16, v10
        v_mul_u32_u24 v11, 18, v10
        v_sub_u32 v11, v9, v11
        v_mad_u32_u24 v12, v10, s4, v5
        v_lshl_add_u32 v{U+T}, v11, 4, v12
        """)
    mainloop(True)
    A("s_cmp_ge_u32 s44, 576")
    A("s_cbranch_scc1 K1_end")
    for a in range(2):
        for T in range(2):
            d = ACC + 16 * (2 * a + T)
            p = F + 8 * (2 * a + T)
            for i in range(8):
                A(f"v_cvt_pk_bf16_f32 v{p+i}, v{d+2*i}, v{d+2*i+1}")
            for i2 in range(2):
                A(f"buffer_store_dwordx4 {vr(p+4*i2,4)}, v{U+T}, s[{sWS}:{sWS+3}], 0 offen{off(1152*a+576*i2)}")
    if DIAG: A("s_waitcnt vmcnt(0)")
    ST.flush(v=20)
    A("s_endpgm")

    A.c("---- router score + mix gate for 64 tokens per workgroup")
    A("K1_rg:")
    A("""
    s_sub_u32 s36, s2, 224
    s_lshl_b32 s3, s36, 6
    s_lshl_b32 s4, s38, 3
    s_add_u32 s3, s3, s4
    v_lshrrev_b32 v1, 3, v0
    v_add_u32 v1, s3, v1
    v_and_b32 v2, 7, v0
    v_lshlrev_b32 v2, 4, v2
    v_mul_u32_u24 v3, 1152, v1
    v_add_u32 v3, v3, v2
    s_waitcnt lgkmcnt(0)
    """)
    for j in range(9):
        A(f"buffer_load_dwordx4 {vr(16+4*j,4)}, v3, s[{sX}:{sX+3}], 0 offen{off(128*j)}")
        A(f"buffer_load_dwordx4 {vr(52+4*j,4)}, v2, s[{sR}:{sR+3}], 0 offen{off(128*j)}")
        A(f"buffer_load_dwordx4 {vr(88+4*j,4)}, v2, s[{sG}:{sG+3}], 0 offen{off(128*j)}")
    A("v_mov_b32 v4, 0")
    A("v_mov_b32 v5, 0")
    A("s_mov_b32 s5, 0xffff0000")
    for j in range(9):
        A(f"s_waitcnt vmcnt({3*(8-j)})")
        for i in range(4):
            x, r, g = 16 + 4 * j + i, 52 + 4 * j + i, 88 + 4 * j + i
            A(f"""
            v_lshlrev_b32 v6, 16, v{x}
            v_lshlrev_b32 v7, 16, v{r}
            v_lshlrev_b32 v8, 16, v{g}
            v_fmac_f32 v4, v6, v7
            v_fmac_f32 v5, v6, v8
            v_and_b32 v6, s5, v{x}
            v_and_b32 v7, s5, v{r}
            v_and_b32 v8, s5, v{g}
            v_fmac_f32 v4, v6, v7
            v_fmac_f32 v5, v6, v8
            """)
    for pat in ("quad_perm:[1,0,3,2]", "quad_perm:[2,3,0,1]", "row_half_mirror"):
        A("s_nop 1")
        A(f"v_add_f32_dpp v4, v4, v4 {pat} row_mask:0xf bank_mask:0xf")
        A(f"v_add_f32_dpp v5, v5, v5 {pat} row_mask:0xf bank_mask:0xf")
    A(f"""
    v_cvt_pk_bf16_f32 v6, v5, v4
    v_lshlrev_b32 v5, 16, v6
    v_mul_f32 v5, {0x80000000 | LOG2E}, v5
    v_exp_f32 v5, v5
    v_ashrrev_i32 v7, 31, v6
    v_add_f32 v5, 1.0, v5
    v_rcp_f32 v5, v5
    v_or_b32 v7, 0x80000000, v7
    v_xor_b32 v6, v6, v7
    v_and_b32 v6, s5, v6
    v_sub_u32 v7, 0xffff, v1
    v_or_b32 v6, v6, v7
    v_cvt_pk_bf16_f32 v5, v5, v5
    v_and_b32 v5, s5, v5
    v_lshlrev_b32 v7, 2, v1
    v_and_b32 v8, 0xff, v7
    ds_write_b32 v8, v6
    s_mov_b32 s3, {GB}
    buffer_store_dword v5, v7, s[{sWS}:{sWS+3}], s3 offen
    s_waitcnt lgkmcnt(0)
    s_barrier
    s_cmp_lg_u32 s38, 0
    s_cbranch_scc1 K1_end
    v_lshlrev_b32 v8, 2, v0
    ds_read_b32 v6, v8
    s_waitcnt lgkmcnt(0)
    """)
    wave_top2_u32(A, 6, 7, 4, 5)
    A(f"""
    s_lshl_b32 s3, s36, 3
    s_add_u32 s3, s3, {RC}
    v_mov_b32 v8, 0
    v_mov_b32 v4, s4
    v_mov_b32 v5, s5
    buffer_store_dwordx2 v[4:5], v8, s[{sWS}:{sWS+3}], s3 offen
    """)
    if DIAG: A("s_waitcnt vmcnt(0)")
    ST.flush(v=20)
    A("K1_end:")
    A("s_endpgm")


def k2(A):
    kernel_head(A, "k2_kernel")
    sX, sGU, sWS, sD = 16, 20, 24, 28
    S = [0, 32]
    O = [64, 80, 96, 112]
    QM, QE = 128, 144
    KM = [148, 152, 156]
    VV = [160, 168, 176]
    KE = [184, 188]
    IDX, L16, VA = 192, 193, 194
    LANE, CAND, TMP, GUA, DNA, XSA = 195, 196, 197, 198, 199, 200
    T0 = 202
    sK, sV, sKE = 44, 48, 52
    WREG = 16384
    HP = 8 * WREG
    HS = HP + 2048
    ws = f"s[{sWS}:{sWS+3}]"
    A("s_cmp_ge_u32 s2, 256")
    A("s_cbranch_scc1 K2_end")
    ST = Stamp(A, 1); ST.t(0)
    if -1 in OPT.get("prio", {}): A(f"s_setprio {OPT['prio'][-1]}")
    srd(A, sWS, 88, WS_SIZE)
    srd(A, sX, 0, XB)
    A("s_load_dwordx4 s[4:7], s[0:1], 40")
    srd(A, sD, 56, 4608 * 1152)
    A(f"""
    s_mov_b32 s{sGU+3}, 0x00020000
    v_lshrrev_b32 v1, 6, v0
    v_and_b32 v{LANE}, 63, v0
    v_readfirstlane_b32 s38, v1
    v_lshlrev_b32 v{L16}, 4, v{LANE}
    s_and_b32 s3, s2, 7
    s_lshl_b32 s36, s3, 2
    s_bfe_u32 s8, s2, 0x20003
    s_add_u32 s36, s36, s8
    s_lshr_b32 s37, s2, 5
    s_and_b32 s39, s38, 1
    s_lshr_b32 s40, s38, 1
    """)
    A.c("s36 head, s37 q block, s38 wave, s39 q group, s40 key quarter")
    A(f"""
    s_lshl_b32 s8, s36, 16
    s_lshl_b32 s9, s37, 1
    s_add_u32 s9, s9, s39
    s_lshl_b32 s10, s9, 12
    s_add_u32 s10, s10, s8
    s_xor_b32 s11, s40, 3
    """)
    for t in range(4):
        A(f"s_xor_b32 s12, s11, {t}")
        A(f"s_lshl_b32 s12, s12, 10")
        A(f"s_add_u32 s{56+t}, s10, s12")
    A(f"""
    s_lshr_b32 s12, s36, 1
    s_lshl_b32 s12, s12, 14
    s_add_u32 s12, s12, {EXT}
    s_lshl_b32 s13, s9, 10
    s_add_u32 s60, s12, s13
    s_lshl_b32 s13, s40, 12
    s_add_u32 s12, s12, s13
    s_add_u32 s{sKE}, s12, {16*16384}
    s_lshl_b32 s13, s40, 14
    s_add_u32 s13, s13, s8
    s_add_u32 s{sK}, s13, {32*65536}
    s_mul_i32 s12, s36, 73728
    s_mul_i32 s13, s40, {16*1152}
    s_add_u32 s12, s12, s13
    s_add_u32 s{sV}, s12, {VB}
    """)
    for g in range(1, 4):
        A(f"s_add_u32 s{sK+g}, s{sK}, {4096*g}")
        A(f"s_add_u32 s{sV+g}, s{sV}, {4608*g}")
    A.c("q ext address: half hh of pair c reads actual tile (c + 2hh) ^ 3 ^ kq")
    A(f"""
    s_lshr_b32 s12, s11, 1
    s_lshl_b32 s12, s12, 9
    s_and_b32 s13, s11, 1
    s_lshl_b32 s13, s13, 3
    s_or_b32 s12, s12, s13
    v_xor_b32 v2, s12, v{L16}
    v_xor_b32 v3, 8, v2
    v_and_b32 v4, 31, v{LANE}
    v_min_u32 v5, 17, v4
    v_lshrrev_b32 v6, 5, v{LANE}
    v_mul_u32_u24 v6, 288, v6
    v_lshl_add_u32 v{VA}, v5, 4, v6
    v_lshlrev_b32 v7, 2, v{LANE}
    s_mov_b32 s62, 0x0011ffff
    s_mov_b32 s63, 0x0011ffff
    s_mov_b32 s61, {RC}
    s_waitcnt lgkmcnt(0)
    """)

    def ldK(j):
        return [f"buffer_load_dwordx4 {vr(KM[j%3],4)}, v{L16}, {ws}, s{sK+j//4} offen{off(1024*(j%4))}"]

    def ldV(j):
        if OPT.get("noexec"):
            return [f"buffer_load_dwordx4 {vr(VV[j%3]+4*i,4)}, v{VA}, {ws}, s{sV+j//4} offen{off(1152*(j%4)+576*i)}" for i in range(2)]
        return ["s_mov_b64 exec, s[62:63]"] + \
            [f"buffer_load_dwordx4 {vr(VV[j%3]+4*i,4)}, v{VA}, {ws}, s{sV+j//4} offen{off(1152*(j%4)+576*i)}" for i in range(2)] + \
            ["s_mov_b64 exec, -1"]

    def ldKE(g):
        return [f"buffer_load_dwordx4 {vr(KE[g%2],4)}, v{L16}, {ws}, s{sKE} offen{off(1024*g)}"]

    def group(j):
        return (ldKE(j // 4) if j % 4 == 0 else []) + ldK(j) + ldV(j)

    def nload(j):
        return 0 if j > 15 else 3 + (j % 4 == 0)

    A(f"buffer_load_dwordx2 {vr(QE,2)}, v2, {ws}, s60 offen")
    A(f"buffer_load_dwordx2 {vr(QE+2,2)}, v3, {ws}, s60 offen")
    for t in range(4):
        A(f"buffer_load_dwordx4 {vr(QM+4*t,4)}, v{L16}, {ws}, s{56+t} offen")
    A.c("preset V registers: rows 17 and 21 are the all-ones rows that produce the softmax denominator")
    A(f"""
    v_or_b32 v5, 4, v4
    v_cmp_eq_u32 vcc, 21, v5
    v_mov_b32 v6, 0x3f803f80
    v_mov_b32 v{IDX}, 0xdddddddd
    v_cndmask_b32 v{VV[0]}, 0, v6, vcc
    """)
    for i in range(1, 24):
        A(f"v_mov_b32 v{VV[0]+i}, v{VV[0]}")
    for l in group(0): A(l)
    A(f"buffer_load_dword v{CAND}, v7, {ws}, s61 offen")
    for l in group(1): A(l)
    A.c("MoE: f block s41 (32 columns), only for workgroups with (id >> 3) < 18")
    A(f"""
    s_lshr_b32 s12, s2, 3
    s_mul_i32 s41, s3, 18
    s_add_u32 s41, s41, s12
    s_cmp_lt_u32 s12, 18
    s_cselect_b32 s{sGU+2}, {576*9216}, 0
    s_cselect_b32 s{sD+2}, {4608*1152}, 0
    s_cselect_b32 s64, 1, 0
    s_cmp_eq_u32 s39, 0
    s_cselect_b32 s{sGU}, s4, s6
    s_cselect_b32 s{sGU+1}, s5, s7
    s_lshl_b32 s42, s38, 14
    v_lshrrev_b32 v8, 2, v{LANE}
    v_and_b32 v9, 3, v{LANE}
    v_lshlrev_b32 v9, 4, v9
    s_mul_i32 s12, s40, 144
    v_add_u32 v10, s12, v8
    v_mul_u32_u24 v10, 9216, v10
    s_lshl_b32 s12, s41, 6
    v_add3_u32 v{GUA}, v10, v9, s12
    s_lshl_b32 s12, s41, 5
    v_add_u32 v10, s12, v8
    v_mul_u32_u24 v10, 1152, v10
    s_lshl_b32 s12, s38, 7
    v_add3_u32 v{DNA}, v10, v9, s12
    s_lshl_b32 s13, s39, 6
    s_add_u32 s13, s13, 1024
    s_sub_u32 s65, s13, s12
    s_add_u32 s66, s65, {16*1152}
    s_bitcmp0_b32 s36, 0
    s_cselect_b32 s12, -1, 0
    s_cselect_b32 s13, 0, -1
    """)
    for i in range(64):
        A(f"v_mov_b32 v{O[0]+i}, 0")
    A(f"s_waitcnt vmcnt({nload(1)+1+3+4})")
    A(f"""
    v_and_b32 v{QE}, s12, v{QE}
    v_and_b32 v{QE+1}, s13, v{QE+1}
    v_and_b32 v{QE+2}, s12, v{QE+2}
    v_and_b32 v{QE+3}, s13, v{QE+3}
    s_waitcnt vmcnt({nload(1)+1+2})
    """)

    def m2b(kt, c):
        u = kt % 4
        return (f"v_mfma_f32_32x32x4_2b_bf16 {vr(S[c],32)}, {vr(KE[(kt//4)%2]+2*(u%2),2)}, {vr(QE+2*c,2)}, 0"
                f" cbsz:1 abid:{u//2}")

    def mm(kt, c, b):
        d = vr(S[c] + 16 * b, 16)
        return mfma(d, vr(KM[kt % 3], 4), vr(QM + 4 * (c + 2 * b), 4), d)

    def sm(kt, c, b, i):
        return (f"v_smfmac_f32_32x32x32_bf16 {vr(O[c+2*b],16)}, {vr(VV[kt%3]+4*i,4)}, "
                f"{vr(S[c]+16*b+8*i,8)}, v{IDX}")

    def moe_dma(n):
        if n < 9:
            return [f"s_add_u32 m0, s42, {1024*n}", f"s_mov_b32 s67, {n*16*9216}",
                    f"buffer_load_dwordx4 v{GUA}, s[{sGU}:{sGU+3}], s67 offen lds"]
        n -= 9
        t, hf = divmod(n, 2)
        pre = [f"s_add_u32 m0, s42, {9216+1024*n}"]
        if t < 2:
            return pre + [f"s_mov_b32 s67, {64*t+hf*16*1152}", f"buffer_load_dwordx4 v{DNA}, s[{sD}:{sD+3}], s67 offen lds"]
        return pre + ["s_nop 0", f"buffer_load_dwordx4 v{DNA}, s[{sD}:{sD+3}], s{65+hf} offen lds"]

    xsel_dma = [f"s_add_u32 m0, s42, {15360}", "s_nop 0",
                f"buffer_load_dwordx4 v{XSA}, s[{sX}:{sX+3}], 0 offen lds"]

    ST.t(1)
    A(m2b(0, 0))
    A("s_nop 15")
    A("s_nop 1")
    A(mm(0, 0, 0))
    A(mm(0, 0, 1))
    A("s_nop 10")
    pend = []
    pend += ["g0"] * 2 + ["cand"] + ["g1"] * nload(1)

    def wait_for(tag):
        last = max(i for i, t in enumerate(pend) if t == tag)
        n = len(pend) - 1 - last
        del pend[:last + 1]
        return f"s_waitcnt vmcnt({n})"

    for kt in range(16):
        for c in range(2):
            n = 2 * kt + c
            cur = S[c]
            E = [f"v_exp_f32 v{cur+i}, v{cur+i}" for i in range(32)]
            nxt = (kt, 1) if c == 0 else (kt + 1, 0)
            prv = (kt - 1, 1) if c == 0 else (kt, 0)
            has_next = n < 31
            ins = {}
            def at(p, l): ins.setdefault(p, []).extend(l if isinstance(l, list) else [l])
            if n > 0:
                at(1, sm(prv[0], prv[1], 1, 1))
            if n in OPT.get("prio", {}):
                at(0, f"s_setprio {OPT['prio'][n]}")
            if c == 0:
                if kt + 2 <= 15:
                    at(1, group(kt + 2)); pend += [f"g{kt+2}"] * nload(kt + 2)
                if kt < 15 and not OPT.get("nomoe"):
                    at(1, moe_dma(kt)); pend += ["moe"]
                if kt == 2:
                    at(1, xsel_dma); pend += ["moe"]
            if c == 1 and has_next:
                at(4, wait_for(f"g{kt+1}"))
            if n == 0:
                at(12, wait_for("g0"))
            if has_next:
                at(4, m2b(*nxt))
                at(20, mm(nxt[0], nxt[1], 0))
                at(28, mm(nxt[0], nxt[1], 1))
            at(12, sm(kt, c, 0, 0))
            at(17, sm(kt, c, 0, 1))
            at(25, sm(kt, c, 1, 0))
            if n == 2:
                B = Asm()
                wave_top2_u32(B, CAND, TMP, 68, 69)
                B(f"""
                s_nop 0
                s_not_b32 s70, s68
                s_not_b32 s71, s69
                s_and_b32 s70, s70, 0x7ff
                s_and_b32 s71, s71, 0x7ff
                s_mul_i32 s70, s70, 1152
                s_mul_i32 s71, s71, 1152
                s_sub_u32 s71, s71, 512
                s_mul_i32 s72, s40, 288
                v_mov_b32 v{XSA}, s70
                v_mov_b32 v{TMP}, s71
                v_cmp_gt_u32 vcc, 32, v{LANE}
                s_nop 1
                v_cndmask_b32 v{XSA}, v{TMP}, v{XSA}, vcc
                v_add3_u32 v{XSA}, v{XSA}, v{L16}, s72
                """)
                p = -1
                tail = []
                for l in B.lines:
                    l = l.strip()
                    if l == "s_nop 1" and p + 2 <= 31:
                        p += 2
                    elif p + 2 > 31 or tail:
                        tail.append(l)
                    else:
                        at(p, l)
                at(31, tail)
            for i in range(32):
                A(E[i])
                for l in ins.get(i, []): A(l)
    A("s_nop 1")
    A(sm(15, 1, 1, 1))
    ST.t(2)

    A.c("---- MoE gate/up partial for this wave's k quarter")
    A(f"""
    v_bfe_u32 v{T0}, v{LANE}, 2, 2
    v_lshrrev_b32 v{T0+1}, 5, v{LANE}
    v_lshl_add_u32 v{T0}, v{T0+1}, 3, v{T0}
    v_lshlrev_b32 v{T0}, 6, v{T0}
    v_bfe_u32 v{T0+2}, v{LANE}, 4, 1
    v_lshl_add_u32 v{T0}, v{T0+2}, 5, v{T0}
    v_and_b32 v{T0+2}, 3, v{LANE}
    v_lshl_add_u32 v{T0}, v{T0+2}, 3, v{T0}
    v_add_u32 v{T0}, s42, v{T0}
    v_bfe_u32 v{T0+2}, v{LANE}, 2, 1
    v_lshlrev_b32 v{T0+3}, 9, v{T0+2}
    v_lshl_add_u32 v{T0+3}, v{T0+1}, 4, v{T0+3}
    v_add_u32 v{T0+3}, s42, v{T0+3}
    s_lshl_b32 s12, s38, 7
    s_add_u32 s12, s12, {HS}
    v_lshlrev_b32 v{T0+4}, 6, v{T0+2}
    v_lshl_add_u32 v{T0+4}, v{T0+1}, 4, v{T0+4}
    v_add_u32 v{T0+4}, s12, v{T0+4}
    v_lshl_add_u32 v{T0+5}, v{LANE}, 1, s12
    v_lshlrev_b32 v{T0+6}, 2, v{LANE}
    s_lshl_b32 s12, s38, 8
    s_add_u32 s12, s12, {HP}
    v_add_u32 v{T0+7}, s12, v{T0+6}
    v_add_u32 v{T0+6}, {HP}, v{T0+6}
    v_add_u32 v{T0+8}, s42, v{L16}
    v_lshlrev_b32 v{T0+9}, 3, v{LANE}
    v_add_u32 v{T0+9}, s42, v{T0+9}
    s_waitcnt vmcnt(0)
    s_cmp_eq_u32 s64, 0
    s_cbranch_scc1 K2_nogu
    """)
    G = 128
    fr = [0, 8, 16, 24, 32, 40, 48, 56, 148]
    for u in range(9):
        A(f"ds_read_b128 {vr(fr[u],4)}, v{T0+3} offset:{15360+32*u}")
        A(f"ds_read_b64_tr_b16 {vr(fr[u]+4,2)}, v{T0}{off(1024*u)}")
        A(f"ds_read_b64_tr_b16 {vr(fr[u]+6,2)}, v{T0}{off(1024*u+256)}")
        if u >= 4:
            A("s_waitcnt lgkmcnt(12)")
            k = u - 4
            A(mfma(vr(G, 16), vr(fr[k], 4), vr(fr[k] + 4, 4), "0" if k == 0 else vr(G, 16)))
    for k in range(5, 9):
        A(f"s_waitcnt lgkmcnt({3*(8-k)})")
        A(mfma(vr(G, 16), vr(fr[k], 4), vr(fr[k] + 4, 4), vr(G, 16)))
    A("K2_nogu:")
    A.c("---- publish partial O tiles 0..2 (local tile 3 is this wave's own)")
    for t in range(3):
        A(f"ds_write_b128 v{T0+8}, {vr(O[t],4)}{off(2560*t)}")
        A(f"ds_write_b128 v{T0+8}, {vr(O[t]+4,4)}{off(2560*t+1024)}")
        A(f"ds_write_b64 v{T0+9}, {vr(O[t]+8,2)}{off(2560*t+2048)}")
    A("s_nop 2")
    A(f"ds_write_b32 v{T0+7}, v{G}")
    for t in range(3):
        A(f"v_xor_b32 v{T0+10+t}, {((t ^ 3) << 1) * WREG}, v{T0+8}")
        A(f"v_xor_b32 v{T0+13+t}, {((t ^ 3) << 1) * WREG}, v{T0+9}")
    ST.t(3)
    A("s_waitcnt lgkmcnt(0)")
    A("s_barrier")
    ST.t(4)
    for t in range(3):
        A(f"ds_read_b128 {vr(O[t],4)}, v{T0+10+t}{off(2560*t)}")
        A(f"ds_read_b128 {vr(O[t]+4,4)}, v{T0+10+t}{off(2560*t+1024)}")
        A(f"ds_read_b64 {vr(O[t]+8,2)}, v{T0+13+t}{off(2560*t+2048)}")
    A("s_cmp_eq_u32 s64, 0")
    A("s_cbranch_scc1 K2_nodown")
    A.c("---- MoE: h = silu(gate) * up, then this wave's w_down column tiles")
    for k in range(4):
        A(f"ds_read2st64_b32 {vr(2*k,2)}, v{T0+6} offset0:{2*k} offset1:{2*k+1}")
    A(f"""
    s_waitcnt lgkmcnt(0)
    v_pk_add_f32 v[0:1], v[0:1], v[2:3]
    v_pk_add_f32 v[4:5], v[4:5], v[6:7]
    v_pk_add_f32 v[0:1], v[0:1], v[4:5]
    v_mul_f32 v2, {0x80000000 | LOG2E}, v0
    v_exp_f32 v2, v2
    v_mul_f32 v0, v0, v1
    v_add_f32 v2, 1.0, v2
    v_rcp_f32 v2, v2
    s_nop 0
    v_mul_f32 v0, v0, v2
    v_cvt_pk_bf16_f32 v0, v0, v0
    ds_write_b16 v{T0+5}, v0
    """)
    for t in range(3):
        for s2 in range(2):
            for a in range(2):
                A(f"ds_read_b64_tr_b16 {vr(16+8*t+4*s2+2*a,2)}, v{T0} offset:{9216+2048*t+1024*s2+256*a}")
    A(f"ds_read_b128 v[8:11], v{T0+4}")
    A(f"ds_read_b128 v[12:15], v{T0+4} offset:32")
    A(f"""
    v_lshrrev_b32 v1, 5, v{LANE}
    v_and_b32 v2, 31, v{LANE}
    v_mul_u32_u24 v1, 2304, v1
    v_lshl_add_u32 v1, v2, 2, v1
    s_mul_i32 s12, s41, 4608
    s_add_u32 s12, s12, {YP}
    s_lshl_b32 s13, s38, 8
    s_add_u32 s13, s13, s12
    s_lshl_b32 s14, s39, 7
    s_add_u32 s14, s14, s12
    s_waitcnt lgkmcnt(0)
    """)
    Y = [128, 144, 160]
    for t in range(3):
        A(mfma(vr(Y[t], 16), "v[8:11]", vr(16 + 8 * t, 4), "0"))
        A(mfma(vr(Y[t], 16), "v[12:15]", vr(20 + 8 * t, 4), vr(Y[t], 16)))
    A("s_nop 7")
    A(f"buffer_store_dword v{Y[0]}, v1, {ws}, s13 offen")
    A("s_nop 0")
    A(f"buffer_store_dword v{Y[1]}, v1, {ws}, s13 offen offset:128")
    A("s_nop 0")
    A(f"buffer_store_dword v{Y[2]}, v1, {ws}, s14 offen offset:2048")
    A(f"""
    s_or_b32 s12, s2, s38
    s_cmp_lg_u32 s12, 0
    s_cbranch_scc1 K2_nodown
    v_mov_b32 v2, s68
    v_mov_b32 v3, s69
    v_mov_b32 v4, {TOP}
    buffer_store_dwordx2 v[2:3], v4, {ws}, 0 offen
    """)
    A("K2_nodown:")
    A("s_waitcnt lgkmcnt(0)")
    o = O[3]
    for i in range(5):
        A(f"v_pk_add_f32 {vr(O[0]+2*i,2)}, {vr(O[0]+2*i,2)}, {vr(O[1]+2*i,2)}")
        A(f"v_pk_add_f32 {vr(o+2*i,2)}, {vr(o+2*i,2)}, {vr(O[2]+2*i,2)}")
    for i in range(5):
        A(f"v_pk_add_f32 {vr(o+2*i,2)}, {vr(o+2*i,2)}, {vr(O[0]+2*i,2)}")
    A.c("safety check of the unshifted softmax: denominator in [2^-30, 2^60], numerators finite; else redo with the true max")
    A(f"""
    v_max3_f32 v0, abs(v{o}), abs(v{o+1}), abs(v{o+2})
    v_max3_f32 v1, abs(v{o+3}), abs(v{o+4}), abs(v{o+5})
    v_max3_f32 v2, abs(v{o+6}), abs(v{o+7}), abs(v{o+8})
    v_max3_f32 v0, v0, v1, v2
    v_cmp_gt_f32 vcc, {f32bits(2.0**120)}, v0
    s_mov_b32 s12, {f32bits(2.0**-30)}
    s_mov_b32 s13, {f32bits(2.0**60)}
    v_cmp_le_f32 s[14:15], s12, v{o+9}
    v_cmp_ge_f32 s[8:9], s13, v{o+9}
    s_and_b64 vcc, vcc, s[14:15]
    s_and_b64 vcc, vcc, s[8:9]
    s_cmp_eq_u64 vcc, exec
    {"s_nop 0" if OPT.get("noexec") else "s_cbranch_scc0 K2_slow"}
    """)
    A("K2_fin:")
    A(f"""
    v_rcp_f32 v0, v{o+9}
    s_lshl_b32 s12, s37, 3
    s_lshl_b32 s13, s39, 2
    s_add_u32 s12, s12, s13
    s_add_u32 s12, s12, s40
    s_mul_i32 s12, s12, 36864
    s_add_u32 s12, s12, {OB}
    s_lshl_b32 s13, s36, 10
    s_add_u32 s13, s13, s12
    s_lshr_b32 s14, s36, 2
    s_lshl_b32 s14, s14, 9
    s_add_u32 s12, s12, s14
    s_and_b32 s14, s36, 3
    s_lshl_b32 s14, s14, 2
    s_add_u32 s12, s12, s14
    s_add_u32 s12, s12, 32768
    v_mul_f32 v2, v{o+8}, v0
    v_mul_f32 v3, v{o+8}, v0
    """)
    for i in range(8):
        A(f"v_mul_f32 v{o+i}, v{o+i}, v0")
    A("v_permlane32_swap_b32 v2, v3")
    for i in range(4):
        A(f"v_cvt_pk_bf16_f32 v{4+i}, v{o+2*i}, v{o+2*i+1}")
    A(f"""
    v_cvt_pk_bf16_f32 v2, v2, v3
    v_and_b32 v3, 0x1ff, v{L16}
    buffer_store_dwordx4 v[4:7], v{L16}, {ws}, s13 offen
    buffer_store_dword v2, v3, {ws}, s12 offen
    """)
    if DIAG: A("s_waitcnt vmcnt(0)")
    ST.flush(v=20)
    A("K2_end:")
    A("s_endpgm")

    A.c("---- slow path: two passes over all keys with the true row maximum (own q tile)")
    A("K2_slow:")
    A(f"""
    s_lshr_b32 s12, s40, 1
    s_lshl_b32 s12, s12, 9
    s_and_b32 s13, s40, 1
    s_lshl_b32 s13, s13, 3
    s_or_b32 s12, s12, s13
    v_and_b32 v{T0}, 0x1ff, v{L16}
    s_add_u32 s12, s12, s60
    buffer_load_dwordx2 {vr(QE,2)}, v{T0}, {ws}, s12 offen
    buffer_load_dwordx4 {vr(QM,4)}, v{L16}, {ws}, s59 offen
    v_and_b32 v4, 31, v{LANE}
    v_or_b32 v5, 4, v4
    v_cmp_eq_u32 vcc, 21, v5
    v_mov_b32 v6, 0x3f803f80
    s_bitcmp0_b32 s36, 0
    v_cndmask_b32 v{VV[0]}, 0, v6, vcc
    s_cselect_b32 s12, -1, 0
    s_cselect_b32 s13, 0, -1
    """)
    for i in range(1, 8):
        A(f"v_mov_b32 v{VV[0]+i}, v{VV[0]}")
    for i in range(16):
        A(f"v_mov_b32 v{o+i}, 0")
    A(f"""
    v_mov_b32 v{T0+1}, 0xff800000
    s_waitcnt vmcnt(0)
    v_and_b32 v{QE}, s12, v{QE}
    v_and_b32 v{QE+1}, s13, v{QE+1}
    s_lshl_b32 s8, s40, 14
    s_sub_u32 s8, s{sK}, s8
    s_lshl_b32 s9, s40, 12
    s_sub_u32 s9, s{sKE}, s9
    s_mul_i32 s10, s40, {16*1152}
    s_sub_u32 s10, s{sV}, s10
    """)
    for pas in range(2):
        A("s_mov_b32 s11, 0")
        A(f"K2_slow{pas}:")
        A(f"""
        s_lshl_b32 s12, s11, 10
        s_add_u32 s12, s12, s8
        s_lshr_b32 s13, s11, 1
        s_lshl_b32 s13, s13, 9
        s_and_b32 s14, s11, 1
        s_lshl_b32 s14, s14, 3
        s_add_u32 s13, s13, s14
        s_add_u32 s13, s13, s9
        buffer_load_dwordx4 {vr(KM[0],4)}, v{L16}, {ws}, s12 offen
        buffer_load_dwordx2 {vr(KE[0],2)}, v{T0}, {ws}, s13 offen
        """)
        if pas:
            A(f"""
            s_mul_i32 s12, s11, 1152
            s_add_u32 s12, s12, s10
            s_mov_b64 exec, s[62:63]
            buffer_load_dwordx4 {vr(VV[0],4)}, v{VA}, {ws}, s12 offen
            buffer_load_dwordx4 {vr(VV[0]+4,4)}, v{VA}, {ws}, s12 offen offset:576
            s_mov_b64 exec, -1
            """)
        A(f"""
        s_waitcnt vmcnt(0)
        v_mfma_f32_32x32x4_2b_bf16 v[0:31], {vr(KE[0],2)}, {vr(QE,2)}, 0
        s_nop 15
        s_nop 3
        {mfma("v[0:15]", vr(KM[0],4), vr(QM,4), "v[0:15]")}
        s_nop 15
        """)
        if not pas:
            for i in range(8):
                A(f"v_max3_f32 v{T0+1}, v{T0+1}, v{2*i}, v{2*i+1}")
        else:
            for i in range(16):
                A(f"v_sub_f32 v{i}, v{i}, v{T0+1}")
            for i in range(16):
                A(f"v_exp_f32 v{i}, v{i}")
            A("s_nop 1")
            A(f"v_smfmac_f32_32x32x32_bf16 {vr(o,16)}, {vr(VV[0],4)}, v[0:7], v{IDX}")
            A(f"v_smfmac_f32_32x32x32_bf16 {vr(o,16)}, {vr(VV[0]+4,4)}, v[8:15], v{IDX}")
            A("s_nop 15")
        A(f"""
        s_add_u32 s11, s11, 1
        s_cmp_lt_u32 s11, 64
        s_cbranch_scc1 K2_slow{pas}
        """)
        if not pas:
            A(f"""
            v_mov_b32 v{T0+2}, v{T0+1}
            s_nop 1
            v_permlane32_swap_b32 v{T0+1}, v{T0+2}
            s_nop 1
            v_max_f32 v{T0+1}, v{T0+1}, v{T0+2}
            """)
    A("s_branch K2_fin")


def k3(A):
    kernel_head(A, "k3_kernel")
    sX, sWO, sWS, sO = 16, 20, 24, 28
    ws = f"s[{sWS}:{sWS+3}]"
    ACC, BX, F, XR, YT = 0, 32, 64, 80, 96
    LANE, L16, WM, WE, XA, GV, AW = 140, 141, 142, 143, 144, 146, 148
    T0 = 152
    YS = 73728
    A("s_cmp_ge_u32 s2, 144")
    A("s_cbranch_scc1 K3_end")
    ST = Stamp(A, 2); ST.t(0)
    srd(A, sWS, 88, WS_SIZE)
    srd(A, sWO, 16, 576 * 1152)
    srd(A, sX, 0, XB)
    srd(A, sO, 72, XB)
    A(f"""
    v_lshrrev_b32 v1, 6, v0
    v_and_b32 v{LANE}, 63, v0
    v_readfirstlane_b32 s38, v1
    v_lshlrev_b32 v{L16}, 4, v{LANE}
    s_and_b32 s3, s2, 7
    s_lshl_b32 s36, s3, 1
    s_bfe_u32 s4, s2, 0x10003
    s_add_u32 s36, s36, s4
    s_lshr_b32 s37, s2, 4
    s_lshl_b32 s39, s36, 2
    s_add_u32 s39, s39, s38
    """)
    A.c("s36 token block (128), s37 channel block (64), s38 wave, s39 token tile")
    A(f"""
    v_lshrrev_b32 v2, 3, v{LANE}
    v_and_b32 v3, 7, v{LANE}
    v_and_b32 v4, 2, v2
    v_xor_b32 v3, v3, v4
    s_lshl_b32 s4, s37, 7
    v_lshl_add_u32 v3, v3, 4, s4
    v_and_b32 v4, 4, v2
    v_add_u32 v4, v4, v2
    s_lshr_b32 s5, s38, 1
    s_and_b32 s6, s38, 1
    s_mul_i32 s7, s5, 18
    s_lshl_b32 s8, s6, 2
    s_add_u32 s7, s7, s8
    v_add_u32 v4, s7, v4
    v_mul_u32_u24 v4, 1152, v4
    v_add_u32 v{WM}, v4, v3
    v_lshrrev_b32 v4, 1, v2
    v_mul_u32_u24 v4, 18, v4
    v_and_b32 v5, 1, v2
    s_mul_i32 s7, s38, 72
    s_add_u32 s7, s7, 16
    v_add3_u32 v4, v4, v5, s7
    v_mul_u32_u24 v4, 1152, v4
    v_add_u32 v{WE}, v4, v3
    s_lshl_b32 s40, s38, 10
    s_mul_i32 s41, s39, 36864
    s_add_u32 s41, s41, {OB}
    s_waitcnt lgkmcnt(0)
    """)
    A(f"s_add_u32 s10, s{sWS}, {TOP}")
    A(f"s_addc_u32 s11, s{sWS+1}, 0")
    A("s_load_dwordx2 s[68:69], s[10:11], 0")

    def dma(u):
        A(f"s_add_u32 m0, s40, {4096*u}")
        if u < 16:
            A(f"s_mov_b32 s42, {36*u*1152}")
            A(f"buffer_load_dwordx4 v{WM}, s[{sWO}:{sWO+3}], s42 offen lds")
        else:
            A(f"s_mov_b32 s42, {18*16*(u-16)*1152}")
            A(f"buffer_load_dwordx4 v{WE}, s[{sWO}:{sWO+3}], s42 offen lds")

    def ldO(n):
        if n % 4 == 0:
            A(f"s_add_u32 s43, s41, {1024*n}")
        A(f"buffer_load_dwordx4 {ar(4*n,4)}, v{L16}, {ws}, s43 offen{off(1024*(n%4))}")

    ST.t(1)
    for ch in range(3):
        for u in range(6 * ch, 6 * ch + 6): dma(u)
        for n in range(12 * ch, 12 * ch + 12): ldO(n)
        if ch == 0:
            A(f"""
            v_and_b32 v2, 31, v{LANE}
            s_lshl_b32 s5, s39, 5
            v_add_u32 v{T0}, s5, v2
            v_lshrrev_b32 v3, 5, v{LANE}
            v_mul_u32_u24 v4, 1152, v{T0}
            v_lshl_add_u32 v4, v3, 6, v4
            v_add_u32 v{XA}, s4, v4
            v_lshlrev_b32 v4, 2, v{T0}
            s_mov_b32 s5, {GB}
            buffer_load_dword v{GV}, v4, {ws}, s5 offen
            """)
            for u in range(4):
                A(f"buffer_load_dwordx4 {vr(XR+4*u,4)}, v{XA}, s[{sX}:{sX+3}], 0 offen{off(16*u)}")
    A(f"""
    v_bfe_u32 v2, v{LANE}, 2, 2
    v_lshl_add_u32 v4, v3, 3, v2
    v_lshlrev_b32 v4, 7, v4
    v_lshrrev_b32 v2, 1, v2
    v_lshl_add_u32 v4, v2, 5, v4
    v_and_b32 v2, 1, v{LANE}
    v_lshl_add_u32 v4, v2, 6, v4
    v_bfe_u32 v2, v{LANE}, 4, 1
    v_lshl_add_u32 v4, v2, 4, v4
    v_bfe_u32 v2, v{LANE}, 1, 1
    v_lshl_add_u32 v{AW}, v2, 3, v4
    v_xor_b32 v{AW+1}, 32, v{AW}
    v_add_u32 v{AW+2}, 65536, v{AW}
    v_add_u32 v{AW+3}, 65536, v{AW+1}
    s_waitcnt lgkmcnt(0)
    s_not_b32 s70, s68
    s_not_b32 s71, s69
    s_and_b32 s70, s70, 0x7ff
    s_and_b32 s71, s71, 0x7ff
    s_mov_b32 s5, 0xffff0000
    s_waitcnt vmcnt(36)
    """)
    ST.t(2)
    for i in range(16):
        A(f"v_lshlrev_b32 v{BX+2*i}, 16, v{XR+i}")
        A(f"v_and_b32 v{BX+2*i+1}, s5, v{XR+i}")
    A.c("---- routed tokens inside this workgroup's token block: add sigmoid(r) * y")
    for sel in range(2):
        A(f"""
        s_lshr_b32 s6, s{70+sel}, 7
        s_cmp_lg_u32 s6, s36
        s_cbranch_scc1 K3_nosel{sel}
        v_lshrrev_b32 v2, 4, v{LANE}
        v_mul_u32_u24 v2, 4608, v2
        v_and_b32 v4, 0xff, v{L16}
        v_add_u32 v2, v2, v4
        s_mul_i32 s6, s38, {36*4608}
        s_lshl_b32 s7, s37, 8
        s_add_u32 s6, s6, s7
        s_add_u32 s6, s6, {YP + 2304*sel}
        s_waitcnt vmcnt(0)
        """)
        for u in range(9):
            A(f"buffer_load_dwordx4 {vr(YT+4*u,4)}, v2, {ws}, s6 offen")
            A(f"s_add_u32 s6, s6, {4*4608}")
        for u in range(1, 9):
            A(f"s_waitcnt vmcnt({8-u})")
            A(f"v_pk_add_f32 {vr(YT,2)}, {vr(YT,2)}, {vr(YT+4*u,2)}")
            A(f"v_pk_add_f32 {vr(YT+2,2)}, {vr(YT+2,2)}, {vr(YT+4*u+2,2)}")
        A(f"""
        s_add_u32 s6, s40, {YS + 4096*sel}
        v_add_u32 v2, s6, v{L16}
        ds_write_b128 v2, {vr(YT,4)}
        s_waitcnt lgkmcnt(0)
        s_barrier
        v_lshlrev_b32 v2, 2, v{LANE}
        v_add_u32 v2, {YS + 4096*sel}, v2
        """)
        for k in range(8):
            A(f"ds_read2st64_b32 {vr(YT+2*k,2)}, v2 offset0:{2*k} offset1:{2*k+1}")
        A(f"""
        s_ashr_i32 s6, s{68+sel}, 31
        s_not_b32 s6, s6
        s_or_b32 s6, s6, 0x80000000
        s_xor_b32 s6, s6, s{68+sel}
        s_and_b32 s6, s6, 0xffff0000
        v_mov_b32 v4, {0x80000000 | LOG2E}
        v_mul_f32 v4, s6, v4
        v_exp_f32 v4, v4
        s_nop 0
        v_add_f32 v4, 1.0, v4
        v_rcp_f32 v4, v4
        s_waitcnt lgkmcnt(0)
        """)
        for k in (4, 2, 1):
            for i in range(k):
                A(f"v_pk_add_f32 {vr(YT+2*i,2)}, {vr(YT+2*i,2)}, {vr(YT+2*(i+k),2)}")
        A(f"""
        v_add_f32 v{YT}, v{YT}, v{YT+1}
        v_mul_f32 v{YT}, v{YT}, v4
        s_lshl_b32 s6, s38, 8
        s_add_u32 s6, s6, {YS + 8192}
        v_lshl_add_u32 v2, v{LANE}, 2, s6
        ds_write_b32 v2, v{YT}
        v_lshl_add_u32 v2, v3, 7, s6
        """)
        for k in range(8):
            A(f"ds_read_b128 {vr(YT+4*k,4)}, v2{off(16*k)}")
        A(f"""
        v_cmp_eq_u32 vcc, s{70+sel}, v{T0}
        s_waitcnt lgkmcnt(0)
        s_and_saveexec_b64 s[8:9], vcc
        """)
        for i in range(16):
            A(f"v_pk_add_f32 {vr(BX+2*i,2)}, {vr(BX+2*i,2)}, {vr(YT+2*i,2)}")
        A("s_mov_b64 exec, s[8:9]")
        A(f"K3_nosel{sel}:")
    A(f"v_sub_f32 v{T0+2}, 1.0, v{GV}")
    A(f"v_mov_b32 v{GV+1}, v{GV}")
    A(f"v_mov_b32 v{T0+3}, v{T0+2}")
    for i in range(16):
        A(f"v_pk_mul_f32 {vr(BX+2*i,2)}, {vr(BX+2*i,2)}, {vr(T0+2,2)}")

    def reads(n):
        f = F + 8 * (n % 2)
        k, o = divmod(2048 * n, 65536)
        return [f"ds_read_b64_tr_b16 {vr(f+4*T+2*a,2)}, v{AW+2*k+T}{off(o+512*a)}" for T in range(2) for a in range(2)]

    A("s_barrier")
    ST.t(3)
    for r in reads(0): A(r)
    for n in range(36):
        f = F + 8 * (n % 2)
        R = reads(n + 1) if n < 35 else []
        A("s_waitcnt lgkmcnt(2)")
        A(mfma(vr(ACC, 16), vr(f, 4), ar(4 * n, 4), "0" if n == 0 else vr(ACC, 16)))
        if n == 11:
            A("s_waitcnt vmcnt(18)")
            A("s_barrier")
        if n == 23:
            A("s_waitcnt vmcnt(0)")
            A("s_barrier")
        for r in R[0:2]: A(r)
        A(f"s_waitcnt lgkmcnt({2 if R else 0})")
        A(mfma(vr(ACC + 16, 16), vr(f + 4, 4), ar(4 * n, 4), "0" if n == 0 else vr(ACC + 16, 16)))
        for r in R[2:4]: A(r)
    A("s_nop 11")
    ST.t(4)
    for u in range(4):
        for i in range(4):
            j = 8 * u + 2 * i
            A(f"v_pk_fma_f32 {vr(ACC+j,2)}, {vr(ACC+j,2)}, {vr(GV,2)}, {vr(BX+j,2)}")
        for i in range(4):
            j = 8 * u + 2 * i
            A(f"v_cvt_pk_bf16_f32 v{XR+4*u+i}, v{ACC+j}, v{ACC+j+1}")
        A(f"buffer_store_dwordx4 {vr(XR+4*u,4)}, v{XA}, s[{sO}:{sO+3}], 0 offen{off(16*u)}")
    if DIAG: A("s_waitcnt vmcnt(0)")
    ST.flush(v=64)
    A("K3_end:")
    A("s_endpgm")


def build():
    A = Asm()
    A.raw("; @launch kernel=k1_kernel grid=(256,1,1) block=(512,1,1) lds=163840")
    A.raw("; @launch kernel=k2_kernel grid=(256,1,1) block=(512,1,1) lds=134144")
    A.raw("; @launch kernel=k3_kernel grid=(144,1,1) block=(256,1,1) lds=82944")
    A('.amdgcn_target "amdgcn-amd-amdhsa--gfx950"')
    A(".text")
    k1(A); k2(A); k3(A)
    A('.section .rodata,"a"')
    A(".p2align 6")
    A.raw(descriptor("k1_kernel", 200, 200))
    A(".p2align 6")
    A.raw(descriptor("k2_kernel", 224, 224))
    A(".p2align 6")
    A.raw(descriptor("k3_kernel", 160 + 144, 160))
    return A.text()


if __name__ == "__main__":
    out = sys.argv[1] if len(sys.argv) > 1 else "gated_mix__mha_block__moe_arch_mod__prompt.s"
    DIAG = len(sys.argv) > 2 and sys.argv[2] == "diag"
    if len(sys.argv) > 3: OPT = eval(sys.argv[3])
    open(out, "w").write(build())
```

```python
import sys
sys.path.insert(0, "gen")
from asmlib import *
import gen1
from gen1 import QK, EXT, VB, GB, RC, YP, WS_SIZE, XB, f32bits, QSCALE, LOG2E, mfma, Stamp

OM = 0x700000
OE = 0x900000
FO = 0xA00000
FY = 0xA40000
EP = 0xA50000
OPT = {}
SPIN = 1 << 17


def mf16(d, a, b, c):
    return f"v_mfma_f32_16x16x32_bf16 {d}, {a}, {b}, {c}"


def k23(A):
    kernel_head(A, "k2_kernel")
    sDBG, sX, sG, sWS, sD, sU, sWO, sO = 12, 16, 20, 24, 28, 32, 72, 76
    S = [0, 32]
    O = [64, 80, 96, 112]
    QM, QE, KE = 128, 144, 148
    NB = 6
    KM = [164 + 12 * g for g in range(NB)]
    VV = [168 + 12 * g for g in range(NB)]
    IDX, L16, VA, LANE = 236, 237, 238, 239
    CAND, TMP, GUA, DNA, DN5, XSA, TAGV = 240, 241, 242, 243, 244, 245, 246
    SW, RD = 242, 243
    PM, PE = 240, 241
    T0 = 247
    sK, sV, sKE, sTAG = 44, 72, 52, 53
    WREG = 29696
    BS = 4 * WREG
    HP = BS + 4 * 9216
    HS = HP + 2048
    CNT = HS + 512
    STG = 92160
    ws = f"s[{sWS}:{sWS+3}]"
    uid = [0]

    def lab(p):
        uid[0] += 1
        return f"{p}_{uid[0]}"

    A("s_cmp_ge_u32 s2, 256")
    A("s_cbranch_scc1 K2_end")
    ST = Stamp(A, 1); ST.t(0)
    srd(A, sWS, 88, WS_SIZE)
    srd(A, sX, 0, XB)
    srd(A, sG, 40, 576 * 9216)
    srd(A, sU, 48, 576 * 9216)
    srd(A, sD, 56, 4608 * 1152)
    srd(A, sDBG, 80, 256)
    A(f"""
    v_lshrrev_b32 v1, 6, v0
    v_and_b32 v{LANE}, 63, v0
    v_readfirstlane_b32 s38, v1
    v_lshlrev_b32 v{L16}, 4, v{LANE}
    s_and_b32 s3, s2, 7
    s_lshl_b32 s4, s3, 1
    s_bfe_u32 s5, s2, 0x10003
    s_add_u32 s4, s4, s5
    s_lshr_b32 s5, s2, 4
    """)
    if OPT.get("map", 1) == 1:
        A("s_mov_b32 s43, s4\ns_mov_b32 s37, s5")
    else:
        A("s_mov_b32 s43, s5\ns_mov_b32 s37, s4")
    A(f"""
    s_lshr_b32 s39, s38, 2
    s_and_b32 s40, s38, 3
    s_lshl_b32 s36, s39, 4
    s_add_u32 s36, s36, s43
    """)
    A.c("s36 head, s37 q block (128), s38 wave, s39 head half, s40 key quarter, s43 head within half")
    A(f"""
    s_lshl_b32 s8, s36, 16
    s_lshl_b32 s10, s37, 12
    s_add_u32 s10, s10, s8
    s_xor_b32 s11, s40, 3
    """)
    for t in range(4):
        A(f"s_xor_b32 s4, s11, {t}")
        A(f"s_lshl_b32 s4, s4, 10")
        A(f"s_add_u32 s{56+t}, s10, s4")
    A(f"""
    s_lshr_b32 s4, s36, 1
    s_lshl_b32 s4, s4, 14
    s_add_u32 s4, s4, {EXT}
    s_lshl_b32 s5, s37, 10
    s_add_u32 s60, s4, s5
    s_lshl_b32 s5, s40, 12
    s_add_u32 s4, s4, s5
    s_add_u32 s{sKE}, s4, {16*16384}
    s_lshl_b32 s5, s40, 14
    s_add_u32 s5, s5, s8
    s_add_u32 s54, s5, {32*65536}
    s_mul_i32 s4, s36, 73728
    s_mul_i32 s5, s40, {16*1152}
    s_add_u32 s4, s4, s5
    s_add_u32 s55, s4, {VB}
    """)
    A.c("key tile pairs are visited in the order m ^ s9, so that the workgroups sharing a head start on different lines")
    A(f"""
    s_and_b32 s9, s37, {OPT.get("rot", 7)}
    s_lshl_b32 s4, s9, 11
    s_add_u32 s{sK}, s54, s4
    s_mul_i32 s4, s9, 2304
    s_add_u32 s{sV}, s55, s4
    s_lshl_b32 s4, s9, 9
    s_and_b32 s5, s4, 512
    v_xor_b32 v{TAGV}, s5, v{L16}
    s_and_b32 s101, s4, 3072
    s_add_u32 s97, s{sKE}, s101
    """)
    A.c("q ext address: half hh of pair c reads actual tile (c + 2hh) ^ 3 ^ kq")
    A(f"""
    s_lshr_b32 s4, s11, 1
    s_lshl_b32 s4, s4, 9
    s_and_b32 s5, s11, 1
    s_lshl_b32 s5, s5, 3
    s_or_b32 s4, s4, s5
    v_xor_b32 v2, s4, v{L16}
    v_xor_b32 v3, 8, v2
    v_and_b32 v4, 31, v{LANE}
    v_min_u32 v5, 17, v4
    v_lshrrev_b32 v6, 5, v{LANE}
    v_mul_u32_u24 v6, 288, v6
    v_lshl_add_u32 v{VA}, v5, 4, v6
    s_mov_b32 s62, 0x0011ffff
    s_mov_b32 s63, 0x0011ffff
    """)
    A.c("V registers are preset: rows 17 and 21 are the all-ones rows that produce the softmax denominator")
    A.c("(1 + 127*2^-16 has the bit pattern 0x3f803f80 = two bf16 ones; the matrix unit fills 32 registers per instruction)")
    A(f"""
    v_or_b32 v5, 4, v4
    v_cmp_eq_u32 vcc, 21, v5
    v_mov_b32 v6, 0x3afe3f80
    v_mov_b32 v8, 0x3f803f80
    v_cndmask_b32 v6, 0, v6, vcc
    v_mov_b32 v7, 0
    v_mov_b32 v9, 0
    v_mov_b32 v10, 0
    v_mov_b32 v11, 0
    v_mov_b32 v{IDX}, 0xdddddddd
    v_mfma_f32_32x32x4_2b_bf16 {vr(164,32)}, v[8:9], v[6:7], 0
    v_cndmask_b32 v196, 0, v8, vcc
    v_cndmask_b32 v197, 0, v8, vcc
    v_cndmask_b32 v198, 0, v8, vcc
    v_cndmask_b32 v199, 0, v8, vcc
    s_nop 12
    """)
    A(f"""
    s_cmp_lg_u32 s39, 0
    s_waitcnt lgkmcnt(0)
    s_cbranch_scc1 K2_young
    """)

    def ldK(j):
        return [f"buffer_load_dwordx4 {vr(KM[j%NB],4)}, v{L16}, {ws}, s{sK+j//2} offen{off(1024*(j%2))}"]

    def ldV(j):
        return ["s_mov_b64 exec, s[62:63]"] + \
            [f"buffer_load_dwordx4 {vr(VV[j%NB]+4*i,4)}, v{VA}, {ws}, s{sV+j//2} offen{off(1152*(j%2)+576*i)}" for i in range(2)] + \
            ["s_mov_b64 exec, -1"]

    def ldKE(g):
        return [f"buffer_load_dwordx4 {vr(KE+4*g,4)}, v{TAGV}, {ws}, s{97+g} offen"]

    def ldQ(t):
        return [f"buffer_load_dwordx4 {vr(QM+4*t,4)}, v{L16}, {ws}, s{56+t} offen"]

    def m2b(kt, c):
        u = kt % 4
        return (f"v_mfma_f32_32x32x4_2b_bf16 {vr(S[c],32)}, {vr(KE+4*(kt//4)+2*(u%2),2)}, {vr(QE+2*c,2)}, 0"
                f" cbsz:1 abid:{u//2}")

    def mm(kt, c, b):
        d = vr(S[c] + 16 * b, 16)
        return mfma(d, vr(KM[kt % NB], 4), vr(QM + 4 * (c + 2 * b), 4), d)

    def sm(kt, c, b, i):
        return (f"v_smfmac_f32_32x32x32_bf16 {vr(O[c+2*b],16)}, {vr(VV[kt%NB]+4*i,4)}, "
                f"{vr(S[c]+16*b+8*i,8)}, v{IDX}")

    def moe_dma(n):
        if n < 18:
            m, u = n % 2, n // 2
            s = (sG, sU)[m]
            return [f"s_add_u32 m0, s42, {9216*m+1024*u}", f"s_mov_b32 s67, {u*16*9216}",
                    f"buffer_load_dwordx4 v{GUA}, s[{s}:{s+3}], s67 offen lds"]
        n -= 18
        pre = [f"s_add_u32 m0, s42, {18432+1024*n}"]
        if n < 8:
            return pre + [f"s_mov_b32 s67, {4*n*1152}", f"buffer_load_dwordx4 v{DNA}, s[{sD}:{sD+3}], s67 offen lds"]
        return pre + [f"s_mov_b32 s67, {16*(n-8)*1152}", f"buffer_load_dwordx4 v{DN5}, s[{sD}:{sD+3}], s67 offen lds"]

    xsel_dma = [f"s_add_u32 m0, s42, {28672}", "s_nop 0",
                f"buffer_load_dwordx4 v{XSA}, s[{sX}:{sX+3}], 0 offen lds"]

    def owrite(t):
        return [f"ds_write_b128 v{SW}, {vr(O[t],4)}{off(3072*t)}",
                f"ds_write_b128 v{SW}, {vr(O[t]+4,4)}{off(3072*t+1024)}",
                f"ds_write_b64 v{SW}, {vr(O[t]+8,2)}{off(3072*t+2048)}"]

    def scratch_addrs(base, stride):
        A(f"s_mul_i32 s4, s40, {stride}")
        A(f"s_add_u32 s4, s4, {base}")
        A(f"v_add_u32 v{SW}, s4, v{L16}")
        for t in range(3):
            A(f"s_xor_b32 s4, s40, {t ^ 3}")
            A(f"s_mul_i32 s4, s4, {stride}")
            A(f"s_add_u32 s4, s4, {base}")
            A(f"v_add_u32 v{RD+t}, s4, v{L16}")
        A(f"""
        v_bfe_u32 v{PM}, v{LANE}, 4, 1
        v_lshlrev_b32 v{PM}, 13, v{PM}
        v_lshrrev_b32 v{PE}, 5, v{LANE}
        v_lshl_add_u32 v{PM}, v{PE}, 8, v{PM}
        v_and_b32 v{PE}, 0xff, v{L16}
        v_add_u32 v{PM}, v{PM}, v{PE}
        v_and_b32 v{PE}, 31, v{LANE}
        v_lshlrev_b32 v{PE}, 2, v{PE}
        s_lshl_b32 s4, s39, 6
        s_lshl_b32 s5, s37, 2
        s_add_u32 s4, s4, s5
        s_add_u32 s4, s4, s40
        s_lshl_b32 s5, s4, 14
        s_lshl_b32 s6, s43, 9
        s_add_u32 s5, s5, s6
        s_add_u32 s65, s5, {OM}
        s_lshl_b32 s4, s4, 4
        s_add_u32 s4, s4, s43
        s_lshl_b32 s4, s4, 7
        s_add_u32 s66, s4, {OE}
        s_lshl_b32 s4, s39, 4
        s_add_u32 s4, s4, s37
        s_lshl_b32 s4, s4, 11
        s_lshl_b32 s5, s40, 6
        s_add_u32 s4, s4, s5
        s_lshl_b32 s5, s43, 2
        s_add_u32 s4, s4, s5
        s_add_u32 s61, s4, {FO}
        v_mov_b32 v{T0+8}, {CNT + (0 if base == 0 else 12)}
        v_mov_b32 v{T0+7}, 1
        """)

    def attention(old):
        pend = []

        def issue(lines, tag):
            for l in lines:
                if l.startswith("buffer_"):
                    pend.append(tag)
            return lines

        def wait_for(tag):
            last = max(i for i, t in enumerate(pend) if t == tag)
            n = len(pend) - 1 - last
            del pend[:last + 1]
            return f"s_waitcnt vmcnt({n})"

        pro = issue([f"buffer_load_dwordx2 {vr(QE,2)}, v2, {ws}, s60 offen"], "qe") + issue(ldKE(0), "q0") + \
            issue(ldQ(0) + ldK(0) + ldQ(2), "q0") + \
            issue([f"buffer_load_dwordx2 {vr(QE+2,2)}, v3, {ws}, s60 offen"], "q1") + issue(ldQ(1) + ldQ(3), "q2") + \
            issue(ldV(0), "g0") + issue(ldK(1) + ldV(1), "g1")
        for l in pro: A(l)
        if old:
            A("s_barrier")
        A(f"""
        v_mfma_f32_32x32x4_2b_bf16 {vr(204,32)}, v[8:9], v[6:7], 0
        v_mfma_f32_32x32x4_2b_bf16 {vr(O[0],32)}, v[10:11], v[10:11], 0
        v_mfma_f32_32x32x4_2b_bf16 {vr(O[2],32)}, v[10:11], v[10:11], 0
        """)
        if old:
            A(f"v_lshlrev_b32 v8, 2, v{LANE}")
            A(f"s_mov_b32 s4, {RC}")
            for l in issue([f"buffer_load_dword v{CAND}, v8, {ws}, s4 offen"], "cand"): A(l)
        for g in range(1, 8):
            A(f"s_xor_b32 s4, s9, {g}")
            A(f"s_lshl_b32 s5, s4, 11")
            A(f"s_add_u32 s{sK+g}, s54, s5")
            A(f"s_mul_i32 s5, s4, 2304")
            A(f"s_add_u32 s{sV+g}, s55, s5")
        for g in range(1, 4):
            A(f"s_xor_b32 s4, s101, {1024*g}")
            A(f"s_add_u32 s{97+g}, s{sKE}, s4")
        if old:
            A.c("MoE: f block s41 (32 columns), only for workgroups with (id >> 3) < 18")
            A(f"""
            s_lshr_b32 s4, s2, 3
            s_mul_i32 s41, s3, 18
            s_add_u32 s41, s41, s4
            s_cmp_lt_u32 s4, {0 if OPT.get('nomoe2') else 18}
            s_cselect_b32 s{sG+2}, {576*9216}, 0
            s_cselect_b32 s{sU+2}, {576*9216}, 0
            s_cselect_b32 s64, 1, 0
            s_mul_i32 s42, s40, {WREG}
            v_lshrrev_b32 v8, 2, v{LANE}
            v_and_b32 v9, 3, v{LANE}
            v_lshlrev_b32 v9, 4, v9
            s_mul_i32 s4, s40, 144
            v_add_u32 v10, s4, v8
            v_mul_u32_u24 v10, 9216, v10
            s_lshl_b32 s4, s41, 6
            v_add3_u32 v{GUA}, v10, v9, s4
            s_lshl_b32 s4, s41, 5
            v_add_u32 v10, s4, v8
            v_mul_u32_u24 v10, 1152, v10
            s_and_b32 s5, s40, 1
            s_lshl_b32 s5, s5, 6
            s_add_u32 s5, s5, 1024
            v_add3_u32 v{DN5}, v10, v9, s5
            v_lshrrev_b32 v8, 4, v{LANE}
            v_add_u32 v10, s4, v8
            v_mul_u32_u24 v10, 1152, v10
            v_lshlrev_b32 v8, 6, v8
            v_and_b32 v9, 0xff, v{L16}
            v_xor_b32 v9, v9, v8
            s_lshl_b32 s5, s40, 8
            v_add3_u32 v{DNA}, v10, v9, s5
            """)
            A.c("L2 warm-up (speed only) of the weight lines this die's workgroups stage later: one 1152-byte row piece per step")
            A(f"""
            v_min_u32 v8, 8, v{LANE}
            v_lshlrev_b32 v{T0}, 7, v8
            s_lshr_b32 s4, s2, 3
            s_lshl_b32 s4, s4, 2
            s_add_u32 s4, s4, s40
            s_mul_i32 s5, s3, 576
            s_add_u32 s5, s5, s4
            s_mul_i32 s55, s5, 1152
            s_lshr_b32 s5, s4, 5
            s_mul_i32 s5, s5, 144
            s_bfe_u32 s6, s4, 0x40001
            s_add_u32 s5, s5, s6
            s_mul_i32 s5, s5, 9216
            s_mul_i32 s6, s3, 1152
            s_add_u32 s54, s5, s6
            s_bitcmp0_b32 s40, 0
            s_cselect_b32 s8, s{sG}, s{sU}
            s_cselect_b32 s9, s{sG+1}, s{sU+1}
            s_mov_b32 s10, {576*9216}
            s_mov_b32 s11, 0x00020000
            """)
        else:
            scratch_addrs(BS, 9216)
        A(f"""
        s_bitcmp0_b32 s36, 0
        s_cselect_b32 s4, -1, 0
        s_cselect_b32 s5, 0, -1
        {wait_for("qe")}
        v_and_b32 v{QE}, s4, v{QE}
        v_and_b32 v{QE+1}, s5, v{QE+1}
        {wait_for("q0")}
        s_nop 0
        """)
        ST.t(1)
        A(m2b(0, 0))
        A(f"""
        {wait_for("q1")}
        v_and_b32 v{QE+2}, s4, v{QE+2}
        v_and_b32 v{QE+3}, s5, v{QE+3}
        s_nop 14
        """)
        A(mm(0, 0, 0))
        A(mm(0, 0, 1))
        A("s_nop 10")
        gsched = {0: [2, 3], 1: [4, 5], 2: [6, 7]}
        for kt in range(3, 11): gsched[kt] = [kt + 5]
        d0, d1, nd = OPT.get("dma", (23, 32, 18))
        dsched = {}
        for n in range(nd): dsched.setdefault(d0 + n * (d1 - d0) // nd, []).append(n)
        tper = OPT.get("touch", [1, 3, 5, 7, 8, 9, 10, 11, 12, 13, 14, 15, 16, 17, 18, 19, 20, 21, 22])
        touch = {}
        for i, p in enumerate(tper):
            if i < 9:
                touch[p] = [f"buffer_load_dword v{T0+3}, v{T0}, s[8:11], s54 offen", f"s_add_u32 s54, s54, {16*9216}"]
                if i == 8:
                    touch[p] = touch[p][:1] + ["s_load_dwordx2 s[8:9], s[0:1], 16", f"s_mov_b32 s10, {576*1152}",
                                               f"s_mul_i32 s54, s3, {576*1152}", "s_sub_u32 s54, s55, s54"]
            elif i < 14:
                touch[p] = [f"buffer_load_dword v{T0+3}, v{T0}, s[{sD}:{sD+3}], s55 offen", f"s_add_u32 s55, s55, {128*1152}"]
            else:
                touch[p] = (["s_waitcnt lgkmcnt(0)"] if i == 14 else []) + \
                    [f"buffer_load_dword v{T0+3}, v{T0}, s[8:11], s54 offen", f"s_add_u32 s54, s54, {128*1152}"]
        for kt in range(16):
            for c in range(2):
                n = 2 * kt + c
                cur = S[c]
                nxt = (kt, 1) if c == 0 else (kt + 1, 0)
                prv = (kt - 1, 1) if c == 0 else (kt, 0)
                has_next = n < 31
                ins = {}
                def at(p, l): ins.setdefault(p, []).extend(l if isinstance(l, list) else [l])
                if n > 0:
                    at(1, sm(prv[0], prv[1], 1, 1))
                if c == 0:
                    for j in gsched.get(kt, []):
                        at(1, issue(ldK(j) + ldV(j), f"g{j}"))
                    if kt == 0:
                        at(1, issue(ldKE(1) + ldKE(2) + ldKE(3), "ke"))
                    if old and kt == 3:
                        at(1, issue(xsel_dma, "moe"))
                    if not old and kt == 11:
                        at(1, issue([f"buffer_load_dword v{TAGV}, off, s[{sDBG}:{sDBG+3}], 0 sc1"], "g15"))
                if c == 1 and has_next:
                    at(4, wait_for(f"g{kt+1}"))
                if n == 0:
                    at(12, wait_for("g0"))
                if old and n in touch:
                    at(13, issue(touch[n], "moe"))
                if old and not OPT.get("nomoe"):
                    for i, x in enumerate(dsched.get(n, [])):
                        at(14 + 8 * i, issue(moe_dma(x), "moe"))
                if has_next:
                    at(4, m2b(*nxt))
                    at(20, mm(nxt[0], nxt[1], 0))
                    at(28, mm(nxt[0], nxt[1], 1))
                at(12, sm(kt, c, 0, 0))
                at(17, sm(kt, c, 0, 1))
                at(25, sm(kt, c, 1, 0))
                if n == 31 and not old:
                    for t, p in ((0, 3), (2, 14), (1, 29)):
                        for i, l in enumerate(owrite(t)): at(p + i, l)
                if n == 4 and old:
                    assert "cand" not in pend
                    B = Asm()
                    wave_top2_u32(B, CAND, TMP, 68, 69)
                    B(f"""
                    s_nop 0
                    s_not_b32 s70, s68
                    s_not_b32 s71, s69
                    s_and_b32 s70, s70, 0x7ff
                    s_and_b32 s71, s71, 0x7ff
                    s_mul_i32 s4, s70, 1152
                    s_mul_i32 s5, s71, 1152
                    s_sub_u32 s5, s5, 512
                    s_mul_i32 s6, s40, 288
                    v_mov_b32 v{XSA}, s4
                    v_mov_b32 v{TMP}, s5
                    v_cmp_gt_u32 vcc, 32, v{LANE}
                    s_nop 1
                    v_cndmask_b32 v{XSA}, v{TMP}, v{XSA}, vcc
                    v_add3_u32 v{XSA}, v{XSA}, v{L16}, s6
                    """)
                    p = -1
                    tail = []
                    for l in B.lines:
                        l = l.strip()
                        if l == "s_nop 1" and p + 2 <= 31:
                            p += 2
                        elif p + 2 > 31 or tail:
                            tail.append(l)
                        else:
                            at(p, l)
                    at(31, tail)
                for i in range(32):
                    A(f"v_exp_f32 v{cur+i}, v{cur+i}")
                    for l in ins.get(i, []): A(l)
        A("s_nop 1")
        A(sm(15, 1, 1, 1))
        ST.t(2)

    def cs(name):
        if not OPT.get("chain"): return
        A("s_memtime s[88:89]")
        A("s_waitcnt lgkmcnt(0)")
        A("s_sub_u32 s88, s88, s80")
        A("s_mov_b32 m0, s35")
        A(f"v_writelane_b32 v{IDX}, s88, m0")
        A("s_add_u32 s35, s35, 1")
        A.c("stamp " + name)

    def arrive(k):
        A(f"""
        v_mov_b32 v{T0+8}, {CNT}
        v_mov_b32 v{T0+7}, 1
        s_mov_b64 exec, 1
        ds_add_u32 v{T0+8}, v{T0+7}{off(4*k)}
        s_mov_b64 exec, -1
        """)

    def gwait(k, sl=1):
        l = lab("K2_gw")
        A(f"""
        v_mov_b32 v{T0+8}, {CNT}
        {l}:
        ds_read_b32 v{T0+7}, v{T0+8}{off(4*k)}
        s_waitcnt lgkmcnt(0)
        v_readfirstlane_b32 s4, v{T0+7}
        s_cmp_ge_u32 s4, 4
        s_cbranch_scc1 {l}_d
        s_sleep {sl}
        s_branch {l}
        {l}_d:
        """)

    def gettag():
        l = lab("K2_tag")
        A(f"""
        s_mov_b32 s5, {SPIN}
        {l}:
        buffer_load_dword v{TAGV}, off, s[{sDBG}:{sDBG+3}], 0 sc1
        s_sub_u32 s5, s5, 1
        s_waitcnt vmcnt(0)
        v_readfirstlane_b32 s{sTAG}, v{TAGV}
        s_cbranch_scc1 {l}_d
        s_cmp_eq_u32 s{sTAG}, 0
        s_cbranch_scc1 {l}
        {l}_d:
        """)

    A(f"s_setprio {OPT.get('oprio', 2)}")
    attention(True)
    if "sprio" in OPT: A(f"s_setprio {OPT['sprio']}")
    if OPT.get("quit"):
        ST.flush(v=20)
        A("s_endpgm")
    if OPT.get("chain"): A("s_mov_b32 s35, 0")
    cs("loop end")
    srd(A, sWO, 16, 576 * 1152)
    srd(A, sO, 72, XB)
    A("s_cmp_eq_u32 s64, 0")
    A("s_cbranch_scc1 K2_nodma")
    nd = OPT.get("dma", (23, 32, 18))[2]
    for x in range(nd, 28):
        for l in moe_dma(x): A(l)
        A(f"s_waitcnt vmcnt({OPT.get('wopace', 3)})")
    A("K2_nodma:")
    scratch_addrs(0, WREG)
    A.c("---- MoE gate/up partials over this wave's k quarter")
    A(f"""
    v_bfe_u32 v{T0+5}, v{LANE}, 2, 2
    v_lshrrev_b32 v{T0+1}, 5, v{LANE}
    v_lshl_add_u32 v{T0+6}, v{T0+1}, 3, v{T0+5}
    v_bfe_u32 v{T0+2}, v{LANE}, 4, 1
    v_lshlrev_b32 v{T0+2}, 5, v{T0+2}
    v_and_b32 v{T0+3}, 3, v{LANE}
    v_lshl_add_u32 v{T0+2}, v{T0+3}, 3, v{T0+2}
    v_add_u32 v{T0+2}, s42, v{T0+2}
    v_lshl_add_u32 v{T0}, v{T0+6}, 6, v{T0+2}
    v_lshl_add_u32 v{T0+6}, v{T0+6}, 8, v{T0+2}
    v_bfe_u32 v{T0+2}, v{LANE}, 2, 1
    v_lshlrev_b32 v{T0+3}, 9, v{T0+2}
    v_lshl_add_u32 v{T0+3}, v{T0+1}, 4, v{T0+3}
    v_add_u32 v{T0+3}, s42, v{T0+3}
    s_lshl_b32 s4, s40, 7
    s_add_u32 s4, s4, {HS}
    v_lshlrev_b32 v{T0+4}, 6, v{T0+2}
    v_lshl_add_u32 v{T0+4}, v{T0+1}, 4, v{T0+4}
    v_add_u32 v{T0+4}, s4, v{T0+4}
    s_lshl_b32 s4, s40, 9
    s_add_u32 s4, s4, {HP}
    v_lshl_add_u32 v{T0+1}, v{LANE}, 2, s4
    s_waitcnt vmcnt(0) lgkmcnt(0)
    """)
    cs("addr+vm0")
    A(f"""
    s_cmp_eq_u32 s64, 0
    s_cbranch_scc1 K2_nogu
    """)
    G, U = 128, 148
    fr = [0, 12, 24, 36, 48, 164, 176, 188, 200]

    def gu(k):
        A(mfma(vr(G, 16), vr(fr[k], 4), vr(fr[k] + 4, 4), "0" if k == 0 else vr(G, 16)))
        A(mfma(vr(U, 16), vr(fr[k], 4), vr(fr[k] + 8, 4), "0" if k == 0 else vr(U, 16)))
    for u in range(9):
        A(f"ds_read_b128 {vr(fr[u],4)}, v{T0+3} offset:{28672+32*u}")
        for m in range(2):
            for a in range(2):
                A(f"ds_read_b64_tr_b16 {vr(fr[u]+4+4*m+2*a,2)}, v{T0}{off(9216*m+1024*u+256*a)}")
        if u >= 2:
            A("s_waitcnt lgkmcnt(10)")
            gu(u - 2)
    A("s_waitcnt lgkmcnt(5)"); gu(7)
    A("s_waitcnt lgkmcnt(0)"); gu(8)
    A("K2_nogu:")
    cs("gate/up")
    for t in range(3):
        for l in owrite(t): A(l)
    A("s_nop 2")
    A(f"ds_write2st64_b32 v{T0+1}, v{G}, v{U} offset0:0 offset1:1")
    cs("owrite")
    A("s_branch K2_fin0")

    A("K2_young:")
    A(f"s_setprio {OPT.get('yprio', 1)}")
    A(f"""
    v_mov_b32 v14, {CNT}
    v_mov_b32 v12, 0
    v_mov_b32 v13, 0
    ds_write_b128 v14, v[10:13]
    ds_write_b128 v14, v[10:13] offset:16
    s_waitcnt lgkmcnt(0)
    s_barrier
    s_or_b32 s4, s2, s40
    s_cmp_lg_u32 s4, 0
    s_cbranch_scc1 K2_notag
    """)
    A.c("hand-off tag of this launch: successor of the word the previous launch left, published through d_debug[0]")
    A(f"""
    s_mov_b32 s4, {EP}
    buffer_load_dword v14, off, {ws}, s4 sc1
    s_mov_b32 s5, 1664525
    s_waitcnt vmcnt(0)
    v_mul_lo_u32 v14, v14, s5
    v_add_u32 v14, 1013904223, v14
    v_max_u32 v14, 1, v14
    s_mov_b64 exec, 1
    buffer_store_dword v14, off, {ws}, s4 sc1
    buffer_store_dword v14, off, s[{sDBG}:{sDBG+3}], 0 sc1
    s_mov_b64 exec, -1
    s_waitcnt vmcnt(0)
    K2_notag:
    """)
    attention(False)
    A("K2_fin0:")
    o = O[3]
    A.c("LDS executes a wave's operations in order: the count is bumped after this wave's writes, and reads issued")
    A.c("behind a count of 4 see every partial")
    A(f"""
    s_mov_b64 exec, 1
    ds_add_u32 v{T0+8}, v{T0+7}
    s_mov_b64 exec, -1
    K2_fin1:
    ds_read_b32 v0, v{T0+8}
    """)
    for t in range(3):
        A(f"ds_read_b128 {vr(O[t],4)}, v{RD+t}{off(3072*t)}")
        A(f"ds_read_b128 {vr(O[t]+4,4)}, v{RD+t}{off(3072*t+1024)}")
        A(f"ds_read_b64 {vr(O[t]+8,2)}, v{RD+t}{off(3072*t+2048)}")
    A("""
    s_waitcnt lgkmcnt(9)
    v_readfirstlane_b32 s4, v0
    s_cmp_lt_u32 s4, 4
    s_cbranch_scc1 K2_fin1
    """)
    A(f"s_mov_b32 s4, {f32bits(2.0**-30)}")
    A(f"s_mov_b32 s5, {f32bits(2.0**60)}")
    for t in range(3):
        A(f"s_waitcnt lgkmcnt({3*(2-t)})")
        for i in range(5):
            A(f"v_pk_add_f32 {vr(o+2*i,2)}, {vr(o+2*i,2)}, {vr(O[t]+2*i,2)}")
    A.c("safety check of the unshifted softmax: denominator in [2^-30, 2^60], numerators finite; else redo with the true max")
    A(f"""
    v_cmp_le_f32 s[6:7], s4, v{o+9}
    v_cmp_ge_f32 s[8:9], s5, v{o+9}
    v_max3_f32 v0, abs(v{o}), abs(v{o+1}), abs(v{o+2})
    v_max3_f32 v1, abs(v{o+3}), abs(v{o+4}), abs(v{o+5})
    v_max3_f32 v2, abs(v{o+6}), abs(v{o+7}), abs(v{o+8})
    v_max3_f32 v0, v0, v1, v2
    s_and_b64 s[6:7], s[6:7], s[8:9]
    v_cmp_gt_f32 vcc, {f32bits(2.0**120)}, v0
    s_and_b64 vcc, vcc, s[6:7]
    s_cmp_eq_u64 vcc, exec
    s_cbranch_scc0 K2_slow
    """)
    A("K2_fin:")
    A(f"""
    v_rcp_f32 v0, v{o+9}
    s_cmp_eq_u32 s39, 0
    v_mul_f32 v2, v{o+8}, v0
    v_mul_f32 v3, v{o+8}, v0
    """)
    for i in range(4):
        A(f"v_pk_mul_f32 {vr(o+2*i,2)}, {vr(o+2*i,2)}, v[0:1] op_sel_hi:[1,0]")
    A("v_permlane32_swap_b32 v2, v3")
    for i in range(4):
        A(f"v_cvt_pk_bf16_f32 v{4+i}, v{o+2*i}, v{o+2*i+1}")
    A(f"""
    v_cvt_pk_bf16_f32 v2, v2, v3
    buffer_store_dwordx4 v[4:7], v{PM}, {ws}, s65 offen sc1
    buffer_store_dword v2, v{PE}, {ws}, s66 offen sc1
    s_cbranch_scc1 K2_old2
    v_readfirstlane_b32 s{sTAG}, v{TAGV}
    s_cmp_lg_u32 s{sTAG}, 0
    s_cbranch_scc1 K2_havetag
    """)
    gettag()
    A(f"""
    K2_havetag:
    v_lshlrev_b32 v8, 8, v{LANE}
    s_mov_b64 exec, 1
    ds_add_u32 v{T0+8}, v{T0+7} offset:4
    s_mov_b64 exec, 0xff
    s_waitcnt vmcnt(0)
    buffer_store_dword v{TAGV}, v8, {ws}, s61 offen sc1
    """)
    if gen1.DIAG:
        ST.t(4); A("s_waitcnt vmcnt(0)")
    ST.flush(v=20)
    A("K2_end:")
    A("s_endpgm")

    A("K2_old2:")
    cs("fin")
    A("s_cmp_eq_u32 s64, 0")
    A("s_cbranch_scc1 K2_nodown")
    A.c("---- MoE: h = silu(gate) * up, then this wave's w_down column tiles")
    A(f"v_lshlrev_b32 v8, 2, v{LANE}")
    A(f"v_add_u32 v8, {HP}, v8")
    for k in range(4):
        A(f"ds_read2st64_b32 {vr(10+2*k,2)}, v8 offset0:{2*k} offset1:{2*k+1}")
    for t in range(4):
        A(f"v_xor_b32 v{20+t}, {t}, v{T0+5}")
        A(f"v_lshl_add_u32 v{20+t}, v{20+t}, 6, v{T0+6}")
    A(f"""
    s_lshl_b32 s4, s40, 7
    s_add_u32 s4, s4, {HS}
    v_lshl_add_u32 v9, v{LANE}, 1, s4
    s_waitcnt lgkmcnt(0)
    v_pk_add_f32 v[10:11], v[10:11], v[12:13]
    v_pk_add_f32 v[14:15], v[14:15], v[16:17]
    v_pk_add_f32 v[10:11], v[10:11], v[14:15]
    v_mul_f32 v12, {0x80000000 | LOG2E}, v10
    v_exp_f32 v12, v12
    v_mul_f32 v10, v10, v11
    v_add_f32 v12, 1.0, v12
    v_rcp_f32 v12, v12
    s_nop 0
    v_mul_f32 v10, v10, v12
    v_cvt_pk_bf16_f32 v10, v10, v10
    ds_write_b16 v9, v10
    ds_read_b128 v[12:15], v{T0+4}
    ds_read_b128 v[16:19], v{T0+4} offset:32
    """)
    for t in range(5):
        for s2 in range(2):
            for a in range(2):
                if t < 4:
                    A(f"ds_read_b64_tr_b16 {vr(24+8*t+4*s2+2*a,2)}, v{20+t} offset:{18432+(16*s2+4*a)*256}")
                else:
                    A(f"ds_read_b64_tr_b16 {vr(24+8*t+4*s2+2*a,2)}, v{T0} offset:{26624+1024*s2+256*a}")
    A(f"""
    v_lshrrev_b32 v8, 5, v{LANE}
    v_mul_u32_u24 v8, 2304, v8
    v_add_u32 v8, v8, v{PE}
    s_mul_i32 s4, s41, 4608
    s_add_u32 s4, s4, {YP}
    s_lshl_b32 s5, s40, 9
    s_add_u32 s5, s5, s4
    s_and_b32 s6, s40, 1
    s_lshl_b32 s6, s6, 7
    s_add_u32 s6, s6, s4
    s_waitcnt lgkmcnt(0)
    """)
    Y = [128 + 16 * t for t in range(5)]
    for t in range(5):
        A(mfma(vr(Y[t], 16), "v[12:15]", vr(24 + 8 * t, 4), "0"))
        A(mfma(vr(Y[t], 16), "v[16:19]", vr(28 + 8 * t, 4), vr(Y[t], 16)))
    A("s_nop 7")
    for t in range(4):
        A(f"buffer_store_dword v{Y[t]}, v8, {ws}, s5 offen{off(128*t)} sc1")
    A(f"buffer_store_dword v{Y[4]}, v8, {ws}, s6 offen offset:2048 sc1")
    A("K2_nodown:")
    cs("down")
    arrive(1)
    gettag()
    cs("tag/drain")
    A(f"""
    s_lshl_b32 s4, s41, 7
    s_lshl_b32 s5, s40, 2
    s_add_u32 s4, s4, s5
    s_add_u32 s4, s4, {FY}
    s_cmp_eq_u32 s64, 0
    s_cselect_b32 s4, s61, s4
    v_lshlrev_b32 v8, 8, v{LANE}
    s_mov_b64 exec, 0xff
    buffer_store_dword v{TAGV}, v8, {ws}, s61 offen sc1
    s_mov_b64 exec, 1
    buffer_store_dword v{TAGV}, off, {ws}, s4 sc1
    s_mov_b64 exec, -1
    """)
    ACC, BX, OF, WF, XR, GV = 0, 20, 40, 76, 216, 226
    B1, B2, E1, E2, OEA, FA, SG1, SG2 = 228, 229, 230, 231, 232, 233, 234, 235
    OUT, XA, XA2, TOK = 240, 243, 244, 245
    YB = STG + 4 * 3072

    Y0 = WF
    nosel = OPT.get("nomoe2") or OPT.get("nosel")

    def yflag_load():
        A(f"buffer_load_dwordx4 {vr(Y0+96,4)}, v{T0+2}, {ws}, s65 offen sc1")

    def y_first():
        A(f"""
        s_lshr_b32 s6, s54, 2
        s_lshr_b32 s4, s70, 6
        s_cmp_eq_u32 s4, {"-1" if nosel else "s6"}
        s_cselect_b32 s64, 1, 0
        s_lshr_b32 s4, s71, 6
        s_cmp_eq_u32 s4, {"-1" if nosel else "s6"}
        s_cselect_b32 s4, 2, 0
        s_or_b32 s64, s64, s4
        s_cbranch_scc0 K2_noy0
        v_min_u32 v{T0+2}, 35, v{LANE}
        v_lshlrev_b32 v{T0+2}, 7, v{T0+2}
        s_mul_i32 s65, s40, {36*128}
        s_add_u32 s65, s65, {FY}
        """)
        yflag_load()
        A("K2_noy0:")

    def y_sum():
        A(f"""
        s_cmp_eq_u32 s64, 0
        s_cbranch_scc1 K2_noy1
        s_mov_b32 s5, {SPIN}
        K2_ypoll:
        v_cmp_ne_u32 vcc, s{sTAG}, v{Y0+96}
        v_cmp_ne_u32 s[8:9], s{sTAG}, v{Y0+97}
        v_cmp_ne_u32 s[10:11], s{sTAG}, v{Y0+98}
        s_or_b64 s[8:9], s[8:9], vcc
        v_cmp_ne_u32 vcc, s{sTAG}, v{Y0+99}
        s_or_b64 s[8:9], s[8:9], s[10:11]
        s_or_b64 s[8:9], s[8:9], vcc
        s_cbranch_scc0 K2_ypolled
        """)
        yflag_load()
        A(f"""
        s_sub_u32 s5, s5, 1
        s_waitcnt vmcnt(0)
        s_cbranch_scc0 K2_ypoll
        K2_ypolled:
        v_min_u32 v{T0}, 53, v{LANE}
        v_mul_u32_u24 v{T0+1}, 3641, v{T0}
        v_lshrrev_b32 v{T0+1}, 16, v{T0+1}
        v_mul_u32_u24 v{T0+1}, {4608-288}, v{T0+1}
        v_lshl_add_u32 v{T0}, v{T0}, 4, v{T0+1}
        s_lshl_b32 s6, s40, 10
        s_add_u32 s6, s6, {YB}
        v_add_u32 v{T0+1}, s6, v{L16}
        """)
        for sel in range(2):
            A(f"""
            s_bitcmp1_b32 s64, {sel}
            s_cbranch_scc0 K2_noys{sel}
            s_lshl_b32 s6, s55, 1
            s_mul_i32 s7, s40, {36*4608}
            s_add_u32 s6, s6, s7
            s_add_u32 s6, s6, {YP + 2304*sel}
            """)
            for u in range(12):
                A(f"buffer_load_dwordx4 {vr(Y0+4*u,4)}, v{T0}, {ws}, s6 offen sc1")
                A(f"s_add_u32 s6, s6, {3*4608}")
            for u in range(1, 12):
                A(f"s_waitcnt vmcnt({11-u})")
                for hf in range(2):
                    A(f"v_pk_add_f32 {vr(Y0+2*hf,2)}, {vr(Y0+2*hf,2)}, {vr(Y0+4*u+2*hf,2)}")
            A(f"ds_write_b128 v{T0+1}, {vr(Y0,4)}{off(4096*sel)}")
            A("s_waitcnt lgkmcnt(0)")
            A(f"K2_noys{sel}:")
        arrive(5)
        A("K2_noy1:")

    if OPT.get("p3map", 1):
        A.c("projection tiles are dealt so that one die works on the same tokens (speed only)")
        A("s_mov_b32 s4, s37\ns_mov_b32 s37, s43\ns_mov_b32 s43, s4")
    A.c("s54 = 16-token tile of this wave, s55 = byte offset of the channel block")
    A(f"""
    s_lshl_b32 s54, s37, 3
    s_and_b32 s4, s43, 1
    s_lshl_b32 s4, s4, 2
    s_add_u32 s54, s54, s4
    s_add_u32 s54, s54, s40
    s_lshr_b32 s55, s43, 1
    s_mul_i32 s55, s55, 144
    v_mul_u32_u24 v0, 6554, v{LANE}
    v_lshrrev_b32 v0, 16, v0
    v_mul_u32_u24 v1, {1152-160}, v0
    s_mul_i32 s4, s40, {6*1152}
    s_add_u32 s4, s4, s55
    v_add3_u32 v{XA}, v1, v{L16}, s4
    s_mul_i32 s42, s40, 960
    v_and_b32 v3, 15, v{LANE}
    v_lshrrev_b32 v4, 4, v{LANE}
    s_lshl_b32 s8, s54, 4
    v_add_u32 v{TOK}, s8, v3
    v_and_b32 v6, 1, v4
    v_lshlrev_b32 v5, 2, v{TOK}
    s_mov_b32 s5, {GB}
    buffer_load_dword v{GV}, v5, {ws}, s5 offen
    s_mul_i32 s5, s40, 3072
    s_add_u32 s97, s5, {STG}
    s_mul_i32 s8, s8, 1152
    s_add_u32 s8, s8, s55
    """)
    for n in range(3):
        A(f"""
        v_add_u32 v5, {64*n}, v{LANE}
        v_mul_u32_u24 v7, 7282, v5
        v_lshrrev_b32 v7, 16, v7
        v_mul_u32_u24 v7, {1152-144}, v7
        v_lshl_add_u32 v7, v5, 4, v7
        v_add_u32 v{OUT+n}, s8, v7
        """)
    A(f"""
    v_cmp_gt_u32 vcc, 16, v{LANE}
    v_bfrev_b32 v5, -2
    s_lshr_b32 s6, s2, 3
    v_cndmask_b32 v{OUT+2}, v5, v{OUT+2}, vcc
    s_and_b32 s6, s6, 3
    s_mul_i32 s66, s6, 6
    s_mov_b32 s62, 0xdff7fdff
    s_mov_b32 s63, 0x7fdff7f
    """)
    gwait(1)
    cs("gwait1")
    for n in range(3):
        A(f"s_add_u32 m0, s97, {1024*n}")
        A("s_nop 0")
        A(f"buffer_load_dwordx4 v{OUT+n}, s[{sX}:{sX+3}], 0 offen lds")
    def wodma(cnt):
        l = lab("K2_wodma")
        A(f"""
        s_mov_b32 s7, {cnt}
        s_mov_b64 exec, s[62:63]
        {l}:
        s_mul_i32 s4, s66, 3840
        s_add_u32 m0, s4, s42
        s_mul_i32 s67, s66, {24*1152}
        buffer_load_dwordx4 v{XA}, s[{sWO}:{sWO+3}], s67 offen lds
        s_add_u32 s66, s66, 1
        s_cmp_eq_u32 s66, 24
        s_cselect_b32 s66, 0, s66
        s_sub_u32 s7, s7, 1
        s_cmp_lg_u32 s7, 0
        s_waitcnt vmcnt({OPT.get('wopace', 3)})
        s_cbranch_scc1 {l}
        s_mov_b64 exec, -1
        """)

    def poll():
        l = lab("K2_poll")
        A(f"""
        s_add_u32 s6, s98, 4096
        s_mov_b32 s5, {SPIN}
        {l}:
        buffer_load_dword v{T0}, v{FA}, {ws}, s100 offen sc1
        s_sub_u32 s5, s5, 1
        s_cbranch_scc1 {l}_d
        s_waitcnt vmcnt(0)
        v_cmp_ne_u32 vcc, s{sTAG}, v{T0}
        s_cbranch_vccnz {l}
        {l}_d:
        """)

    def oloads():
        for ks in range(8):
            A(f"buffer_load_dwordx4 {vr(OF+4*ks,4)}, v{L16}, {ws}, s{98 if ks < 4 else 6} offen{off(1024*(ks%4))} sc1")
        for c in range(4):
            A(f"buffer_load_dword v{OF+32+c}, v{OEA}, {ws}, s99 offen{off(128*c)} sc1")

    wodma(4)
    A(f"""
    v_mul_u32_u24 v5, 144, v3
    v_add_u32 v5, s97, v5
    v_lshl_add_u32 v{SG1}, v4, 3, v5
    v_lshl_add_u32 v{SG2}, v6, 3, v5
    v_lshlrev_b32 v5, 2, v3
    v_lshl_add_u32 v{OEA}, v4, 9, v5
    v_lshlrev_b32 v{FA}, 2, v3
    v_bfe_u32 v7, v{LANE}, 2, 2
    v_lshrrev_b32 v5, 1, v4
    v_mul_u32_u24 v5, 18, v5
    v_lshl_add_u32 v5, v6, 2, v5
    v_add_u32 v5, v5, v7
    v_mul_u32_u24 v5, 160, v5
    v_and_b32 v8, 3, v{LANE}
    v_and_b32 v9, 1, v{LANE}
    v_lshl_add_u32 v{B1}, v8, 3, v5
    v_lshl_add_u32 v{B2}, v9, 3, v5
    v_lshrrev_b32 v5, 1, v7
    v_lshl_add_u32 v5, v4, 2, v5
    v_mul_u32_u24 v5, 18, v5
    v_and_b32 v7, 1, v7
    v_add3_u32 v5, v5, v7, 16
    v_mul_u32_u24 v5, 160, v5
    v_lshl_add_u32 v{E1}, v8, 3, v5
    v_lshl_add_u32 v{E2}, v9, 3, v5
    s_lshl_b32 s4, s54, 13
    s_add_u32 s98, s4, {OM}
    s_lshr_b32 s4, s54, 1
    s_lshl_b32 s4, s4, 11
    s_and_b32 s5, s54, 1
    s_lshl_b32 s5, s5, 6
    s_add_u32 s4, s4, s5
    s_add_u32 s99, s4, {OE}
    s_lshl_b32 s4, s37, 4
    s_add_u32 s4, s4, s43
    s_lshl_b32 s4, s4, 7
    s_lshr_b32 s5, s40, 1
    s_lshl_b32 s5, s5, 6
    s_add_u32 s4, s4, s5
    s_add_u32 s100, s4, {FO}
    s_mov_b32 s101, 0
    """)
    for i in range(20):
        A(f"v_mov_b32 v{ACC+i}, 0")
    wodma(20)
    cs("wo dma")
    y_first()
    poll()
    A("s_waitcnt vmcnt(0)")
    cs("polled")
    arrive(2)
    y_sum()
    A("s_add_u32 s6, s98, 4096")
    oloads()
    cs("yred")
    for T in range(5):
        A(f"ds_read_b64 {vr(XR+2*T,2)}, v{SG1 if T < 4 else SG2}{off(32*T)}")
    gwait(2)
    cs("gwait2")

    def wreads(ks):
        f = WF + 20 * (ks % 7)
        r = []
        for T in range(5):
            for a in range(2):
                if ks < 8:
                    b, im = (B1 if T < 4 else B2), (36 * ks + 8 * a) * 160
                else:
                    b, im = (E1 if T < 4 else E2), 36 * a * 160
                im += 32 * T
                r.append(f"ds_read_b64_tr_b16 {vr(f+4*T+2*a,2)}, v{b}{off(im)}")
        return r

    A("K2_p3:")
    for ks in range(7):
        for l in wreads(ks): A(l)
    cs("preload")
    A("s_cmp_lg_u32 s101, 0")
    A("s_cbranch_scc1 K2_pass1")
    ST.t(3)
    gwait(4, 2)
    cs("window")
    A("s_branch K2_mms")
    A("K2_pass1:")
    poll()
    if not OPT.get("chain"): ST.t(4)
    cs("polled")
    oloads()
    A("K2_mms:")
    A("s_waitcnt lgkmcnt(0)")
    for ks in range(9):
        A(f"s_waitcnt vmcnt({11-ks if ks < 8 else 0})" + (" lgkmcnt(0)" if ks == 7 else ""))
        f = WF + 20 * (ks % 7)
        late = wreads(ks + 6) if ks in (1, 2) else []
        for T in range(5):
            A(mf16(vr(ACC + 4 * T, 4), vr(f + 4 * T, 4), vr(OF + 4 * ks, 4), vr(ACC + 4 * T, 4)))
            for l in late[2 * T:2 * T + 2]: A(l)
    cs("mfma")
    A("s_cmp_eq_u32 s101, 0")
    A("s_cbranch_scc1 K2_mid")
    A(f"v_add_u32 v{T0}, s97, v{L16}")
    A("s_nop 1")
    for i in range(10):
        A(f"v_pk_fma_f32 {vr(ACC+2*i,2)}, {vr(ACC+2*i,2)}, {vr(GV,2)}, {vr(BX+2*i,2)}")
        A(f"v_cvt_pk_bf16_f32 v{XR+i}, v{ACC+2*i}, v{ACC+2*i+1}")
        if i % 2: A(f"ds_write_b64 v{SG1 if i < 8 else SG2}, {vr(XR+i-1,2)}{off(16*(i-1))}")
    for n in range(3):
        A(f"ds_read_b128 {vr(OF+4*n,4)}, v{T0}{off(1024*n)}")
    for n in range(3):
        A(f"s_waitcnt lgkmcnt({2-n})")
        A(f"buffer_store_dwordx4 {vr(OF+4*n,4)}, v{OUT+n}, s[{sO}:{sO+3}], 0 offen")
    cs("epilogue")
    if gen1.DIAG: A("s_waitcnt vmcnt(0)")
    cs("drain")
    if OPT.get("chain"):
        A(f"""
        s_lshl_b32 s4, s2, 2
        s_add_u32 s4, s4, s38
        s_lshl_b32 s4, s4, 8
        s_add_u32 s4, s4, 0xD00000
        v_lshlrev_b32 v80, 2, v{LANE}
        buffer_store_dword v{IDX}, v80, {ws}, s4 offen
        """)
    ST.flush(v=80)
    A("s_endpgm")

    A.c("---- between the halves: routed tokens of this wave's tile get sigmoid(r) * y; then b *= 1 - g")
    A("K2_mid:")
    A("s_mov_b32 s5, 0xffff0000")
    for i in range(10):
        A(f"v_lshlrev_b32 v{BX+2*i}, 16, v{XR+i}")
        A(f"v_and_b32 v{BX+2*i+1}, s5, v{XR+i}")
    YT = OF
    for sel in range(2):
        A(f"""
        s_lshr_b32 s4, s{70+sel}, 4
        s_cmp_lg_u32 s4, {"-1" if OPT.get("nomoe2") or OPT.get("nosel") else "s54"}
        s_cbranch_scc1 K2_nosel{sel}
        """)
        gwait(5)
        A(f"""
        v_lshlrev_b32 v{T0}, 3, v{LANE}
        v_add_u32 v{T0+1}, {YB + 4096*sel}, v{T0}
        """)
        for k in range(12):
            A(f"ds_read_b64 {vr(YT+2*k,2)}, v{T0+1}{off(1024*(k//3)+288*(k%3))}")
        A(f"""
        v_add_u32 v{T0}, s97, v{T0}
        s_ashr_i32 s6, s{68+sel}, 31
        s_not_b32 s6, s6
        s_or_b32 s6, s6, 0x80000000
        s_xor_b32 s6, s6, s{68+sel}
        s_and_b32 s6, s6, 0xffff0000
        v_mov_b32 v{T0+3}, {0x80000000 | LOG2E}
        v_mul_f32 v{T0+3}, s6, v{T0+3}
        v_exp_f32 v{T0+3}, v{T0+3}
        v_lshrrev_b32 v{T0+2}, 4, v{LANE}
        v_add_f32 v{T0+3}, 1.0, v{T0+3}
        v_rcp_f32 v{T0+3}, v{T0+3}
        v_lshl_add_u32 v{T0+1}, v{T0+2}, 4, s97
        v_and_b32 v{T0+2}, 1, v{T0+2}
        v_lshl_add_u32 v{T0+2}, v{T0+2}, 4, s97
        s_waitcnt lgkmcnt(0)
        """)
        for k in range(1, 12):
            A(f"v_pk_add_f32 {vr(YT,2)}, {vr(YT,2)}, {vr(YT+2*k,2)}")
        A(f"ds_write_b64 v{T0}, {vr(YT,2)}")
        for p in range(4):
            A(f"ds_read_b128 {vr(YT+4+4*p,4)}, v{T0+1}{off(64*p)}")
        A(f"ds_read_b128 {vr(YT+20,4)}, v{T0+2} offset:256")
        A(f"""
        v_cmp_eq_u32 vcc, s{70+sel}, v{TOK}
        s_waitcnt lgkmcnt(0)
        s_and_saveexec_b64 s[8:9], vcc
        """)
        for i in range(20):
            A(f"v_fmac_f32 v{BX+i}, v{YT+4+i}, v{T0+3}")
        A("s_mov_b64 exec, s[8:9]")
        A(f"K2_nosel{sel}:")
    A(f"v_sub_f32 v{T0+1}, 1.0, v{GV}")
    A(f"v_mov_b32 v{GV+1}, v{GV}")
    for i in range(10):
        A(f"v_pk_mul_f32 {vr(BX+2*i,2)}, {vr(BX+2*i,2)}, {vr(T0+1,2)} op_sel_hi:[1,0]")
    for b in (B1, B2, E1, E2):
        A(f"v_add_u32 v{b}, {288*160}, v{b}")
    A(f"""
    s_add_u32 s98, s98, {128*8192}
    s_add_u32 s99, s99, {64*2048}
    s_add_u32 s100, s100, {256*128}
    s_mov_b32 s101, 1
    """)
    cs("mid")
    A("s_branch K2_p3")

    A.c("---- slow path: two passes over all keys with the true row maximum (own q tile)")
    A("K2_slow:")
    M, QA = 40, 42
    A(f"""
    s_lshr_b32 s4, s40, 1
    s_lshl_b32 s4, s4, 9
    s_and_b32 s5, s40, 1
    s_lshl_b32 s5, s5, 3
    s_or_b32 s4, s4, s5
    v_and_b32 v{QA}, 0x1ff, v{L16}
    s_add_u32 s4, s4, s60
    buffer_load_dwordx2 {vr(QE,2)}, v{QA}, {ws}, s4 offen
    buffer_load_dwordx4 {vr(QM,4)}, v{L16}, {ws}, s59 offen
    v_and_b32 v4, 31, v{LANE}
    v_or_b32 v5, 4, v4
    v_cmp_eq_u32 vcc, 21, v5
    v_mov_b32 v6, 0x3f803f80
    s_bitcmp0_b32 s36, 0
    v_cndmask_b32 v{VV[0]}, 0, v6, vcc
    s_cselect_b32 s4, -1, 0
    s_cselect_b32 s5, 0, -1
    """)
    for i in range(1, 8):
        A(f"v_mov_b32 v{VV[0]+i}, v{VV[0]}")
    for i in range(16):
        A(f"v_mov_b32 v{o+i}, 0")
    A(f"""
    v_mov_b32 v{M}, 0xff800000
    s_waitcnt vmcnt(0)
    v_and_b32 v{QE}, s4, v{QE}
    v_and_b32 v{QE+1}, s5, v{QE+1}
    s_lshl_b32 s8, s36, 16
    s_add_u32 s8, s8, {32*65536}
    s_lshl_b32 s9, s40, 12
    s_sub_u32 s9, s{sKE}, s9
    s_mul_i32 s10, s36, 73728
    s_add_u32 s10, s10, {VB}
    """)
    for pas in range(2):
        A("s_mov_b32 s11, 0")
        A(f"K2_slow{pas}:")
        A(f"""
        s_lshl_b32 s4, s11, 10
        s_add_u32 s4, s4, s8
        s_lshr_b32 s5, s11, 1
        s_lshl_b32 s5, s5, 9
        s_and_b32 s6, s11, 1
        s_lshl_b32 s6, s6, 3
        s_add_u32 s5, s5, s6
        s_add_u32 s5, s5, s9
        buffer_load_dwordx4 {vr(KM[0],4)}, v{L16}, {ws}, s4 offen
        buffer_load_dwordx2 {vr(KE,2)}, v{QA}, {ws}, s5 offen
        """)
        if pas:
            A(f"""
            s_mul_i32 s4, s11, 1152
            s_add_u32 s4, s4, s10
            s_mov_b64 exec, s[62:63]
            buffer_load_dwordx4 {vr(VV[0],4)}, v{VA}, {ws}, s4 offen
            buffer_load_dwordx4 {vr(VV[0]+4,4)}, v{VA}, {ws}, s4 offen offset:576
            s_mov_b64 exec, -1
            """)
        A(f"""
        s_waitcnt vmcnt(0)
        v_mfma_f32_32x32x4_2b_bf16 v[0:31], {vr(KE,2)}, {vr(QE,2)}, 0
        s_nop 15
        s_nop 3
        {mfma("v[0:15]", vr(KM[0],4), vr(QM,4), "v[0:15]")}
        s_nop 15
        """)
        if not pas:
            for i in range(8):
                A(f"v_max3_f32 v{M}, v{M}, v{2*i}, v{2*i+1}")
        else:
            for i in range(16):
                A(f"v_sub_f32 v{i}, v{i}, v{M}")
            for i in range(16):
                A(f"v_exp_f32 v{i}, v{i}")
            A("s_nop 1")
            A(f"v_smfmac_f32_32x32x32_bf16 {vr(o,16)}, {vr(VV[0],4)}, v[0:7], v{IDX}")
            A(f"v_smfmac_f32_32x32x32_bf16 {vr(o,16)}, {vr(VV[0]+4,4)}, v[8:15], v{IDX}")
            A("s_nop 15")
        A(f"""
        s_add_u32 s11, s11, 1
        s_cmp_lt_u32 s11, 64
        s_cbranch_scc1 K2_slow{pas}
        """)
        if not pas:
            A(f"""
            v_mov_b32 v{M+1}, v{M}
            s_nop 1
            v_permlane32_swap_b32 v{M}, v{M+1}
            s_nop 1
            v_max_f32 v{M}, v{M}, v{M+1}
            """)
    A("s_branch K2_fin")
    return CNT + 32


def build():
    A = Asm()
    A('.amdgcn_target "amdgcn-amd-amdhsa--gfx950"')
    A(".text")
    gen1.k1(A)
    lds = k23(A)
    A('.section .rodata,"a"')
    A(".p2align 6")
    A.raw(descriptor("k1_kernel", 200, 200))
    A(".p2align 6")
    A.raw(descriptor("k2_kernel", 256, 256))
    head = ("; gated mix of a 32-head attention block and a top-2 routed SwiGLU FFN (S=2048, D=576), two launches\n"
            "; @launch kernel=k1_kernel grid=(256,1,1) block=(512,1,1) lds=163840\n"
            f"; @launch kernel=k2_kernel grid=(256,1,1) block=(512,1,1) lds={lds}\n")
    return head + A.text()


if __name__ == "__main__":
    out = sys.argv[1]
    gen1.DIAG = len(sys.argv) > 2 and sys.argv[2] == "diag"
    if len(sys.argv) > 3:
        OPT = eval(sys.argv[3]); gen1.OPT = OPT
    open(out, "w").write(build())
```

```python
import sys
sys.path.insert(0, "gen")
from asmlib import *
import gen1
from gen1 import YP, WS_SIZE, XB, f32bits, QSCALE, LOG2E, mfma, Stamp
NAME = "gated_mix__mha_block__moe_arch_mod__prompt_kernel"
R = 110592
GB = 0x6C0000
RC = 0x6C4000
F1 = 0xA60000
OOB = 0x7FFFFF00

OM = 0x700000
OE = 0x900000
FO = 0xA00000
FY = 0xA40000
EP = 0xA50000
OPT = {}
SPIN = 1 << 17


def mf16(d, a, b, c):
    return f"v_mfma_f32_16x16x32_bf16 {d}, {a}, {b}, {c}"


def k23(A):
    kernel_head(A, NAME)
    sDBG, sX, sG, sWS, sD, sU, sWO, sO = 12, 16, 20, 24, 28, 32, 72, 76
    sW = 20
    S = [0, 32]
    O = [64, 80, 96, 112]
    QM, QE, KE = 128, 144, 148
    NB = 6
    KM = [164 + 12 * g for g in range(NB)]
    VV = [168 + 12 * g for g in range(NB)]
    IDX, L16, VA, LANE = 236, 237, 238, 239
    KA, VA2, KEA, GUA, XSA, TCH, TAGV, TMP = 240, 241, 242, 243, 244, 245, 246, 247
    CAND, PA, RET, ONE, CA = 248, 252, 253, 254, 255
    QEA = 251
    SW, PM, PE, RD = 243, 244, 245, 247
    DNA, DN5 = 240, 241
    T0 = 212
    sT = [44 + t for t in range(8)] + [72 + t for t in range(8)]
    sTAG = 53
    WREG = 29696
    BS = 4 * WREG
    HP = BS + 4 * 9216
    HS = HP + 2048
    CNT = HS + 512
    STG = 92160
    SLOT = 24576
    RGV = 6 * SLOT
    ws = f"s[{sWS}:{sWS+3}]"
    uid = [0]

    def lab(p):
        uid[0] += 1
        return f"{p}_{uid[0]}"

    def cs(name):
        if not OPT.get("chain"): return
        A("s_memtime s[88:89]")
        A("s_waitcnt lgkmcnt(0)")
        A("s_sub_u32 s88, s88, s80")
        A("s_mov_b32 m0, s96")
        A(f"v_writelane_b32 v{IDX}, s88, m0")
        A("s_add_u32 s96, s96, 1")
        A.c("stamp " + name)

    def csflush(k, v):
        if not OPT.get("chain"): return
        A(f"""
        s_lshl_b32 s4, s2, 2
        s_add_u32 s4, s4, s38
        s_lshl_b32 s4, s4, 8
        s_add_u32 s4, s4, {0xD00000 + 0x40000*k}
        v_lshlrev_b32 v{v}, 2, v{LANE}
        buffer_store_dword v{IDX}, v{v}, {ws}, s4 offen
        s_nop 1
        """)

    def arrive(k):
        A(f"""
        v_mov_b32 v{CA}, {CNT}
        v_mov_b32 v{ONE}, 1
        s_mov_b64 exec, 1
        ds_add_u32 v{CA}, v{ONE}{off(4*k)}
        s_mov_b64 exec, -1
        """)

    def gwait(k, sl=1):
        l = lab("K2_gw")
        A(f"""
        v_mov_b32 v{CA}, {CNT}
        {l}:
        ds_read_b32 v{ONE}, v{CA}{off(4*k)}
        s_waitcnt lgkmcnt(0)
        v_readfirstlane_b32 s4, v{ONE}
        s_cmp_ge_u32 s4, 4
        s_cbranch_scc1 {l}_d
        s_sleep {sl}
        s_branch {l}
        {l}_d:
        """)

    tagload = f"buffer_load_dword v{TAGV}, off, s[{sDBG}:{sDBG+3}], 0 sc1"

    def gettag():
        l = lab("K2_tag")
        A(f"""
        s_mov_b32 s5, {SPIN}
        {l}:
        s_waitcnt vmcnt(0)
        v_readfirstlane_b32 s{sTAG}, v{TAGV}
        s_cmp_lg_u32 s{sTAG}, 0
        s_cbranch_scc1 {l}_d
        {tagload}
        s_sub_u32 s5, s5, 1
        s_cbranch_scc0 {l}
        {l}_d:
        """)

    def lane_addrs(KA, VA, VA2, KEA):
        A(f"""
        s_lshr_b32 s4, s36, 1
        s_mul_i32 s4, s4, {9*256}
        s_and_b32 s5, s36, 1
        s_mul_i32 s5, s5, {5*256}
        s_add_u32 s5, s5, s4
        s_add_u32 s4, s4, 1024
        v_and_b32 v4, 31, v{LANE}
        v_lshrrev_b32 v6, 5, v{LANE}
        v_lshl_add_u32 v{KEA}, v4, 3, s4
        v_lshl_add_u32 v{KA}, v4, 3, s5
        v_lshl_add_u32 v{KA}, v6, 9, v{KA}
        s_mul_i32 s4, s36, 288
        s_add_u32 s4, s4, 36864
        v_min_u32 v5, 17, v4
        v_lshl_add_u32 v{VA}, v5, 4, s4
        v_mul_u32_u24 v5, 9216, v6
        v_add_u32 v{VA}, v{VA}, v5
        v_add_u32 v{VA2}, 18432, v{VA}
        """)

    def att_setup():
        A(f"""
        s_lshl_b32 s4, s3, 1
        s_bfe_u32 s5, s2, 0x10003
        s_add_u32 s43, s4, s5
        s_lshr_b32 s37, s2, 4
        s_lshl_b32 s36, s39, 4
        s_add_u32 s36, s36, s43
        """)
        A.c("s36 head, s37 q block (128), s38 wave, s39 head half, s40 key quarter, s43 head within half")
        lane_addrs(KA, VA, VA2, KEA)
        A(f"""
        s_mul_i32 s10, s37, {4*R}
        s_xor_b32 s11, s40, 3
        """)
        for t in range(4):
            A(f"s_xor_b32 s4, s11, {t}")
            A(f"s_mul_i32 s4, s4, {R}")
            A(f"s_add_u32 s{56+t}, s10, s4")
        A.c("q ext: half hh of pair c reads tile (c + 2hh) ^ 3 ^ kq; k ext: half hh of pair p reads tile 2p + hh")
        A(f"""
        s_and_b32 s4, s11, 1
        s_mul_i32 s5, s4, {R}
        s_add_u32 s60, s10, s5
        s_xor_b32 s4, s4, 1
        s_mul_i32 s5, s4, {R}
        s_add_u32 s52, s10, s5
        s_lshr_b32 s4, s11, 1
        v_xor_b32 v5, s4, v6
        s_mov_b32 s4, {2*R}
        v_mad_u32_u24 v{QEA}, v5, s4, v{KEA}
        s_mov_b32 s4, {R}
        v_mad_u32_u24 v{KEA}, v6, s4, v{KEA}
        s_mul_i32 s10, s40, {16*R}
        s_add_u32 s10, s10, 36864
        s_and_b32 s9, s37, {OPT.get("rot", 0)}
        """)
        for m in range(8):
            A(f"s_xor_b32 s4, s9, {m}")
            A(f"s_mul_i32 s4, s4, {2*R}")
            A(f"s_add_u32 s{sT[2*m]}, s10, s4")
            A(f"s_add_u32 s{sT[2*m+1]}, s{sT[2*m]}, {R}")
        A.c("projection flags this wave waits for: lanes 0-7 q, 8-15 k, 16-23 v; two channel blocks x four token blocks")
        A(f"""
        s_mul_i32 s4, s36, 18
        s_and_b32 s4, s4, 0xfffc
        s_add_u32 s5, s4, 19
        s_lshr_b32 s4, s4, 6
        s_lshr_b32 s5, s5, 6
        s_sub_u32 s5, s5, s4
        v_bfe_u32 v5, v{LANE}, 2, 1
        v_and_b32 v5, s5, v5
        v_bfe_u32 v7, v{LANE}, 3, 2
        v_min_u32 v7, 2, v7
        v_mad_u32_u24 v5, v7, 9, v5
        v_add_u32 v5, s4, v5
        v_and_b32 v8, 3, v{LANE}
        s_lshl_b32 s4, s40, 2
        v_add_u32 v8, s4, v8
        v_cmp_eq_u32 vcc, 0, v7
        v_mov_b32 v9, s37
        s_mov_b32 s62, 0x0011ffff
        v_cndmask_b32 v8, v8, v9, vcc
        v_lshl_add_u32 v5, v5, 4, v8
        s_mov_b32 s4, {F1}
        v_lshl_add_u32 v{PA}, v5, 5, s4
        s_mov_b32 s63, 0x0011ffff
        """)

    A("s_cmp_ge_u32 s2, 256")
    A("s_cbranch_scc1 K2_end")
    ST = Stamp(A, 0); ST.t(0)
    srd(A, sX, 0, XB)
    srd(A, sW, 8, 576 * 3456)
    srd(A, sWS, 88, WS_SIZE)
    srd(A, sDBG, 80, 256)
    A(f"""
    v_lshrrev_b32 v1, 6, v0
    v_and_b32 v{LANE}, 63, v0
    v_readfirstlane_b32 s38, v1
    v_lshlrev_b32 v{L16}, 4, v{LANE}
    s_and_b32 s3, s2, 7
    s_and_b32 s4, s2, 3
    s_bfe_u32 s5, s2, 0x20003
    s_lshl_b32 s68, s4, 2
    s_add_u32 s68, s68, s5
    s_lshr_b32 s6, s3, 2
    s_lshr_b32 s7, s2, 5
    s_lshl_b32 s8, s6, 3
    s_add_u32 s8, s8, s7
    s_mul_i32 s100, s8, 52
    s_lshr_b32 s100, s100, 8
    s_mul_i32 s9, s100, 5
    s_sub_u32 s70, s8, s9
    s_mul_i32 s69, s100, 9
    s_add_u32 s69, s69, s70
    s_cmp_lt_u32 s70, 4
    s_cselect_b32 s101, 1, 0
    s_cmp_eq_u32 s100, 3
    s_cselect_b32 s101, 0, s101
    s_lshr_b32 s39, s38, 2
    s_and_b32 s40, s38, 3
    s_cmp_eq_u32 s39, 0
    s_cbranch_scc1 K2_old
    """)
    A.c("projection tile: s68 token block (128), s100 section (q, k, v, router), s70 block in section, s69 block, s101 has a second tile")
    A.c("=========== waves 4-7 first stage x and w_qkv for the projection (k chunks start at s71, for L2 locality only)")
    A(f"""
    s_setprio 1
    s_lshl_b32 s71, s5, 1
    s_add_u32 s71, s71, s7
    s_add_u32 s71, s71, s4
    s_add_u32 s71, s71, s6
    s_sub_u32 s9, s71, 9
    s_cselect_b32 s71, s71, s9
    s_cmp_eq_u32 s100, 3
    s_cselect_b32 s71, 0, {"s71" if OPT.get("crot", 1) else 0}
    s_cselect_b32 s{sW+2}, 0, {576*3456}
    v_lshrrev_b32 v2, 3, v{LANE}
    v_and_b32 v3, 7, v{LANE}
    v_lshrrev_b32 v4, 4, v{LANE}
    s_lshl_b32 s9, s40, 2
    v_add_u32 v5, s9, v4
    v_and_b32 v5, 7, v5
    v_xor_b32 v5, v3, v5
    s_lshl_b32 s9, s40, 3
    v_add_u32 v2, s9, v2
    s_lshl_b32 s10, s68, 7
    v_add_u32 v6, s10, v2
    v_mul_u32_u24 v6, 1152, v6
    v_lshl_add_u32 v10, v5, 4, v6
    v_and_b32 v4, 1, v4
    v_lshlrev_b32 v4, 2, v4
    v_xor_b32 v3, v3, v4
    v_mul_u32_u24 v6, 3456, v2
    v_lshl_add_u32 v6, v3, 4, v6
    s_lshl_b32 s10, s69, 7
    v_add_u32 v11, s10, v6
    s_lshl_b32 s42, s40, 10
    s_waitcnt lgkmcnt(0)
    """)
    npend = [0]

    def nextchunk():
        A("s_add_u32 s71, s71, 1\ns_cmp_eq_u32 s71, 9\ns_cselect_b32 s71, 0, s71")

    def issueA(c):
        slot = c % 6
        A(f"s_lshl_b32 s65, s71, 7\ns_mul_i32 s66, s71, {64*3456}")
        for u in range(4):
            if u % 2 == 0:
                A(f"s_add_u32 m0, s42, {slot*SLOT + 16384 + (u//2)*4096}")
                A(f"s_add_u32 s67, s66, {(u//2)*32*3456}")
                A(f"buffer_load_dwordx4 v11, s[{sW}:{sW+3}], s67 offen lds")
            A(f"s_add_u32 m0, s42, {slot*SLOT + u*4096}")
            A(f"s_add_u32 s67, s65, {u*36864}")
            A(f"buffer_load_dwordx4 v10, s[{sX}:{sX+3}], s67 offen lds")
        nextchunk()

    def issueB(t):
        for c in range(3 * t, 3 * t + 3):
            A(f"s_mul_i32 s66, s71, {64*3456}")
            for u in range(2):
                A(f"s_add_u32 m0, s42, {3*SLOT + c*8192 + u*4096}")
                A(f"s_add_u32 s67, s66, {u*32*3456 + 640}")
                A(f"buffer_load_dwordx4 v11, s[{sW}:{sW+3}], s67 offen lds")
            nextchunk()

    D = OPT.get("depth", 2)
    issueA(0)
    A.c("L2 warm-up (speed only) of a quarter of the second tile's weight rows")
    A(f"""
    s_cmp_eq_u32 s101, 0
    s_cselect_b32 s9, {OOB}, 0
    s_mul_i32 s5, s5, 144
    s_mul_i32 s4, s40, 36
    s_add_u32 s5, s5, s4
    v_min_u32 v2, 35, v{LANE}
    v_add_u32 v2, s5, v2
    v_mul_u32_u24 v2, 3456, v2
    v_add_u32 v2, s10, v2
    buffer_load_dword v3, v2, s[{sW}:{sW+3}], {"s9" if OPT.get("wbtouch", 1) else "s" + str(sW+2)} offen offset:640
    """)
    for c in range(1, D): issueA(c)
    issued = D
    for c in range(9):
        A(f"s_waitcnt vmcnt({6*(issued - c - 1) + (1 if c == 0 else 0)})")
        A("s_barrier")
        if issued < 9:
            issueA(issued); issued += 1
        elif issued == 9:
            A.c("tiles without a second block stage zeros here (empty descriptor)")
            A(f"s_cmp_eq_u32 s101, 0\ns_cselect_b32 s{sW+2}, 0, s{sW+2}")
            issueB(0); issued += 1
    A("""
    s_cmp_eq_u32 s101, 0
    s_cbranch_scc1 K2_ldone
    s_waitcnt vmcnt(0)
    s_barrier
    """)
    issueB(1); issueB(2)
    A("""
    s_waitcnt vmcnt(6)
    s_barrier
    s_waitcnt vmcnt(0)
    s_barrier
    K2_ldone:
    s_waitcnt vmcnt(0)
    """)
    ST.t(1)
    A("s_barrier")
    att_setup()
    gwait(7, 4)
    A(tagload)
    gettag()
    A("s_branch K2_young2")

    ACC, PK, AX, AW, SA = 64, 96, 224, 232, 247
    WFR = [0, 8, 112, 120]

    def xf(n):
        return 128 + 4 * n if n < 24 else 16 + 4 * (n - 24)

    def epi_qk(sb):
        for T in range(2):
            d = ACC + 16 * T
            for i in range(8):
                A(f"v_pk_mul_f32 {vr(d+2*i,2)}, {vr(d+2*i,2)}, s[98:99]")
            for i in range(8):
                A(f"v_cvt_pk_bf16_f32 v{PK+8*T+i}, v{d+2*i}, v{d+2*i+1}")
                if i % 2:
                    A(f"buffer_store_dwordx2 {vr(PK+8*T+i-1,2)}, v{SA}, {ws}, s{sb} offen{off((8*T+i-1)*256)} sc1")

    def epi_v(sb):
        A(f"s_add_u32 s67, s{sb}, 18432")
        for T in range(2):
            d = ACC + 16 * T
            for i in range(8):
                A(f"v_cvt_pk_bf16_f32 v{PK+8*T+i}, v{d+2*i}, v{d+2*i+1}")
                if i % 4 == 3:
                    A(f"buffer_store_dwordx4 {vr(PK+8*T+i-3,4)}, v{SA}, {ws}, s{sb if i < 4 else 67} offen{off(512*T)} sc1")

    def xread(n):
        c, s_ = divmod(n, 4)
        k, o = divmod(c % 6, 3)
        return f"ds_read_b128 {vr(xf(n),4)}, v{AX+4*k+s_}{off(o*SLOT)}"

    def readsA(n):
        c, s_ = divmod(n, 4)
        k, o = divmod(c % 6, 3)
        w = [[f"ds_read_b64_tr_b16 {vr(WFR[n%4]+4*T+2*a,2)}, v{AW+2*k+T}{off(o*SLOT+(16*s_+4*a)*128)}" for a in range(2)] for T in range(2)]
        return w[0] + [xread(n)] + w[1]

    def readsB(n):
        c, s_ = divmod(n, 4)
        k = 0 if c < 2 else 1
        o = c * 8192 - 16384 * k
        return [f"ds_read_b64_tr_b16 {vr(WFR[n%4]+4*T+2*a,2)}, v{AW+2*k+T}{off(o+(16*s_+4*a)*128)}" for T in range(2) for a in range(2)]

    def gemm(vmode, second):
        rd = readsB if second else readsA
        h = 2 if second else 3
        tot = h + 2
        A("s_barrier")
        if not second: cs("B0")
        for r in rd(0) + rd(1): A(r)
        for n in range(36):
            Rn = rd(n + 2) if n < 34 else []
            ahead = tot if n < 35 else 0

            def M(T):
                d = vr(ACC + 16 * T, 16)
                x, w = vr(xf(n), 4), vr(WFR[n % 4] + 4 * T, 4)
                c = "0" if n == 0 else d
                A(mfma(d, x, w, c) if vmode else mfma(d, w, x, c))
            A(f"s_waitcnt lgkmcnt({2 + ahead})")
            M(0)
            if Rn and (n + 2) % (12 if second else 4) == 0:
                A("s_barrier")
            if not second and n == OPT.get("tagstep", 20):
                A(tagload)
            if second and n == OPT.get("aflag", 14):
                aflag0()
            if second and n == OPT.get("aflag", 14) + 3:
                aflag1()
            for r in Rn[:h]: A(r)
            A(f"s_waitcnt lgkmcnt({ahead + (h if Rn else 0)})")
            M(1)
            for r in Rn[h:]: A(r)

    def aflag0():
        A(f"""
        s_waitcnt vmcnt(0)
        s_mov_b64 exec, 1
        ds_add_rtn_u32 v{RET}, v{CA}, v{ONE} offset:24
        s_mov_b64 exec, -1
        """)

    def aflag1():
        A(f"""
        v_readfirstlane_b32 s4, v{RET}
        v_lshlrev_b32 v{RET}, 2, v{LANE}
        s_cmp_eq_u32 s4, 3
        s_cselect_b32 s4, s61, {OOB}
        s_mov_b64 exec, 0xff
        buffer_store_dword v{TAGV}, v{RET}, {ws}, s4 offen sc1
        s_mov_b64 exec, -1
        """)

    def p1_compute():
        A("K2_old:")
        A(f"s_setprio {OPT.get('oprio', 2)}")
        if OPT.get("chain"): A("s_mov_b32 s96, 0")
        A(f"""
        v_mov_b32 v{CA}, {CNT}
        v_mov_b32 v{ONE}, 1
        v_mov_b32 v10, 0
        v_mov_b32 v11, 0
        v_mov_b32 v12, 0
        v_mov_b32 v13, 0
        s_waitcnt lgkmcnt(0)
        s_or_b32 s4, s2, s40
        s_cmp_lg_u32 s4, 0
        s_cbranch_scc1 K2_notag
        """)
        A.c("hand-off tag of this launch: successor of the word the previous launch left, published through d_debug[0]")
        A(f"""
        s_mov_b32 s4, {EP}
        buffer_load_dword v14, off, {ws}, s4 sc1
        s_mov_b32 s5, 1664525
        s_waitcnt vmcnt(0)
        v_mul_lo_u32 v14, v14, s5
        v_add_u32 v14, 1013904223, v14
        v_max_u32 v14, 1, v14
        s_mov_b64 exec, 1
        buffer_store_dword v14, off, s[{sDBG}:{sDBG+3}], 0 sc1
        buffer_store_dword v14, off, {ws}, s4 sc1
        s_mov_b64 exec, -1
        K2_notag:
        ds_write_b128 v{CA}, v[10:13]
        ds_write_b128 v{CA}, v[10:13] offset:16
        s_load_dwordx2 s[4:5], s[0:1], 32
        s_load_dwordx2 s[6:7], s[0:1], 64
        """)
        srd(A, sG, 40, 576 * 9216)
        srd(A, sU, 48, 576 * 9216)
        srd(A, sD, 56, 4608 * 1152)
        A(f"""
        s_mov_b32 s10, 1152
        s_mov_b32 s11, 0x00020000
        s_waitcnt lgkmcnt(0)
        s_cmp_lt_u32 s40, 2
        s_cselect_b32 s8, s4, s6
        s_cselect_b32 s9, s5, s7
        s_cmp_lg_u32 s100, 3
        s_cbranch_scc1 K2_norgv
        s_lshl_b32 s4, s40, 10
        s_add_u32 m0, s4, {RGV}
        s_and_b32 s4, s4, 1024
        buffer_load_dwordx4 v{L16}, s[8:11], s4 offen lds
        K2_norgv:
        """)
        att_setup()
        A.c("MoE: f block s41 (32 columns), only for workgroups with (id >> 3) < 18")
        A(f"""
        s_bitcmp0_b32 s40, 0
        s_cselect_b32 s8, s{sG}, s{sU}
        s_cselect_b32 s9, s{sG+1}, s{sU+1}
        s_mov_b32 s10, {576*9216}
        s_mov_b32 s11, 0x00020000
        s_lshr_b32 s4, s2, 3
        s_mul_i32 s41, s3, 18
        s_add_u32 s41, s41, s4
        s_cmp_lt_u32 s4, {0 if OPT.get('nomoe2') else 18}
        s_cselect_b32 s{sG+2}, {576*9216}, 0
        s_cselect_b32 s{sU+2}, {576*9216}, 0
        s_cselect_b32 s64, 1, 0
        s_mul_i32 s42, s40, {WREG}
        v_lshrrev_b32 v8, 2, v{LANE}
        v_and_b32 v9, 48, v{L16}
        s_mul_i32 s4, s40, 144
        v_add_u32 v10, s4, v8
        v_mul_u32_u24 v10, 9216, v10
        s_lshl_b32 s4, s41, 6
        v_add3_u32 v{GUA}, v10, v9, s4
        """)
        A.c("L2 warm-up (speed only) of the weight lines this die's workgroups stage later: one 1152-byte row piece per step")
        A(f"""
        v_min_u32 v8, 8, v{LANE}
        v_lshlrev_b32 v{TCH}, 7, v8
        s_lshr_b32 s4, s2, 3
        s_lshl_b32 s4, s4, 2
        s_add_u32 s4, s4, s40
        s_mul_i32 s5, s3, 576
        s_add_u32 s5, s5, s4
        s_mul_i32 s55, s5, 1152
        s_lshr_b32 s5, s4, 5
        s_mul_i32 s5, s5, 144
        s_bfe_u32 s6, s4, 0x40001
        s_add_u32 s5, s5, s6
        s_mul_i32 s5, s5, 9216
        s_mul_i32 s6, s3, 1152
        s_add_u32 s54, s5, s6
        """)
        A.c("LDS fragment addresses; v tiles read token rows with bits 2 and 3 swapped")
        A(f"""
        v_lshrrev_b32 v1, 5, v{LANE}
        v_and_b32 v2, 31, v{LANE}
        v_and_b32 v3, 0x13, v2
        v_and_b32 v4, 4, v2
        v_lshl_or_b32 v3, v4, 1, v3
        v_and_b32 v4, 8, v2
        v_lshrrev_b32 v4, 1, v4
        v_or_b32 v3, v3, v4
        s_cmp_eq_u32 s100, 2
        s_cselect_b64 vcc, -1, 0
        v_cndmask_b32 v3, v2, v3, vcc
        v_mul_u32_u24 v4, 9216, v1
        v_lshl_add_u32 v4, v2, 4, v4
        v_lshlrev_b32 v5, 3, v{LANE}
        v_cndmask_b32 v{SA}, v5, v4, vcc
        v_bfe_u32 v4, v3, 1, 3
        v_xor_b32 v4, v4, v1
        s_lshl_b32 s4, s40, 5
        v_add_u32 v3, s4, v3
        v_lshlrev_b32 v3, 7, v3
        v_lshl_add_u32 v{AX}, v4, 4, v3
        """)
        for s_ in range(1, 4):
            A(f"v_xor_b32 v{AX+s_}, {s_ << 5}, v{AX}")
        A(f"""
        v_bfe_u32 v3, v{LANE}, 2, 2
        v_lshl_add_u32 v4, v1, 3, v3
        v_lshlrev_b32 v4, 7, v4
        v_lshrrev_b32 v3, 1, v3
        v_lshl_add_u32 v4, v3, 6, v4
        v_bfe_u32 v3, v{LANE}, 4, 1
        v_lshl_add_u32 v4, v3, 5, v4
        v_and_b32 v3, 3, v{LANE}
        v_lshl_add_u32 v4, v3, 3, v4
        v_add_u32 v{AW}, 16384, v4
        v_xor_b32 v{AW+1}, 64, v{AW}
        """)
        for s_ in range(4):
            A(f"v_add_u32 v{AX+4+s_}, {3*SLOT}, v{AX+s_}")
        for s_ in range(2):
            A(f"v_add_u32 v{AW+2+s_}, {3*SLOT}, v{AW+s_}")
        A.c("store bases s65 / s66 and flag addresses s61 / s97 of the two tiles")
        A(f"""
        s_lshl_b32 s4, s68, 2
        s_add_u32 s71, s4, s40
        s_mul_i32 s4, s71, {R}
        s_lshl_b32 s5, s69, 12
        s_lshl_b32 s6, s70, 10
        s_add_u32 s6, s6, 73728
        s_cmp_eq_u32 s100, 2
        s_cselect_b32 s5, s6, s5
        s_cselect_b32 s6, 10, 12
        s_lshl_b32 s6, 5, s6
        s_add_u32 s65, s4, s5
        s_add_u32 s66, s65, s6
        s_lshl_b32 s4, s69, 4
        s_add_u32 s4, s4, s68
        s_lshl_b32 s4, s4, 5
        s_add_u32 s61, s4, {F1}
        s_add_u32 s97, s61, {5*512}
        s_cmp_eq_u32 s101, 0
        s_cselect_b32 s66, {OOB}, s66
        s_cselect_b32 s97, {OOB}, s97
        s_cmp_eq_u32 s100, 0
        s_cselect_b32 s98, {QSCALE}, 1.0
        s_mov_b32 s99, s98
        """)
        cs("setup")
        A("""
        s_cmp_eq_u32 s100, 2
        s_cbranch_scc1 K2_pv
        s_cmp_eq_u32 s100, 3
        s_cbranch_scc1 K2_rg
        """)
        for vmode in (False, True):
            if vmode: A("K2_pv:")
            A.c("v tiles: D = x W (lane = channel, registers = tokens)" if vmode else "q / k tiles: D = W^T x^T (lane = token, registers = channels)")
            gemm(vmode, False)
            gettag()
            for s_ in range(2):
                A(f"v_add_u32 v{AW+s_}, {3*SLOT-16384}, v{AW+s_}")
            A("s_nop 3")
            cs("pass A")
            (epi_v if vmode else epi_qk)(65)
            ST.t(1)
            cs("a stores")
            A("s_cmp_eq_u32 s101, 0")
            A("s_cbranch_scc1 K2_nob")
            gemm(vmode, True)
            A("s_branch K2_p1done")
        A.c("---- router score and mix gate of 32 tokens per wave")
        A("K2_rg:")
        A(f"""
        v_and_b32 v3, 1, v{LANE}
        v_lshlrev_b32 v3, 11, v3
        v_lshl_add_u32 v3, v1, 4, v3
        v_add_u32 v{AW}, {RGV}, v3
        s_lshl_b32 s4, s71, 5
        v_add_u32 v{AW+1}, s4, v2
        s_waitcnt vmcnt(0)
        """)
        for c in range(9):
            A("s_barrier")
            if c == 0: cs("B0")
            if c == 5: A(tagload)
            for n in range(4 * c, 4 * c + 4):
                A(xread(n))
                A(f"ds_read_b128 {vr(4*(n%4),4)}, v{AW}{off(32*n)}")
            for n in range(4 * c, 4 * c + 4):
                A(f"s_waitcnt lgkmcnt({2*(3-n%4)})")
                A(mfma(vr(ACC, 16), vr(4 * (n % 4), 4), vr(xf(n), 4), "0" if n == 0 else vr(ACC, 16)))
        gettag()
        A("s_nop 7")
        cs("pass A")
        A(f"""
        s_mov_b32 s5, 0xffff0000
        v_cvt_pk_bf16_f32 v6, v{ACC+1}, v{ACC}
        v_lshlrev_b32 v4, 16, v6
        v_mul_f32 v4, {0x80000000 | LOG2E}, v4
        v_exp_f32 v4, v4
        v_ashrrev_i32 v7, 31, v6
        v_add_f32 v4, 1.0, v4
        v_rcp_f32 v4, v4
        v_or_b32 v7, 0x80000000, v7
        v_xor_b32 v6, v6, v7
        v_and_b32 v6, s5, v6
        v_sub_u32 v7, 0xffff, v{AW+1}
        v_or_b32 v6, v6, v7
        v_cvt_pk_bf16_f32 v4, v4, v4
        v_and_b32 v4, s5, v4
        v_mov_b32 v5, s{sTAG}
        v_lshlrev_b32 v7, 3, v{AW+1}
        s_mov_b32 s4, {GB}
        buffer_store_dwordx2 v[4:5], v7, {ws}, s4 offen sc1
        """)
        wave_top2_u32(A, 6, 7, 6, 7)
        A(f"""
        s_lshl_b32 s4, s71, 4
        s_add_u32 s4, s4, {RC}
        v_mov_b32 v8, s6
        v_mov_b32 v9, s{sTAG}
        v_mov_b32 v10, s7
        v_mov_b32 v11, s{sTAG}
        s_mov_b64 exec, 1
        buffer_store_dwordx4 v[8:11], off, {ws}, s4 sc1
        s_mov_b64 exec, -1
        s_mov_b32 s61, {OOB}
        """)
        ST.t(1)
        cs("a stores")
        A("K2_nob:")
        aflag0()
        A("s_waitcnt lgkmcnt(0)")
        aflag1()
        A("K2_p1done:")
        A("s_barrier")
        cs("pass B")

    def ldK(j):
        return [f"buffer_load_dwordx2 {vr(KM[j%NB]+2*i,2)}, v{KA}, {ws}, s{sT[j]} offen{off(256*i)} sc1" for i in range(2)]

    def ldV(j):
        return ["s_mov_b64 exec, s[62:63]"] + \
            [f"buffer_load_dwordx4 {vr(VV[j%NB]+4*i,4)}, v{(VA, VA2)[i]}, {ws}, s{sT[j]} offen sc1" for i in range(2)] + \
            ["s_mov_b64 exec, -1"]

    def ldKE(p):
        return [f"buffer_load_dwordx2 {vr(KE+2*p,2)}, v{KEA}, {ws}, s{sT[2*p]} offen sc1"]

    def ldQ(t):
        return [f"buffer_load_dwordx2 {vr(QM+4*t+2*i,2)}, v{KA}, {ws}, s{56+t} offen{off(256*i)} sc1" for i in range(2)]

    def group(j):
        return (ldKE(j // 2) if j % 2 == 0 else []) + ldK(j) + ldV(j)

    def m2b(kt, c):
        u = kt % 4
        return (f"v_mfma_f32_32x32x4_2b_bf16 {vr(S[c],32)}, {vr(KE+2*(kt//2),2)}, {vr(QE+2*c,2)}, 0"
                f" cbsz:1 abid:{kt%2}")

    def mm(kt, c, b):
        d = vr(S[c] + 16 * b, 16)
        return mfma(d, vr(KM[kt % NB], 4), vr(QM + 4 * (c + 2 * b), 4), d)

    def sm(kt, c, b, i):
        return (f"v_smfmac_f32_32x32x32_bf16 {vr(O[c+2*b],16)}, {vr(VV[kt%NB]+4*i,4)}, "
                f"{vr(S[c]+16*b+8*i,8)}, v{IDX}")

    def moe_dma(n):
        if n < 18:
            m, u = n % 2, n // 2
            s = (sG, sU)[m]
            return [f"s_add_u32 m0, s42, {9216*m+1024*u}", f"s_mov_b32 s67, {u*16*9216}",
                    f"buffer_load_dwordx4 v{GUA}, s[{s}:{s+3}], s67 offen lds"]
        n -= 18
        pre = [f"s_add_u32 m0, s42, {18432+1024*n}"]
        if n < 8:
            return pre + [f"s_mov_b32 s67, {4*n*1152}", f"buffer_load_dwordx4 v{DNA}, s[{sD}:{sD+3}], s67 offen lds"]
        return pre + [f"s_mov_b32 s67, {16*(n-8)*1152}", f"buffer_load_dwordx4 v{DN5}, s[{sD}:{sD+3}], s67 offen lds"]

    xsel_dma = [f"s_add_u32 m0, s42, {28672}", "s_nop 0",
                f"buffer_load_dwordx4 v{XSA}, s[{sX}:{sX+3}], 0 offen lds"]

    def owrite(t):
        return [f"ds_write_b128 v{SW}, {vr(O[t],4)}{off(3072*t)}",
                f"ds_write_b128 v{SW}, {vr(O[t]+4,4)}{off(3072*t+1024)}",
                f"ds_write_b64 v{SW}, {vr(O[t]+8,2)}{off(3072*t+2048)}"]

    def scratch_addrs(base, stride):
        A(f"s_mul_i32 s4, s40, {stride}")
        A(f"s_add_u32 s4, s4, {base}")
        A(f"v_add_u32 v{SW}, s4, v{L16}")
        for t in range(3):
            A(f"s_xor_b32 s4, s40, {t ^ 3}")
            A(f"s_mul_i32 s4, s4, {stride}")
            A(f"s_add_u32 s4, s4, {base}")
            A(f"v_add_u32 v{RD+t}, s4, v{L16}")
        A(f"""
        v_bfe_u32 v{PM}, v{LANE}, 4, 1
        v_lshlrev_b32 v{PM}, 13, v{PM}
        v_lshrrev_b32 v{PE}, 5, v{LANE}
        v_lshl_add_u32 v{PM}, v{PE}, 8, v{PM}
        v_and_b32 v{PE}, 0xff, v{L16}
        v_add_u32 v{PM}, v{PM}, v{PE}
        v_and_b32 v{PE}, 31, v{LANE}
        v_lshlrev_b32 v{PE}, 2, v{PE}
        s_lshl_b32 s4, s39, 6
        s_lshl_b32 s5, s37, 2
        s_add_u32 s4, s4, s5
        s_add_u32 s4, s4, s40
        s_lshl_b32 s5, s4, 14
        s_lshl_b32 s6, s43, 9
        s_add_u32 s5, s5, s6
        s_add_u32 s65, s5, {OM}
        s_lshl_b32 s4, s4, 4
        s_add_u32 s4, s4, s43
        s_lshl_b32 s4, s4, 7
        s_add_u32 s66, s4, {OE}
        s_lshl_b32 s4, s39, 4
        s_add_u32 s4, s4, s37
        s_lshl_b32 s4, s4, 11
        s_lshl_b32 s5, s40, 6
        s_add_u32 s4, s4, s5
        s_lshl_b32 s5, s43, 2
        s_add_u32 s4, s4, s5
        s_add_u32 s61, s4, {FO}
        v_mov_b32 v{CA}, {CNT + (0 if base == 0 else 12)}
        v_mov_b32 v{ONE}, 1
        """)

    def attention(old):
        pend = []

        def issue(lines, tag):
            for l in lines:
                if l.startswith("buffer_"):
                    pend.append(tag)
            return lines

        def wait_for(tag):
            last = max(i for i, t in enumerate(pend) if t == tag)
            n = len(pend) - 1 - last
            del pend[:last + 1]
            return f"s_waitcnt vmcnt({n})"

        A.c("V registers are preset: rows 17 and 21 are the all-ones rows that produce the softmax denominator")
        A.c("(1 + 127*2^-16 has the bit pattern 0x3f803f80 = two bf16 ones; the matrix unit fills 32 registers per instruction)")
        l = lab("K2_p1poll")
        A(f"""
        buffer_load_dword v{RET}, v{PA}, {ws}, 0 offen sc1
        v_and_b32 v4, 31, v{LANE}
        v_or_b32 v5, 4, v4
        v_cmp_eq_u32 vcc, 21, v5
        v_mov_b32 v6, 0x3afe3f80
        v_mov_b32 v8, 0x3f803f80
        v_cndmask_b32 v6, 0, v6, vcc
        v_mov_b32 v7, 0
        v_mov_b32 v9, 0
        v_mov_b32 v10, 0
        v_mov_b32 v11, 0
        v_mfma_f32_32x32x4_2b_bf16 {vr(164,32)}, v[8:9], v[6:7], 0
        v_mfma_f32_32x32x4_2b_bf16 {vr(204,32)}, v[8:9], v[6:7], 0
        v_cndmask_b32 v196, 0, v8, vcc
        v_cndmask_b32 v197, 0, v8, vcc
        v_cndmask_b32 v198, 0, v8, vcc
        v_cndmask_b32 v199, 0, v8, vcc
        s_mov_b32 s5, {SPIN}
        s_nop 9
        {l}:
        s_waitcnt vmcnt(0)
        v_cmp_ne_u32 vcc, s{sTAG}, v{RET}
        s_cbranch_vccz {l}_d
        {"" if old else "s_sleep 8"}
        buffer_load_dword v{RET}, v{PA}, {ws}, 0 offen sc1
        s_sub_u32 s5, s5, 1
        s_cbranch_scc0 {l}
        {l}_d:
        """)
        ST.t(2)
        if old: cs("polled")
        pro = issue([f"buffer_load_dwordx2 {vr(QE,2)}, v{QEA}, {ws}, s60 offen sc1"], "qe") + issue(ldKE(0), "q0") + \
            issue(ldQ(0) + ldK(0) + ldQ(2), "q0") + \
            issue([f"buffer_load_dwordx2 {vr(QE+2,2)}, v{QEA}, {ws}, s52 offen sc1"], "q1") + issue(ldQ(1) + ldQ(3), "q2") + \
            issue(ldV(0), "g0") + issue(group(1), "g1")
        for l in pro: A(l)
        if old:
            A(f"s_mov_b32 s4, {RC}")
            for l in issue([f"buffer_load_dwordx4 {vr(CAND,4)}, v{L16}, {ws}, s4 offen sc1"], "cand"): A(l)
            A.c("half-B projection tile goes out behind the first attention loads (always eight stores)")
            A("s_cmp_eq_u32 s100, 2")
            A("s_cbranch_scc1 K2_bv")
            epi_qk(66)
            A("s_branch K2_bdone")
            A("K2_bv:")
            epi_v(66)
            A(f"s_mov_b32 s4, {OOB}")
            for i in range(4): A(f"buffer_store_dword v{PK}, off, {ws}, s4")
            A("K2_bdone:")
            pend.extend(["bst"] * 8)
            A(f"v_lshlrev_b32 v{PA}, 2, v{LANE}")
            cs("b stores")
            csflush(0, 12)
        A(f"""
        v_mfma_f32_32x32x4_2b_bf16 {vr(O[0],32)}, v[10:11], v[10:11], 0
        v_mfma_f32_32x32x4_2b_bf16 {vr(O[2],32)}, v[10:11], v[10:11], 0
        v_mov_b32 v{IDX}, 0xdddddddd
        s_bitcmp0_b32 s36, 0
        s_cselect_b32 s4, -1, 0
        s_cselect_b32 s5, 0, -1
        {wait_for("qe")}
        v_and_b32 v{QE}, s4, v{QE}
        v_and_b32 v{QE+1}, s5, v{QE+1}
        {wait_for("q0")}
        s_nop 0
        """)
        A(m2b(0, 0))
        A(f"""
        {wait_for("q1")}
        v_and_b32 v{QE+2}, s4, v{QE+2}
        v_and_b32 v{QE+3}, s5, v{QE+3}
        s_nop 14
        """)
        A(mm(0, 0, 0))
        A(mm(0, 0, 1))
        A("s_nop 10")
        gsched = {0: [2, 3], 1: [4, 5], 2: [6, 7]}
        for kt in range(3, 11): gsched[kt] = [kt + 5]
        d0, d1, nd = OPT.get("dma", (23, 32, 18))
        dsched = {}
        for n in range(nd): dsched.setdefault(d0 + n * (d1 - d0) // nd, []).append(n)
        tper = OPT.get("touch", [1, 3, 5, 7, 8, 9, 10, 11, 12, 13, 14, 15, 16, 17, 18, 19, 20, 21, 22])
        touch = {}
        for i, p in enumerate(tper):
            if i < 9:
                touch[p] = [f"buffer_load_dword v{TMP}, v{TCH}, s[8:11], s54 offen", f"s_add_u32 s54, s54, {16*9216}"]
                if i == 8:
                    touch[p] = touch[p][:1] + ["s_load_dwordx2 s[8:9], s[0:1], 16", f"s_mov_b32 s10, {576*1152}",
                                               f"s_mul_i32 s54, s3, {576*1152}", "s_sub_u32 s54, s55, s54"]
            elif i < 14:
                touch[p] = [f"buffer_load_dword v{TMP}, v{TCH}, s[{sD}:{sD+3}], s55 offen", f"s_add_u32 s55, s55, {128*1152}"]
            else:
                touch[p] = (["s_waitcnt lgkmcnt(0)"] if i == 14 else []) + \
                    [f"buffer_load_dword v{TMP}, v{TCH}, s[8:11], s54 offen", f"s_add_u32 s54, s54, {128*1152}"]
        for kt in range(16):
            for c in range(2):
                n = 2 * kt + c
                cur = S[c]
                nxt = (kt, 1) if c == 0 else (kt + 1, 0)
                prv = (kt - 1, 1) if c == 0 else (kt, 0)
                has_next = n < 31
                ins = {}
                def at(p, l): ins.setdefault(p, []).extend(l if isinstance(l, list) else [l])
                if n > 0:
                    at(1, sm(prv[0], prv[1], 1, 1))
                if c == 0:
                    for j in gsched.get(kt, []):
                        at(1, issue(group(j), f"g{j}"))
                    if old and kt == 3:
                        at(1, issue(xsel_dma, "moe"))
                if c == 1 and has_next:
                    at(4, wait_for(f"g{kt+1}"))
                if n == 0:
                    at(12, wait_for("g0"))
                if old and n in touch:
                    at(13, issue(touch[n], "moe"))
                if old and not OPT.get("nomoe"):
                    for i, x in enumerate(dsched.get(n, [])):
                        at(14 + 8 * i, issue(moe_dma(x), "moe"))
                if has_next:
                    at(4, m2b(*nxt))
                    at(20, mm(nxt[0], nxt[1], 0))
                    at(28, mm(nxt[0], nxt[1], 1))
                at(12, sm(kt, c, 0, 0))
                at(17, sm(kt, c, 0, 1))
                at(25, sm(kt, c, 1, 0))
                if old and n == OPT.get("bflag", 3):
                    assert "bst" not in pend
                    at(6, ["s_mov_b64 exec, 1", f"ds_add_rtn_u32 v{RET}, v{CA}, v{ONE} offset:28", "s_mov_b64 exec, -1"])
                    at(26, ["s_waitcnt lgkmcnt(0)", f"v_readfirstlane_b32 s4, v{RET}"])
                    at(27, issue(["s_cmp_eq_u32 s4, 3", f"s_cselect_b32 s4, s97, {OOB}", "s_mov_b64 exec, 0xff",
                                  f"buffer_store_dword v{TAGV}, v{PA}, {ws}, s4 offen sc1", "s_mov_b64 exec, -1"], "moe"))
                if n == 31 and not old:
                    for t, p in ((0, 3), (2, 14), (1, 29)):
                        for i, l in enumerate(owrite(t)): at(p + i, l)
                if n == 4 and old:
                    assert "cand" not in pend
                    B = Asm()
                    at(0, [f"v_cmp_ne_u32 vcc, s{sTAG}, v{CAND+1}", f"v_cmp_ne_u32 s[4:5], s{sTAG}, v{CAND+3}",
                           "s_or_b64 vcc, vcc, s[4:5]", "s_cbranch_scc1 K2_candspin", "K2_candok:"])
                    wave_max_u32(B, CAND, CAND + 1, 68)
                    B(f"s_nop 1\nv_cmp_ne_u32 vcc, s68, v{CAND}\ns_nop 1\nv_cndmask_b32 v{CAND}, v{CAND+2}, v{CAND}, vcc")
                    wave_max_u32(B, CAND, CAND + 1, 69)
                    B(f"""
                    s_nop 0
                    s_not_b32 s70, s68
                    s_not_b32 s71, s69
                    s_and_b32 s70, s70, 0x7ff
                    s_and_b32 s71, s71, 0x7ff
                    s_mul_i32 s4, s70, 1152
                    s_mul_i32 s5, s71, 1152
                    s_sub_u32 s5, s5, 512
                    s_mul_i32 s6, s40, 288
                    v_mov_b32 v{XSA}, s4
                    v_mov_b32 v{CAND}, s5
                    v_cmp_gt_u32 vcc, 32, v{LANE}
                    s_nop 1
                    v_cndmask_b32 v{XSA}, v{CAND}, v{XSA}, vcc
                    v_add3_u32 v{XSA}, v{XSA}, v{L16}, s6
                    """)
                    p = -1
                    tail = []
                    for l in B.lines:
                        l = l.strip()
                        if l == "s_nop 1" and p + 2 <= 31:
                            p += 2
                        elif p + 2 > 31 or tail:
                            tail.append(l)
                        else:
                            at(p, l)
                    at(31, tail)
                for i in range(32):
                    A(f"v_exp_f32 v{cur+i}, v{cur+i}")
                    for l in ins.get(i, []): A(l)
        A("s_nop 1")
        A(sm(15, 1, 1, 1))
        ST.t(3)

    p1_compute()
    attention(True)
    if OPT.get("quit"):
        ST.flush(v=20)
        A("s_endpgm")
    if OPT.get("chain"): A("s_mov_b32 s96, 0")
    cs("loop end")
    srd(A, sWO, 16, 576 * 1152)
    srd(A, sO, 72, XB)
    A("s_cmp_eq_u32 s64, 0")
    A("s_cbranch_scc1 K2_nodma")
    A(f"""
    v_lshrrev_b32 v8, 2, v{LANE}
    v_and_b32 v9, 48, v{L16}
    s_lshl_b32 s4, s41, 5
    v_add_u32 v10, s4, v8
    v_mul_u32_u24 v10, 1152, v10
    s_and_b32 s5, s40, 1
    s_lshl_b32 s5, s5, 6
    s_add_u32 s5, s5, 1024
    v_add3_u32 v{DN5}, v10, v9, s5
    v_lshrrev_b32 v8, 4, v{LANE}
    v_add_u32 v10, s4, v8
    v_mul_u32_u24 v10, 1152, v10
    v_lshlrev_b32 v8, 6, v8
    v_and_b32 v9, 0xff, v{L16}
    v_xor_b32 v9, v9, v8
    s_lshl_b32 s5, s40, 8
    v_add3_u32 v{DNA}, v10, v9, s5
    """)
    nd = OPT.get("dma", (23, 32, 18))[2]
    for x in range(nd, 28):
        for l in moe_dma(x): A(l)
        A(f"s_waitcnt vmcnt({OPT.get('wopace', 3)})")
    A("K2_nodma:")
    A("s_waitcnt vmcnt(0)")
    scratch_addrs(0, WREG)
    A.c("---- MoE gate/up partials over this wave's k quarter")
    A(f"""
    v_bfe_u32 v{T0+5}, v{LANE}, 2, 2
    v_lshrrev_b32 v{T0+1}, 5, v{LANE}
    v_lshl_add_u32 v{T0+6}, v{T0+1}, 3, v{T0+5}
    v_bfe_u32 v{T0+2}, v{LANE}, 4, 1
    v_lshlrev_b32 v{T0+2}, 5, v{T0+2}
    v_and_b32 v{T0+3}, 3, v{LANE}
    v_lshl_add_u32 v{T0+2}, v{T0+3}, 3, v{T0+2}
    v_add_u32 v{T0+2}, s42, v{T0+2}
    v_lshl_add_u32 v{T0}, v{T0+6}, 6, v{T0+2}
    v_lshl_add_u32 v{T0+6}, v{T0+6}, 8, v{T0+2}
    v_bfe_u32 v{T0+2}, v{LANE}, 2, 1
    v_lshlrev_b32 v{T0+3}, 9, v{T0+2}
    v_lshl_add_u32 v{T0+3}, v{T0+1}, 4, v{T0+3}
    v_add_u32 v{T0+3}, s42, v{T0+3}
    s_lshl_b32 s4, s40, 7
    s_add_u32 s4, s4, {HS}
    v_lshlrev_b32 v{T0+4}, 6, v{T0+2}
    v_lshl_add_u32 v{T0+4}, v{T0+1}, 4, v{T0+4}
    v_add_u32 v{T0+4}, s4, v{T0+4}
    s_lshl_b32 s4, s40, 9
    s_add_u32 s4, s4, {HP}
    v_lshl_add_u32 v{T0+1}, v{LANE}, 2, s4
    s_waitcnt vmcnt(0) lgkmcnt(0)
    """)
    cs("addr+vm0")
    A(f"""
    s_cmp_eq_u32 s64, 0
    s_cbranch_scc1 K2_nogu
    """)
    G, U = 128, 148
    fr = [0, 12, 24, 36, 48, 164, 176, 188, 200]

    def gu(k):
        A(mfma(vr(G, 16), vr(fr[k], 4), vr(fr[k] + 4, 4), "0" if k == 0 else vr(G, 16)))
        A(mfma(vr(U, 16), vr(fr[k], 4), vr(fr[k] + 8, 4), "0" if k == 0 else vr(U, 16)))
    for u in range(9):
        A(f"ds_read_b128 {vr(fr[u],4)}, v{T0+3} offset:{28672+32*u}")
        for m in range(2):
            for a in range(2):
                A(f"ds_read_b64_tr_b16 {vr(fr[u]+4+4*m+2*a,2)}, v{T0}{off(9216*m+1024*u+256*a)}")
        if u >= 2:
            A("s_waitcnt lgkmcnt(10)")
            gu(u - 2)
    A("s_waitcnt lgkmcnt(5)"); gu(7)
    A("s_waitcnt lgkmcnt(0)"); gu(8)
    A("K2_nogu:")
    cs("gate/up")
    for t in range(3):
        for l in owrite(t): A(l)
    A("s_nop 2")
    A(f"ds_write2st64_b32 v{T0+1}, v{G}, v{U} offset0:0 offset1:1")
    cs("owrite")
    A("s_branch K2_fin0")

    A("K2_young2:")
    scratch_addrs(BS, 9216)
    attention(False)
    A("K2_fin0:")
    o = O[3]
    A.c("LDS executes a wave's operations in order: the count is bumped after this wave's writes, and reads issued")
    A.c("behind a count of 4 see every partial")
    A(f"""
    s_mov_b64 exec, 1
    ds_add_u32 v{CA}, v{ONE}
    s_mov_b64 exec, -1
    K2_fin1:
    ds_read_b32 v0, v{CA}
    """)
    for t in range(3):
        A(f"ds_read_b128 {vr(O[t],4)}, v{RD+t}{off(3072*t)}")
        A(f"ds_read_b128 {vr(O[t]+4,4)}, v{RD+t}{off(3072*t+1024)}")
        A(f"ds_read_b64 {vr(O[t]+8,2)}, v{RD+t}{off(3072*t+2048)}")
    A("""
    s_waitcnt lgkmcnt(9)
    v_readfirstlane_b32 s4, v0
    s_cmp_lt_u32 s4, 4
    s_cbranch_scc1 K2_fin1
    """)
    A(f"s_mov_b32 s4, {f32bits(2.0**-30)}")
    A(f"s_mov_b32 s5, {f32bits(2.0**60)}")
    for t in range(3):
        A(f"s_waitcnt lgkmcnt({3*(2-t)})")
        for i in range(5):
            A(f"v_pk_add_f32 {vr(o+2*i,2)}, {vr(o+2*i,2)}, {vr(O[t]+2*i,2)}")
    A.c("safety check of the unshifted softmax: denominator in [2^-30, 2^60], numerators finite; else redo with the true max")
    A(f"""
    v_cmp_le_f32 s[6:7], s4, v{o+9}
    v_cmp_ge_f32 s[8:9], s5, v{o+9}
    v_max3_f32 v0, abs(v{o}), abs(v{o+1}), abs(v{o+2})
    v_max3_f32 v1, abs(v{o+3}), abs(v{o+4}), abs(v{o+5})
    v_max3_f32 v2, abs(v{o+6}), abs(v{o+7}), abs(v{o+8})
    v_max3_f32 v0, v0, v1, v2
    s_and_b64 s[6:7], s[6:7], s[8:9]
    v_cmp_gt_f32 vcc, {f32bits(2.0**120)}, v0
    s_and_b64 vcc, vcc, s[6:7]
    s_cmp_eq_u64 vcc, exec
    s_cbranch_scc0 K2_slow
    """)
    A("K2_fin:")
    A(f"""
    v_rcp_f32 v0, v{o+9}
    s_cmp_eq_u32 s39, 0
    v_mul_f32 v2, v{o+8}, v0
    v_mul_f32 v3, v{o+8}, v0
    """)
    for i in range(4):
        A(f"v_pk_mul_f32 {vr(o+2*i,2)}, {vr(o+2*i,2)}, v[0:1] op_sel_hi:[1,0]")
    A("v_permlane32_swap_b32 v2, v3")
    for i in range(4):
        A(f"v_cvt_pk_bf16_f32 v{4+i}, v{o+2*i}, v{o+2*i+1}")
    A(f"""
    v_cvt_pk_bf16_f32 v2, v2, v3
    buffer_store_dwordx4 v[4:7], v{PM}, {ws}, s65 offen sc1
    buffer_store_dword v2, v{PE}, {ws}, s66 offen sc1
    s_cbranch_scc1 K2_old2
    v_lshlrev_b32 v8, 8, v{LANE}
    s_mov_b64 exec, 1
    ds_add_u32 v{CA}, v{ONE} offset:4
    s_mov_b64 exec, 0xff
    s_waitcnt vmcnt(0)
    buffer_store_dword v{TAGV}, v8, {ws}, s61 offen sc1
    """)
    if gen1.DIAG:
        ST.t(4); A("s_waitcnt vmcnt(0)")
    ST.flush(v=20)
    A("K2_end:")
    A("s_endpgm")

    A("K2_old2:")
    cs("fin")
    A("s_cmp_eq_u32 s64, 0")
    A("s_cbranch_scc1 K2_nodown")
    A.c("---- MoE: h = silu(gate) * up, then this wave's w_down column tiles")
    A(f"v_lshlrev_b32 v8, 2, v{LANE}")
    A(f"v_add_u32 v8, {HP}, v8")
    for k in range(4):
        A(f"ds_read2st64_b32 {vr(10+2*k,2)}, v8 offset0:{2*k} offset1:{2*k+1}")
    for t in range(4):
        A(f"v_xor_b32 v{20+t}, {t}, v{T0+5}")
        A(f"v_lshl_add_u32 v{20+t}, v{20+t}, 6, v{T0+6}")
    A(f"""
    s_lshl_b32 s4, s40, 7
    s_add_u32 s4, s4, {HS}
    v_lshl_add_u32 v9, v{LANE}, 1, s4
    s_waitcnt lgkmcnt(0)
    v_pk_add_f32 v[10:11], v[10:11], v[12:13]
    v_pk_add_f32 v[14:15], v[14:15], v[16:17]
    v_pk_add_f32 v[10:11], v[10:11], v[14:15]
    v_mul_f32 v12, {0x80000000 | LOG2E}, v10
    v_exp_f32 v12, v12
    v_mul_f32 v10, v10, v11
    v_add_f32 v12, 1.0, v12
    v_rcp_f32 v12, v12
    s_nop 0
    v_mul_f32 v10, v10, v12
    v_cvt_pk_bf16_f32 v10, v10, v10
    ds_write_b16 v9, v10
    ds_read_b128 v[12:15], v{T0+4}
    ds_read_b128 v[16:19], v{T0+4} offset:32
    """)
    for t in range(5):
        for s2 in range(2):
            for a in range(2):
                if t < 4:
                    A(f"ds_read_b64_tr_b16 {vr(24+8*t+4*s2+2*a,2)}, v{20+t} offset:{18432+(16*s2+4*a)*256}")
                else:
                    A(f"ds_read_b64_tr_b16 {vr(24+8*t+4*s2+2*a,2)}, v{T0} offset:{26624+1024*s2+256*a}")
    A(f"""
    v_lshrrev_b32 v8, 5, v{LANE}
    v_mul_u32_u24 v8, 2304, v8
    v_add_u32 v8, v8, v{PE}
    s_mul_i32 s4, s41, 4608
    s_add_u32 s4, s4, {YP}
    s_lshl_b32 s5, s40, 9
    s_add_u32 s5, s5, s4
    s_and_b32 s6, s40, 1
    s_lshl_b32 s6, s6, 7
    s_add_u32 s6, s6, s4
    s_waitcnt lgkmcnt(0)
    """)
    Y = [128 + 16 * t for t in range(5)]
    for t in range(5):
        A(mfma(vr(Y[t], 16), "v[12:15]", vr(24 + 8 * t, 4), "0"))
        A(mfma(vr(Y[t], 16), "v[16:19]", vr(28 + 8 * t, 4), vr(Y[t], 16)))
    A("s_nop 7")
    for t in range(4):
        A(f"buffer_store_dword v{Y[t]}, v8, {ws}, s5 offen{off(128*t)} sc1")
    A(f"buffer_store_dword v{Y[4]}, v8, {ws}, s6 offen offset:2048 sc1")
    A("K2_nodown:")
    cs("down")
    arrive(1)
    A("s_waitcnt vmcnt(0)")
    cs("tag/drain")
    A(f"""
    s_lshl_b32 s4, s41, 7
    s_lshl_b32 s5, s40, 2
    s_add_u32 s4, s4, s5
    s_add_u32 s4, s4, {FY}
    s_cmp_eq_u32 s64, 0
    s_cselect_b32 s4, s61, s4
    v_lshlrev_b32 v8, 8, v{LANE}
    s_mov_b64 exec, 0xff
    buffer_store_dword v{TAGV}, v8, {ws}, s61 offen sc1
    s_mov_b64 exec, 1
    buffer_store_dword v{TAGV}, off, {ws}, s4 sc1
    s_mov_b64 exec, -1
    """)
    ACC, BX, OF, WF, XR, GV = 0, 20, 40, 76, 216, 226
    B1, B2, E1, E2, OEA, FA, SG1, SG2 = 228, 229, 230, 231, 232, 233, 234, 235
    OUT, XA, XA2, TOK = 240, 243, 244, 245
    T0 = 247
    YB = STG + 4 * 3072

    Y0 = WF
    nosel = OPT.get("nomoe2") or OPT.get("nosel")

    def yflag_load():
        A(f"buffer_load_dwordx4 {vr(Y0+96,4)}, v{T0+2}, {ws}, s65 offen sc1")

    def y_first():
        A(f"""
        s_lshr_b32 s6, s54, 2
        s_lshr_b32 s4, s70, 6
        s_cmp_eq_u32 s4, {"-1" if nosel else "s6"}
        s_cselect_b32 s64, 1, 0
        s_lshr_b32 s4, s71, 6
        s_cmp_eq_u32 s4, {"-1" if nosel else "s6"}
        s_cselect_b32 s4, 2, 0
        s_or_b32 s64, s64, s4
        s_cbranch_scc0 K2_noy0
        v_min_u32 v{T0+2}, 35, v{LANE}
        v_lshlrev_b32 v{T0+2}, 7, v{T0+2}
        s_mul_i32 s65, s40, {36*128}
        s_add_u32 s65, s65, {FY}
        """)
        yflag_load()
        A("K2_noy0:")

    def y_sum():
        A(f"""
        s_cmp_eq_u32 s64, 0
        s_cbranch_scc1 K2_noy1
        s_mov_b32 s5, {SPIN}
        K2_ypoll:
        v_cmp_ne_u32 vcc, s{sTAG}, v{Y0+96}
        v_cmp_ne_u32 s[8:9], s{sTAG}, v{Y0+97}
        v_cmp_ne_u32 s[10:11], s{sTAG}, v{Y0+98}
        s_or_b64 s[8:9], s[8:9], vcc
        v_cmp_ne_u32 vcc, s{sTAG}, v{Y0+99}
        s_or_b64 s[8:9], s[8:9], s[10:11]
        s_or_b64 s[8:9], s[8:9], vcc
        s_cbranch_scc0 K2_ypolled
        """)
        yflag_load()
        A(f"""
        s_sub_u32 s5, s5, 1
        s_waitcnt vmcnt(0)
        s_cbranch_scc0 K2_ypoll
        K2_ypolled:
        v_min_u32 v{T0}, 53, v{LANE}
        v_mul_u32_u24 v{T0+1}, 3641, v{T0}
        v_lshrrev_b32 v{T0+1}, 16, v{T0+1}
        v_mul_u32_u24 v{T0+1}, {4608-288}, v{T0+1}
        v_lshl_add_u32 v{T0}, v{T0}, 4, v{T0+1}
        s_lshl_b32 s6, s40, 10
        s_add_u32 s6, s6, {YB}
        v_add_u32 v{T0+1}, s6, v{L16}
        """)
        for sel in range(2):
            A(f"""
            s_bitcmp1_b32 s64, {sel}
            s_cbranch_scc0 K2_noys{sel}
            s_lshl_b32 s6, s55, 1
            s_mul_i32 s7, s40, {36*4608}
            s_add_u32 s6, s6, s7
            s_add_u32 s6, s6, {YP + 2304*sel}
            """)
            for u in range(12):
                A(f"buffer_load_dwordx4 {vr(Y0+4*u,4)}, v{T0}, {ws}, s6 offen sc1")
                A(f"s_add_u32 s6, s6, {3*4608}")
            for u in range(1, 12):
                A(f"s_waitcnt vmcnt({11-u})")
                for hf in range(2):
                    A(f"v_pk_add_f32 {vr(Y0+2*hf,2)}, {vr(Y0+2*hf,2)}, {vr(Y0+4*u+2*hf,2)}")
            A(f"ds_write_b128 v{T0+1}, {vr(Y0,4)}{off(4096*sel)}")
            A("s_waitcnt lgkmcnt(0)")
            A(f"K2_noys{sel}:")
        arrive(5)
        A("K2_noy1:")

    if OPT.get("p3map", 1):
        A.c("projection tiles are dealt so that one die works on the same tokens (speed only)")
        A("s_mov_b32 s4, s37\ns_mov_b32 s37, s43\ns_mov_b32 s43, s4")
    A.c("s54 = 16-token tile of this wave, s55 = byte offset of the channel block")
    A(f"""
    s_lshl_b32 s54, s37, 3
    s_and_b32 s4, s43, 1
    s_lshl_b32 s4, s4, 2
    s_add_u32 s54, s54, s4
    s_add_u32 s54, s54, s40
    s_lshr_b32 s55, s43, 1
    s_mul_i32 s55, s55, 144
    v_mul_u32_u24 v0, 6554, v{LANE}
    v_lshrrev_b32 v0, 16, v0
    v_mul_u32_u24 v1, {1152-160}, v0
    s_mul_i32 s4, s40, {6*1152}
    s_add_u32 s4, s4, s55
    v_add3_u32 v{XA}, v1, v{L16}, s4
    s_mul_i32 s42, s40, 960
    v_and_b32 v3, 15, v{LANE}
    v_lshrrev_b32 v4, 4, v{LANE}
    s_lshl_b32 s8, s54, 4
    v_add_u32 v{TOK}, s8, v3
    v_and_b32 v6, 1, v4
    v_lshlrev_b32 v{XA2}, 3, v{TOK}
    s_mov_b32 s5, {GB}
    buffer_load_dwordx2 {vr(GV,2)}, v{XA2}, {ws}, s5 offen sc1
    s_mul_i32 s5, s40, 3072
    s_add_u32 s97, s5, {STG}
    s_mul_i32 s8, s8, 1152
    s_add_u32 s8, s8, s55
    """)
    for n in range(3):
        A(f"""
        v_add_u32 v5, {64*n}, v{LANE}
        v_mul_u32_u24 v7, 7282, v5
        v_lshrrev_b32 v7, 16, v7
        v_mul_u32_u24 v7, {1152-144}, v7
        v_lshl_add_u32 v7, v5, 4, v7
        v_add_u32 v{OUT+n}, s8, v7
        """)
    A(f"""
    v_cmp_gt_u32 vcc, 16, v{LANE}
    v_bfrev_b32 v5, -2
    s_lshr_b32 s6, s2, 3
    v_cndmask_b32 v{OUT+2}, v5, v{OUT+2}, vcc
    s_and_b32 s6, s6, 3
    s_mul_i32 s66, s6, 6
    s_mov_b32 s62, 0xdff7fdff
    s_mov_b32 s63, 0x7fdff7f
    """)
    gwait(1)
    cs("gwait1")
    for n in range(3):
        A(f"s_add_u32 m0, s97, {1024*n}")
        A("s_nop 0")
        A(f"buffer_load_dwordx4 v{OUT+n}, s[{sX}:{sX+3}], 0 offen lds")
    def wodma(cnt):
        l = lab("K2_wodma")
        A(f"""
        s_mov_b32 s7, {cnt}
        s_mov_b64 exec, s[62:63]
        {l}:
        s_mul_i32 s4, s66, 3840
        s_add_u32 m0, s4, s42
        s_mul_i32 s67, s66, {24*1152}
        buffer_load_dwordx4 v{XA}, s[{sWO}:{sWO+3}], s67 offen lds
        s_add_u32 s66, s66, 1
        s_cmp_eq_u32 s66, 24
        s_cselect_b32 s66, 0, s66
        s_sub_u32 s7, s7, 1
        s_cmp_lg_u32 s7, 0
        s_waitcnt vmcnt({OPT.get('wopace', 3)})
        s_cbranch_scc1 {l}
        s_mov_b64 exec, -1
        """)

    def poll():
        l = lab("K2_poll")
        A(f"""
        s_add_u32 s6, s98, 4096
        s_mov_b32 s5, {SPIN}
        {l}:
        buffer_load_dword v{T0}, v{FA}, {ws}, s100 offen sc1
        s_sub_u32 s5, s5, 1
        s_cbranch_scc1 {l}_d
        s_waitcnt vmcnt(0)
        v_cmp_ne_u32 vcc, s{sTAG}, v{T0}
        s_cbranch_vccnz {l}
        {l}_d:
        """)

    def oloads():
        for ks in range(8):
            A(f"buffer_load_dwordx4 {vr(OF+4*ks,4)}, v{L16}, {ws}, s{98 if ks < 4 else 6} offen{off(1024*(ks%4))} sc1")
        for c in range(4):
            A(f"buffer_load_dword v{OF+32+c}, v{OEA}, {ws}, s99 offen{off(128*c)} sc1")

    wodma(4)
    A(f"""
    v_mul_u32_u24 v5, 144, v3
    v_add_u32 v5, s97, v5
    v_lshl_add_u32 v{SG1}, v4, 3, v5
    v_lshl_add_u32 v{SG2}, v6, 3, v5
    v_lshlrev_b32 v5, 2, v3
    v_lshl_add_u32 v{OEA}, v4, 9, v5
    v_lshlrev_b32 v{FA}, 2, v3
    v_bfe_u32 v7, v{LANE}, 2, 2
    v_lshrrev_b32 v5, 1, v4
    v_mul_u32_u24 v5, 18, v5
    v_lshl_add_u32 v5, v6, 2, v5
    v_add_u32 v5, v5, v7
    v_mul_u32_u24 v5, 160, v5
    v_and_b32 v8, 3, v{LANE}
    v_and_b32 v9, 1, v{LANE}
    v_lshl_add_u32 v{B1}, v8, 3, v5
    v_lshl_add_u32 v{B2}, v9, 3, v5
    v_lshrrev_b32 v5, 1, v7
    v_lshl_add_u32 v5, v4, 2, v5
    v_mul_u32_u24 v5, 18, v5
    v_and_b32 v7, 1, v7
    v_add3_u32 v5, v5, v7, 16
    v_mul_u32_u24 v5, 160, v5
    v_lshl_add_u32 v{E1}, v8, 3, v5
    v_lshl_add_u32 v{E2}, v9, 3, v5
    s_lshl_b32 s4, s54, 13
    s_add_u32 s98, s4, {OM}
    s_lshr_b32 s4, s54, 1
    s_lshl_b32 s4, s4, 11
    s_and_b32 s5, s54, 1
    s_lshl_b32 s5, s5, 6
    s_add_u32 s4, s4, s5
    s_add_u32 s99, s4, {OE}
    s_lshl_b32 s4, s37, 4
    s_add_u32 s4, s4, s43
    s_lshl_b32 s4, s4, 7
    s_lshr_b32 s5, s40, 1
    s_lshl_b32 s5, s5, 6
    s_add_u32 s4, s4, s5
    s_add_u32 s100, s4, {FO}
    s_mov_b32 s101, 0
    """)
    for i in range(20):
        A(f"v_mov_b32 v{ACC+i}, 0")
    wodma(20)
    cs("wo dma")
    y_first()
    poll()
    A("s_waitcnt vmcnt(0)")
    cs("polled")
    arrive(2)
    A(f"""
    s_mov_b32 s5, {SPIN}
    s_mov_b32 s6, {GB}
    K2_gchk:
    v_cmp_ne_u32 vcc, s{sTAG}, v{GV+1}
    s_cbranch_vccz K2_gok
    buffer_load_dwordx2 {vr(GV,2)}, v{XA2}, {ws}, s6 offen sc1
    s_sub_u32 s5, s5, 1
    s_waitcnt vmcnt(0)
    s_cbranch_scc0 K2_gchk
    K2_gok:
    """)
    y_sum()
    A("s_add_u32 s6, s98, 4096")
    oloads()
    cs("yred")
    for T in range(5):
        A(f"ds_read_b64 {vr(XR+2*T,2)}, v{SG1 if T < 4 else SG2}{off(32*T)}")
    gwait(2)
    cs("gwait2")

    def wreads(ks):
        f = WF + 20 * (ks % 7)
        r = []
        for T in range(5):
            for a in range(2):
                if ks < 8:
                    b, im = (B1 if T < 4 else B2), (36 * ks + 8 * a) * 160
                else:
                    b, im = (E1 if T < 4 else E2), 36 * a * 160
                im += 32 * T
                r.append(f"ds_read_b64_tr_b16 {vr(f+4*T+2*a,2)}, v{b}{off(im)}")
        return r

    A("K2_p3:")
    for ks in range(7):
        for l in wreads(ks): A(l)
    cs("preload")
    A("s_cmp_lg_u32 s101, 0")
    A("s_cbranch_scc1 K2_pass1")
    gwait(4, 2)
    cs("window")
    A("s_branch K2_mms")
    A("K2_pass1:")
    poll()
    if not OPT.get("chain"): ST.t(4)
    cs("polled")
    oloads()
    A("K2_mms:")
    A("s_waitcnt lgkmcnt(0)")
    for ks in range(9):
        A(f"s_waitcnt vmcnt({11-ks if ks < 8 else 0})" + (" lgkmcnt(0)" if ks == 7 else ""))
        f = WF + 20 * (ks % 7)
        late = wreads(ks + 6) if ks in (1, 2) else []
        for T in range(5):
            A(mf16(vr(ACC + 4 * T, 4), vr(f + 4 * T, 4), vr(OF + 4 * ks, 4), vr(ACC + 4 * T, 4)))
            for l in late[2 * T:2 * T + 2]: A(l)
    cs("mfma")
    A("s_cmp_eq_u32 s101, 0")
    A("s_cbranch_scc1 K2_mid")
    A(f"v_add_u32 v{T0}, s97, v{L16}")
    A("s_nop 1")
    for i in range(10):
        A(f"v_pk_fma_f32 {vr(ACC+2*i,2)}, {vr(ACC+2*i,2)}, {vr(GV,2)}, {vr(BX+2*i,2)}")
        A(f"v_cvt_pk_bf16_f32 v{XR+i}, v{ACC+2*i}, v{ACC+2*i+1}")
        if i % 2: A(f"ds_write_b64 v{SG1 if i < 8 else SG2}, {vr(XR+i-1,2)}{off(16*(i-1))}")
    for n in range(3):
        A(f"ds_read_b128 {vr(OF+4*n,4)}, v{T0}{off(1024*n)}")
    for n in range(3):
        A(f"s_waitcnt lgkmcnt({2-n})")
        A(f"buffer_store_dwordx4 {vr(OF+4*n,4)}, v{OUT+n}, s[{sO}:{sO+3}], 0 offen")
    cs("epilogue")
    if gen1.DIAG: A("s_waitcnt vmcnt(0)")
    cs("drain")
    csflush(1, 80)
    ST.flush(v=80)
    A("s_endpgm")

    A.c("---- between the halves: routed tokens of this wave's tile get sigmoid(r) * y; then b *= 1 - g")
    A("K2_mid:")
    A("s_mov_b32 s5, 0xffff0000")
    for i in range(10):
        A(f"v_lshlrev_b32 v{BX+2*i}, 16, v{XR+i}")
        A(f"v_and_b32 v{BX+2*i+1}, s5, v{XR+i}")
    YT = OF
    for sel in range(2):
        A(f"""
        s_lshr_b32 s4, s{70+sel}, 4
        s_cmp_lg_u32 s4, {"-1" if OPT.get("nomoe2") or OPT.get("nosel") else "s54"}
        s_cbranch_scc1 K2_nosel{sel}
        """)
        gwait(5)
        A(f"""
        v_lshlrev_b32 v{T0}, 3, v{LANE}
        v_add_u32 v{T0+1}, {YB + 4096*sel}, v{T0}
        """)
        for k in range(12):
            A(f"ds_read_b64 {vr(YT+2*k,2)}, v{T0+1}{off(1024*(k//3)+288*(k%3))}")
        A(f"""
        v_add_u32 v{T0}, s97, v{T0}
        s_ashr_i32 s6, s{68+sel}, 31
        s_not_b32 s6, s6
        s_or_b32 s6, s6, 0x80000000
        s_xor_b32 s6, s6, s{68+sel}
        s_and_b32 s6, s6, 0xffff0000
        v_mov_b32 v{T0+3}, {0x80000000 | LOG2E}
        v_mul_f32 v{T0+3}, s6, v{T0+3}
        v_exp_f32 v{T0+3}, v{T0+3}
        v_lshrrev_b32 v{T0+2}, 4, v{LANE}
        v_add_f32 v{T0+3}, 1.0, v{T0+3}
        v_rcp_f32 v{T0+3}, v{T0+3}
        v_lshl_add_u32 v{T0+1}, v{T0+2}, 4, s97
        v_and_b32 v{T0+2}, 1, v{T0+2}
        v_lshl_add_u32 v{T0+2}, v{T0+2}, 4, s97
        s_waitcnt lgkmcnt(0)
        """)
        for k in range(1, 12):
            A(f"v_pk_add_f32 {vr(YT,2)}, {vr(YT,2)}, {vr(YT+2*k,2)}")
        A(f"ds_write_b64 v{T0}, {vr(YT,2)}")
        for p in range(4):
            A(f"ds_read_b128 {vr(YT+4+4*p,4)}, v{T0+1}{off(64*p)}")
        A(f"ds_read_b128 {vr(YT+20,4)}, v{T0+2} offset:256")
        A(f"""
        v_cmp_eq_u32 vcc, s{70+sel}, v{TOK}
        s_waitcnt lgkmcnt(0)
        s_and_saveexec_b64 s[8:9], vcc
        """)
        for i in range(20):
            A(f"v_fmac_f32 v{BX+i}, v{YT+4+i}, v{T0+3}")
        A("s_mov_b64 exec, s[8:9]")
        A(f"K2_nosel{sel}:")
    A(f"v_sub_f32 v{T0+1}, 1.0, v{GV}")
    A(f"v_mov_b32 v{GV+1}, v{GV}")
    for i in range(10):
        A(f"v_pk_mul_f32 {vr(BX+2*i,2)}, {vr(BX+2*i,2)}, {vr(T0+1,2)} op_sel_hi:[1,0]")
    for b in (B1, B2, E1, E2):
        A(f"v_add_u32 v{b}, {288*160}, v{b}")
    A(f"""
    s_add_u32 s98, s98, {128*8192}
    s_add_u32 s99, s99, {64*2048}
    s_add_u32 s100, s100, {256*128}
    s_mov_b32 s101, 1
    """)
    cs("mid")
    A("s_branch K2_p3")

    A.c("---- slow path: two passes over all keys with the true row maximum (own q tile)")
    A("K2_slow:")
    M, KA, VA, VA2, KEA = 40, 42, 43, 44, 45
    lane_addrs(KA, VA, VA2, KEA)
    A(f"""
    buffer_load_dwordx2 {vr(QE,2)}, v{KEA}, {ws}, s59 offen sc1
    buffer_load_dwordx2 {vr(QM,2)}, v{KA}, {ws}, s59 offen sc1
    buffer_load_dwordx2 {vr(QM+2,2)}, v{KA}, {ws}, s59 offen offset:256 sc1
    v_and_b32 v4, 31, v{LANE}
    v_or_b32 v5, 4, v4
    v_cmp_eq_u32 vcc, 21, v5
    v_mov_b32 v6, 0x3f803f80
    s_bitcmp0_b32 s36, 0
    v_cndmask_b32 v{VV[0]}, 0, v6, vcc
    s_cselect_b32 s4, -1, 0
    s_cselect_b32 s5, 0, -1
    """)
    for i in range(1, 8):
        A(f"v_mov_b32 v{VV[0]+i}, v{VV[0]}")
    for i in range(16):
        A(f"v_mov_b32 v{o+i}, 0")
    A(f"""
    v_mov_b32 v{M}, 0xff800000
    s_waitcnt vmcnt(0)
    v_and_b32 v{QE}, s4, v{QE}
    v_and_b32 v{QE+1}, s5, v{QE+1}
    """)
    for pas in range(2):
        A("s_mov_b32 s11, 36864")
        A(f"K2_slow{pas}:")
        A(f"""
        buffer_load_dwordx2 {vr(KM[0],2)}, v{KA}, {ws}, s11 offen sc1
        buffer_load_dwordx2 {vr(KM[0]+2,2)}, v{KA}, {ws}, s11 offen offset:256 sc1
        buffer_load_dwordx2 {vr(KE,2)}, v{KEA}, {ws}, s11 offen sc1
        """)
        if pas:
            A(f"""
            s_mov_b64 exec, s[62:63]
            buffer_load_dwordx4 {vr(VV[0],4)}, v{VA}, {ws}, s11 offen sc1
            buffer_load_dwordx4 {vr(VV[0]+4,4)}, v{VA2}, {ws}, s11 offen sc1
            s_mov_b64 exec, -1
            """)
        A(f"""
        s_waitcnt vmcnt(0)
        v_mfma_f32_32x32x4_2b_bf16 v[0:31], {vr(KE,2)}, {vr(QE,2)}, 0
        s_nop 15
        s_nop 3
        {mfma("v[0:15]", vr(KM[0],4), vr(QM,4), "v[0:15]")}
        s_nop 15
        """)
        if not pas:
            for i in range(8):
                A(f"v_max3_f32 v{M}, v{M}, v{2*i}, v{2*i+1}")
        else:
            for i in range(16):
                A(f"v_sub_f32 v{i}, v{i}, v{M}")
            for i in range(16):
                A(f"v_exp_f32 v{i}, v{i}")
            A("s_nop 1")
            A(f"v_smfmac_f32_32x32x32_bf16 {vr(o,16)}, {vr(VV[0],4)}, v[0:7], v{IDX}")
            A(f"v_smfmac_f32_32x32x32_bf16 {vr(o,16)}, {vr(VV[0]+4,4)}, v[8:15], v{IDX}")
            A("s_nop 15")
        A(f"""
        s_add_u32 s11, s11, {R}
        s_cmp_lt_u32 s11, {64*R}
        s_cbranch_scc1 K2_slow{pas}
        """)
        if not pas:
            A(f"""
            v_mov_b32 v{M+1}, v{M}
            s_nop 1
            v_permlane32_swap_b32 v{M}, v{M+1}
            s_nop 1
            v_max_f32 v{M}, v{M}, v{M+1}
            """)
    A("s_branch K2_fin")
    A.c("---- router candidates not published yet (rare): wait for them")
    A(f"""
    K2_candspin:
    s_mov_b32 s6, {SPIN}
    s_mov_b32 s7, {RC}
    K2_candspin1:
    buffer_load_dwordx4 {vr(CAND,4)}, v{L16}, {ws}, s7 offen sc1
    s_sub_u32 s6, s6, 1
    s_waitcnt vmcnt(0)
    s_cbranch_scc1 K2_candok
    v_cmp_ne_u32 vcc, s{sTAG}, v{CAND+1}
    v_cmp_ne_u32 s[4:5], s{sTAG}, v{CAND+3}
    s_or_b64 vcc, vcc, s[4:5]
    s_cbranch_scc1 K2_candspin1
    s_branch K2_candok
    """)
    return CNT + 32


def build():
    A = Asm()
    A('.amdgcn_target "amdgcn-amd-amdhsa--gfx950"')
    A(".text")
    lds = k23(A)
    A('.section .rodata,"a"')
    A(".p2align 6")
    A.raw(descriptor(NAME, 256, 256))
    head = ("; gated mix of a 32-head attention block and a top-2 routed SwiGLU FFN (S=2048, D=576), one launch\n"
            f"; @launch grid=(256,1,1) block=(512,1,1) lds={lds}\n")
    return head + A.text()


if __name__ == "__main__":
    out = sys.argv[1]
    gen1.DIAG = len(sys.argv) > 2 and sys.argv[2] == "diag"
    if len(sys.argv) > 3:
        OPT = eval(sys.argv[3]); gen1.OPT = OPT
    open(out, "w").write(build())
```

```python
import sys
sys.path.insert(0, "gen")
from asmlib import *
import gen1
from gen1 import YP, WS_SIZE, XB, f32bits, QSCALE, LOG2E, mfma, Stamp
NAME = "gated_mix__mha_block__moe_arch_mod__prompt_kernel"
R = 110592
GB = 0x6C0000
RC = 0x6C4000
F1 = 0xA60000
OOB = 0x7FFFFF00

OM = 0x700000
OE = 0x900000
FO = 0xA00000
FY = 0xA40000
EP = 0xA50000
OPT = {}
SPIN = 1 << 17


def mf16(d, a, b, c):
    return f"v_mfma_f32_16x16x32_bf16 {d}, {a}, {b}, {c}"


def k23(A):
    kernel_head(A, NAME)
    sDBG, sX, sG, sWS, sD, sU, sWO, sO = 12, 16, 20, 24, 28, 32, 72, 76
    sW, sWB = 20, 28
    S = [0, 32]
    O = [64, 80, 96, 112]
    QM, QE, KE = 128, 144, 148
    NB = 5
    KP = [164 + 10 * g for g in range(3)]
    VV = [194 + 8 * g for g in range(NB)]
    IDX, L16, VA, LANE = 236, 237, 238, 239
    KA, VA2, KEA, GUA, XSA, TCH, TAGV, TMP = 240, 241, 242, 243, 244, 245, 246, 247
    CAND, PA, RET, ONE, CA = 248, 252, 253, 254, 255
    QEA = 251
    SW, PM, PE, RD = 243, 244, 245, 247
    DNA, DN5 = 245, 247
    T0 = 212
    sT = [44 + t for t in range(8)] + [72 + t for t in range(8)]
    sTAG = 53
    WREG = 29696
    BS = 4 * WREG
    HP = BS + 4 * 9216
    HS = HP + 2048
    CNT = HS + 512
    STG = 92160
    SLOT = 32768
    RGV = 4 * SLOT
    ws = f"s[{sWS}:{sWS+3}]"
    uid = [0]

    def lab(p):
        uid[0] += 1
        return f"{p}_{uid[0]}"

    def cs(name):
        if not OPT.get("chain"): return
        A("s_memtime s[88:89]")
        A("s_waitcnt lgkmcnt(0)")
        A("s_sub_u32 s88, s88, s80")
        A("s_mov_b32 m0, s96")
        A(f"v_writelane_b32 v{IDX}, s88, m0")
        A("s_add_u32 s96, s96, 1")
        A.c("stamp " + name)

    def csflush(k, v):
        if not OPT.get("chain"): return
        A(f"""
        s_lshl_b32 s4, s2, 2
        s_add_u32 s4, s4, s38
        s_lshl_b32 s4, s4, 8
        s_add_u32 s4, s4, {0xD00000 + 0x40000*k}
        v_lshlrev_b32 v{v}, 2, v{LANE}
        buffer_store_dword v{IDX}, v{v}, {ws}, s4 offen
        s_nop 1
        """)

    def arrive(k):
        A(f"""
        v_mov_b32 v{CA}, {CNT}
        v_mov_b32 v{ONE}, 1
        s_mov_b64 exec, 1
        ds_add_u32 v{CA}, v{ONE}{off(4*k)}
        s_mov_b64 exec, -1
        """)

    def gwait(k, sl=1):
        l = lab("K2_gw")
        A(f"""
        v_mov_b32 v{CA}, {CNT}
        {l}:
        ds_read_b32 v{ONE}, v{CA}{off(4*k)}
        s_waitcnt lgkmcnt(0)
        v_readfirstlane_b32 s4, v{ONE}
        s_cmp_ge_u32 s4, 4
        s_cbranch_scc1 {l}_d
        s_sleep {sl}
        s_branch {l}
        {l}_d:
        """)

    tagload = f"buffer_load_dword v{TAGV}, off, s[{sDBG}:{sDBG+3}], 0 sc1"

    def gettag():
        l = lab("K2_tag")
        A(f"""
        s_mov_b32 s5, {SPIN}
        {l}:
        s_waitcnt vmcnt(0)
        v_readfirstlane_b32 s{sTAG}, v{TAGV}
        s_cmp_lg_u32 s{sTAG}, 0
        s_cbranch_scc1 {l}_d
        {tagload}
        s_sub_u32 s5, s5, 1
        s_cbranch_scc0 {l}
        {l}_d:
        """)

    def lane_addrs(KA, VA, VA2, KEA):
        A(f"""
        s_lshr_b32 s4, s36, 1
        s_mul_i32 s4, s4, {9*256}
        s_and_b32 s5, s36, 1
        s_mul_i32 s5, s5, {5*256}
        s_add_u32 s5, s5, s4
        s_add_u32 s4, s4, 1024
        v_and_b32 v4, 31, v{LANE}
        v_lshrrev_b32 v6, 5, v{LANE}
        v_lshrrev_b32 v5, 4, v4
        v_mul_u32_u24 v5, {R-256}, v5
        v_lshl_add_u32 v5, v4, 4, v5
        v_add_u32 v{KEA}, s4, v5
        v_add_u32 v{KA}, s5, v5
        v_lshl_add_u32 v{KA}, v6, 9, v{KA}
        s_mul_i32 s4, s36, 288
        s_add_u32 s4, s4, 36864
        v_min_u32 v5, 17, v4
        v_lshl_add_u32 v{VA}, v5, 4, s4
        v_mul_u32_u24 v5, 9216, v6
        v_add_u32 v{VA}, v{VA}, v5
        v_add_u32 v{VA2}, 18432, v{VA}
        """)

    def att_setup():
        A(f"""
        s_lshl_b32 s4, s3, 1
        s_bfe_u32 s5, s2, 0x10003
        s_add_u32 s43, s4, s5
        s_lshr_b32 s37, s2, 4
        s_lshl_b32 s36, s39, 4
        s_add_u32 s36, s36, s43
        """)
        A.c("s36 head, s37 q block (128), s38 wave, s39 head half, s40 key quarter, s43 head within half")
        lane_addrs(KA, VA, VA2, KEA)
        A(f"""
        s_mul_i32 s10, s37, {4*R}
        s_xor_b32 s11, s40, 3
        """)
        A.c("a 32-row tile = the same 16-token half of two neighbouring records; local q tile t is tile t ^ 3 ^ kq")
        A(f"""
        s_mov_b32 s60, s10
        s_lshr_b32 s4, s11, 1
        s_mul_i32 s5, s4, {2*R}
        s_add_u32 s56, s10, s5
        s_xor_b32 s5, s4, 1
        s_mul_i32 s5, s5, {2*R}
        s_add_u32 s57, s10, s5
        v_xor_b32 v5, s4, v6
        s_mov_b32 s4, {2*R}
        v_mad_u32_u24 v{QEA}, v5, s4, v{KEA}
        s_and_b32 s9, s37, {OPT.get("rot", 0)}
        s_and_b32 s5, s9, 1
        v_xor_b32 v5, s5, v6
        v_subrev_u32 v5, s5, v5
        v_mad_i32_i24 v{KEA}, v5, s4, v{KEA}
        s_mul_i32 s10, s40, {16*R}
        s_add_u32 s10, s10, 36864
        """)
        assert not OPT.get("rot", 0) & 1
        for m in range(8):
            A(f"s_xor_b32 s4, s9, {m}")
            A(f"s_mul_i32 s4, s4, {2*R}")
            A(f"s_add_u32 s{sT[2*m]}, s10, s4")
            A(f"s_add_u32 s{sT[2*m+1]}, s{sT[2*m]}, {R}")
        A.c("projection flags this wave waits for: lanes 0-7 q, 8-15 k, 16-23 v; two channel blocks x four token blocks")
        A(f"""
        s_mul_i32 s4, s36, 18
        s_and_b32 s4, s4, 0xfffc
        s_add_u32 s5, s4, 19
        s_lshr_b32 s4, s4, 6
        s_lshr_b32 s5, s5, 6
        s_sub_u32 s5, s5, s4
        v_bfe_u32 v5, v{LANE}, 2, 1
        v_and_b32 v5, s5, v5
        v_bfe_u32 v7, v{LANE}, 3, 2
        v_min_u32 v7, 2, v7
        v_mad_u32_u24 v5, v7, 9, v5
        v_add_u32 v5, s4, v5
        v_and_b32 v8, 3, v{LANE}
        s_lshl_b32 s4, s40, 2
        v_add_u32 v8, s4, v8
        v_cmp_eq_u32 vcc, 0, v7
        v_mov_b32 v9, s37
        s_mov_b32 s62, 0x0011ffff
        v_cndmask_b32 v8, v8, v9, vcc
        v_lshl_add_u32 v5, v5, 4, v8
        s_mov_b32 s4, {F1}
        v_lshl_add_u32 v{PA}, v5, 5, s4
        s_mov_b32 s63, 0x0011ffff
        """)

    ACC, PK, AX, AW, SA = 64, 128, 224, 228, 250
    FR = [0, 32]

    def acc(a, T):
        return ACC + 16 * a + 4 * T

    def epilogue(vmode):
        A(f"s_add_u32 s66, s65, {R}")
        for r in range(2):
            for T in range(4):
                p = PK + 16 * r + 4 * T
                for a in (2 * r, 2 * r + 1):
                    d = acc(a, T)
                    if not vmode:
                        for i in range(2):
                            A(f"v_pk_mul_f32 {vr(d+2*i,2)}, {vr(d+2*i,2)}, s[98:99]")
                    for i in range(2):
                        A(f"v_cvt_pk_bf16_f32 v{p+2*(a%2)+i}, v{d+2*i}, v{d+2*i+1}")
                A(f"buffer_store_dwordx4 {vr(p,4)}, v{SA}, {ws}, s{65+r} offen{off((256 if vmode else 1024)*T)} sc1")

    def xread(n, a, vmode):
        c, s_ = divmod(n, 2)
        k, o = divmod(c % 4, 2)
        to = (a // 2) * 4096 + (a % 2) * 512 if vmode else a * 2048
        return f"ds_read_b128 {vr(FR[n%2]+4*a,4)}, v{AX+2*k+s_}{off(o*SLOT+to)}"

    def reads(n, vmode):
        c, s_ = divmod(n, 2)
        k, o = divmod(c % 4, 2)
        w = [[(f"w{T}", f"ds_read_b64_tr_b16 {vr(FR[n%2]+16+4*T+2*a,2)}, v{AW+4*k+T}{off(o*SLOT+(32*s_+4*a)*128)}") for a in range(2)] for T in range(4)]
        x = [(f"x{a}", xread(n, a, vmode)) for a in range(4)]
        return [(f"{n}{t}", l) for t, l in w[0] + x[:1] + w[1] + w[2] + w[3] + x[1:]]

    def gemm(vmode):
        q = []

        def put(r):
            q.append(r[0]); A(r[1])

        def need(*tags):
            idx = [i for i, t in enumerate(q) if t in tags]
            if idx:
                A(f"s_waitcnt lgkmcnt({len(q) - 1 - max(idx)})")
                del q[:max(idx) + 1]
        A("s_barrier")
        sp(1, "b0")
        cs("B0")
        for r in reads(0, vmode): put(r)
        for n in range(18):
            Rn = reads(n + 1, vmode) if n < 17 else []
            for a in range(4):
                for T in range(4):
                    i = 4 * a + T
                    if i == 0 and n > 0: need(f"{n}x0", f"{n}w0", f"{n}w1", f"{n}w2", f"{n}w3")
                    need(f"{n}x{a}", f"{n}w{T}")
                    d = vr(acc(a, T), 4)
                    x, w = vr(FR[n % 2] + 4 * a, 4), vr(FR[n % 2] + 16 + 4 * T, 4)
                    c = "0" if n == 0 else d
                    A(mf16(d, x, w, c) if vmode else mf16(d, w, x, c))
                    if i == 0 and Rn and n % 2 == 1: A("s_barrier")
                    if i == 0 and n == OPT.get("tagstep", 10): A(tagload)
                    if i < len(Rn): put(Rn[i])

    def pflag(sf):
        l = lab("K2_pf")
        A(f"""
        v_lshlrev_b32 v12, 2, v{LANE}
        s_and_b32 s4, s40, 2
        s_lshl_b32 s4, s4, 1
        v_add_u32 v13, s4, v{CA}
        s_mov_b64 exec, 1
        s_waitcnt vmcnt(0)
        ds_add_rtn_u32 v{RET}, v13, v{ONE} offset:24
        s_mov_b64 exec, 0xff
        s_waitcnt lgkmcnt(0)
        v_readfirstlane_b32 s4, v{RET}
        s_cmp_lg_u32 s4, 1
        s_cbranch_scc1 {l}
        buffer_store_dword v{TAGV}, v12, {ws}, s{sf} offen sc1
        {l}:
        s_mov_b64 exec, -1
        """)

    def presets():
        A.c("V registers are preset: rows 17 and 21 are the all-ones rows that produce the softmax denominator")
        A.c("(1 + 127*2^-16 has the bit pattern 0x3f803f80 = two bf16 ones; the matrix unit fills 32 registers per instruction)")
        A(f"""
        v_and_b32 v4, 31, v{LANE}
        v_or_b32 v5, 4, v4
        v_cmp_eq_u32 vcc, 21, v5
        v_mov_b32 v6, 0x3afe3f80
        v_mov_b32 v8, 0x3f803f80
        v_cndmask_b32 v6, 0, v6, vcc
        v_mov_b32 v7, 0
        v_mov_b32 v9, 0
        v_mov_b32 v10, 0
        v_mov_b32 v11, 0
        v_mfma_f32_32x32x4_2b_bf16 {vr(170,32)}, v[8:9], v[6:7], 0
        v_mfma_f32_32x32x4_2b_bf16 {vr(202,32)}, v[8:9], v[6:7], 0
        v_mfma_f32_32x32x4_2b_bf16 {vr(O[0],32)}, v[10:11], v[10:11], 0
        v_mfma_f32_32x32x4_2b_bf16 {vr(O[2],32)}, v[10:11], v[10:11], 0
        s_nop 3
        """)

    def p1_addrs():
        A.c("wave = 64 tokens (s40 & 1) x one 64-channel tile (s40 >> 1); v tiles map row 4g+j of tile a to token 8g+4a+j")
        A(f"""
        v_lshrrev_b32 v1, 4, v{LANE}
        v_and_b32 v2, 15, v{LANE}
        v_and_b32 v3, 12, v2
        v_add_u32 v3, v3, v2
        s_cmp_eq_u32 s100, 2
        s_cselect_b64 vcc, -1, 0
        v_cndmask_b32 v3, v2, v3, vcc
        v_mul_u32_u24 v4, 9216, v1
        v_lshl_add_u32 v4, v2, 4, v4
        v_cndmask_b32 v{SA}, v{L16}, v4, vcc
        v_lshrrev_b32 v4, 1, v2
        v_xor_b32 v4, v4, v1
        s_and_b32 s4, s40, 1
        s_lshl_b32 s4, s4, 1
        s_cmp_eq_u32 s100, 3
        s_cselect_b32 s4, s40, s4
        s_lshl_b32 s5, s68, 2
        s_add_u32 s71, s5, s4
        s_lshl_b32 s4, s4, 12
        v_lshl_add_u32 v3, v3, 7, s4
        v_lshl_add_u32 v{AX}, v4, 4, v3
        v_xor_b32 v{AX+1}, 64, v{AX}
        v_add_u32 v{AX+2}, {2*SLOT}, v{AX}
        v_add_u32 v{AX+3}, {2*SLOT}, v{AX+1}
        v_bfe_u32 v3, v{LANE}, 2, 2
        v_lshl_add_u32 v4, v1, 3, v3
        v_lshlrev_b32 v4, 7, v4
        v_bfe_u32 v3, v{LANE}, 3, 2
        v_lshl_add_u32 v4, v3, 5, v4
        v_and_b32 v3, 3, v{LANE}
        v_lshl_add_u32 v4, v3, 3, v4
        s_lshr_b32 s7, s40, 1
        s_lshl_b32 s4, s7, 13
        s_add_u32 s4, s4, 16384
        v_add_u32 v{AW}, s4, v4
        """)
        for T in range(1, 4):
            A(f"v_xor_b32 v{AW+T}, {32*T}, v{AW}")
        for T in range(4):
            A(f"v_add_u32 v{AW+4+T}, {2*SLOT}, v{AW+T}")
        A.c("store base s65 and flag address s61 of this wave's tile")
        A(f"""
        s_mul_i32 s7, s7, 5
        s_add_u32 s69, s69, s7
        s_add_u32 s70, s70, s7
        s_mul_i32 s4, s71, {R}
        s_lshl_b32 s5, s69, 12
        s_lshl_b32 s6, s70, 10
        s_add_u32 s6, s6, 73728
        s_cmp_eq_u32 s100, 2
        s_cselect_b32 s5, s6, s5
        s_add_u32 s65, s4, s5
        s_lshl_b32 s4, s69, 4
        s_add_u32 s4, s4, s68
        s_lshl_b32 s4, s4, 5
        s_add_u32 s61, s4, {F1}
        s_cmp_eq_u32 s100, 0
        s_cselect_b32 s98, {QSCALE}, 1.0
        s_mov_b32 s99, s98
        """)

    A("s_cmp_ge_u32 s2, 256")
    A("s_cbranch_scc1 K2_end")
    ST = Stamp(A, 0); ST.t(0)
    STS = OPT.get("st", ("astore,polled,loopend,fpolled", "loaded,polled,loopend,flag"))

    def sp(old, name):
        L = STS[0 if old else 1].split(",")
        if name in L: ST.t(1 + L.index(name))
    srd(A, sX, 0, XB)
    srd(A, sW, 8, 576 * 3456)
    srd(A, sWS, 88, WS_SIZE)
    srd(A, sDBG, 80, 256)
    A(f"""
    v_lshrrev_b32 v1, 6, v0
    v_and_b32 v{LANE}, 63, v0
    v_readfirstlane_b32 s38, v1
    v_lshlrev_b32 v{L16}, 4, v{LANE}
    s_and_b32 s3, s2, 7
    s_and_b32 s4, s2, 3
    s_bfe_u32 s5, s2, 0x20003
    s_lshl_b32 s68, s4, 2
    s_add_u32 s68, s68, s5
    s_lshr_b32 s6, s3, 2
    s_lshr_b32 s7, s2, 5
    s_cmp_eq_u32 s6, 0
    s_mov_b32 s11, 0x9edcba87
    s_cselect_b32 s11, 0x94653210, s11
    s_lshr_b32 s9, s5, 1
    s_xor_b32 s9, s9, s6
    s_mul_i32 s9, s9, 0x60000000
    s_or_b32 s9, s9, s11
    s_lshl_b32 s8, s7, 2
    s_lshr_b32 s8, s9, s8
    s_and_b32 s8, s8, 15
    s_mul_i32 s100, s8, 52
    s_lshr_b32 s100, s100, 8
    s_mul_i32 s9, s100, 5
    s_sub_u32 s70, s8, s9
    s_mul_i32 s69, s100, 9
    s_add_u32 s69, s69, s70
    s_cmp_lt_u32 s70, 4
    s_cselect_b32 s101, 1, 0
    s_cmp_eq_u32 s100, 3
    s_cselect_b32 s101, 0, s101
    s_lshr_b32 s39, s38, 2
    s_and_b32 s40, s38, 3
    s_cmp_eq_u32 s39, 0
    s_cbranch_scc1 K2_old
    """)
    CR = OPT.get("cr", (7, 1, 3, 2, 1, 1))
    A.c("projection tile: s68 token block (128), s100 section (q, k, v, router), s70 block in section, s69 block, s101 has a second tile")
    A.c("=========== waves 4-7 first stage x and w_qkv for the projection (k chunks start at s71, for L2 locality only)")
    A(f"""
    s_setprio 2
    s_and_b32 s71, s7, {CR[0]}
    s_mul_i32 s71, s71, {CR[1]}
    s_and_b32 s9, s5, {CR[2]}
    s_mul_i32 s9, s9, {CR[3]}
    s_{"xor_b32" if len(CR) > 6 else "add_u32"} s71, s71, s9
    s_mul_i32 s9, s4, {CR[4]}
    s_add_u32 s71, s71, s9
    s_mul_i32 s9, s6, {CR[5]}
    s_add_u32 s71, s71, s9
    s_mul_i32 s9, s71, 57
    s_lshr_b32 s9, s9, 9
    s_mul_i32 s9, s9, 9
    s_sub_u32 s71, s71, s9
    s_cmp_eq_u32 s100, 3
    s_cselect_b32 s71, 0, s71
    v_lshrrev_b32 v2, 3, v{LANE}
    v_and_b32 v3, 7, v{LANE}
    v_lshrrev_b32 v4, 4, v{LANE}
    s_cmp_eq_u32 s100, 2
    s_cselect_b32 s9, 1, 2
    s_cselect_b32 s10, 1, 3
    s_lshl_b32 s9, s40, s9
    s_and_b32 s9, s9, 7
    v_and_b32 v5, s10, v4
    v_add_u32 v5, s9, v5
    v_xor_b32 v5, v3, v5
    s_lshl_b32 s9, s40, 3
    v_add_u32 v2, s9, v2
    s_lshl_b32 s10, s68, 7
    v_add_u32 v6, s10, v2
    v_mul_u32_u24 v6, 1152, v6
    v_lshl_add_u32 v10, v5, 4, v6
    v_and_b32 v4, 1, v4
    s_and_b32 s9, s40, 1
    s_lshl_b32 s9, s9, 2
    v_lshl_add_u32 v4, v4, 1, s9
    v_xor_b32 v3, v3, v4
    v_mul_u32_u24 v6, 3456, v2
    v_lshl_add_u32 v6, v3, 4, v6
    s_lshl_b32 s10, s69, 7
    v_add_u32 v11, s10, v6
    s_lshl_b32 s42, s40, 10
    s_cmp_eq_u32 s100, 3
    s_cselect_b32 s{sW+2}, 0, {576*3456}
    s_cmp_eq_u32 s101, 0
    s_cselect_b32 s{sWB+2}, 0, {576*3456}
    s_mov_b32 s{sWB+3}, 0x00020000
    s_waitcnt lgkmcnt(0)
    s_mov_b64 s[{sWB}:{sWB+1}], s[{sW}:{sW+1}]
    """)
    A.c("missing tiles stage zeros (empty descriptors)")

    def issueA(c):
        slot = c % 4
        A(f"s_lshl_b32 s65, s71, 7\ns_mul_i32 s66, s71, {64*3456}")
        for u in range(4):
            t, hf = u % 2, u // 2
            A(f"s_add_u32 m0, s42, {slot*SLOT + 16384 + t*8192 + hf*4096}")
            A(f"s_add_u32 s67, s66, {hf*32*3456 + 640*t}")
            A(f"buffer_load_dwordx4 v11, s[{(sW, sWB)[t]}:{(sW, sWB)[t]+3}], s67 offen lds")
            A(f"s_add_u32 m0, s42, {slot*SLOT + u*4096}")
            A(f"s_add_u32 s67, s65, {u*36864}")
            A(f"buffer_load_dwordx4 v10, s[{sX}:{sX+3}], s67 offen lds")
        A("s_add_u32 s71, s71, 1\ns_cmp_eq_u32 s71, 9\ns_cselect_b32 s71, 0, s71")

    issueA(0); issueA(1)
    issued = 2
    for c in range(9):
        A(f"s_waitcnt vmcnt({8*(issued - c - 1)})")
        A("s_barrier")
        if issued < 9:
            issueA(issued); issued += 1
    sp(0, "loaded")
    A(tagload)
    att_setup()
    presets()
    gettag()
    A("s_branch K2_young2")

    def p1_compute():
        A("K2_old:")
        A("s_setprio 3")
        if OPT.get("chain"): A("s_mov_b32 s96, 0")
        A(f"""
        v_mov_b32 v{CA}, {CNT}
        v_mov_b32 v{ONE}, 1
        v_mov_b32 v10, 0
        v_mov_b32 v11, 0
        v_mov_b32 v12, 0
        v_mov_b32 v13, 0
        s_waitcnt lgkmcnt(0)
        s_or_b32 s4, s2, s40
        s_cmp_lg_u32 s4, 0
        s_cbranch_scc1 K2_notag
        """)
        A.c("hand-off tag of this launch: successor of the word the previous launch left, published through d_debug[0]")
        A(f"""
        s_mov_b32 s4, {EP}
        buffer_load_dword v14, off, {ws}, s4 sc1
        s_mov_b32 s5, 1664525
        s_waitcnt vmcnt(0)
        v_mul_lo_u32 v14, v14, s5
        v_add_u32 v14, 1013904223, v14
        v_max_u32 v14, 1, v14
        s_mov_b64 exec, 1
        buffer_store_dword v14, off, s[{sDBG}:{sDBG+3}], 0 sc1
        buffer_store_dword v14, off, {ws}, s4 sc1
        s_mov_b64 exec, -1
        K2_notag:
        ds_write_b128 v{CA}, v[10:13]
        ds_write_b128 v{CA}, v[10:13] offset:16
        ds_write_b128 v{CA}, v[10:13] offset:32
        s_load_dwordx2 s[4:5], s[0:1], 32
        s_load_dwordx2 s[6:7], s[0:1], 64
        """)
        srd(A, sG, 40, 576 * 9216)
        srd(A, sU, 48, 576 * 9216)
        srd(A, sD, 56, 4608 * 1152)
        A(f"""
        s_mov_b32 s10, 1152
        s_mov_b32 s11, 0x00020000
        s_waitcnt lgkmcnt(0)
        s_cmp_lt_u32 s40, 2
        s_cselect_b32 s8, s4, s6
        s_cselect_b32 s9, s5, s7
        s_cmp_lg_u32 s100, 3
        s_cbranch_scc1 K2_norgv
        s_lshl_b32 s4, s40, 10
        s_add_u32 m0, s4, {RGV}
        s_and_b32 s4, s4, 1024
        buffer_load_dwordx4 v{L16}, s[8:11], s4 offen lds
        K2_norgv:
        """)
        p1_addrs()
        att_setup()
        A.c("MoE: f block s41 (32 columns), only for workgroups with (id >> 3) < 18")
        A(f"""
        s_lshr_b32 s4, s2, 3
        s_mul_i32 s41, s3, 18
        s_add_u32 s41, s41, s4
        s_mul_i32 s42, s40, {WREG}
        v_lshrrev_b32 v8, 2, v{LANE}
        v_and_b32 v9, 48, v{L16}
        s_mul_i32 s5, s40, 144
        v_add_u32 v10, s5, v8
        v_mul_u32_u24 v10, 9216, v10
        s_lshl_b32 s5, s41, 6
        v_add3_u32 v{GUA}, v10, v9, s5
        s_lshl_b32 s6, s41, 5
        v_add_u32 v10, s6, v8
        v_mul_u32_u24 v10, 1152, v10
        s_and_b32 s5, s40, 1
        s_lshl_b32 s5, s5, 6
        s_add_u32 s5, s5, 1024
        v_add3_u32 v{DN5}, v10, v9, s5
        v_lshrrev_b32 v8, 4, v{LANE}
        v_add_u32 v10, s6, v8
        v_mul_u32_u24 v10, 1152, v10
        v_lshlrev_b32 v8, 6, v8
        v_and_b32 v9, 0xff, v{L16}
        v_xor_b32 v9, v9, v8
        s_lshl_b32 s5, s40, 8
        v_add3_u32 v{DNA}, v10, v9, s5
        """)
        A.c("neighbouring f blocks share cache lines: odd ones stage w_up first, even ones w_gate (speed only)")
        A(f"""
        s_bitcmp0_b32 s41, 0
        s_cselect_b32 s58, 0, 9216
        s_cselect_b64 s[6:7], s[{sG}:{sG+1}], s[{sU}:{sU+1}]
        s_cselect_b64 s[{sU}:{sU+1}], s[{sU}:{sU+1}], s[{sG}:{sG+1}]
        s_mov_b64 s[{sG}:{sG+1}], s[6:7]
        s_xor_b32 s59, s58, 9216
        s_add_u32 s58, s58, s42
        s_add_u32 s59, s59, s42
        s_mov_b32 s54, 0
        s_mov_b32 s55, {16*9216}
        s_mov_b32 s64, 1
        s_mov_b32 s52, 0
        s_cmp_lt_u32 s4, {0 if OPT.get('nomoe2') else 18}
        s_cbranch_scc1 K2_ismoe
        """)
        A.c("the other workgroups use the same slots to pull w_o into their die's L2 (speed only)")
        A(f"""
        s_load_dwordx2 s[{sG}:{sG+1}], s[0:1], 16
        s_load_dwordx2 s[{sU}:{sU+1}], s[0:1], 16
        s_mov_b32 s{sG+2}, {576*1152}
        s_mov_b32 s{sU+2}, {576*1152}
        s_mov_b32 s{sD+2}, 0
        s_sub_u32 s4, s4, 18
        s_lshl_b32 s4, s4, 2
        s_add_u32 s4, s4, s40
        s_lshl_b32 s4, s4, 10
        v_add_u32 v{GUA}, s4, v{L16}
        s_mov_b32 s55, {56*1024}
        s_mov_b32 s64, 0
        s_mov_b32 s52, -1
        s_waitcnt lgkmcnt(0)
        K2_ismoe:
        """)
        cs("setup")
        A("""
        s_cmp_eq_u32 s100, 3
        s_cbranch_scc1 K2_rg
        s_cmp_ge_u32 s70, 9
        s_cbranch_scc1 K2_idle
        s_cmp_eq_u32 s100, 2
        s_cbranch_scc1 K2_pv
        """)
        for vmode in (False, True):
            if vmode: A("K2_pv:")
            A.c("v tiles: D = x W (lane = channel, registers = tokens)" if vmode else "q / k tiles: D = W^T x^T (lane = token, registers = channels)")
            gemm(vmode)
            sp(1, "passa")
            gettag()
            cs("pass A")
            epilogue(vmode)
            sp(1, "astore")
            cs("a stores")
            A("s_branch K2_p1done")
        A.c("---- no second tile in this workgroup")
        A("K2_idle:")
        for c in range(9): A("s_barrier")
        A(tagload)
        gettag()
        A(f"s_mov_b32 s61, {OOB}")
        A("s_branch K2_p1done")
        A.c("---- router score and mix gate of 32 tokens per wave")
        A("K2_rg:")
        A(f"""
        v_lshrrev_b32 v1, 4, v{LANE}
        v_and_b32 v2, 31, v{LANE}
        v_and_b32 v3, 1, v{LANE}
        v_lshlrev_b32 v3, 11, v3
        v_lshl_add_u32 v3, v1, 4, v3
        v_add_u32 v{AW}, {RGV}, v3
        s_lshl_b32 s4, s71, 5
        v_add_u32 v{AW+1}, s4, v2
        v_cmp_lt_u32 vcc, 15, v2
        s_waitcnt vmcnt(0)
        """)
        for c in range(9):
            A("s_barrier")
            if c == 0: cs("B0")
            if c == 5: A(tagload)
            for n in (2 * c, 2 * c + 1):
                A(f"ds_read_b128 {vr(FR[n%2]+16,4)}, v{AW}{off(64*n)}")
                for a in range(2): A(xread(n, a, False))
            for n in (2 * c, 2 * c + 1):
                A(f"s_waitcnt lgkmcnt({3*(1-n%2)})")
                for a in range(2):
                    A(mf16(vr(ACC + 4 * a, 4), vr(FR[n % 2] + 16, 4), vr(FR[n % 2] + 4 * a, 4), "0" if n == 0 else vr(ACC + 4 * a, 4)))
        gettag()
        A("s_nop 3")
        cs("pass A")
        A(f"v_cndmask_b32 v{ACC}, v{ACC}, v{ACC+4}, vcc")
        A(f"v_cndmask_b32 v{ACC+1}, v{ACC+1}, v{ACC+5}, vcc")
        A(f"""
        s_mov_b32 s5, 0xffff0000
        v_cvt_pk_bf16_f32 v6, v{ACC+1}, v{ACC}
        v_lshlrev_b32 v4, 16, v6
        v_mul_f32 v4, {0x80000000 | LOG2E}, v4
        v_exp_f32 v4, v4
        v_ashrrev_i32 v7, 31, v6
        v_add_f32 v4, 1.0, v4
        v_rcp_f32 v4, v4
        v_or_b32 v7, 0x80000000, v7
        v_xor_b32 v6, v6, v7
        v_and_b32 v6, s5, v6
        v_sub_u32 v7, 0xffff, v{AW+1}
        v_or_b32 v6, v6, v7
        v_cvt_pk_bf16_f32 v4, v4, v4
        v_and_b32 v4, s5, v4
        v_mov_b32 v5, s{sTAG}
        v_lshlrev_b32 v7, 3, v{AW+1}
        s_mov_b32 s4, {GB}
        buffer_store_dwordx2 v[4:5], v7, {ws}, s4 offen sc1
        """)
        wave_top2_u32(A, 6, 7, 6, 7)
        A(f"""
        s_lshl_b32 s4, s71, 4
        s_add_u32 s4, s4, {RC}
        v_mov_b32 v8, s6
        v_mov_b32 v9, s{sTAG}
        v_mov_b32 v10, s7
        v_mov_b32 v11, s{sTAG}
        s_mov_b64 exec, 1
        buffer_store_dwordx4 v[8:11], off, {ws}, s4 sc1
        s_mov_b64 exec, -1
        s_mov_b32 s61, {OOB}
        """)
        sp(1, "astore")
        cs("a stores")
        A("K2_p1done:")
        presets()
        pflag(61)
        sp(1, "aflag")
        cs("flag")

    def ldK(p):
        return [f"buffer_load_dwordx4 {vr(KP[p%3]+6*i,4)}, v{KA}, {ws}, s{sT[2*p]} offen{off(256*i)} sc1" for i in range(2)]

    def ldV(j):
        return ["s_mov_b64 exec, s[62:63]"] + \
            [f"buffer_load_dwordx4 {vr(VV[j%NB]+4*i,4)}, v{(VA, VA2)[j%2]}, {ws}, s{sT[(j & ~1)+i]} offen sc1" for i in range(2)] + \
            ["s_mov_b64 exec, -1"]

    def ldKE(g):
        return [f"buffer_load_dwordx4 {vr(KE+4*g,4)}, v{KEA}, {ws}, s{sT[4*g]} offen sc1"]

    QT = 32

    def ldQ(rp):
        return [f"buffer_load_dwordx4 {vr(QT+8*rp+4*i,4)}, v{KA}, {ws}, s{56+rp} offen{off(256*i)} sc1" for i in range(2)]

    def items(j):
        return ([ldKE(j // 4)] if j % 4 == 0 else []) + ([[l] for l in ldK(j // 2)] if j % 2 == 0 else []) + [ldV(j)]

    def kmov(kt):
        b = KP[(kt // 2) % 3]
        return f"v_mov_b64 {vr(b+4,2)}, {vr(b+8 if kt % 2 else b,2)}"

    def m2b(kt, c):
        u = kt % 4
        return (f"v_mfma_f32_32x32x4_2b_bf16 {vr(S[c],32)}, {vr(KE+4*(kt//4)+2*(u%2),2)}, {vr(QE+2*c,2)}, 0"
                f" cbsz:1 abid:{u//2}")

    def mm(kt, c, b):
        d = vr(S[c] + 16 * b, 16)
        return mfma(d, vr(KP[(kt // 2) % 3] + (2 if kt % 2 else 4), 4), vr(QM + 4 * (c + 2 * b), 4), d)

    def sm(kt, c, b, i):
        return (f"v_smfmac_f32_32x32x32_bf16 {vr(O[c+2*b],16)}, {vr(VV[kt%NB]+4*i,4)}, "
                f"{vr(S[c]+16*b+8*i,8)}, v{IDX}")

    def moe_dma(n):
        if n < 18:
            m, u = n // 9, n % 9
            s = (sG, sU)[m]
            return [f"s_add_u32 m0, s{58+m}, {1024*u}", "s_and_b32 s54, s54, s52" if n == 9 else "s_nop 0",
                    f"buffer_load_dwordx4 v{GUA}, s[{s}:{s+3}], s54 offen lds", "s_add_u32 s54, s54, s55"]
        n -= 18
        pre = [f"s_add_u32 m0, s42, {18432+1024*n}"]
        if n < 8:
            return pre + [f"s_mov_b32 s67, {4*n*1152}", f"buffer_load_dwordx4 v{DNA}, s[{sD}:{sD+3}], s67 offen lds"]
        return pre + [f"s_mov_b32 s67, {16*(n-8)*1152}", f"buffer_load_dwordx4 v{DN5}, s[{sD}:{sD+3}], s67 offen lds"]

    xsel_dma = [f"s_add_u32 m0, s42, {28672}", "s_nop 0",
                f"buffer_load_dwordx4 v{XSA}, s[{sX}:{sX+3}], 0 offen lds"]

    def owrite(t):
        return [f"ds_write_b128 v{SW}, {vr(O[t],4)}{off(3072*t)}",
                f"ds_write_b128 v{SW}, {vr(O[t]+4,4)}{off(3072*t+1024)}",
                f"ds_write_b64 v{SW}, {vr(O[t]+8,2)}{off(3072*t+2048)}"]

    def scratch_addrs(base, stride):
        A(f"s_mul_i32 s4, s40, {stride}")
        A(f"s_add_u32 s4, s4, {base}")
        A(f"v_add_u32 v{SW}, s4, v{L16}")
        for t in range(3):
            A(f"s_xor_b32 s4, s40, {t ^ 3}")
            A(f"s_mul_i32 s4, s4, {stride}")
            A(f"s_add_u32 s4, s4, {base}")
            A(f"v_add_u32 v{RD+t}, s4, v{L16}")
        A(f"""
        v_bfe_u32 v{PM}, v{LANE}, 4, 1
        v_lshlrev_b32 v{PM}, 14, v{PM}
        v_lshrrev_b32 v{PE}, 5, v{LANE}
        v_lshl_add_u32 v{PM}, v{PE}, 8, v{PM}
        v_and_b32 v{PE}, 0xff, v{L16}
        v_add_u32 v{PM}, v{PM}, v{PE}
        v_and_b32 v{PE}, 31, v{LANE}
        v_lshlrev_b32 v{PE}, 2, v{PE}
        s_lshl_b32 s4, s39, 6
        s_lshl_b32 s5, s37, 2
        s_add_u32 s4, s4, s5
        s_add_u32 s4, s4, s40
        s_lshl_b32 s5, s4, 1
        s_and_b32 s6, s40, 1
        s_sub_u32 s5, s5, s6
        s_lshl_b32 s5, s5, 13
        s_lshl_b32 s6, s43, 9
        s_add_u32 s5, s5, s6
        s_add_u32 s65, s5, {OM}
        s_lshl_b32 s4, s4, 4
        s_add_u32 s4, s4, s43
        s_lshl_b32 s4, s4, 7
        s_add_u32 s66, s4, {OE}
        s_lshl_b32 s4, s39, 4
        s_add_u32 s4, s4, s37
        s_lshl_b32 s4, s4, 11
        s_lshl_b32 s5, s40, 6
        s_add_u32 s4, s4, s5
        s_lshl_b32 s5, s43, 2
        s_add_u32 s4, s4, s5
        s_add_u32 s61, s4, {FO}
        v_mov_b32 v{CA}, {CNT + (0 if base == 0 else 12)}
        v_mov_b32 v{ONE}, 1
        """)

    def attention(old):
        pend = []

        def issue(lines, tag):
            for l in lines:
                if l.startswith("buffer_"):
                    pend.append(tag)
            return lines

        def wait_for(tag):
            last = max(i for i, t in enumerate(pend) if t == tag)
            n = len(pend) - 1 - last
            del pend[:last + 1]
            return f"s_waitcnt vmcnt({n})"

        l = lab("K2_p1poll")
        sl0, sl1 = OPT.get("psleep", (10, 0)) if old else OPT.get("ysleep", (8, 8))
        A(f"""
        s_mov_b32 s5, {SPIN}
        {f"s_sleep {sl0}" if sl0 else ""}
        {l}:
        buffer_load_dword v{RET}, v{PA}, {ws}, 0 offen sc1
        s_sub_u32 s5, s5, 1
        s_cbranch_scc1 {l}_d
        s_waitcnt vmcnt(0)
        v_cmp_ne_u32 vcc, s{sTAG}, v{RET}
        s_cbranch_vccz {l}_d
        {f"s_sleep {sl1}" if sl1 else ""}
        s_branch {l}
        {l}_d:
        """)
        sp(old, "polled")
        if old: cs("polled")
        pro = issue([f"buffer_load_dwordx4 {vr(QT+16,4)}, v{QEA}, {ws}, s60 offen sc1"] + ldKE(0), "qe") + \
            issue(ldQ(0) + ldQ(1) + ldK(0), "q0") + issue(ldV(0), "g0") + issue(ldV(1), "g1")
        for l in pro:
            A(l)
            if not old and l.startswith("buffer_") and OPT.get("ypace", 2): A(f"s_sleep {OPT.get('ypace', 2)}")
        if old:
            A(f"s_mov_b32 s4, {RC}")
            for l in issue([f"buffer_load_dwordx4 {vr(CAND,4)}, v{L16}, {ws}, s4 offen sc1"], "cand"): A(l)
            A(f"s_mov_b64 exec, 1\nds_add_u32 v{CA}, v{ONE} offset:32\ns_mov_b64 exec, -1")
            cs("issued")
            csflush(0, 12)
        A(f"""
        v_mov_b32 v{IDX}, 0xdddddddd
        s_bitcmp0_b32 s36, 0
        s_cselect_b32 s4, -1, 0
        s_cselect_b32 s5, 0, -1
        s_bitcmp1_b32 s40, 0
        """)
        l = lab("K2_qsel")
        w0, w1 = wait_for("qe"), wait_for("q0")
        A(f"s_cbranch_scc1 {l}")
        for b0 in (1, 0):
            if b0 == 0: A(f"{l}:")
            A(w0)
            for c in range(2):
                A(f"v_and_b32 v{QE+2*c}, s4, v{QT+16+2*(c^b0)}")
                A(f"v_and_b32 v{QE+2*c+1}, s5, v{QT+17+2*(c^b0)}")
            A(m2b(0, 0))
            A(w1)
            for t in (0, 2, 1, 3):
                for ab in range(2):
                    A(f"v_mov_b64 {vr(QM+4*t+2*ab,2)}, {vr(QT+8*(t>>1)+4*ab+2*((t&1)^b0),2)}")
            if b0 == 1: A(f"s_branch {l}_d")
        A(f"{l}_d:")
        A(kmov(0))
        A("s_nop 7")
        A(mm(0, 0, 0))
        A(mm(0, 0, 1))
        A("s_nop 10")
        A(f"s_setprio {1 if old else 0}")
        sp(old, "first")
        XS = OPT.get("xsel", 9)
        TP = OPT.get("top2", 12)
        gsched = {}
        nx = 2
        for kt in range(16):
            for _ in range(2 if kt in OPT.get("ramp" if old else "yramp", (1, 3)) else 1):
                if nx <= min(15, kt + NB - 1):
                    gsched.setdefault(kt, []).append(nx); nx += 1
        d0, d1, d2 = OPT.get("dma", (6, 25, 31))
        order = [x for pr in zip(range(9), range(18, 27)) for x in pr] + [27]
        dsched = {}
        for i, x in enumerate(order): dsched.setdefault(d0 + i * (d1 - d0) // 19, []).append(x)
        for i in range(9): dsched.setdefault(d1 + i * (d2 - d1) // 9, []).append(9 + i)
        touch = {}
        for kt in range(16):
            for c in range(2):
                n = 2 * kt + c
                cur = S[c]
                nxt = (kt, 1) if c == 0 else (kt + 1, 0)
                prv = (kt - 1, 1) if c == 0 else (kt, 0)
                has_next = n < 31
                ins = {}
                def at(p, l): ins.setdefault(p, []).extend(l if isinstance(l, list) else [l])
                if n > 0:
                    at(1, sm(prv[0], prv[1], 1, 1))
                L2 = OPT.get("lchain") == 2
                if c == 0:
                    if L2: at(1, "s_memtime s[82:83]")
                    todo = [(it, f"g{j}") for j in gsched.get(kt, []) for it in items(j)]
                    if old and kt == XS: todo.append((xsel_dma, "moe"))
                    slots = [(0, 2), (0, 14), (0, 26), (1, 8), (1, 22), (1, 30)]
                    place = {sl: td for sl, td in zip(slots, todo)}
                    assert len(todo) <= len(slots)
                if c == 0 and L2: at(1, "s_memtime s[84:85]")
                if c == 1 and L2: at(4, "s_memtime s[86:87]")
                if c == 1 and has_next:
                    at(4, wait_for(f"g{kt+1}"))
                if c == 1 and L2:
                    at(4, "s_memtime s[88:89]")
                    at(30, ["s_waitcnt lgkmcnt(0)"] + sum([[f"s_sub_u32 s{82+2*q}, s{82+2*q}, s80", f"v_writelane_b32 v{PA}, s{82+2*q}, {4*kt+q}"] for q in range(4)], []))
                ev = [(p, td) for (cc, p), td in place.items() if cc == c]
                if old and n in touch: ev.append((19, (touch[n], "moe")))
                if old and not OPT.get("nomoe"):
                    for i, x in enumerate(dsched.get(n, [])): ev.append((6 + 10 * i, (moe_dma(x), "moe")))
                if n == 0: ev.append((12, None))
                for p, td in sorted(ev, key=lambda e: e[0]):
                    at(p, wait_for("g0") if td is None else issue(*td))
                if c == 1 and has_next: at(10, kmov(kt + 1))
                if has_next:
                    at(4, m2b(*nxt))
                    at(20, mm(nxt[0], nxt[1], 0))
                    at(28, mm(nxt[0], nxt[1], 1))
                at(12, sm(kt, c, 0, 0))
                at(17, sm(kt, c, 0, 1))
                at(25, sm(kt, c, 1, 0))
                if old and n == OPT.get("ringchk", 3):
                    at(6, f"ds_read_b32 v{RET}, v{CA} offset:32")
                    at(26, ["s_waitcnt lgkmcnt(0)", f"v_readfirstlane_b32 s4, v{RET}"])
                    at(27, ["s_cmp_lt_u32 s4, 4", "s_cbranch_scc1 K2_ringspin", "K2_ringok:"])
                if OPT.get("lchain") == 1:
                    if c == 0: at(0, "s_memtime s[88:89]")
                    else: at(0, ["s_waitcnt lgkmcnt(0)", "s_sub_u32 s88, s88, s80", f"v_writelane_b32 v{PA}, s88, {kt}"])
                if n == 31 and not old:
                    for t, p in ((0, 3), (2, 14), (1, 29)):
                        for i, l in enumerate(owrite(t)): at(p + i, l)
                if n == TP and old:
                    assert "cand" not in pend
                    B = Asm()
                    at(0, [f"v_cmp_ne_u32 vcc, s{sTAG}, v{CAND+1}", f"v_cmp_ne_u32 s[4:5], s{sTAG}, v{CAND+3}",
                           "s_or_b64 vcc, vcc, s[4:5]", "s_cbranch_scc1 K2_candspin", "K2_candok:"])
                    wave_max_u32(B, CAND, CAND + 1, 68)
                    B(f"s_nop 1\nv_cmp_ne_u32 vcc, s68, v{CAND}\ns_nop 1\nv_cndmask_b32 v{CAND}, v{CAND+2}, v{CAND}, vcc")
                    wave_max_u32(B, CAND, CAND + 1, 69)
                    B(f"""
                    s_nop 0
                    s_not_b32 s70, s68
                    s_not_b32 s71, s69
                    s_and_b32 s70, s70, 0x7ff
                    s_and_b32 s71, s71, 0x7ff
                    s_mul_i32 s4, s70, 1152
                    s_mul_i32 s5, s71, 1152
                    s_sub_u32 s5, s5, 512
                    s_mul_i32 s6, s40, 288
                    v_mov_b32 v{XSA}, s4
                    v_mov_b32 v{CAND}, s5
                    v_cmp_gt_u32 vcc, 32, v{LANE}
                    s_nop 1
                    v_cndmask_b32 v{XSA}, v{CAND}, v{XSA}, vcc
                    v_add3_u32 v{XSA}, v{XSA}, v{L16}, s6
                    """)
                    p = -1
                    tail = []
                    for l in B.lines:
                        l = l.strip()
                        if l == "s_nop 1" and p + 2 <= 31:
                            p += 2
                        elif p + 2 > 31 or tail:
                            tail.append(l)
                        else:
                            at(p, l)
                    at(31, tail)
                for i in range(32):
                    A(f"v_exp_f32 v{cur+i}, v{cur+i}")
                    for l in ins.get(i, []): A(l)
        A("s_nop 1")
        A(sm(15, 1, 1, 1))
        sp(old, "loopend")
        if OPT.get("lchain"):
            A(f"""
            s_lshl_b32 s4, s2, 2
            s_add_u32 s4, s4, s40
            s_lshl_b32 s4, s4, 8
            s_add_u32 s4, s4, {0xD00000 + 0x40000*(0 if old else 1)}
            v_lshlrev_b32 v0, 2, v{LANE}
            buffer_store_dword v{PA}, v0, {ws}, s4 offen
            """)

    p1_compute()
    attention(True)
    if OPT.get("quit"):
        ST.flush(v=20)
        A("s_endpgm")
    if OPT.get("chain"): A("s_mov_b32 s96, 0")
    cs("loop end")
    scratch_addrs(0, WREG)
    A.c("---- MoE gate/up partials over this wave's k quarter")
    A(f"""
    v_bfe_u32 v{T0+5}, v{LANE}, 2, 2
    v_lshrrev_b32 v{T0+1}, 5, v{LANE}
    v_lshl_add_u32 v{T0+6}, v{T0+1}, 3, v{T0+5}
    v_bfe_u32 v{T0+2}, v{LANE}, 4, 1
    v_lshlrev_b32 v{T0+2}, 5, v{T0+2}
    v_and_b32 v{T0+3}, 3, v{LANE}
    v_lshl_add_u32 v{T0+2}, v{T0+3}, 3, v{T0+2}
    v_add_u32 v{T0+2}, s42, v{T0+2}
    v_lshl_add_u32 v{T0}, v{T0+6}, 6, v{T0+2}
    v_lshl_add_u32 v{T0+6}, v{T0+6}, 8, v{T0+2}
    v_bfe_u32 v{T0+2}, v{LANE}, 2, 1
    v_lshlrev_b32 v{T0+3}, 9, v{T0+2}
    v_lshl_add_u32 v{T0+3}, v{T0+1}, 4, v{T0+3}
    v_add_u32 v{T0+3}, s42, v{T0+3}
    s_lshl_b32 s4, s40, 7
    s_add_u32 s4, s4, {HS}
    v_lshlrev_b32 v{T0+4}, 6, v{T0+2}
    v_lshl_add_u32 v{T0+4}, v{T0+1}, 4, v{T0+4}
    v_add_u32 v{T0+4}, s4, v{T0+4}
    s_lshl_b32 s4, s40, 9
    s_add_u32 s4, s4, {HP}
    v_lshl_add_u32 v{T0+1}, v{LANE}, 2, s4
    s_waitcnt vmcnt(0) lgkmcnt(0)
    """)
    cs("addr+vm0")
    A(f"""
    s_cmp_eq_u32 s64, 0
    s_cbranch_scc1 K2_nogu
    """)
    G, U = 128, 148
    fr = [0, 12, 24, 36, 48, 164, 176, 188, 200]

    def gu(k):
        A(mfma(vr(G, 16), vr(fr[k], 4), vr(fr[k] + 4, 4), "0" if k == 0 else vr(G, 16)))
        A(mfma(vr(U, 16), vr(fr[k], 4), vr(fr[k] + 8, 4), "0" if k == 0 else vr(U, 16)))
    for u in range(9):
        A(f"ds_read_b128 {vr(fr[u],4)}, v{T0+3} offset:{28672+32*u}")
        for m in range(2):
            for a in range(2):
                A(f"ds_read_b64_tr_b16 {vr(fr[u]+4+4*m+2*a,2)}, v{T0}{off(9216*m+1024*u+256*a)}")
        if u >= 2:
            A("s_waitcnt lgkmcnt(10)")
            gu(u - 2)
    A("s_waitcnt lgkmcnt(5)"); gu(7)
    A("s_waitcnt lgkmcnt(0)"); gu(8)
    A("K2_nogu:")
    cs("gate/up")
    for t in range(3):
        for l in owrite(t): A(l)
    A("s_nop 2")
    A(f"ds_write2st64_b32 v{T0+1}, v{G}, v{U} offset0:0 offset1:1")
    cs("owrite")
    A("s_branch K2_fin0")

    A("K2_young2:")
    scratch_addrs(BS, 9216)
    gwait(8, 2)
    A(f"v_mov_b32 v{CA}, {CNT+12}\nv_mov_b32 v{ONE}, 1")
    attention(False)
    A("K2_fin0:")
    o = O[3]
    A.c("LDS executes a wave's operations in order: the count is bumped after this wave's writes, and reads issued")
    A.c("behind a count of 4 see every partial")
    A(f"""
    s_mov_b64 exec, 1
    ds_add_u32 v{CA}, v{ONE}
    s_mov_b64 exec, -1
    K2_fin1:
    ds_read_b32 v0, v{CA}
    """)
    for t in range(3):
        A(f"ds_read_b128 {vr(O[t],4)}, v{RD+t}{off(3072*t)}")
        A(f"ds_read_b128 {vr(O[t]+4,4)}, v{RD+t}{off(3072*t+1024)}")
        A(f"ds_read_b64 {vr(O[t]+8,2)}, v{RD+t}{off(3072*t+2048)}")
    A("""
    s_waitcnt lgkmcnt(9)
    v_readfirstlane_b32 s4, v0
    s_cmp_lt_u32 s4, 4
    s_cbranch_scc1 K2_fin1
    """)
    A(f"s_mov_b32 s4, {f32bits(2.0**-30)}")
    A(f"s_mov_b32 s5, {f32bits(2.0**60)}")
    for t in range(3):
        A(f"s_waitcnt lgkmcnt({3*(2-t)})")
        for i in range(5):
            A(f"v_pk_add_f32 {vr(o+2*i,2)}, {vr(o+2*i,2)}, {vr(O[t]+2*i,2)}")
    A.c("safety check of the unshifted softmax: denominator in [2^-30, 2^60], numerators finite; else redo with the true max")
    A(f"""
    v_cmp_le_f32 s[6:7], s4, v{o+9}
    v_cmp_ge_f32 s[8:9], s5, v{o+9}
    v_max3_f32 v0, abs(v{o}), abs(v{o+1}), abs(v{o+2})
    v_max3_f32 v1, abs(v{o+3}), abs(v{o+4}), abs(v{o+5})
    v_max3_f32 v2, abs(v{o+6}), abs(v{o+7}), abs(v{o+8})
    v_max3_f32 v0, v0, v1, v2
    s_and_b64 s[6:7], s[6:7], s[8:9]
    v_cmp_gt_f32 vcc, {f32bits(2.0**120)}, v0
    s_and_b64 vcc, vcc, s[6:7]
    s_cmp_eq_u64 vcc, exec
    s_cbranch_scc0 K2_slow
    """)
    A("K2_fin:")
    A(f"""
    v_rcp_f32 v0, v{o+9}
    s_cmp_eq_u32 s39, 0
    v_mul_f32 v2, v{o+8}, v0
    v_mul_f32 v3, v{o+8}, v0
    """)
    for i in range(4):
        A(f"v_pk_mul_f32 {vr(o+2*i,2)}, {vr(o+2*i,2)}, v[0:1] op_sel_hi:[1,0]")
    A("v_permlane32_swap_b32 v2, v3")
    for i in range(4):
        A(f"v_cvt_pk_bf16_f32 v{4+i}, v{o+2*i}, v{o+2*i+1}")
    A(f"""
    v_cvt_pk_bf16_f32 v2, v2, v3
    buffer_store_dwordx4 v[4:7], v{PM}, {ws}, s65 offen sc1
    buffer_store_dword v2, v{PE}, {ws}, s66 offen sc1
    s_cbranch_scc1 K2_old2
    v_lshlrev_b32 v8, 8, v{LANE}
    s_mov_b64 exec, 1
    ds_add_u32 v{CA}, v{ONE} offset:4
    s_mov_b64 exec, 0xff
    s_waitcnt vmcnt(0)
    buffer_store_dword v{TAGV}, v8, {ws}, s61 offen sc1
    """)
    if gen1.DIAG:
        sp(0, "flag"); A("s_waitcnt vmcnt(0)")
    ST.flush(v=20)
    A("K2_end:")
    A("s_endpgm")

    A("K2_old2:")
    cs("fin")
    A("s_cmp_eq_u32 s64, 0")
    A("s_cbranch_scc1 K2_nodown")
    A.c("---- MoE: h = silu(gate) * up, then this wave's w_down column tiles")
    A(f"v_lshlrev_b32 v8, 2, v{LANE}")
    A(f"v_add_u32 v8, {HP}, v8")
    for k in range(4):
        A(f"ds_read2st64_b32 {vr(10+2*k,2)}, v8 offset0:{2*k} offset1:{2*k+1}")
    for t in range(4):
        A(f"v_xor_b32 v{20+t}, {t}, v{T0+5}")
        A(f"v_lshl_add_u32 v{20+t}, v{20+t}, 6, v{T0+6}")
    A(f"""
    s_lshl_b32 s4, s40, 7
    s_add_u32 s4, s4, {HS}
    v_lshl_add_u32 v9, v{LANE}, 1, s4
    s_waitcnt lgkmcnt(0)
    v_pk_add_f32 v[10:11], v[10:11], v[12:13]
    v_pk_add_f32 v[14:15], v[14:15], v[16:17]
    v_pk_add_f32 v[10:11], v[10:11], v[14:15]
    v_mul_f32 v12, {0x80000000 | LOG2E}, v10
    v_exp_f32 v12, v12
    v_mul_f32 v10, v10, v11
    v_add_f32 v12, 1.0, v12
    v_rcp_f32 v12, v12
    s_nop 0
    v_mul_f32 v10, v10, v12
    v_cvt_pk_bf16_f32 v10, v10, v10
    ds_write_b16 v9, v10
    ds_read_b128 v[12:15], v{T0+4}
    ds_read_b128 v[16:19], v{T0+4} offset:32
    """)
    for t in range(5):
        for s2 in range(2):
            for a in range(2):
                if t < 4:
                    A(f"ds_read_b64_tr_b16 {vr(24+8*t+4*s2+2*a,2)}, v{20+t} offset:{18432+(16*s2+4*a)*256}")
                else:
                    A(f"ds_read_b64_tr_b16 {vr(24+8*t+4*s2+2*a,2)}, v{T0} offset:{26624+1024*s2+256*a}")
    A(f"""
    v_lshrrev_b32 v8, 5, v{LANE}
    v_mul_u32_u24 v8, 2304, v8
    v_add_u32 v8, v8, v{PE}
    s_mul_i32 s4, s41, 4608
    s_add_u32 s4, s4, {YP}
    s_lshl_b32 s5, s40, 9
    s_add_u32 s5, s5, s4
    s_and_b32 s6, s40, 1
    s_lshl_b32 s6, s6, 7
    s_add_u32 s6, s6, s4
    s_waitcnt lgkmcnt(0)
    """)
    Y = [128 + 16 * t for t in range(5)]
    for t in range(5):
        A(mfma(vr(Y[t], 16), "v[12:15]", vr(24 + 8 * t, 4), "0"))
        A(mfma(vr(Y[t], 16), "v[16:19]", vr(28 + 8 * t, 4), vr(Y[t], 16)))
    A("s_nop 7")
    for t in range(4):
        A(f"buffer_store_dword v{Y[t]}, v8, {ws}, s5 offen{off(128*t)} sc1")
    A(f"buffer_store_dword v{Y[4]}, v8, {ws}, s6 offen offset:2048 sc1")
    A("K2_nodown:")
    cs("down")
    arrive(1)
    srd(A, sWO, 16, 576 * 1152)
    srd(A, sO, 72, XB)
    A("s_waitcnt vmcnt(0) lgkmcnt(0)")
    cs("tag/drain")
    A(f"""
    s_lshl_b32 s4, s41, 7
    s_lshl_b32 s5, s40, 2
    s_add_u32 s4, s4, s5
    s_add_u32 s4, s4, {FY}
    s_cmp_eq_u32 s64, 0
    s_cselect_b32 s4, s61, s4
    v_lshlrev_b32 v8, 8, v{LANE}
    s_mov_b64 exec, 0xff
    buffer_store_dword v{TAGV}, v8, {ws}, s61 offen sc1
    s_mov_b64 exec, 1
    buffer_store_dword v{TAGV}, off, {ws}, s4 sc1
    s_mov_b64 exec, -1
    """)
    ACC, BX, OF, WF, XR, GV = 0, 20, 40, 76, 216, 226
    B1, B2, E1, E2, OEA, FA, SG1, SG2 = 228, 229, 230, 231, 232, 233, 234, 235
    OUT, XA, XA2, TOK = 240, 243, 244, 245
    T0 = 247
    YB = STG + 4 * 3072

    Y0 = WF
    nosel = OPT.get("nomoe2") or OPT.get("nosel")

    def yflag_load():
        A(f"buffer_load_dwordx4 {vr(Y0+96,4)}, v{T0+2}, {ws}, s65 offen sc1")

    def y_first():
        A(f"""
        s_lshr_b32 s6, s54, 2
        s_lshr_b32 s4, s70, 6
        s_cmp_eq_u32 s4, {"-1" if nosel else "s6"}
        s_cselect_b32 s64, 1, 0
        s_lshr_b32 s4, s71, 6
        s_cmp_eq_u32 s4, {"-1" if nosel else "s6"}
        s_cselect_b32 s4, 2, 0
        s_or_b32 s64, s64, s4
        s_cbranch_scc0 K2_noy0
        v_min_u32 v{T0+2}, 35, v{LANE}
        v_lshlrev_b32 v{T0+2}, 7, v{T0+2}
        s_mul_i32 s65, s40, {36*128}
        s_add_u32 s65, s65, {FY}
        """)
        yflag_load()
        A("K2_noy0:")

    def y_sum():
        A(f"""
        s_cmp_eq_u32 s64, 0
        s_cbranch_scc1 K2_noy1
        s_mov_b32 s5, {SPIN}
        K2_ypoll:
        v_cmp_ne_u32 vcc, s{sTAG}, v{Y0+96}
        v_cmp_ne_u32 s[8:9], s{sTAG}, v{Y0+97}
        v_cmp_ne_u32 s[10:11], s{sTAG}, v{Y0+98}
        s_or_b64 s[8:9], s[8:9], vcc
        v_cmp_ne_u32 vcc, s{sTAG}, v{Y0+99}
        s_or_b64 s[8:9], s[8:9], s[10:11]
        s_or_b64 s[8:9], s[8:9], vcc
        s_cbranch_scc0 K2_ypolled
        """)
        yflag_load()
        A(f"""
        s_sub_u32 s5, s5, 1
        s_waitcnt vmcnt(0)
        s_cbranch_scc0 K2_ypoll
        K2_ypolled:
        v_min_u32 v{T0}, 53, v{LANE}
        v_mul_u32_u24 v{T0+1}, 3641, v{T0}
        v_lshrrev_b32 v{T0+1}, 16, v{T0+1}
        v_mul_u32_u24 v{T0+1}, {4608-288}, v{T0+1}
        v_lshl_add_u32 v{T0}, v{T0}, 4, v{T0+1}
        s_lshl_b32 s6, s40, 10
        s_add_u32 s6, s6, {YB}
        v_add_u32 v{T0+1}, s6, v{L16}
        """)
        for sel in range(2):
            A(f"""
            s_bitcmp1_b32 s64, {sel}
            s_cbranch_scc0 K2_noys{sel}
            s_lshl_b32 s6, s55, 1
            s_mul_i32 s7, s40, {36*4608}
            s_add_u32 s6, s6, s7
            s_add_u32 s6, s6, {YP + 2304*sel}
            """)
            for u in range(12):
                A(f"buffer_load_dwordx4 {vr(Y0+4*u,4)}, v{T0}, {ws}, s6 offen sc1")
                A(f"s_add_u32 s6, s6, {3*4608}")
            for u in range(1, 12):
                A(f"s_waitcnt vmcnt({11-u})")
                for hf in range(2):
                    A(f"v_pk_add_f32 {vr(Y0+2*hf,2)}, {vr(Y0+2*hf,2)}, {vr(Y0+4*u+2*hf,2)}")
            A(f"ds_write_b128 v{T0+1}, {vr(Y0,4)}{off(4096*sel)}")
            A("s_waitcnt lgkmcnt(0)")
            A(f"K2_noys{sel}:")
        arrive(5)
        A("K2_noy1:")

    if OPT.get("p3map", 1):
        A.c("projection tiles are dealt so that one die works on the same tokens (speed only)")
        A("s_mov_b32 s4, s37\ns_mov_b32 s37, s43\ns_mov_b32 s43, s4")
    A.c("s54 = 16-token tile of this wave, s55 = byte offset of the channel block")
    A(f"""
    s_lshl_b32 s54, s37, 3
    s_and_b32 s4, s43, 1
    s_lshl_b32 s4, s4, 2
    s_add_u32 s54, s54, s4
    s_add_u32 s54, s54, s40
    s_lshr_b32 s55, s43, 1
    s_mul_i32 s55, s55, 144
    v_mul_u32_u24 v0, 6554, v{LANE}
    v_lshrrev_b32 v0, 16, v0
    v_mul_u32_u24 v1, {1152-160}, v0
    s_mul_i32 s4, s40, {6*1152}
    s_add_u32 s4, s4, s55
    v_add3_u32 v{XA}, v1, v{L16}, s4
    s_mul_i32 s42, s40, 960
    v_and_b32 v3, 15, v{LANE}
    v_lshrrev_b32 v4, 4, v{LANE}
    s_lshl_b32 s8, s54, 4
    v_add_u32 v{TOK}, s8, v3
    v_and_b32 v6, 1, v4
    v_lshlrev_b32 v{XA2}, 3, v{TOK}
    s_mov_b32 s5, {GB}
    buffer_load_dwordx2 {vr(GV,2)}, v{XA2}, {ws}, s5 offen sc1
    s_mul_i32 s5, s40, 3072
    s_add_u32 s97, s5, {STG}
    s_mul_i32 s8, s8, 1152
    s_add_u32 s8, s8, s55
    """)
    for n in range(3):
        A(f"""
        v_add_u32 v5, {64*n}, v{LANE}
        v_mul_u32_u24 v7, 7282, v5
        v_lshrrev_b32 v7, 16, v7
        v_mul_u32_u24 v7, {1152-144}, v7
        v_lshl_add_u32 v7, v5, 4, v7
        v_add_u32 v{OUT+n}, s8, v7
        """)
    A(f"""
    v_cmp_gt_u32 vcc, 16, v{LANE}
    v_bfrev_b32 v5, -2
    s_lshr_b32 s6, s2, 3
    v_cndmask_b32 v{OUT+2}, v5, v{OUT+2}, vcc
    s_and_b32 s6, s6, 3
    s_mul_i32 s66, s6, 6
    s_mov_b32 s62, 0xdff7fdff
    s_mov_b32 s63, 0x7fdff7f
    """)
    gwait(1)
    cs("gwait1")
    for n in range(3):
        A(f"s_add_u32 m0, s97, {1024*n}")
        A("s_nop 0")
        A(f"buffer_load_dwordx4 v{OUT+n}, s[{sX}:{sX+3}], 0 offen lds")
    def wodma(cnt):
        l = lab("K2_wodma")
        A(f"""
        s_mov_b32 s7, {cnt}
        s_mov_b64 exec, s[62:63]
        {l}:
        s_mul_i32 s4, s66, 3840
        s_add_u32 m0, s4, s42
        s_mul_i32 s67, s66, {24*1152}
        buffer_load_dwordx4 v{XA}, s[{sWO}:{sWO+3}], s67 offen lds
        s_add_u32 s66, s66, 1
        s_cmp_eq_u32 s66, 24
        s_cselect_b32 s66, 0, s66
        s_sub_u32 s7, s7, 1
        s_cmp_lg_u32 s7, 0
        s_waitcnt vmcnt({OPT.get('wopace', 3)})
        s_cbranch_scc1 {l}
        s_mov_b64 exec, -1
        """)

    def poll():
        l = lab("K2_poll")
        A(f"""
        s_add_u32 s6, s98, 4096
        s_mov_b32 s5, {SPIN}
        {l}:
        buffer_load_dword v{T0}, v{FA}, {ws}, s100 offen sc1
        s_sub_u32 s5, s5, 1
        s_cbranch_scc1 {l}_d
        s_waitcnt vmcnt(0)
        v_cmp_ne_u32 vcc, s{sTAG}, v{T0}
        s_cbranch_vccnz {l}
        {l}_d:
        """)

    def oloads():
        for ks in range(8):
            A(f"buffer_load_dwordx4 {vr(OF+4*ks,4)}, v{L16}, {ws}, s{98 if ks < 4 else 6} offen{off(1024*(ks%4))} sc1")
        for c in range(4):
            A(f"buffer_load_dword v{OF+32+c}, v{OEA}, {ws}, s99 offen{off(128*c)} sc1")

    wodma(4)
    A(f"""
    v_mul_u32_u24 v5, 144, v3
    v_add_u32 v5, s97, v5
    v_lshl_add_u32 v{SG1}, v4, 3, v5
    v_lshl_add_u32 v{SG2}, v6, 3, v5
    v_lshlrev_b32 v5, 2, v3
    v_lshl_add_u32 v{OEA}, v4, 9, v5
    v_lshlrev_b32 v{FA}, 2, v3
    v_bfe_u32 v7, v{LANE}, 2, 2
    v_lshrrev_b32 v5, 1, v4
    v_mul_u32_u24 v5, 18, v5
    v_lshl_add_u32 v5, v6, 2, v5
    v_add_u32 v5, v5, v7
    v_mul_u32_u24 v5, 160, v5
    v_and_b32 v8, 3, v{LANE}
    v_and_b32 v9, 1, v{LANE}
    v_lshl_add_u32 v{B1}, v8, 3, v5
    v_lshl_add_u32 v{B2}, v9, 3, v5
    v_lshrrev_b32 v5, 1, v7
    v_lshl_add_u32 v5, v4, 2, v5
    v_mul_u32_u24 v5, 18, v5
    v_and_b32 v7, 1, v7
    v_add3_u32 v5, v5, v7, 16
    v_mul_u32_u24 v5, 160, v5
    v_lshl_add_u32 v{E1}, v8, 3, v5
    v_lshl_add_u32 v{E2}, v9, 3, v5
    s_lshl_b32 s4, s54, 13
    s_add_u32 s98, s4, {OM}
    s_lshr_b32 s4, s54, 2
    s_lshl_b32 s4, s4, 1
    s_and_b32 s5, s40, 1
    s_add_u32 s4, s4, s5
    s_lshl_b32 s4, s4, 11
    s_lshr_b32 s5, s40, 1
    s_lshl_b32 s5, s5, 6
    s_add_u32 s4, s4, s5
    s_add_u32 s99, s4, {OE}
    s_lshl_b32 s4, s37, 4
    s_add_u32 s4, s4, s43
    s_lshl_b32 s4, s4, 7
    s_and_b32 s5, s40, 1
    s_lshl_b32 s5, s5, 6
    s_add_u32 s4, s4, s5
    s_add_u32 s100, s4, {FO}
    s_mov_b32 s101, 0
    """)
    for i in range(20):
        A(f"v_mov_b32 v{ACC+i}, 0")
    wodma(20)
    cs("wo dma")
    y_first()
    poll()
    A("s_waitcnt vmcnt(0)")
    cs("polled")
    arrive(2)
    A(f"""
    s_mov_b32 s5, {SPIN}
    s_mov_b32 s6, {GB}
    K2_gchk:
    v_cmp_ne_u32 vcc, s{sTAG}, v{GV+1}
    s_cbranch_vccz K2_gok
    buffer_load_dwordx2 {vr(GV,2)}, v{XA2}, {ws}, s6 offen sc1
    s_sub_u32 s5, s5, 1
    s_waitcnt vmcnt(0)
    s_cbranch_scc0 K2_gchk
    K2_gok:
    """)
    y_sum()
    A("s_add_u32 s6, s98, 4096")
    oloads()
    cs("yred")
    for T in range(5):
        A(f"ds_read_b64 {vr(XR+2*T,2)}, v{SG1 if T < 4 else SG2}{off(32*T)}")
    gwait(2)
    cs("gwait2")

    def wreads(ks):
        f = WF + 20 * (ks % 7)
        r = []
        for T in range(5):
            for a in range(2):
                if ks < 8:
                    b, im = (B1 if T < 4 else B2), (36 * ks + 8 * a) * 160
                else:
                    b, im = (E1 if T < 4 else E2), 36 * a * 160
                im += 32 * T
                r.append(f"ds_read_b64_tr_b16 {vr(f+4*T+2*a,2)}, v{b}{off(im)}")
        return r

    A("K2_p3:")
    for ks in range(7):
        for l in wreads(ks): A(l)
    cs("preload")
    A("s_cmp_lg_u32 s101, 0")
    A("s_cbranch_scc1 K2_pass1")
    sp(1, "ready")
    gwait(4, 2)
    sp(1, "window")
    cs("window")
    A("s_branch K2_mms")
    A("K2_pass1:")
    sp(1, "pre1")
    poll()
    if not OPT.get("chain"): sp(1, "fpolled")
    cs("polled")
    oloads()
    A("K2_mms:")
    A("s_waitcnt lgkmcnt(0)")
    for ks in range(9):
        A(f"s_waitcnt vmcnt({11-ks if ks < 8 else 0})" + (" lgkmcnt(0)" if ks == 7 else ""))
        f = WF + 20 * (ks % 7)
        late = wreads(ks + 6) if ks in (1, 2) else []
        for T in range(5):
            A(mf16(vr(ACC + 4 * T, 4), vr(f + 4 * T, 4), vr(OF + 4 * ks, 4), vr(ACC + 4 * T, 4)))
            for l in late[2 * T:2 * T + 2]: A(l)
    cs("mfma")
    A("s_cmp_eq_u32 s101, 0")
    A("s_cbranch_scc1 K2_mid")
    A(f"v_add_u32 v{T0}, s97, v{L16}")
    A("s_nop 1")
    for i in range(10):
        A(f"v_pk_fma_f32 {vr(ACC+2*i,2)}, {vr(ACC+2*i,2)}, {vr(GV,2)}, {vr(BX+2*i,2)}")
        A(f"v_cvt_pk_bf16_f32 v{XR+i}, v{ACC+2*i}, v{ACC+2*i+1}")
        if i % 2: A(f"ds_write_b64 v{SG1 if i < 8 else SG2}, {vr(XR+i-1,2)}{off(16*(i-1))}")
    for n in range(3):
        A(f"ds_read_b128 {vr(OF+4*n,4)}, v{T0}{off(1024*n)}")
    for n in range(3):
        A(f"s_waitcnt lgkmcnt({2-n})")
        A(f"buffer_store_dwordx4 {vr(OF+4*n,4)}, v{OUT+n}, s[{sO}:{sO+3}], 0 offen")
    cs("epilogue")
    if gen1.DIAG: A("s_waitcnt vmcnt(0)")
    cs("drain")
    csflush(1, 80)
    ST.flush(v=80)
    A("s_endpgm")

    A.c("---- between the halves: routed tokens of this wave's tile get sigmoid(r) * y; then b *= 1 - g")
    A("K2_mid:")
    A("s_mov_b32 s5, 0xffff0000")
    for i in range(10):
        A(f"v_lshlrev_b32 v{BX+2*i}, 16, v{XR+i}")
        A(f"v_and_b32 v{BX+2*i+1}, s5, v{XR+i}")
    YT = OF
    for sel in range(2):
        A(f"""
        s_lshr_b32 s4, s{70+sel}, 4
        s_cmp_lg_u32 s4, {"-1" if OPT.get("nomoe2") or OPT.get("nosel") else "s54"}
        s_cbranch_scc1 K2_nosel{sel}
        """)
        gwait(5)
        A(f"""
        v_lshlrev_b32 v{T0}, 3, v{LANE}
        v_add_u32 v{T0+1}, {YB + 4096*sel}, v{T0}
        """)
        for k in range(12):
            A(f"ds_read_b64 {vr(YT+2*k,2)}, v{T0+1}{off(1024*(k//3)+288*(k%3))}")
        A(f"""
        v_add_u32 v{T0}, s97, v{T0}
        s_ashr_i32 s6, s{68+sel}, 31
        s_not_b32 s6, s6
        s_or_b32 s6, s6, 0x80000000
        s_xor_b32 s6, s6, s{68+sel}
        s_and_b32 s6, s6, 0xffff0000
        v_mov_b32 v{T0+3}, {0x80000000 | LOG2E}
        v_mul_f32 v{T0+3}, s6, v{T0+3}
        v_exp_f32 v{T0+3}, v{T0+3}
        v_lshrrev_b32 v{T0+2}, 4, v{LANE}
        v_add_f32 v{T0+3}, 1.0, v{T0+3}
        v_rcp_f32 v{T0+3}, v{T0+3}
        v_lshl_add_u32 v{T0+1}, v{T0+2}, 4, s97
        v_and_b32 v{T0+2}, 1, v{T0+2}
        v_lshl_add_u32 v{T0+2}, v{T0+2}, 4, s97
        s_waitcnt lgkmcnt(0)
        """)
        for k in range(1, 12):
            A(f"v_pk_add_f32 {vr(YT,2)}, {vr(YT,2)}, {vr(YT+2*k,2)}")
        A(f"ds_write_b64 v{T0}, {vr(YT,2)}")
        for p in range(4):
            A(f"ds_read_b128 {vr(YT+4+4*p,4)}, v{T0+1}{off(64*p)}")
        A(f"ds_read_b128 {vr(YT+20,4)}, v{T0+2} offset:256")
        A(f"""
        v_cmp_eq_u32 vcc, s{70+sel}, v{TOK}
        s_waitcnt lgkmcnt(0)
        s_and_saveexec_b64 s[8:9], vcc
        """)
        for i in range(20):
            A(f"v_fmac_f32 v{BX+i}, v{YT+4+i}, v{T0+3}")
        A("s_mov_b64 exec, s[8:9]")
        A(f"K2_nosel{sel}:")
    A(f"v_sub_f32 v{T0+1}, 1.0, v{GV}")
    A(f"v_mov_b32 v{GV+1}, v{GV}")
    for i in range(10):
        A(f"v_pk_mul_f32 {vr(BX+2*i,2)}, {vr(BX+2*i,2)}, {vr(T0+1,2)} op_sel_hi:[1,0]")
    for b in (B1, B2, E1, E2):
        A(f"v_add_u32 v{b}, {288*160}, v{b}")
    A(f"""
    s_add_u32 s98, s98, {128*8192}
    s_add_u32 s99, s99, {64*2048}
    s_add_u32 s100, s100, {256*128}
    s_mov_b32 s101, 1
    """)
    cs("mid")
    A("s_branch K2_p3")

    A.c("---- slow path: two passes over all keys with the true row maximum (own q tile)")
    A("K2_slow:")
    M, KA, VA, VA2, KEA = 40, 42, 43, 44, 45
    lane_addrs(KA, VA, VA2, KEA)
    A(f"""
    s_and_b32 s4, s40, 1
    s_lshl_b32 s4, s4, 3
    s_add_u32 s59, s57, s4
    buffer_load_dwordx2 {vr(QE,2)}, v{KEA}, {ws}, s59 offen sc1
    buffer_load_dwordx2 {vr(QM,2)}, v{KA}, {ws}, s59 offen sc1
    buffer_load_dwordx2 {vr(QM+2,2)}, v{KA}, {ws}, s59 offen offset:256 sc1
    v_and_b32 v4, 31, v{LANE}
    v_or_b32 v5, 4, v4
    v_cmp_eq_u32 vcc, 21, v5
    v_mov_b32 v6, 0x3f803f80
    s_bitcmp0_b32 s36, 0
    v_cndmask_b32 v{VV[0]}, 0, v6, vcc
    s_cselect_b32 s4, -1, 0
    s_cselect_b32 s5, 0, -1
    """)
    for i in range(1, 8):
        A(f"v_mov_b32 v{VV[0]+i}, v{VV[0]}")
    for i in range(16):
        A(f"v_mov_b32 v{o+i}, 0")
    A(f"""
    v_mov_b32 v{M}, 0xff800000
    s_waitcnt vmcnt(0)
    v_and_b32 v{QE}, s4, v{QE}
    v_and_b32 v{QE+1}, s5, v{QE+1}
    """)
    for pas in range(2):
        A("s_mov_b32 s10, 0")
        A(f"K2_slow{pas}:")
        A(f"""
        s_lshr_b32 s8, s10, 1
        s_mul_i32 s8, s8, {2*R}
        s_add_u32 s8, s8, 36864
        s_and_b32 s9, s10, 1
        s_lshl_b32 s11, s9, 3
        s_add_u32 s11, s11, s8
        s_mul_i32 s9, s9, 18432
        s_add_u32 s8, s8, s9
        s_add_u32 s9, s8, {R}
        buffer_load_dwordx2 {vr(KP[0],2)}, v{KA}, {ws}, s11 offen sc1
        buffer_load_dwordx2 {vr(KP[0]+2,2)}, v{KA}, {ws}, s11 offen offset:256 sc1
        buffer_load_dwordx2 {vr(KE,2)}, v{KEA}, {ws}, s11 offen sc1
        """)
        if pas:
            A(f"""
            s_mov_b64 exec, s[62:63]
            buffer_load_dwordx4 {vr(VV[0],4)}, v{VA}, {ws}, s8 offen sc1
            buffer_load_dwordx4 {vr(VV[0]+4,4)}, v{VA}, {ws}, s9 offen sc1
            s_mov_b64 exec, -1
            """)
        A(f"""
        s_waitcnt vmcnt(0)
        v_mfma_f32_32x32x4_2b_bf16 v[0:31], {vr(KE,2)}, {vr(QE,2)}, 0
        s_nop 15
        s_nop 3
        {mfma("v[0:15]", vr(KP[0],4), vr(QM,4), "v[0:15]")}
        s_nop 15
        """)
        if not pas:
            for i in range(8):
                A(f"v_max3_f32 v{M}, v{M}, v{2*i}, v{2*i+1}")
        else:
            for i in range(16):
                A(f"v_sub_f32 v{i}, v{i}, v{M}")
            for i in range(16):
                A(f"v_exp_f32 v{i}, v{i}")
            A("s_nop 1")
            A(f"v_smfmac_f32_32x32x32_bf16 {vr(o,16)}, {vr(VV[0],4)}, v[0:7], v{IDX}")
            A(f"v_smfmac_f32_32x32x32_bf16 {vr(o,16)}, {vr(VV[0]+4,4)}, v[8:15], v{IDX}")
            A("s_nop 15")
        A(f"""
        s_add_u32 s10, s10, 1
        s_cmp_lt_u32 s10, 64
        s_cbranch_scc1 K2_slow{pas}
        """)
        if not pas:
            A(f"""
            v_mov_b32 v{M+1}, v{M}
            s_nop 1
            v_permlane32_swap_b32 v{M}, v{M+1}
            s_nop 1
            v_max_f32 v{M}, v{M}, v{M+1}
            """)
    A("s_branch K2_fin")
    A("K2_ringspin:")
    gwait(8)
    A(f"v_mov_b32 v{ONE}, 1")
    A("s_branch K2_ringok")
    A.c("---- router candidates not published yet (rare): wait for them")
    A(f"""
    K2_candspin:
    s_mov_b32 s6, {SPIN}
    s_mov_b32 s7, {RC}
    K2_candspin1:
    buffer_load_dwordx4 {vr(CAND,4)}, v{L16}, {ws}, s7 offen sc1
    s_sub_u32 s6, s6, 1
    s_waitcnt vmcnt(0)
    s_cbranch_scc1 K2_candok
    v_cmp_ne_u32 vcc, s{sTAG}, v{CAND+1}
    v_cmp_ne_u32 s[4:5], s{sTAG}, v{CAND+3}
    s_or_b64 vcc, vcc, s[4:5]
    s_cbranch_scc1 K2_candspin1
    s_branch K2_candok
    """)
    return CNT + 48


def build():
    A = Asm()
    A('.amdgcn_target "amdgcn-amd-amdhsa--gfx950"')
    A(".text")
    lds = k23(A)
    A('.section .rodata,"a"')
    A(".p2align 6")
    A.raw(descriptor(NAME, 256, 256))
    head = ("; gated mix of a 32-head attention block and a top-2 routed SwiGLU FFN (S=2048, D=576), one launch\n"
            f"; @launch grid=(256,1,1) block=(512,1,1) lds={lds}\n")
    return head + A.text()


if __name__ == "__main__":
    out = sys.argv[1]
    gen1.DIAG = len(sys.argv) > 2 and sys.argv[2] == "diag"
    if len(sys.argv) > 3:
        OPT = eval(sys.argv[3]); gen1.OPT = OPT
    open(out, "w").write(build())
```

```python
import sys
sys.path.insert(0, "gen")
from asmlib import *
import gen1
from gen1 import YP, WS_SIZE, XB, f32bits, QSCALE, LOG2E, mfma, Stamp
NAME = "gated_mix__mha_block__moe_arch_mod__prompt_kernel"
R = 110592
GB = 0x6C0000
RC = 0x6C4000
F1 = 0xA60000
PG = 0xB00000
OOB = 0x7FFFFF00

OM = 0x700000
OE = 0x900000
FO = 0xA00000
FY = 0xA40000
EP = 0xA50000
OPT = {}
SPIN = 1 << 17


def mf16(d, a, b, c):
    return f"v_mfma_f32_16x16x32_bf16 {d}, {a}, {b}, {c}"


def k23(A):
    kernel_head(A, NAME)
    sDBG, sX, sG, sWS, sD, sU, sWO, sO = 12, 16, 20, 24, 28, 32, 72, 76
    sW, sWB = 20, 28
    S = [0, 32]
    O = [64, 80, 96, 112]
    QM, QE, KE = 128, 144, 148
    NB = 5
    KP = [164 + 10 * g for g in range(3)]
    VV = [194 + 8 * g for g in range(NB)]
    IDX, L16, VA, LANE = 236, 237, 238, 239
    KA, VA2, KEA, GUA, TAGV = 240, 241, 242, 234, 246
    CAND, PA, RET, ONE, CA = 250, 252, 253, 254, 255
    QEA = 251
    SW, PM, PE, RD = 243, 244, 245, 247
    DNA, DN5 = 245, 247
    M0, M1, M2, M3, M4, M5 = 234, 235, 238, 240, 241, 242
    sT = [44 + t for t in range(8)] + [72 + t for t in range(8)]
    sTAG = 53
    WREG = 14336
    AS = 4 * WREG
    DN = 92160
    BS = DN + 36864
    HP = BS + 4 * 8192
    HS = HP + 1024
    CNT = HS + 512
    STG = DN
    SLOT = 32768
    RGV = 4 * SLOT
    ws = f"s[{sWS}:{sWS+3}]"
    uid = [0]
    FOM = OPT.get("fo", 1)
    FOX, FOS = (("0xff", 8), ("1", 2), ("1\ns_mov_b32 exec_lo, -1", 2))[FOM]

    def lab(p):
        uid[0] += 1
        return f"{p}_{uid[0]}"

    def cs(name):
        if not OPT.get("chain"): return
        A("s_memtime s[88:89]")
        A("s_waitcnt lgkmcnt(0)")
        A("s_sub_u32 s88, s88, s80")
        A("s_mov_b32 m0, s96")
        A(f"v_writelane_b32 v{IDX}, s88, m0")
        A("s_add_u32 s96, s96, 1")
        A.c("stamp " + name)

    def csflush(k, v):
        if not OPT.get("chain"): return
        A(f"""
        s_lshl_b32 s4, s2, 2
        s_add_u32 s4, s4, s38
        s_lshl_b32 s4, s4, 8
        s_add_u32 s4, s4, {0xD00000 + 0x40000*k}
        v_lshlrev_b32 v{v}, 2, v{LANE}
        buffer_store_dword v{IDX}, v{v}, {ws}, s4 offen
        s_nop 1
        """)

    def arrive(k):
        A(f"""
        v_mov_b32 v{CA}, {CNT}
        v_mov_b32 v{ONE}, 1
        s_mov_b64 exec, 1
        ds_add_u32 v{CA}, v{ONE}{off(4*k)}
        s_mov_b64 exec, -1
        """)

    def gwait(k, sl=1):
        l = lab("K2_gw")
        A(f"""
        v_mov_b32 v{CA}, {CNT}
        {l}:
        ds_read_b32 v{ONE}, v{CA}{off(4*k)}
        s_waitcnt lgkmcnt(0)
        v_readfirstlane_b32 s4, v{ONE}
        s_cmp_ge_u32 s4, 4
        s_cbranch_scc1 {l}_d
        s_sleep {sl}
        s_branch {l}
        {l}_d:
        """)

    tagload = f"buffer_load_dword v{TAGV}, off, s[{sDBG}:{sDBG+3}], 0 sc1"

    def gettag():
        l = lab("K2_tag")
        A(f"""
        s_mov_b32 s5, {SPIN}
        {l}:
        s_waitcnt vmcnt(0)
        v_readfirstlane_b32 s{sTAG}, v{TAGV}
        s_cmp_lg_u32 s{sTAG}, 0
        s_cbranch_scc1 {l}_d
        s_sleep 8
        {tagload}
        s_sub_u32 s5, s5, 1
        s_cbranch_scc0 {l}
        {l}_d:
        """)

    def lane_addrs(KA, VA, VA2, KEA):
        A(f"""
        s_lshr_b32 s4, s36, 1
        s_mul_i32 s4, s4, {9*256}
        s_and_b32 s5, s36, 1
        s_mul_i32 s5, s5, {5*256}
        s_add_u32 s5, s5, s4
        s_add_u32 s4, s4, 1024
        v_and_b32 v4, 31, v{LANE}
        v_lshrrev_b32 v6, 5, v{LANE}
        v_lshrrev_b32 v5, 4, v4
        v_mul_u32_u24 v5, {R-256}, v5
        v_lshl_add_u32 v5, v4, 4, v5
        v_add_u32 v{KEA}, s4, v5
        v_add_u32 v{KA}, s5, v5
        v_lshl_add_u32 v{KA}, v6, 9, v{KA}
        s_mul_i32 s4, s36, 288
        s_add_u32 s4, s4, 36864
        v_min_u32 v5, 17, v4
        v_lshl_add_u32 v{VA}, v5, 4, s4
        v_mul_u32_u24 v5, 9216, v6
        v_add_u32 v{VA}, v{VA}, v5
        v_add_u32 v{VA2}, 18432, v{VA}
        """)

    def att_setup(old):
        A(f"""
        s_lshl_b32 s4, s3, 1
        s_bfe_u32 s5, s2, 0x10003
        s_add_u32 s43, s4, s5
        s_lshr_b32 s37, s2, 4
        s_lshl_b32 s36, s43, 1
        s_add_u32 s36, s36, s39
        """)
        A.c("s36 head, s37 q block (128), s38 wave, s39 head half, s40 key quarter, s43 head within half")
        lane_addrs(KA, VA, VA2, KEA)
        A(f"""
        s_mul_i32 s10, s37, {4*R}
        s_xor_b32 s11, s40, 3
        """)
        A.c("a 32-row tile = the same 16-token half of two neighbouring records; local q tile t is tile t ^ 3 ^ kq")
        A(f"""
        s_mov_b32 s60, s10
        s_lshr_b32 s4, s11, 1
        s_mul_i32 s5, s4, {2*R}
        s_add_u32 s56, s10, s5
        s_xor_b32 s5, s4, 1
        s_mul_i32 s5, s5, {2*R}
        s_add_u32 s57, s10, s5
        v_xor_b32 v5, s4, v6
        s_mov_b32 s4, {2*R}
        v_mad_u32_u24 v{QEA}, v5, s4, v{KEA}
        s_and_b32 s9, s37, {OPT.get("rot", 0)}
        s_and_b32 s5, s9, 1
        v_xor_b32 v5, s5, v6
        v_subrev_u32 v5, s5, v5
        v_mad_i32_i24 v{KEA}, v5, s4, v{KEA}
        s_mul_i32 s10, s40, {16*R}
        s_add_u32 s10, s10, 36864
        """)
        assert not OPT.get("rot", 0) & 1
        for m in range(8):
            A(f"s_xor_b32 s4, s9, {m}")
            A(f"s_mul_i32 s4, s4, {2*R}")
            A(f"s_add_u32 s{sT[2*m]}, s10, s4")
            A(f"s_add_u32 s{sT[2*m+1]}, s{sT[2*m]}, {R}")
        A("s_mov_b32 s62, 0x0011ffff\ns_mov_b32 s63, 0x0011ffff")
        if old: return
        A.c("projection flags of this head pair: lane = (k / v, first / last channel, token block), and the two q flags")
        A(f"""
        s_mul_i32 s4, s43, 36
        v_bfe_u32 v5, v{LANE}, 4, 1
        v_mad_u32_u24 v5, v5, 35, s4
        v_lshrrev_b32 v7, 7, v5
        v_lshl_add_u32 v7, v7, 4, s37
        s_mov_b32 s4, {F1}
        v_lshl_add_u32 v{PA-2}, v7, 5, s4
        v_mul_u32_u24 v7, 576, v6
        v_add_u32 v5, 576, v5
        v_add_u32 v5, v5, v7
        v_lshrrev_b32 v5, 7, v5
        v_and_b32 v7, 15, v{LANE}
        v_lshl_add_u32 v5, v5, 4, v7
        v_lshl_add_u32 v{PA}, v5, 5, s4
        """)

    ACC, PK, AX, AW, SA = 64, 128, 220, 224, 250
    FR = [0, 32]

    def acc(a, T):
        return ACC + 16 * a + 4 * T

    def epilogue(vmode):
        A(f"s_add_u32 s66, s65, {R}")
        for r in range(2):
            for T in range(4):
                p = PK + 16 * r + 4 * T
                for a in (2 * r, 2 * r + 1):
                    d = acc(a, T)
                    if not vmode:
                        for i in range(2):
                            A(f"v_pk_mul_f32 {vr(d+2*i,2)}, {vr(d+2*i,2)}, s[98:99]")
                    for i in range(2):
                        A(f"v_cvt_pk_bf16_f32 v{p+2*(a%2)+i}, v{d+2*i}, v{d+2*i+1}")
                A(f"buffer_store_dwordx4 {vr(p,4)}, v{SA}, {ws}, s{65+r} offen{off((256 if vmode else 1024)*T)} sc1")

    def xread(n, a, vmode):
        c, s_ = divmod(n, 2)
        k, o = divmod(c % 4, 2)
        to = (a // 2) * 4096 + (a % 2) * 512 if vmode else a * 2048
        return f"ds_read_b128 {vr(FR[n%2]+4*a,4)}, v{AX+2*k+s_}{off(o*SLOT+to)}"

    def reads(n, vmode):
        c, s_ = divmod(n, 2)
        k, o = divmod(c % 4, 2)
        w = [[(f"w{T}", f"ds_read_b64_tr_b16 {vr(FR[n%2]+16+4*T+2*a,2)}, v{AW+4*k+T}{off(o*SLOT+(32*s_+4*a)*128)}") for a in range(2)] for T in range(4)]
        x = [(f"x{a}", xread(n, a, vmode)) for a in range(4)]
        return [(f"{n}{t}", l) for t, l in w[0] + x[:1] + w[1] + w[2] + w[3] + x[1:]]

    def gemm(vmode):
        q = []

        def put(r):
            q.append(r[0]); A(r[1])

        def need(*tags):
            idx = [i for i, t in enumerate(q) if t in tags]
            if idx:
                A(f"s_waitcnt lgkmcnt({len(q) - 1 - max(idx)})")
                del q[:max(idx) + 1]
        A("s_barrier")
        sp(1, "b0")
        cs("B0")
        for r in reads(0, vmode): put(r)
        for n in range(18):
            Rn = reads(n + 1, vmode) if n < 17 else []
            for a in range(4):
                for T in range(4):
                    i = 4 * a + T
                    if i == 0 and n > 0: need(f"{n}x0", f"{n}w0", f"{n}w1", f"{n}w2", f"{n}w3")
                    need(f"{n}x{a}", f"{n}w{T}")
                    d = vr(acc(a, T), 4)
                    x, w = vr(FR[n % 2] + 4 * a, 4), vr(FR[n % 2] + 16 + 4 * T, 4)
                    c = "0" if n == 0 else d
                    A(mf16(d, x, w, c) if vmode else mf16(d, w, x, c))
                    if i == 0 and Rn and n % 2 == 1: A("s_barrier")
                    if i == 0 and n == OPT.get("tagstep", 10): A(tagload)
                    if i < len(Rn): put(Rn[i])

    def pflag(sf):
        A(f"""
        v_lshlrev_b32 v12, 2, v{LANE}
        s_cmp_lg_u32 s40, 0
        s_waitcnt vmcnt(0)
        s_barrier
        s_cbranch_scc1 K2_noflag
        s_mov_b64 exec, 0xff
        buffer_store_dword v{TAGV}, v12, {ws}, s{sf} offen sc1
        s_mov_b64 exec, -1
        K2_noflag:
        """)

    def presets():
        A.c("V registers are preset: rows 17 and 21 are the all-ones rows that produce the softmax denominator")
        A.c("(1 + 127*2^-16 has the bit pattern 0x3f803f80 = two bf16 ones; the matrix unit fills 32 registers per instruction)")
        A(f"""
        v_and_b32 v4, 31, v{LANE}
        v_or_b32 v5, 4, v4
        v_cmp_eq_u32 vcc, 21, v5
        v_mov_b32 v6, 0x3afe3f80
        v_mov_b32 v8, 0x3f803f80
        v_cndmask_b32 v6, 0, v6, vcc
        v_mov_b32 v7, 0
        v_mov_b32 v9, 0
        v_mov_b32 v10, 0
        v_mov_b32 v11, 0
        v_mfma_f32_32x32x4_2b_bf16 {vr(170,32)}, v[8:9], v[6:7], 0
        v_mfma_f32_32x32x4_2b_bf16 {vr(202,32)}, v[8:9], v[6:7], 0
        v_mfma_f32_32x32x4_2b_bf16 {vr(O[0],32)}, v[10:11], v[10:11], 0
        v_mfma_f32_32x32x4_2b_bf16 {vr(O[2],32)}, v[10:11], v[10:11], 0
        s_nop 3
        """)

    def p1_addrs():
        A.c("wave = 64 tokens (s40 & 1) x one 64-channel tile (s40 >> 1); v tiles map row 4g+j of tile a to token 8g+4a+j")
        A(f"""
        v_lshrrev_b32 v1, 4, v{LANE}
        v_and_b32 v2, 15, v{LANE}
        v_and_b32 v3, 12, v2
        v_add_u32 v3, v3, v2
        s_cmp_eq_u32 s100, 2
        s_cselect_b64 vcc, -1, 0
        v_cndmask_b32 v3, v2, v3, vcc
        v_mul_u32_u24 v4, 9216, v1
        v_lshl_add_u32 v4, v2, 4, v4
        v_cndmask_b32 v{SA}, v{L16}, v4, vcc
        v_lshrrev_b32 v4, 1, v2
        v_xor_b32 v4, v4, v1
        s_and_b32 s4, s40, 1
        s_lshl_b32 s4, s4, 1
        s_cmp_eq_u32 s100, 3
        s_cselect_b32 s4, s40, s4
        s_lshl_b32 s5, s68, 2
        s_add_u32 s71, s5, s4
        s_lshl_b32 s4, s4, 12
        v_lshl_add_u32 v3, v3, 7, s4
        v_lshl_add_u32 v{AX}, v4, 4, v3
        v_xor_b32 v{AX+1}, 64, v{AX}
        v_add_u32 v{AX+2}, {2*SLOT}, v{AX}
        v_add_u32 v{AX+3}, {2*SLOT}, v{AX+1}
        v_bfe_u32 v3, v{LANE}, 2, 2
        v_lshl_add_u32 v4, v1, 3, v3
        v_lshlrev_b32 v4, 7, v4
        v_bfe_u32 v3, v{LANE}, 3, 2
        v_lshl_add_u32 v4, v3, 5, v4
        v_and_b32 v3, 3, v{LANE}
        v_lshl_add_u32 v4, v3, 3, v4
        s_lshr_b32 s7, s40, 1
        s_lshl_b32 s4, s7, 13
        s_add_u32 s4, s4, 16384
        v_add_u32 v{AW}, s4, v4
        """)
        for T in range(1, 4):
            A(f"v_xor_b32 v{AW+T}, {32*T}, v{AW}")
        for T in range(4):
            A(f"v_add_u32 v{AW+4+T}, {2*SLOT}, v{AW+T}")
        A.c("store base s65 and flag address s61 of this wave's tile")
        A(f"""
        s_add_u32 s69, s69, s7
        s_mul_i32 s4, s71, {R}
        s_lshl_b32 s5, s69, 12
        s_lshl_b32 s6, s69, 10
        s_add_u32 s6, s6, {73728 - 18*1024}
        s_cmp_eq_u32 s100, 2
        s_cselect_b32 s5, s6, s5
        s_add_u32 s65, s4, s5
        s_lshl_b32 s4, s97, 4
        s_add_u32 s4, s4, s68
        s_lshl_b32 s4, s4, 5
        s_add_u32 s61, s4, {F1}
        s_cmp_lt_u32 s69, 9
        s_cselect_b32 s98, {QSCALE}, 1.0
        s_mov_b32 s99, s98
        """)

    A("s_cmp_ge_u32 s2, 256")
    A("s_cbranch_scc1 K2_end")
    ST = Stamp(A, 0); ST.t(0)
    STS = OPT.get("st", ("astore,polled,loopend,fpolled", "loaded,polled,loopend,flag"))

    def sp(old, name):
        L = STS[0 if old else 1].split(",")
        if name in L: ST.t(1 + L.index(name))
    srd(A, sX, 0, XB)
    srd(A, sW, 8, 576 * 3456)
    srd(A, sWS, 88, WS_SIZE)
    srd(A, sDBG, 80, 256)
    A(f"""
    v_lshrrev_b32 v1, 6, v0
    v_and_b32 v{LANE}, 63, v0
    v_readfirstlane_b32 s38, v1
    v_lshlrev_b32 v{L16}, 4, v{LANE}
    s_and_b32 s3, s2, 7
    s_and_b32 s4, s2, 3
    s_bfe_u32 s5, s2, 0x20003
    s_lshl_b32 s68, s4, 2
    s_add_u32 s68, s68, s5
    s_lshr_b32 s6, s3, 2
    s_lshr_b32 s7, s2, 5
    s_mul_i32 s97, s6, 7
    s_add_u32 s97, s97, s7
    s_lshl_b32 s69, s97, 1
    s_cmp_ge_u32 s97, 9
    s_cselect_b32 s100, 2, 0
    s_cmp_lt_u32 s97, 13
    s_cselect_b32 s101, 1, 0
    s_lshr_b32 s9, s5, 1
    s_xor_b32 s9, s9, s6
    s_add_u32 s9, s9, 3
    s_cmp_eq_u32 s7, 7
    s_cselect_b32 s100, s9, s100
    s_cselect_b32 s101, 0, s101
    s_lshr_b32 s39, s38, 2
    s_and_b32 s40, s38, 3
    s_cmp_eq_u32 s39, 0
    s_cbranch_scc1 K2_old
    """)
    CR = OPT.get("cr", (1, 4, 1, 4, 1, 2, 1))
    A.c("projection tile: s68 token block (128), s97 channel tile (128), s100 kind (0 q/k, 2 v, 3 router, 4 none), s69 first block, s101 has a second block")
    A.c("=========== waves 4-7 first stage x and w_qkv for the projection (k chunks start at s71, for L2 locality only)")
    A(f"""
    s_setprio 2
    s_cmp_eq_u32 s100, 4
    s_cbranch_scc1 K2_loaded
    s_and_b32 s71, s7, {CR[0]}
    s_mul_i32 s71, s71, {CR[1]}
    s_and_b32 s9, s5, {CR[2]}
    s_mul_i32 s9, s9, {CR[3]}
    s_{"xor_b32" if len(CR) > 6 else "add_u32"} s71, s71, s9
    s_mul_i32 s9, s4, {CR[4]}
    s_add_u32 s71, s71, s9
    s_mul_i32 s9, s6, {CR[5]}
    s_add_u32 s71, s71, s9
    s_mul_i32 s9, s71, 57
    s_lshr_b32 s9, s9, 9
    s_mul_i32 s9, s9, 9
    s_sub_u32 s71, s71, s9
    s_cmp_eq_u32 s100, 3
    s_cselect_b32 s71, 0, s71
    v_lshrrev_b32 v2, 3, v{LANE}
    v_and_b32 v3, 7, v{LANE}
    v_lshrrev_b32 v4, 4, v{LANE}
    s_cmp_eq_u32 s100, 2
    s_cselect_b32 s9, 1, 2
    s_cselect_b32 s10, 1, 3
    s_lshl_b32 s9, s40, s9
    s_and_b32 s9, s9, 7
    v_and_b32 v5, s10, v4
    v_add_u32 v5, s9, v5
    v_xor_b32 v5, v3, v5
    s_lshl_b32 s9, s40, 3
    v_add_u32 v2, s9, v2
    s_lshl_b32 s10, s68, 7
    v_add_u32 v6, s10, v2
    v_mul_u32_u24 v6, 1152, v6
    v_lshl_add_u32 v10, v5, 4, v6
    v_and_b32 v4, 1, v4
    s_and_b32 s9, s40, 1
    s_lshl_b32 s9, s9, 2
    v_lshl_add_u32 v4, v4, 1, s9
    v_xor_b32 v3, v3, v4
    v_mul_u32_u24 v6, 3456, v2
    v_lshl_add_u32 v6, v3, 4, v6
    s_lshl_b32 s10, s69, 7
    v_add_u32 v11, s10, v6
    s_lshl_b32 s42, s40, 10
    s_cmp_eq_u32 s100, 3
    s_cselect_b32 s{sW+2}, 0, {576*3456}
    s_cmp_eq_u32 s101, 0
    s_cselect_b32 s{sWB+2}, 0, {576*3456}
    s_mov_b32 s{sWB+3}, 0x00020000
    s_waitcnt lgkmcnt(0)
    s_mov_b64 s[{sWB}:{sWB+1}], s[{sW}:{sW+1}]
    """)
    A.c("missing tiles stage zeros (empty descriptors)")

    def issueA(c):
        slot = c % 4
        A(f"s_lshl_b32 s65, s71, 7\ns_mul_i32 s66, s71, {64*3456}")
        for u in range(4):
            t, hf = u % 2, u // 2
            A(f"s_add_u32 m0, s42, {slot*SLOT + 16384 + t*8192 + hf*4096}")
            A(f"s_add_u32 s67, s66, {hf*32*3456 + 128*t}")
            A(f"buffer_load_dwordx4 v11, s[{(sW, sWB)[t]}:{(sW, sWB)[t]+3}], s67 offen lds")
            A(f"s_add_u32 m0, s42, {slot*SLOT + u*4096}")
            A(f"s_add_u32 s67, s65, {u*36864}")
            A(f"buffer_load_dwordx4 v10, s[{sX}:{sX+3}], s67 offen lds")
        A("s_add_u32 s71, s71, 1\ns_cmp_eq_u32 s71, 9\ns_cselect_b32 s71, 0, s71")

    issueA(0); issueA(1)
    issued = 2
    for c in range(9):
        A(f"s_waitcnt vmcnt({8*(issued - c - 1)})")
        A("s_barrier")
        if issued < 9:
            issueA(issued); issued += 1
    A("K2_loaded:")
    A("s_waitcnt lgkmcnt(0)")
    sp(0, "loaded")
    A(tagload)
    att_setup(False)
    presets()
    gettag()
    A("s_branch K2_young2")

    def p1_compute():
        A("K2_old:")
        A("s_setprio 3")
        if OPT.get("chain"): A("s_mov_b32 s96, 0")
        A(f"""
        v_mov_b32 v{CA}, {CNT}
        v_mov_b32 v{ONE}, 1
        v_mov_b32 v10, 0
        v_mov_b32 v11, 0
        v_mov_b32 v12, 0
        v_mov_b32 v13, 0
        s_waitcnt lgkmcnt(0)
        s_or_b32 s4, s2, s40
        s_cmp_lg_u32 s4, 0
        s_cbranch_scc1 K2_notag
        """)
        A.c("hand-off tag of this launch: successor of the word the previous launch left, published through d_debug[0]")
        A(f"""
        s_mov_b32 s4, {EP}
        buffer_load_dword v14, off, {ws}, s4 sc1
        s_mov_b32 s5, 1664525
        s_waitcnt vmcnt(0)
        v_mul_lo_u32 v14, v14, s5
        v_add_u32 v14, 1013904223, v14
        v_max_u32 v14, 1, v14
        s_mov_b64 exec, 1
        buffer_store_dword v14, off, s[{sDBG}:{sDBG+3}], 0 sc1
        buffer_store_dword v14, off, {ws}, s4 sc1
        s_mov_b64 exec, -1
        K2_notag:
        ds_write_b128 v{CA}, v[10:13]
        ds_write_b128 v{CA}, v[10:13] offset:16
        ds_write_b128 v{CA}, v[10:13] offset:32
        s_load_dwordx2 s[4:5], s[0:1], 32
        s_load_dwordx2 s[6:7], s[0:1], 64
        """)
        srd(A, sG, 40, 576 * 9216)
        srd(A, sU, 48, 576 * 9216)
        srd(A, sD, 56, 4608 * 1152)
        A(f"""
        s_mov_b32 s10, 1152
        s_mov_b32 s11, 0x00020000
        s_waitcnt lgkmcnt(0)
        s_cmp_lt_u32 s40, 2
        s_cselect_b32 s8, s4, s6
        s_cselect_b32 s9, s5, s7
        s_cmp_lg_u32 s100, 3
        s_cbranch_scc1 K2_norgv
        s_lshl_b32 s4, s40, 10
        s_add_u32 m0, s4, {RGV}
        s_and_b32 s4, s4, 1024
        buffer_load_dwordx4 v{L16}, s[8:11], s4 offen lds
        K2_norgv:
        """)
        p1_addrs()
        att_setup(True)
        A.c("MoE stage 1: 96 rows x 64 columns of w_gate or w_up per wave; stage 2 (s64): 32 rows of w_down")
        A.c("slots a workgroup does not need pull w_o into its die's L2 instead (speed only)")
        nm = OPT.get('nomoe2')
        A(f"""
        s_load_dwordx2 s[6:7], s[0:1], 16
        s_lshr_b32 s4, s2, 3
        s_mul_i32 s41, s3, 18
        s_add_u32 s41, s41, s4
        s_mul_i32 s42, s40, {WREG}
        s_mul_i32 s9, s40, 9216
        s_sub_u32 s5, s4, 18
        s_cselect_b32 s5, s41, s5
        s_cselect_b32 s64, {0 if nm else 1}, 0
        s_mul_i32 s8, s5, 36864
        s_add_u32 s8, s8, s9
        s_add_u32 s9, s9, {DN}
        s_mul_i32 s5, s3, 27
        s_add_u32 s5, s5, s4
        s_sub_u32 s5, s5, 5
        s_max_i32 s5, s5, 0
        s_mul_i32 s58, s5, 3641
        s_lshr_b32 s58, s58, 16
        s_mul_i32 s10, s58, 18
        s_sub_u32 s5, s5, s10
        s_lshl_b32 s5, s5, 2
        s_add_u32 s5, s5, s40
        s_mul_i32 s59, s5, 24
        s_add_u32 s59, s59, s58
        s_lshl_b32 s59, s59, 9
        s_add_u32 s59, s59, {PG}
        s_sub_u32 s10, s58, 6
        s_cselect_b32 s58, s58, s10
        s_cselect_b64 s[{sG}:{sG+1}], s[{sG}:{sG+1}], s[{sU}:{sU+1}]
        s_mul_i32 s54, s58, {96*9216}
        s_lshl_b32 s5, s5, 7
        s_add_u32 s54, s54, s5
        s_mul_i32 s58, s58, 192
        s_mov_b32 s55, {8*9216}
        v_lshrrev_b32 v8, 3, v{LANE}
        v_mul_u32_u24 v8, {9216-128}, v8
        v_add_u32 v{GUA}, v8, v{L16}
        s_waitcnt lgkmcnt(0)
        s_cmp_lt_u32 s4, 18
        s_cselect_b64 s[{sD}:{sD+1}], s[{sD}:{sD+1}], s[6:7]
        s_cselect_b32 s{sD+2}, s{sD+2}, {576*1152}
        s_cmp_lt_u32 s4, 5
        s_cbranch_scc0 K2_st1
        s_mov_b64 s[{sG}:{sG+1}], s[6:7]
        s_mov_b32 s{sG+2}, {576*1152}
        s_lshl_b32 s4, s4, 2
        s_add_u32 s4, s4, s40
        s_add_u32 s4, s4, 504
        s_lshl_b32 s54, s4, 10
        s_mov_b32 s55, {20*1024}
        v_mov_b32 v{GUA}, v{L16}
        s_mov_b32 s59, {OOB}
        K2_st1:
        s_sub_u32 s54, s54, s55
        """)
        cs("setup")
        A("""
        s_cmp_eq_u32 s100, 3
        s_cbranch_scc1 K2_rg
        s_cmp_eq_u32 s100, 4
        s_cbranch_scc1 K2_idle2
        s_cmp_ge_u32 s69, 27
        s_cbranch_scc1 K2_idle
        s_cmp_eq_u32 s100, 2
        s_cbranch_scc1 K2_pv
        """)
        for vmode in (False, True):
            if vmode: A("K2_pv:")
            A.c("v tiles: D = x W (lane = channel, registers = tokens)" if vmode else "q / k tiles: D = W^T x^T (lane = token, registers = channels)")
            gemm(vmode)
            sp(1, "passa")
            gettag()
            cs("pass A")
            epilogue(vmode)
            sp(1, "astore")
            cs("a stores")
            A("s_branch K2_p1done")
        A.c("---- no second tile in this workgroup")
        A("K2_idle:")
        for c in range(9): A("s_barrier")
        A("s_branch K2_idle3")
        A("K2_idle2:")
        if OPT.get("dwarm", 0):
            A.c("no projection work here: L2 warm-up (speed only) of half the w_down rows this die stages later")
            A(f"""
            s_load_dwordx2 s[4:5], s[0:1], 56
            s_mov_b32 s6, {4608*1152}
            s_mov_b32 s7, 0x00020000
            s_bfe_u32 s10, s2, 0x10003
            s_lshl_b32 s11, s3, 1
            s_add_u32 s10, s10, s11
            s_lshl_b32 s10, s10, 2
            s_add_u32 s10, s10, s40
            s_mul_i32 s10, s10, {81*1024}
            s_mov_b32 s11, 27
            s_waitcnt lgkmcnt(0)
            K2_dwarm:
            buffer_load_dwordx4 v[12:15], v{L16}, s[4:7], s10 offen
            buffer_load_dwordx4 v[12:15], v{L16}, s[4:7], s10 offen offset:1024
            buffer_load_dwordx4 v[12:15], v{L16}, s[4:7], s10 offen offset:2048
            s_add_u32 s10, s10, 3072
            s_sub_u32 s11, s11, 1
            s_cmp_lg_u32 s11, 0
            s_waitcnt vmcnt(12)
            s_cbranch_scc1 K2_dwarm
            """)
        A("K2_idle3:")
        A(tagload)
        gettag()
        A(f"s_mov_b32 s61, {OOB}")
        A("s_branch K2_p1done")
        A.c("---- router score and mix gate of 32 tokens per wave")
        A("K2_rg:")
        A(f"""
        v_lshrrev_b32 v1, 4, v{LANE}
        v_and_b32 v2, 31, v{LANE}
        v_and_b32 v3, 1, v{LANE}
        v_lshlrev_b32 v3, 11, v3
        v_lshl_add_u32 v3, v1, 4, v3
        v_add_u32 v{AW}, {RGV}, v3
        s_lshl_b32 s4, s71, 5
        v_add_u32 v{AW+1}, s4, v2
        v_cmp_lt_u32 vcc, 15, v2
        s_waitcnt vmcnt(0)
        """)
        for c in range(9):
            A("s_barrier")
            if c == 0: cs("B0")
            if c == 5: A(tagload)
            for n in (2 * c, 2 * c + 1):
                A(f"ds_read_b128 {vr(FR[n%2]+16,4)}, v{AW}{off(64*n)}")
                for a in range(2): A(xread(n, a, False))
            for n in (2 * c, 2 * c + 1):
                A(f"s_waitcnt lgkmcnt({3*(1-n%2)})")
                for a in range(2):
                    A(mf16(vr(ACC + 4 * a, 4), vr(FR[n % 2] + 16, 4), vr(FR[n % 2] + 4 * a, 4), "0" if n == 0 else vr(ACC + 4 * a, 4)))
        gettag()
        A("s_nop 3")
        cs("pass A")
        A(f"v_cndmask_b32 v{ACC}, v{ACC}, v{ACC+4}, vcc")
        A(f"v_cndmask_b32 v{ACC+1}, v{ACC+1}, v{ACC+5}, vcc")
        A(f"""
        s_mov_b32 s5, 0xffff0000
        v_cvt_pk_bf16_f32 v6, v{ACC+1}, v{ACC}
        v_lshlrev_b32 v4, 16, v6
        v_mul_f32 v4, {0x80000000 | LOG2E}, v4
        v_exp_f32 v4, v4
        v_ashrrev_i32 v7, 31, v6
        v_add_f32 v4, 1.0, v4
        v_rcp_f32 v4, v4
        v_or_b32 v7, 0x80000000, v7
        v_xor_b32 v6, v6, v7
        v_and_b32 v6, s5, v6
        v_sub_u32 v7, 0xffff, v{AW+1}
        v_or_b32 v6, v6, v7
        v_cvt_pk_bf16_f32 v4, v4, v4
        v_and_b32 v4, s5, v4
        v_mov_b32 v5, s{sTAG}
        v_lshlrev_b32 v7, 3, v{AW+1}
        s_mov_b32 s4, {GB}
        buffer_store_dwordx2 v[4:5], v7, {ws}, s4 offen sc1
        """)
        wave_top2_u32(A, 6, 7, 6, 7)
        A(f"""
        s_lshl_b32 s4, s71, 4
        s_add_u32 s4, s4, {RC}
        v_mov_b32 v8, s6
        v_mov_b32 v9, s{sTAG}
        v_mov_b32 v10, s7
        v_mov_b32 v11, s{sTAG}
        s_mov_b64 exec, 1
        buffer_store_dwordx4 v[8:11], off, {ws}, s4 sc1
        s_mov_b64 exec, -1
        s_mov_b32 s61, {OOB}
        """)
        sp(1, "astore")
        cs("a stores")
        A("K2_p1done:")
        presets()
        pflag(61)
        scratch_addrs(AS, 8192)
        sp(1, "aflag")
        cs("flag")

    def ldK(p):
        return [f"buffer_load_dwordx4 {vr(KP[p%3]+6*i,4)}, v{KA}, {ws}, s{sT[2*p]} offen{off(256*i)} sc1" for i in range(2)]

    def ldV(j):
        return ["s_mov_b64 exec, s[62:63]"] + \
            [f"buffer_load_dwordx4 {vr(VV[j%NB]+4*i,4)}, v{(VA, VA2)[j%2]}, {ws}, s{sT[(j & ~1)+i]} offen sc1" for i in range(2)] + \
            ["s_mov_b64 exec, -1"]

    def ldKE(g):
        return [f"buffer_load_dwordx4 {vr(KE+4*g,4)}, v{KEA}, {ws}, s{sT[4*g]} offen sc1"]

    QT = 32

    def ldQ(rp):
        return [f"buffer_load_dwordx4 {vr(QT+8*rp+4*i,4)}, v{KA}, {ws}, s{56+rp} offen{off(256*i)} sc1" for i in range(2)]

    def items(j):
        return ([ldKE(j // 4)] if j % 4 == 0 else []) + ([[l] for l in ldK(j // 2)] if j % 2 == 0 else []) + [ldV(j)]

    def kmov(kt):
        b = KP[(kt // 2) % 3]
        return f"v_mov_b64 {vr(b+4,2)}, {vr(b+8 if kt % 2 else b,2)}"

    def m2b(kt, c):
        u = kt % 4
        return (f"v_mfma_f32_32x32x4_2b_bf16 {vr(S[c],32)}, {vr(KE+4*(kt//4)+2*(u%2),2)}, {vr(QE+2*c,2)}, 0"
                f" cbsz:1 abid:{u//2}")

    def mm(kt, c, b):
        d = vr(S[c] + 16 * b, 16)
        return mfma(d, vr(KP[(kt // 2) % 3] + (2 if kt % 2 else 4), 4), vr(QM + 4 * (c + 2 * b), 4), d)

    def sm(kt, c, b, i):
        return (f"v_smfmac_f32_32x32x32_bf16 {vr(O[c+2*b],16)}, {vr(VV[kt%NB]+4*i,4)}, "
                f"{vr(S[c]+16*b+8*i,8)}, v{IDX}")

    def moe_dma(n):
        if n < 12:
            return [f"s_add_u32 m0, s42, {1024*n}", f"s_add_u32 s54, s54, s55",
                    f"buffer_load_dwordx4 v{GUA}, s[{sG}:{sG+3}], s54 offen{OPT.get('gunt', '')} lds"]
        n -= 12
        pre = [f"s_add_u32 m0, s9, {4096*(n//4)}", f"s_add_u32 s67, s8, {4096*(n//4)}"]
        return pre + [f"buffer_load_dwordx4 v{L16}, s[{sD}:{sD+3}], s67 offen{off(1024*(n%4))}{OPT.get('dnnt', '')} lds"]

    def xsel_dma(k):
        return [f"s_add_u32 m0, s42, {12288+1024*k}", "s_nop 0",
                f"buffer_load_dwordx4 v{L16}, s[{sX}:{sX+3}], s{10+k} offen lds"]

    def owrite(t):
        return [f"ds_write_b128 v{SW}, {vr(O[t],4)}{off(2048*t)}",
                f"ds_write_b128 v{SW}, {vr(O[t]+4,4)}{off(2048*t+1024)}",
                f"ds_write_b64 v{SW}, {vr(O[t]+8,2)}{off((6144, 6152, 7168)[t])}"]

    def scratch_addrs(base, stride):
        A(f"s_mul_i32 s4, s40, {stride}")
        A(f"s_add_u32 s4, s4, {base}")
        A(f"v_add_u32 v{SW}, s4, v{L16}")
        for t in range(3):
            A(f"s_xor_b32 s4, s40, {t ^ 3}")
            A(f"s_mul_i32 s4, s4, {stride}")
            A(f"s_add_u32 s4, s4, {base}")
            A(f"v_add_u32 v{RD+t}, s4, v{L16}")
        A(f"""
        v_bfe_u32 v{PM}, v{LANE}, 4, 1
        v_lshlrev_b32 v{PM}, 14, v{PM}
        v_lshrrev_b32 v{PE}, 5, v{LANE}
        v_lshl_add_u32 v{PM}, v{PE}, 8, v{PM}
        v_and_b32 v{PE}, 0xff, v{L16}
        v_add_u32 v{PM}, v{PM}, v{PE}
        v_and_b32 v{PE}, 31, v{LANE}
        v_lshlrev_b32 v{PE}, 2, v{PE}
        s_lshl_b32 s4, s39, 6
        s_lshl_b32 s5, s37, 2
        s_add_u32 s4, s4, s5
        s_add_u32 s4, s4, s40
        s_lshl_b32 s5, s4, 1
        s_and_b32 s6, s40, 1
        s_sub_u32 s5, s5, s6
        s_lshl_b32 s5, s5, 13
        s_lshl_b32 s6, s43, 9
        s_add_u32 s5, s5, s6
        s_add_u32 s65, s5, {OM}
        s_lshl_b32 s4, s4, 4
        s_add_u32 s4, s4, s43
        s_lshl_b32 s4, s4, 7
        s_add_u32 s66, s4, {OE}
        s_lshl_b32 s4, s39, 4
        s_add_u32 s4, s4, s37
        s_lshl_b32 s4, s4, 11
        s_lshl_b32 s5, s40, 6
        s_add_u32 s4, s4, s5
        s_lshl_b32 s5, s43, 2
        s_add_u32 s4, s4, s5
        s_add_u32 s61, s4, {FO}
        """)
        if FOM:
            A(f"""
            s_sub_u32 s4, s66, {OE}
            {"" if FOM == 2 else "s_lshr_b32 s4, s4, 11"}
            {"" if FOM == 2 else "s_lshl_b32 s4, s4, 7"}
            {"" if FOM == 2 else "s_add_u32 s4, s4, s5"}
            s_add_u32 s61, s4, {FO}
            """)
        A(f"""
        v_mov_b32 v{CA}, {CNT + (0 if base == AS else 12)}
        v_mov_b32 v{ONE}, 1
        """)

    def attention(old):
        pend = []

        def issue(lines, tag):
            for l in lines:
                if l.startswith("buffer_"):
                    pend.append(tag)
            return lines

        def wait_for(tag):
            last = max(i for i, t in enumerate(pend) if t == tag)
            n = len(pend) - 1 - last
            del pend[:last + 1]
            return f"s_waitcnt vmcnt({n})"

        if old: A("s_barrier")
        sp(old, "polled")
        if old: cs("polled")
        pro = issue([f"buffer_load_dwordx4 {vr(QT+16,4)}, v{QEA}, {ws}, s60 offen sc1"] + ldKE(0), "qe") + \
            issue(ldQ(0) + ldQ(1) + ldK(0), "q0") + issue(ldV(0), "g0") + issue(ldV(1), "g1")
        for l in pro:
            A(l)
            if not old and l.startswith("buffer_") and OPT.get("ypace", 0): A(f"s_sleep {OPT.get('ypace', 1)}")
        if old:
            A(f"s_mov_b32 s4, {RC}")
            for l in issue([f"buffer_load_dwordx4 {vr(CAND,4)}, v{L16}, {ws}, s4 offen sc1"], "cand"): A(l)
            A("s_barrier")
            cs("issued")
            csflush(0, 12)
        A(f"""
        v_mov_b32 v{IDX}, 0xdddddddd
        s_bitcmp0_b32 s36, 0
        s_cselect_b32 s4, -1, 0
        s_cselect_b32 s5, 0, -1
        s_bitcmp1_b32 s40, 0
        """)
        l = lab("K2_qsel")
        w0, w1 = wait_for("qe"), wait_for("q0")
        A(f"s_cbranch_scc1 {l}")
        for b0 in (1, 0):
            if b0 == 0: A(f"{l}:")
            A(w0)
            for c in range(2):
                A(f"v_and_b32 v{QE+2*c}, s4, v{QT+16+2*(c^b0)}")
                A(f"v_and_b32 v{QE+2*c+1}, s5, v{QT+17+2*(c^b0)}")
            A(m2b(0, 0))
            A(w1)
            for t in (0, 2, 1, 3):
                for ab in range(2):
                    A(f"v_mov_b64 {vr(QM+4*t+2*ab,2)}, {vr(QT+8*(t>>1)+4*ab+2*((t&1)^b0),2)}")
            if b0 == 1: A(f"s_branch {l}_d")
        A(f"{l}_d:")
        A(kmov(0))
        A("s_nop 7")
        A(mm(0, 0, 0))
        A(mm(0, 0, 1))
        A("s_nop 10")
        A(f"s_setprio {1 if old else 0}")
        sp(old, "first")
        XS = OPT.get("xsel", 9)
        TP = OPT.get("top2", 12)
        gsched = {}
        nx = 2
        for kt in range(16):
            for _ in range(2 if kt in OPT.get("ramp" if old else "yramp", (1, 3)) else 1):
                if nx <= min(15, kt + NB - 1):
                    gsched.setdefault(kt, []).append(nx); nx += 1
        dsched = {}
        d0, d1 = OPT.get("dma", (3, 29))
        order = range(21)
        for i, x in enumerate(order): dsched.setdefault(d0 + i * (d1 - d0) // 21, []).append(x)
        assert max(dsched) < 32
        touch = {}
        for kt in range(16):
            for c in range(2):
                n = 2 * kt + c
                cur = S[c]
                nxt = (kt, 1) if c == 0 else (kt + 1, 0)
                prv = (kt - 1, 1) if c == 0 else (kt, 0)
                has_next = n < 31
                ins = {}
                def at(p, l): ins.setdefault(p, []).extend(l if isinstance(l, list) else [l])
                if n > 0:
                    at(1, sm(prv[0], prv[1], 1, 1))
                L2 = OPT.get("lchain") == 2
                if c == 0:
                    if L2: at(1, "s_memtime s[82:83]")
                    todo = [(it, f"g{j}") for j in gsched.get(kt, []) for it in items(j)]
                    if old and kt == XS: todo += [(xsel_dma(0), "st1"), (xsel_dma(1), "st1")]
                    slots = [(0, 2), (0, 14), (0, 26), (1, 8), (1, 22), (1, 30)]
                    place = {sl: td for sl, td in zip(slots, todo)}
                    assert len(todo) <= len(slots)
                if c == 0 and L2: at(1, "s_memtime s[84:85]")
                if c == 1 and L2: at(4, "s_memtime s[86:87]")
                if c == 1 and has_next:
                    at(4, wait_for(f"g{kt+1}"))
                if c == 1 and L2:
                    at(4, "s_memtime s[88:89]")
                    at(30, ["s_waitcnt lgkmcnt(0)"] + sum([[f"s_sub_u32 s{82+2*q}, s{82+2*q}, s80", f"v_writelane_b32 v{PA}, s{82+2*q}, {4*kt+q}"] for q in range(4)], []))
                ev = [(p, td) for (cc, p), td in place.items() if cc == c]
                if old and n in touch: ev.append((19, (touch[n], "moe")))
                if old and not OPT.get("nomoe"):
                    for i, x in enumerate(dsched.get(n, [])): ev.append((6 + 10 * i, (moe_dma(x), "st1" if x < 12 else "moe")))
                if n == 0: ev.append((12, None))
                for p, td in sorted(ev, key=lambda e: e[0]):
                    at(p, wait_for("g0") if td is None else issue(*td))
                if c == 1 and has_next: at(10, kmov(kt + 1))
                if has_next:
                    at(4, m2b(*nxt))
                    at(20, mm(nxt[0], nxt[1], 0))
                    at(28, mm(nxt[0], nxt[1], 1))
                at(12, sm(kt, c, 0, 0))
                at(17, sm(kt, c, 0, 1))
                at(25, sm(kt, c, 1, 0))
                if OPT.get("lchain") == 1:
                    if c == 0: at(0, "s_memtime s[88:89]")
                    else: at(0, ["s_waitcnt lgkmcnt(0)", "s_sub_u32 s88, s88, s80", f"v_writelane_b32 v{PA}, s88, {kt}"])
                if old and n >= 27:
                    G, XF, WFs = 202, 148, [218, 222, 164, 168]
                    if n == 27:
                        for i, l in enumerate([f"v_lshrrev_b32 v{M1}, 4, v{LANE}", f"v_bfe_u32 v{M2}, v{LANE}, 2, 2",
                                               f"v_lshl_add_u32 v{M5}, v{M1}, 3, v{M2}", f"v_lshlrev_b32 v{M4}, 3, v{LANE}",
                                               f"v_lshl_add_u32 v{M0}, v{M5}, 7, s42", f"v_and_b32 v{M2}, 1, v{M2}",
                                               f"v_and_or_b32 v{M0}, v{M4}, 24, v{M0}", f"v_lshl_add_u32 v{M3}, v{M1}, 4, s42",
                                               f"v_lshl_add_u32 v{M3}, v{M2}, 10, v{M3}", f"v_mov_b32 v251, v{TAGV}",
                                               f"v_mov_b32 v253, v{TAGV}"]): at(8 + 2 * i, l)
                    elif n < 31:
                        assert "st1" not in pend
                        u = n - 28
                        at(2, f"ds_read_b128 {vr(XF,4)}, v{M3} offset:{12288+64*u}")
                        for t in range(4):
                            for a in range(2):
                                at(3 + 2 * t + a, f"ds_read_b64_tr_b16 {vr(WFs[t]+2*a,2)}, v{M0}{off(4096*u+512*a+32*t)}")
                            at((15, 19, 23, 30)[t], ([f"s_waitcnt lgkmcnt({(6, 0)[t]})"] if t < 2 else []) +
                               [mf16(vr(G + 4 * t, 4), vr(XF, 4), vr(WFs[t], 4), "0" if u == 0 else vr(G + 4 * t, 4))])
                    else:
                        at(7, ["s_mov_b32 s10, 0", "s_mov_b32 s11, -1", "s_add_u32 s4, s59, 6144",
                               f"v_cndmask_b32 v250, v{G}, v{G+4}, s[10:11]",
                               f"buffer_store_dwordx2 v[250:251], v{M4}, {ws}, s59 offen sc1"])
                        at(9, [f"v_cndmask_b32 v252, v{G+8}, v{G+12}, s[10:11]",
                               f"buffer_store_dwordx2 v[252:253], v{M4}, {ws}, s4 offen sc1"])
                if n == 31:
                    for t, p in ((0, 3), (2, 14), (1, 29)):
                        for i, l in enumerate(owrite(t)): at(p + i, l)
                if n == TP and old:
                    assert "cand" not in pend
                    B = Asm()
                    at(0, [f"v_cmp_ne_u32 vcc, s{sTAG}, v{CAND+1}", f"v_cmp_ne_u32 s[4:5], s{sTAG}, v{CAND+3}",
                           "s_or_b64 vcc, vcc, s[4:5]", "s_cbranch_scc1 K2_candspin", "K2_candok:"])
                    wave_max_u32(B, CAND, CAND + 1, 68)
                    B(f"s_nop 1\nv_cmp_ne_u32 vcc, s68, v{CAND}\ns_nop 1\nv_cndmask_b32 v{CAND}, v{CAND+2}, v{CAND}, vcc")
                    wave_max_u32(B, CAND, CAND + 1, 69)
                    B(f"""
                    s_nop 0
                    s_not_b32 s70, s68
                    s_not_b32 s71, s69
                    s_and_b32 s70, s70, 0x7ff
                    s_and_b32 s71, s71, 0x7ff
                    s_mul_i32 s10, s70, 1152
                    s_mul_i32 s11, s71, 1152
                    s_add_u32 s10, s10, s58
                    s_add_u32 s11, s11, s58
                    """)
                    p = -1
                    tail = []
                    for l in B.lines:
                        l = l.strip()
                        if l == "s_nop 1" and p + 2 <= 31:
                            p += 2
                        elif p + 2 > 31 or tail:
                            tail.append(l)
                        else:
                            at(p, l)
                    at(31, tail)
                for i in range(32):
                    A(f"v_exp_f32 v{cur+i}, v{cur+i}")
                    for l in ins.get(i, []):
                        if OPT.get("noload") and kt >= 2 and not l.startswith("v_"): continue
                        A(l)
        A("s_nop 1")
        A(sm(15, 1, 1, 1))
        sp(old, "loopend")
        if OPT.get("lchain"):
            A(f"""
            s_lshl_b32 s4, s2, 2
            s_add_u32 s4, s4, s40
            s_lshl_b32 s4, s4, 8
            s_add_u32 s4, s4, {0xD00000 + 0x40000*(0 if old else 1)}
            v_lshlrev_b32 v0, 2, v{LANE}
            buffer_store_dword v{PA}, v0, {ws}, s4 offen
            """)

    p1_compute()
    attention(True)
    if OPT.get("quit"):
        ST.flush(v=20)
        A("s_endpgm")
    if OPT.get("chain"): A("s_mov_b32 s96, 0")
    cs("loop end")
    A.c("---- MoE stage 2: fetch three partials per wave")
    PL = 184

    def pload():
        for q in range(3):
            A(f"buffer_load_dwordx2 {vr(PL+2*q,2)}, v{M4}, {ws}, s67 offen{off(512*q)} sc1")
    A(f"""
    s_and_b32 s4, s40, 1
    s_lshl_b32 s4, s4, 1
    s_lshr_b32 s5, s40, 1
    s_add_u32 s4, s4, s5
    s_lshl_b32 s5, s41, 2
    s_add_u32 s4, s4, s5
    s_mul_i32 s4, s4, 1536
    s_add_u32 s67, s4, {PG}
    s_cmp_eq_u32 s64, 0
    s_cbranch_scc1 K2_fin0
    """)
    pload()
    A("s_branch K2_fin0")

    A("K2_young2:")
    scratch_addrs(BS, 8192)
    sl0, sl1 = OPT.get("psleep", (10, 0))
    A(f"""
    s_barrier
    s_cmp_lg_u32 s40, 0
    s_cbranch_scc1 K2_p1seen
    s_mov_b32 s5, {SPIN}
    {f"s_sleep {sl0}" if sl0 else ""}
    K2_p1poll:
    buffer_load_dword v12, v{PA}, {ws}, 0 offen sc1
    buffer_load_dword v13, v{PA-2}, {ws}, 0 offen sc1
    s_sub_u32 s5, s5, 1
    s_cbranch_scc1 K2_p1seen
    s_waitcnt vmcnt(0)
    v_cmp_ne_u32 vcc, s{sTAG}, v12
    v_cmp_ne_u32 s[6:7], s{sTAG}, v13
    s_or_b64 vcc, vcc, s[6:7]
    s_cbranch_scc0 K2_p1seen
    {f"s_sleep {sl1}" if sl1 else ""}
    s_branch K2_p1poll
    K2_p1seen:
    s_barrier
    s_barrier
    """)
    attention(False)
    A("K2_fin0:")
    o = O[3]
    A.c("LDS executes a wave's operations in order: the count is bumped after this wave's writes, and reads issued")
    A.c("behind a count of 4 see every partial")
    A(f"""
    s_mov_b64 exec, 1
    ds_add_u32 v{CA}, v{ONE}
    s_mov_b64 exec, -1
    K2_fin1:
    ds_read_b32 v0, v{CA}
    """)
    for t in range(3):
        A(f"ds_read_b128 {vr(O[t],4)}, v{RD+t}{off(2048*t)}")
        A(f"ds_read_b128 {vr(O[t]+4,4)}, v{RD+t}{off(2048*t+1024)}")
        A(f"ds_read_b64 {vr(O[t]+8,2)}, v{RD+t}{off((6144, 6152, 7168)[t])}")
    A("""
    s_waitcnt lgkmcnt(9)
    v_readfirstlane_b32 s4, v0
    s_cmp_lt_u32 s4, 4
    s_cbranch_scc1 K2_fin1
    """)
    A(f"s_mov_b32 s4, {f32bits(2.0**-30)}")
    A(f"s_mov_b32 s5, {f32bits(2.0**60)}")
    for t in range(3):
        A(f"s_waitcnt lgkmcnt({3*(2-t)})")
        for i in range(5):
            A(f"v_pk_add_f32 {vr(o+2*i,2)}, {vr(o+2*i,2)}, {vr(O[t]+2*i,2)}")
    A.c("safety check of the unshifted softmax: denominator in [2^-30, 2^60], numerators finite; else redo with the true max")
    A(f"""
    v_cmp_le_f32 s[6:7], s4, v{o+9}
    v_cmp_ge_f32 s[8:9], s5, v{o+9}
    v_max3_f32 v0, abs(v{o}), abs(v{o+1}), abs(v{o+2})
    v_max3_f32 v1, abs(v{o+3}), abs(v{o+4}), abs(v{o+5})
    v_max3_f32 v2, abs(v{o+6}), abs(v{o+7}), abs(v{o+8})
    v_max3_f32 v0, v0, v1, v2
    s_and_b64 s[6:7], s[6:7], s[8:9]
    v_cmp_gt_f32 vcc, {f32bits(2.0**120)}, v0
    s_and_b64 vcc, vcc, s[6:7]
    s_cmp_eq_u64 vcc, exec
    {"s_nop 0" if OPT.get("noload") else "s_cbranch_scc0 K2_slow"}
    """)
    A("K2_fin:")
    A(f"""
    v_rcp_f32 v0, v{o+9}
    s_cmp_eq_u32 s39, 0
    v_mul_f32 v2, v{o+8}, v0
    v_mul_f32 v3, v{o+8}, v0
    """)
    for i in range(4):
        A(f"v_pk_mul_f32 {vr(o+2*i,2)}, {vr(o+2*i,2)}, v[0:1] op_sel_hi:[1,0]")
    A("v_permlane32_swap_b32 v2, v3")
    for i in range(4):
        A(f"v_cvt_pk_bf16_f32 v{4+i}, v{o+2*i}, v{o+2*i+1}")
    A(f"""
    v_cvt_pk_bf16_f32 v2, v2, v3
    buffer_store_dwordx4 v[4:7], v{PM}, {ws}, s65 offen sc1
    buffer_store_dword v2, v{PE}, {ws}, s66 offen sc1
    s_cbranch_scc1 K2_old2
    v_lshlrev_b32 v8, {FOS}, v{LANE}
    s_mov_b64 exec, 1
    ds_add_u32 v{CA}, v{ONE} offset:4
    s_mov_b64 exec, {FOX}
    s_waitcnt vmcnt(0)
    buffer_store_dword v{TAGV}, v8, {ws}, s61 offen sc1
    """)
    if gen1.DIAG:
        sp(0, "flag"); A("s_waitcnt vmcnt(0)")
    ST.flush(v=20)
    A("K2_end:")
    A("s_endpgm")

    A("K2_old2:")
    cs("fin")
    srd(A, sWO, 16, 576 * 1152)
    srd(A, sO, 72, XB)
    A(f"""
    v_lshlrev_b32 v8, 2, v{LANE}
    s_waitcnt vmcnt(2)
    s_cmp_eq_u32 s64, 0
    s_cbranch_scc1 K2_nop
    s_mov_b32 s5, {SPIN}
    K2_pchk:
    v_cmp_ne_u32 vcc, s{sTAG}, v{PL+1}
    v_cmp_ne_u32 s[8:9], s{sTAG}, v{PL+3}
    v_cmp_ne_u32 s[10:11], s{sTAG}, v{PL+5}
    s_or_b64 s[8:9], s[8:9], vcc
    s_or_b64 s[8:9], s[8:9], s[10:11]
    s_cbranch_scc0 K2_pok
    s_sleep 4
    """)
    pload()
    A(f"""
    s_sub_u32 s5, s5, 1
    s_waitcnt vmcnt(0)
    s_cbranch_scc0 K2_pchk
    K2_pok:
    s_lshl_b32 s4, s40, 8
    s_add_u32 s4, s4, {HP}
    v_add_f32 v10, v{PL}, v{PL+2}
    v_add_u32 v9, s4, v8
    v_add_f32 v10, v10, v{PL+4}
    ds_write_b32 v9, v10
    s_mul_i32 s6, s40, 288
    s_and_b32 s6, s6, 0xffc0
    s_add_u32 s5, s6, {DN}
    v_mul_u32_u24 v20, 1152, v{M5}
    v_and_b32 v21, 24, v{M4}
    v_add3_u32 v20, v20, v21, s5
    s_lshl_b32 s4, s40, 7
    s_add_u32 s4, s4, {HS}
    v_lshl_add_u32 v21, v{M1}, 4, s4
    v_lshl_add_u32 v21, v{M2}, 6, v21
    K2_nop:
    """)
    arrive(1)
    cs("partials")
    gwait(1)
    cs("gwait1")
    A("s_cmp_eq_u32 s64, 0")
    A("s_cbranch_scc1 K2_nost2")
    A.c("---- MoE: h = silu(gate) * up, then this wave's w_down column tiles")
    A(f"""
    v_add_u32 v9, {HP}, v8
    ds_read2st64_b32 v[10:11], v9 offset0:0 offset1:1
    ds_read2st64_b32 v[12:13], v9 offset0:2 offset1:3
    """)
    for t in range(5):
        for a in range(2):
            A(f"ds_read_b64_tr_b16 {vr(24+4*t+2*a,2)}, v20{off(4608*a+32*t)}")
    A(f"""
    s_lshl_b32 s4, s40, 7
    s_add_u32 s4, s4, {HS}
    v_and_b32 v16, 15, v{LANE}
    v_lshl_add_u32 v14, v16, 1, s4
    v_and_b32 v15, 32, v{LANE}
    v_and_b32 v9, 64, v8
    v_mul_u32_u24 v8, 36, v9
    v_add3_u32 v9, v9, v14, v15
    v_lshl_add_u32 v8, v15, 1, v8
    v_lshl_add_u32 v8, v16, 2, v8
    s_waitcnt lgkmcnt(10)
    v_pk_add_f32 v[10:11], v[10:11], v[12:13]
    v_mul_f32 v12, {0x80000000 | LOG2E}, v10
    v_exp_f32 v12, v12
    v_mul_f32 v10, v10, v11
    v_add_f32 v12, 1.0, v12
    v_rcp_f32 v12, v12
    s_mul_i32 s4, s41, 4608
    v_mul_f32 v10, v10, v12
    v_cvt_pk_bf16_f32 v10, v10, v10
    ds_write_b16 v9, v10
    ds_read_b128 v[12:15], v21
    """)
    for t in range(5, 10):
        for a in range(2):
            A(f"ds_read_b64_tr_b16 {vr(24+4*t+2*a,2)}, v20{off(4608*a+32*t)}")
    A(f"""
    s_lshl_b32 s5, s6, 1
    s_add_u32 s4, s4, s5
    s_add_u32 s5, s4, {YP}
    s_mov_b32 s10, 0
    s_mov_b32 s11, -1
    s_waitcnt lgkmcnt(10)
    """)
    Y = [128 + 4 * t for t in range(10)]
    for t in range(10):
        if t == 5: A("s_waitcnt lgkmcnt(0)")
        A(mf16(vr(Y[t], 4), "v[12:15]", vr(24 + 4 * t, 4), "0"))
    A("s_nop 1")
    for t in range(0, 10, 2):
        A(f"v_cndmask_b32 v{Y[t]}, v{Y[t]}, v{Y[t+1]}, s[10:11]")
        A(f"buffer_store_dword v{Y[t]}, v8, {ws}, s5 offen{off(64*t)} sc1")
    A("K2_nost2:")
    cs("down")
    ACC, BX, OF, WF, XR, GV = 0, 20, 40, 76, 216, 226
    B1, B2, E1, E2, OEA, FA, SG1, SG2 = 228, 229, 230, 231, 232, 233, 234, 235
    OUT, XA, XA2, TOK, B3, B4 = 240, 243, 244, 252, 238, 253
    T0 = 247
    YB = STG + 4 * 3072

    Y0 = WF
    nosel = OPT.get("nomoe2") or OPT.get("nosel")

    def yflag_load():
        A(f"buffer_load_dwordx4 {vr(Y0+96,4)}, v{T0+2}, {ws}, s65 offen sc1")

    def y_first():
        A(f"""
        s_lshr_b32 s6, s54, 2
        s_lshr_b32 s4, s70, 6
        s_cmp_eq_u32 s4, {"-1" if nosel else "s6"}
        s_cselect_b32 s64, 1, 0
        s_lshr_b32 s4, s71, 6
        s_cmp_eq_u32 s4, {"-1" if nosel else "s6"}
        s_cselect_b32 s4, 2, 0
        s_or_b32 s64, s64, s4
        s_cbranch_scc0 K2_noy0
        v_min_u32 v{T0+2}, 35, v{LANE}
        v_lshlrev_b32 v{T0+2}, 7, v{T0+2}
        s_mul_i32 s65, s40, {36*128}
        s_add_u32 s65, s65, {FY}
        """)
        yflag_load()
        A("K2_noy0:")

    def y_sum():
        A(f"""
        s_cmp_eq_u32 s64, 0
        s_cbranch_scc1 K2_noy1
        s_mov_b32 s5, {SPIN}
        K2_ypoll:
        v_cmp_ne_u32 vcc, s{sTAG}, v{Y0+96}
        v_cmp_ne_u32 s[8:9], s{sTAG}, v{Y0+97}
        v_cmp_ne_u32 s[10:11], s{sTAG}, v{Y0+98}
        s_or_b64 s[8:9], s[8:9], vcc
        v_cmp_ne_u32 vcc, s{sTAG}, v{Y0+99}
        s_or_b64 s[8:9], s[8:9], s[10:11]
        s_or_b64 s[8:9], s[8:9], vcc
        s_cbranch_scc0 K2_ypolled
        """)
        yflag_load()
        A(f"""
        s_sub_u32 s5, s5, 1
        s_waitcnt vmcnt(0)
        s_cbranch_scc0 K2_ypoll
        K2_ypolled:
        v_min_u32 v{T0}, 53, v{LANE}
        v_mul_u32_u24 v{T0+1}, 3641, v{T0}
        v_lshrrev_b32 v{T0+1}, 16, v{T0+1}
        v_mul_u32_u24 v{T0+1}, {4608-288}, v{T0+1}
        v_lshl_add_u32 v{T0}, v{T0}, 4, v{T0+1}
        s_lshl_b32 s6, s40, 10
        s_add_u32 s6, s6, {YB}
        v_add_u32 v{T0+1}, s6, v{L16}
        """)
        for sel in range(2):
            A(f"""
            s_bitcmp1_b32 s64, {sel}
            s_cbranch_scc0 K2_noyl{sel}
            s_lshl_b32 s6, s55, 1
            s_mul_i32 s7, s40, {36*4608}
            s_add_u32 s6, s6, s7
            s_add_u32 s6, s6, {YP + 2304*sel}
            """)
            for u in range(12):
                A(f"buffer_load_dwordx4 {vr(Y0+48*sel+4*u,4)}, v{T0}, {ws}, s6 offen sc1")
                A(f"s_add_u32 s6, s6, {3*4608}")
            A(f"K2_noyl{sel}:")
        A("K2_noy1:")

    def y_sum2(later):
        A(f"""
        s_cmp_eq_u32 s64, 0
        s_cbranch_scc1 K2_noy2
        s_waitcnt vmcnt({later})
        """)
        for sel in range(2):
            A(f"s_bitcmp1_b32 s64, {sel}")
            A(f"s_cbranch_scc0 K2_noys{sel}")
            y = Y0 + 48 * sel
            for u in range(1, 12):
                for hf in range(2):
                    A(f"v_pk_add_f32 {vr(y+2*hf,2)}, {vr(y+2*hf,2)}, {vr(y+4*u+2*hf,2)}")
            A(f"ds_write_b128 v{T0+1}, {vr(y,4)}{off(4096*sel)}")
            A(f"K2_noys{sel}:")
        arrive(5)
        A("K2_noy2:")

    if OPT.get("p3map", 1):
        A.c("projection tiles are dealt so that one die works on the same tokens (speed only)")
        A("s_mov_b32 s4, s37\ns_mov_b32 s37, s43\ns_mov_b32 s43, s4")
    A.c("s54 = 16-token tile of this wave, s55 = byte offset of the channel block")
    A(f"""
    s_lshl_b32 s54, s37, 3
    s_and_b32 s4, s43, 1
    s_lshl_b32 s4, s4, 2
    s_add_u32 s54, s54, s4
    s_add_u32 s54, s54, s40
    s_lshr_b32 s55, s43, 1
    s_mul_i32 s55, s55, 144
    v_mul_u32_u24 v0, 6554, v{LANE}
    v_lshrrev_b32 v0, 16, v0
    v_mul_u32_u24 v1, {1152-160}, v0
    s_mul_i32 s4, s40, {6*1152}
    s_add_u32 s4, s4, s55
    v_add3_u32 v{XA}, v1, v{L16}, s4
    s_mul_i32 s42, s40, 960
    v_and_b32 v3, 15, v{LANE}
    v_lshrrev_b32 v4, 4, v{LANE}
    s_lshl_b32 s8, s54, 4
    v_add_u32 v{TOK}, s8, v3
    v_and_b32 v6, 1, v4
    v_lshlrev_b32 v{XA2}, 3, v{TOK}
    s_mov_b32 s5, {GB}
    buffer_load_dwordx2 {vr(GV,2)}, v{XA2}, {ws}, s5 offen sc1
    s_mul_i32 s5, s40, 3072
    s_add_u32 s97, s5, {STG}
    s_mul_i32 s8, s8, 1152
    s_add_u32 s8, s8, s55
    """)
    for n in range(3):
        A(f"""
        v_add_u32 v5, {64*n}, v{LANE}
        v_mul_u32_u24 v7, 7282, v5
        v_lshrrev_b32 v7, 16, v7
        v_mul_u32_u24 v7, {1152-144}, v7
        v_lshl_add_u32 v7, v5, 4, v7
        v_add_u32 v{OUT+n}, s8, v7
        """)
    A(f"""
    v_cmp_gt_u32 vcc, 16, v{LANE}
    v_bfrev_b32 v5, -2
    s_lshr_b32 s6, s2, 3
    v_cndmask_b32 v{OUT+2}, v5, v{OUT+2}, vcc
    s_and_b32 s6, s6, 3
    s_mul_i32 s66, s6, 6
    s_mov_b32 s62, 0xdff7fdff
    s_mov_b32 s63, 0x7fdff7f
    """)
    A(f"""
    v_lshlrev_b32 v9, {FOS}, v{LANE}
    s_waitcnt vmcnt(1)
    s_mov_b64 exec, {FOX}
    buffer_store_dword v{TAGV}, v9, {ws}, s61 offen sc1
    s_lshl_b32 s4, s41, 7
    s_lshl_b32 s5, s40, 2
    s_add_u32 s4, s4, s5
    s_add_u32 s4, s4, {FY}
    s_cmp_eq_u32 s64, 0
    s_cselect_b32 s4, {OOB}, s4
    s_mov_b64 exec, 1
    buffer_store_dword v{TAGV}, off, {ws}, s4 sc1
    s_mov_b64 exec, -1
    """)
    cs("drain")

    def wodma(cnt):
        l = lab("K2_wodma")
        A(f"""
        s_mov_b32 s7, {cnt}
        s_mov_b64 exec, s[62:63]
        {l}:
        s_mul_i32 s4, s66, 3840
        s_add_u32 m0, s4, s42
        s_mul_i32 s67, s66, {24*1152}
        buffer_load_dwordx4 v{XA}, s[{sWO}:{sWO+3}], s67 offen lds
        s_add_u32 s66, s66, 1
        s_cmp_eq_u32 s66, 24
        s_cselect_b32 s66, 0, s66
        s_sub_u32 s7, s7, 1
        s_cmp_lg_u32 s7, 0
        s_waitcnt vmcnt({OPT.get('wopace', 3)})
        s_cbranch_scc1 {l}
        s_mov_b64 exec, -1
        """)

    def poll():
        l = lab("K2_poll")
        A(f"""
        s_add_u32 s6, s98, 4096
        s_mov_b32 s5, {SPIN}
        {l}:
        buffer_load_dword v{T0}, v{FA}, {ws}, s100 offen sc1
        s_sub_u32 s5, s5, 1
        s_cbranch_scc1 {l}_d
        s_waitcnt vmcnt(0)
        v_cmp_ne_u32 vcc, s{sTAG}, v{T0}
        s_cbranch_vccnz {l}
        {l}_d:
        """)

    def oloads():
        for ks in range(8):
            A(f"buffer_load_dwordx4 {vr(OF+4*ks,4)}, v{L16}, {ws}, s{98 if ks < 4 else 6} offen{off(1024*(ks%4))} sc1")
        for c in range(4):
            A(f"buffer_load_dword v{OF+32+c}, v{OEA}, {ws}, s99 offen{off(128*c)} sc1")

    wodma(4)
    A(f"""
    v_mul_u32_u24 v5, 144, v3
    v_add_u32 v5, s97, v5
    v_lshl_add_u32 v{SG1}, v4, 3, v5
    v_lshl_add_u32 v{SG2}, v6, 3, v5
    v_lshlrev_b32 v5, 2, v3
    v_lshl_add_u32 v{OEA}, v4, 9, v5
    v_lshlrev_b32 v{FA}, {7 if FOM == 2 else 2}, v3
    v_bfe_u32 v7, v{LANE}, 2, 2
    v_lshrrev_b32 v5, 1, v4
    v_mul_u32_u24 v5, 36, v5
    v_lshl_add_u32 v5, v6, 2, v5
    v_add_u32 v5, v5, v7
    v_mul_u32_u24 v5, 160, v5
    v_and_b32 v8, 3, v{LANE}
    v_and_b32 v9, 1, v{LANE}
    v_lshl_add_u32 v{B1}, v8, 3, v5
    v_lshl_add_u32 v{B2}, v9, 3, v5
    v_add_u32 v{B3}, {288*160}, v{B1}
    v_add_u32 v{B4}, {288*160}, v{B2}
    v_lshrrev_b32 v5, 1, v7
    v_lshl_add_u32 v5, v4, 2, v5
    v_mul_u32_u24 v5, 36, v5
    v_and_b32 v7, 1, v7
    v_add3_u32 v5, v5, v7, 16
    v_mul_u32_u24 v5, 160, v5
    v_lshl_add_u32 v{E1}, v8, 3, v5
    v_lshl_add_u32 v{E2}, v9, 3, v5
    s_lshl_b32 s4, s54, 13
    s_add_u32 s98, s4, {OM}
    s_lshr_b32 s4, s54, 2
    s_lshl_b32 s4, s4, 1
    s_and_b32 s5, s40, 1
    s_add_u32 s4, s4, s5
    s_lshl_b32 s4, s4, 11
    s_lshr_b32 s5, s40, 1
    s_lshl_b32 s5, s5, 6
    s_add_u32 s4, s4, s5
    s_add_u32 s99, s4, {OE}
    s_lshl_b32 s4, s37, 4
    s_add_u32 s4, s4, s43
    s_lshl_b32 s4, s4, 7
    s_and_b32 s5, s40, 1
    s_lshl_b32 s5, s5, 6
    s_add_u32 s4, s4, s5
    s_add_u32 s100, s4, {FO}
    s_mov_b32 s101, 0
    """)
    if FOM:
        A(f"""
        s_sub_u32 s4, s99, {OE}
        s_lshr_b32 s4, s4, 11
        s_lshl_b32 s4, s4, {7 if FOM == 1 else 11}
        s_add_u32 s100, s4, {FO}
        """)

    assert OPT.get('wopace', 3) <= 4
    for i in range(10):
        A(f"v_mov_b64 {vr(ACC+2*i,2)}, 0")
    wodma(20)
    cs("wo dma")
    y_first()
    poll()
    A("s_waitcnt vmcnt(0)")
    cs("polled")
    arrive(2)
    A(f"""
    s_mov_b32 s5, {SPIN}
    s_mov_b32 s6, {GB}
    K2_gchk:
    v_cmp_ne_u32 vcc, s{sTAG}, v{GV+1}
    s_cbranch_vccz K2_gok
    buffer_load_dwordx2 {vr(GV,2)}, v{XA2}, {ws}, s6 offen sc1
    s_sub_u32 s5, s5, 1
    s_waitcnt vmcnt(0)
    s_cbranch_scc0 K2_gchk
    K2_gok:
    """)
    y_sum()
    A("s_add_u32 s6, s98, 4096")
    oloads()
    gwait(2)
    cs("gwait2")
    for n in range(3):
        A(f"s_add_u32 m0, s97, {1024*n}")
        A("s_nop 0")
        A(f"buffer_load_dwordx4 v{OUT+n}, s[{sX}:{sX+3}], 0 offen lds")
    y_sum2(15)
    cs("yred")

    def wreads(ks):
        f = WF + 20 * (ks % 7)
        r = []
        for T in range(5):
            for a in range(2):
                if ks < 8:
                    b, im = ((B1, B3) if T < 4 else (B2, B4))[ks // 4], (72 * (ks % 4) + 8 * a) * 160
                else:
                    b, im = (E1 if T < 4 else E2), 72 * a * 160
                im += 32 * T
                r.append(f"ds_read_b64_tr_b16 {vr(f+4*T+2*a,2)}, v{b}{off(im)}")
        return r

    A("K2_p3:")
    for ks in range(7):
        for l in wreads(ks): A(l)
    cs("preload")
    A("s_cmp_lg_u32 s101, 0")
    A("s_cbranch_scc1 K2_pass1")
    sp(1, "ready")
    gwait(4, 2)
    sp(1, "window")
    cs("window")
    A("s_branch K2_mms")
    A("K2_pass1:")
    sp(1, "pre1")
    poll()
    if not OPT.get("chain"): sp(1, "fpolled")
    cs("polled")
    oloads()
    A("K2_mms:")
    A("s_waitcnt lgkmcnt(0)")
    for ks in range(9):
        A(f"s_waitcnt vmcnt({11-ks if ks < 8 else 0})" + (" lgkmcnt(0)" if ks == 7 else ""))
        f = WF + 20 * (ks % 7)
        late = wreads(ks + 6) if ks in (1, 2) else []
        for T in range(5):
            A(mf16(vr(ACC + 4 * T, 4), vr(f + 4 * T, 4), vr(OF + 4 * ks, 4), vr(ACC + 4 * T, 4)))
            for l in late[2 * T:2 * T + 2]: A(l)
    cs("mfma")
    A("s_cmp_eq_u32 s101, 0")
    A("s_cbranch_scc1 K2_mid")
    A(f"v_add_u32 v{T0}, s97, v{L16}")
    A("s_nop 1")
    for i in range(10):
        A(f"v_pk_fma_f32 {vr(ACC+2*i,2)}, {vr(ACC+2*i,2)}, {vr(GV,2)}, {vr(BX+2*i,2)}")
        A(f"v_cvt_pk_bf16_f32 v{XR+i}, v{ACC+2*i}, v{ACC+2*i+1}")
        if i % 2: A(f"ds_write_b64 v{SG1 if i < 8 else SG2}, {vr(XR+i-1,2)}{off(16*(i-1))}")
    for n in range(3):
        A(f"ds_read_b128 {vr(OF+4*n,4)}, v{T0}{off(1024*n)}")
    for n in range(3):
        A(f"s_waitcnt lgkmcnt({2-n})")
        A(f"buffer_store_dwordx4 {vr(OF+4*n,4)}, v{OUT+n}, s[{sO}:{sO+3}], 0 offen")
    cs("epilogue")
    if gen1.DIAG: A("s_waitcnt vmcnt(0)")
    cs("drain")
    csflush(1, 80)
    ST.flush(v=80)
    A("s_endpgm")

    A.c("---- between the halves: routed tokens of this wave's tile get sigmoid(r) * y; then b *= 1 - g")
    A("K2_mid:")
    for T in range(5):
        A(f"ds_read_b64 {vr(XR+2*T,2)}, v{SG1 if T < 4 else SG2}{off(32*T)}")
    for b in (B1, B2, B3, B4, E1, E2):
        A(f"v_add_u32 v{b}, {18*160}, v{b}")
    A("s_mov_b32 s5, 0xffff0000")
    A("s_waitcnt lgkmcnt(0)")
    for i in range(10):
        A(f"v_lshlrev_b32 v{BX+2*i}, 16, v{XR+i}")
        A(f"v_and_b32 v{BX+2*i+1}, s5, v{XR+i}")
    YT = OF
    for sel in range(2):
        A(f"""
        s_lshr_b32 s4, s{70+sel}, 4
        s_cmp_lg_u32 s4, {"-1" if OPT.get("nomoe2") or OPT.get("nosel") else "s54"}
        s_cbranch_scc1 K2_nosel{sel}
        """)
        gwait(5)
        A(f"""
        v_lshlrev_b32 v{T0}, 3, v{LANE}
        v_add_u32 v{T0+1}, {YB + 4096*sel}, v{T0}
        """)
        for k in range(12):
            A(f"ds_read_b64 {vr(YT+2*k,2)}, v{T0+1}{off(1024*(k//3)+288*(k%3))}")
        A(f"""
        v_add_u32 v{T0}, s97, v{T0}
        s_ashr_i32 s6, s{68+sel}, 31
        s_not_b32 s6, s6
        s_or_b32 s6, s6, 0x80000000
        s_xor_b32 s6, s6, s{68+sel}
        s_and_b32 s6, s6, 0xffff0000
        v_mov_b32 v{T0+3}, {0x80000000 | LOG2E}
        v_mul_f32 v{T0+3}, s6, v{T0+3}
        v_exp_f32 v{T0+3}, v{T0+3}
        v_lshrrev_b32 v{T0+2}, 4, v{LANE}
        v_add_f32 v{T0+3}, 1.0, v{T0+3}
        v_rcp_f32 v{T0+3}, v{T0+3}
        v_lshl_add_u32 v{T0+1}, v{T0+2}, 4, s97
        v_and_b32 v{T0+2}, 1, v{T0+2}
        v_lshl_add_u32 v{T0+2}, v{T0+2}, 4, s97
        s_waitcnt lgkmcnt(0)
        """)
        for k in range(1, 12):
            A(f"v_pk_add_f32 {vr(YT,2)}, {vr(YT,2)}, {vr(YT+2*k,2)}")
        A(f"ds_write_b64 v{T0}, {vr(YT,2)}")
        for p in range(4):
            A(f"ds_read_b128 {vr(YT+4+4*p,4)}, v{T0+1}{off(64*p)}")
        A(f"ds_read_b128 {vr(YT+20,4)}, v{T0+2} offset:256")
        A(f"""
        v_cmp_eq_u32 vcc, s{70+sel}, v{TOK}
        s_waitcnt lgkmcnt(0)
        s_and_saveexec_b64 s[8:9], vcc
        """)
        for i in range(20):
            A(f"v_fmac_f32 v{BX+i}, v{YT+4+i}, v{T0+3}")
        A("s_mov_b64 exec, s[8:9]")
        A(f"K2_nosel{sel}:")
    A(f"v_sub_f32 v{T0+1}, 1.0, v{GV}")
    A(f"v_mov_b32 v{GV+1}, v{GV}")
    for i in range(10):
        A(f"v_pk_mul_f32 {vr(BX+2*i,2)}, {vr(BX+2*i,2)}, {vr(T0+1,2)} op_sel_hi:[1,0]")
    A(f"""
    s_add_u32 s98, s98, {128*8192}
    s_add_u32 s99, s99, {64*2048}
    s_add_u32 s100, s100, {(256*128, 64*128, 64*2048)[FOM]}
    s_mov_b32 s101, 1
    """)
    cs("mid")
    A("s_branch K2_p3")

    A.c("---- slow path: two passes over all keys with the true row maximum (own q tile)")
    A("K2_slow:")
    M, KA, VA, VA2, KEA = 40, 42, 43, 44, 45
    lane_addrs(KA, VA, VA2, KEA)
    A(f"""
    s_and_b32 s4, s40, 1
    s_lshl_b32 s4, s4, 3
    s_add_u32 s59, s57, s4
    buffer_load_dwordx2 {vr(QE,2)}, v{KEA}, {ws}, s59 offen sc1
    buffer_load_dwordx2 {vr(QM,2)}, v{KA}, {ws}, s59 offen sc1
    buffer_load_dwordx2 {vr(QM+2,2)}, v{KA}, {ws}, s59 offen offset:256 sc1
    v_and_b32 v4, 31, v{LANE}
    v_or_b32 v5, 4, v4
    v_cmp_eq_u32 vcc, 21, v5
    v_mov_b32 v6, 0x3f803f80
    s_bitcmp0_b32 s36, 0
    v_cndmask_b32 v{VV[0]}, 0, v6, vcc
    s_cselect_b32 s4, -1, 0
    s_cselect_b32 s5, 0, -1
    """)
    for i in range(1, 8):
        A(f"v_mov_b32 v{VV[0]+i}, v{VV[0]}")
    for i in range(16):
        A(f"v_mov_b32 v{o+i}, 0")
    A(f"""
    v_mov_b32 v{M}, 0xff800000
    s_waitcnt vmcnt(0)
    v_and_b32 v{QE}, s4, v{QE}
    v_and_b32 v{QE+1}, s5, v{QE+1}
    """)
    for pas in range(2):
        A("s_mov_b32 s10, 0")
        A(f"K2_slow{pas}:")
        A(f"""
        s_lshr_b32 s8, s10, 1
        s_mul_i32 s8, s8, {2*R}
        s_add_u32 s8, s8, 36864
        s_and_b32 s9, s10, 1
        s_lshl_b32 s11, s9, 3
        s_add_u32 s11, s11, s8
        s_mul_i32 s9, s9, 18432
        s_add_u32 s8, s8, s9
        s_add_u32 s9, s8, {R}
        buffer_load_dwordx2 {vr(KP[0],2)}, v{KA}, {ws}, s11 offen sc1
        buffer_load_dwordx2 {vr(KP[0]+2,2)}, v{KA}, {ws}, s11 offen offset:256 sc1
        buffer_load_dwordx2 {vr(KE,2)}, v{KEA}, {ws}, s11 offen sc1
        """)
        if pas:
            A(f"""
            s_mov_b64 exec, s[62:63]
            buffer_load_dwordx4 {vr(VV[0],4)}, v{VA}, {ws}, s8 offen sc1
            buffer_load_dwordx4 {vr(VV[0]+4,4)}, v{VA}, {ws}, s9 offen sc1
            s_mov_b64 exec, -1
            """)
        A(f"""
        s_waitcnt vmcnt(0)
        v_mfma_f32_32x32x4_2b_bf16 v[0:31], {vr(KE,2)}, {vr(QE,2)}, 0
        s_nop 15
        s_nop 3
        {mfma("v[0:15]", vr(KP[0],4), vr(QM,4), "v[0:15]")}
        s_nop 15
        """)
        if not pas:
            for i in range(8):
                A(f"v_max3_f32 v{M}, v{M}, v{2*i}, v{2*i+1}")
        else:
            for i in range(16):
                A(f"v_sub_f32 v{i}, v{i}, v{M}")
            for i in range(16):
                A(f"v_exp_f32 v{i}, v{i}")
            A("s_nop 1")
            A(f"v_smfmac_f32_32x32x32_bf16 {vr(o,16)}, {vr(VV[0],4)}, v[0:7], v{IDX}")
            A(f"v_smfmac_f32_32x32x32_bf16 {vr(o,16)}, {vr(VV[0]+4,4)}, v[8:15], v{IDX}")
            A("s_nop 15")
        A(f"""
        s_add_u32 s10, s10, 1
        s_cmp_lt_u32 s10, 64
        s_cbranch_scc1 K2_slow{pas}
        """)
        if not pas:
            A(f"""
            v_mov_b32 v{M+1}, v{M}
            s_nop 1
            v_permlane32_swap_b32 v{M}, v{M+1}
            s_nop 1
            v_max_f32 v{M}, v{M}, v{M+1}
            """)
    A("s_branch K2_fin")
    A.c("---- router candidates not published yet (rare): wait for them")
    A(f"""
    {"K2_candok:" if OPT.get("noload") else ""}
    K2_candspin:
    s_mov_b32 s6, {SPIN}
    s_mov_b32 s7, {RC}
    K2_candspin1:
    buffer_load_dwordx4 {vr(CAND,4)}, v{L16}, {ws}, s7 offen sc1
    s_sub_u32 s6, s6, 1
    s_waitcnt vmcnt(0)
    s_cbranch_scc1 K2_candok
    v_cmp_ne_u32 vcc, s{sTAG}, v{CAND+1}
    v_cmp_ne_u32 s[4:5], s{sTAG}, v{CAND+3}
    s_or_b64 vcc, vcc, s[4:5]
    s_cbranch_scc1 K2_candspin1
    s_branch K2_candok
    """)
    return CNT + 48


def build():
    A = Asm()
    A('.amdgcn_target "amdgcn-amd-amdhsa--gfx950"')
    A(".text")
    lds = k23(A)
    A('.section .rodata,"a"')
    A(".p2align 6")
    A.raw(descriptor(NAME, 256, 256))
    head = ("; gated mix of a 32-head attention block and a top-2 routed SwiGLU FFN (S=2048, D=576), one launch\n"
            f"; @launch grid=(256,1,1) block=(512,1,1) lds={lds}\n")
    return head + A.text()


if __name__ == "__main__":
    out = sys.argv[1]
    gen1.DIAG = len(sys.argv) > 2 and sys.argv[2] == "diag"
    if len(sys.argv) > 3:
        OPT = eval(sys.argv[3]); gen1.OPT = OPT
    open(out, "w").write(build())
```

```python
import sys
sys.path.insert(0, "gen")
from asmlib import *
import gen1
from gen1 import YP, WS_SIZE, XB, f32bits, QSCALE, LOG2E, mfma, Stamp
NAME = "gated_mix__mha_block__moe_arch_mod__prompt_kernel"
R = 110592
GB = 0x6C0000
RC = 0x6C4000
F1 = 0xA60000
PG = 0xB00000
OOB = 0x7FFFFF00

OM = 0x700000
OE = 0x900000
FO = 0xA00000
FY = 0xA40000
EP = 0xA50000
OPT = {}
SPIN = 1 << 17


def mf16(d, a, b, c):
    return f"v_mfma_f32_16x16x32_bf16 {d}, {a}, {b}, {c}"


def k23(A):
    kernel_head(A, NAME)
    sDBG, sX, sG, sWS, sD, sU, sWO, sO = 12, 16, 20, 24, 28, 32, 72, 76
    sW, sWB = 20, 28
    S = [0, 32]
    O = [64, 80, 96, 112]
    QM, QE, KE = 128, 144, 148
    NB = 5
    KP = [164 + 10 * g for g in range(3)]
    VV = [194 + 8 * g for g in range(NB)]
    IDX, L16, VA, LANE = 236, 237, 238, 239
    KA, VA2, KEA, GUA, TAGV = 240, 241, 242, 234, 246
    CAND, PA, RET, ONE, CA = 250, 252, 253, 254, 255
    QEA = 251
    SW, PM, PE, RD = 243, 244, 245, 247
    DNA, DN5 = 245, 247
    M0, M1, M2, M3, M4, M5 = 234, 235, 238, 240, 241, 242
    sT = [44 + t for t in range(8)] + [72 + t for t in range(8)]
    sTAG = 53
    WREG = 14336
    AS = 4 * WREG
    DN = 92160
    BS = DN + 36864
    HP = BS + 4 * 8192
    HS = HP + 1024
    CNT = HS + 512
    STG = DN
    SLOT = 32768
    RGV = 4 * SLOT
    ws = f"s[{sWS}:{sWS+3}]"
    uid = [0]
    FOM = OPT.get("fo", 1)
    FOX, FOS = (("0xff", 8), ("1", 2), ("1\ns_mov_b32 exec_lo, -1", 2))[FOM]

    def lab(p):
        uid[0] += 1
        return f"{p}_{uid[0]}"

    def cs(name):
        if not OPT.get("chain"): return
        A("s_memtime s[88:89]")
        A("s_waitcnt lgkmcnt(0)")
        A("s_sub_u32 s88, s88, s80")
        A("s_mov_b32 m0, s96")
        A(f"v_writelane_b32 v{IDX}, s88, m0")
        A("s_add_u32 s96, s96, 1")
        A.c("stamp " + name)

    def csflush(k, v):
        if not OPT.get("chain"): return
        A(f"""
        s_lshl_b32 s4, s2, 2
        s_add_u32 s4, s4, s38
        s_lshl_b32 s4, s4, 8
        s_add_u32 s4, s4, {0xD00000 + 0x40000*k}
        v_lshlrev_b32 v{v}, 2, v{LANE}
        buffer_store_dword v{IDX}, v{v}, {ws}, s4 offen
        s_nop 1
        """)

    def arrive(k):
        A(f"""
        v_mov_b32 v{CA}, {CNT}
        v_mov_b32 v{ONE}, 1
        s_mov_b64 exec, 1
        ds_add_u32 v{CA}, v{ONE}{off(4*k)}
        s_mov_b64 exec, -1
        """)

    def gwait(k, sl=1):
        l = lab("K2_gw")
        A(f"""
        v_mov_b32 v{CA}, {CNT}
        {l}:
        ds_read_b32 v{ONE}, v{CA}{off(4*k)}
        s_waitcnt lgkmcnt(0)
        v_readfirstlane_b32 s4, v{ONE}
        s_cmp_ge_u32 s4, 4
        s_cbranch_scc1 {l}_d
        s_sleep {sl}
        s_branch {l}
        {l}_d:
        """)

    tagload = f"buffer_load_dword v{TAGV}, off, s[{sDBG}:{sDBG+3}], 0 sc1"

    def gettag():
        l = lab("K2_tag")
        A(f"""
        s_mov_b32 s5, {SPIN}
        {l}:
        s_waitcnt vmcnt(0)
        v_readfirstlane_b32 s{sTAG}, v{TAGV}
        s_cmp_lg_u32 s{sTAG}, 0
        s_cbranch_scc1 {l}_d
        s_sleep 8
        {tagload}
        s_sub_u32 s5, s5, 1
        s_cbranch_scc0 {l}
        {l}_d:
        """)

    def lane_addrs(KA, VA, VA2, KEA):
        A(f"""
        s_lshr_b32 s4, s36, 1
        s_mul_i32 s4, s4, {9*256}
        s_and_b32 s5, s36, 1
        s_mul_i32 s5, s5, {5*256}
        s_add_u32 s5, s5, s4
        s_add_u32 s4, s4, 1024
        v_and_b32 v4, 31, v{LANE}
        v_lshrrev_b32 v6, 5, v{LANE}
        v_lshrrev_b32 v5, 4, v4
        v_mul_u32_u24 v5, {R-256}, v5
        v_lshl_add_u32 v5, v4, 4, v5
        v_add_u32 v{KEA}, s4, v5
        v_add_u32 v{KA}, s5, v5
        v_lshl_add_u32 v{KA}, v6, 9, v{KA}
        s_mul_i32 s4, s36, 288
        s_add_u32 s4, s4, 36864
        v_min_u32 v5, 17, v4
        v_lshl_add_u32 v{VA}, v5, 4, s4
        v_mul_u32_u24 v5, 9216, v6
        v_add_u32 v{VA}, v{VA}, v5
        v_add_u32 v{VA2}, 18432, v{VA}
        """)

    def att_setup(old):
        A(f"""
        s_lshl_b32 s4, s3, 1
        s_bfe_u32 s5, s2, 0x10003
        s_add_u32 s43, s4, s5
        s_lshr_b32 s37, s2, 4
        s_lshl_b32 s36, s43, 1
        s_add_u32 s36, s36, s39
        """)
        A.c("s36 head, s37 q block (128), s38 wave, s39 head half, s40 key quarter, s43 head within half")
        lane_addrs(KA, VA, VA2, KEA)
        A(f"""
        s_mul_i32 s10, s37, {4*R}
        s_xor_b32 s11, s40, 3
        """)
        A.c("a 32-row tile = the same 16-token half of two neighbouring records; local q tile t is tile t ^ 3 ^ kq")
        A(f"""
        s_mov_b32 s60, s10
        s_lshr_b32 s4, s11, 1
        s_mul_i32 s5, s4, {2*R}
        s_add_u32 s56, s10, s5
        s_xor_b32 s5, s4, 1
        s_mul_i32 s5, s5, {2*R}
        s_add_u32 s57, s10, s5
        v_xor_b32 v5, s4, v6
        s_mov_b32 s4, {2*R}
        v_mad_u32_u24 v{QEA}, v5, s4, v{KEA}
        s_and_b32 s9, s37, {OPT.get("rot", 0)}
        s_and_b32 s5, s9, 1
        v_xor_b32 v5, s5, v6
        v_subrev_u32 v5, s5, v5
        v_mad_i32_i24 v{KEA}, v5, s4, v{KEA}
        s_mul_i32 s10, s40, {16*R}
        s_add_u32 s10, s10, 36864
        """)
        assert not OPT.get("rot", 0) & 1
        for m in range(8):
            A(f"s_xor_b32 s4, s9, {m}")
            A(f"s_mul_i32 s4, s4, {2*R}")
            A(f"s_add_u32 s{sT[2*m]}, s10, s4")
            A(f"s_add_u32 s{sT[2*m+1]}, s{sT[2*m]}, {R}")
        A("s_mov_b32 s62, 0x0011ffff\ns_mov_b32 s63, 0x0011ffff")
        if old: return
        A.c("projection flags of this head pair: lane = (k / v, first / last channel, token block), and the two q flags")
        A(f"""
        s_mul_i32 s4, s43, 36
        v_bfe_u32 v5, v{LANE}, 4, 1
        v_mad_u32_u24 v5, v5, 35, s4
        v_lshrrev_b32 v7, 7, v5
        v_lshl_add_u32 v7, v7, 4, s37
        s_mov_b32 s4, {F1}
        v_lshl_add_u32 v{PA-2}, v7, 5, s4
        v_mul_u32_u24 v7, 576, v6
        v_add_u32 v5, 576, v5
        v_add_u32 v5, v5, v7
        v_lshrrev_b32 v5, 7, v5
        v_and_b32 v7, 15, v{LANE}
        v_lshl_add_u32 v5, v5, 4, v7
        v_lshl_add_u32 v{PA}, v5, 5, s4
        """)

    ACC, PK, AX, AW, SA = 64, 128, 220, 224, 250
    FR = [0, 32]

    def acc(a, T):
        return ACC + 16 * a + 4 * T

    def epilogue(vmode, r):
        out = []
        for T in range(4):
            p = PK + 16 * r + 4 * T
            for a in (2 * r, 2 * r + 1):
                d = acc(a, T)
                if not vmode:
                    out += [f"v_pk_mul_f32 {vr(d+2*i,2)}, {vr(d+2*i,2)}, s[98:99]" for i in range(2)]
                out += [f"v_cvt_pk_bf16_f32 v{p+2*(a%2)+i}, v{d+2*i}, v{d+2*i+1}" for i in range(2)]
            out.append(f"buffer_store_dwordx4 {vr(p,4)}, v{SA}, {ws}, s{65+r} offen{off((256 if vmode else 1024)*T)} sc1")
        return out

    def xread(n, a, vmode):
        c, s_ = divmod(n, 2)
        k, o = divmod(c % 4, 2)
        to = (a // 2) * 4096 + (a % 2) * 512 if vmode else a * 2048
        return f"ds_read_b128 {vr(FR[n%2]+4*a,4)}, v{AX+2*k+s_}{off(o*SLOT+to)}"

    def reads(n, vmode):
        c, s_ = divmod(n, 2)
        k, o = divmod(c % 4, 2)
        w = [[(f"w{T}", f"ds_read_b64_tr_b16 {vr(FR[n%2]+16+4*T+2*a,2)}, v{AW+4*k+T}{off(o*SLOT+(32*s_+4*a)*128)}") for a in range(2)] for T in range(4)]
        x = [(f"x{a}", xread(n, a, vmode)) for a in range(4)]
        return [(f"{n}{t}", l) for t, l in w[0] + x[:1] + w[1] + w[2] + w[3] + x[1:]]

    def gemm(vmode):
        q = []

        def put(r):
            if OPT.get("nord") and len(r[0]) + int(r[0][0] > "1") > 3: return
            q.append(r[0]); A(r[1])

        def need(*tags):
            idx = [i for i, t in enumerate(q) if t in tags]
            if idx:
                A(f"s_waitcnt lgkmcnt({len(q) - 1 - max(idx)})")
                del q[:max(idx) + 1]
        A("s_barrier")
        sp(1, "b0")
        cs("B0")
        for r in reads(0, vmode): put(r)

        def mm1(n, a, T):
            need(f"{n}x{a}", f"{n}w{T}")
            d = vr(acc(a, T), 4)
            x, w = vr(FR[n % 2] + 4 * a, 4), vr(FR[n % 2] + 16 + 4 * T, 4)
            c = "0" if n == 0 else d
            A(mf16(d, x, w, c) if vmode else mf16(d, w, x, c))
        for n in range(16):
            Rn = reads(n + 1, vmode)
            bp = OPT.get("bp", (0, 6))[n == 15] if n % 2 else 0
            for i in range(16):
                if i == 0 and n > 0: need(f"{n}x0", f"{n}w0", f"{n}w1", f"{n}w2", f"{n}w3")
                mm1(n, i // 4, i % 4)
                if i == bp and n % 2 == 1:
                    need(f"{n}x3")
                    A("s_barrier")
                if i == 0 and n == OPT.get("tagstep", 8): A(tagload)
                if i == 0 and n == OPT.get("tagstep", 8) + 5: gettag()
                if i >= bp:
                    k = 1 if bp <= 2 else 2
                    for r in Rn[k * (i - bp):k * (i - bp) + k]: put(r)
        Rn = reads(17, vmode)
        for i in range(8):
            mm1(16, i // 4, i % 4)
            for r in Rn[2 * i:2 * i + 2]: put(r)
        for i in range(8): mm1(17, i % 2, i // 2)
        E = epilogue(vmode, 0)
        tail = [(16, 2 + i // 4, i % 4) for i in range(8)] + [(17, 2 + i % 2, i // 2) for i in range(8)]
        for i, t in enumerate(tail):
            mm1(*t)
            if not OPT.get("ilv", (1, 1))[vmode]:
                if i == 15:
                    for l in E: A(l)
            elif i >= 2:
                for l in E[(i - 2) * len(E) // 14:(i - 1) * len(E) // 14]: A(l)
        sp(1, "passa")
        cs("pass A")
        A("s_nop 1")
        for l in epilogue(vmode, 1): A(l)

    def pflag(sf):
        A(f"""
        v_lshlrev_b32 v12, 2, v{LANE}
        s_cmp_lg_u32 s40, 0
        s_waitcnt vmcnt(0)
        s_barrier
        s_cbranch_scc1 K2_noflag
        s_mov_b64 exec, 0xff
        buffer_store_dword v{TAGV}, v12, {ws}, s{sf} offen sc1
        s_mov_b64 exec, -1
        K2_noflag:
        """)

    def presets():
        A.c("V registers are preset: rows 17 and 21 are the all-ones rows that produce the softmax denominator")
        A.c("(1 + 127*2^-16 has the bit pattern 0x3f803f80 = two bf16 ones; the matrix unit fills 32 registers per instruction)")
        A(f"""
        v_and_b32 v4, 31, v{LANE}
        v_or_b32 v5, 4, v4
        v_cmp_eq_u32 vcc, 21, v5
        v_mov_b32 v6, 0x3afe3f80
        v_mov_b32 v8, 0x3f803f80
        v_cndmask_b32 v6, 0, v6, vcc
        v_mov_b32 v7, 0
        v_mov_b32 v9, 0
        v_mov_b32 v10, 0
        v_mov_b32 v11, 0
        v_mfma_f32_32x32x4_2b_bf16 {vr(170,32)}, v[8:9], v[6:7], 0
        v_mfma_f32_32x32x4_2b_bf16 {vr(202,32)}, v[8:9], v[6:7], 0
        v_mfma_f32_32x32x4_2b_bf16 {vr(O[0],32)}, v[10:11], v[10:11], 0
        v_mfma_f32_32x32x4_2b_bf16 {vr(O[2],32)}, v[10:11], v[10:11], 0
        s_nop 3
        """)

    def p1_addrs():
        A.c("wave = 64 tokens (s40 & 1) x one 64-channel tile (s40 >> 1); v tiles map row 4g+j of tile a to token 8g+4a+j")
        A(f"""
        v_lshrrev_b32 v1, 4, v{LANE}
        v_and_b32 v2, 15, v{LANE}
        v_and_b32 v3, 12, v2
        v_add_u32 v3, v3, v2
        s_cmp_eq_u32 s100, 2
        s_cselect_b64 vcc, -1, 0
        v_cndmask_b32 v3, v2, v3, vcc
        v_mul_u32_u24 v4, 9216, v1
        v_lshl_add_u32 v4, v2, 4, v4
        v_cndmask_b32 v{SA}, v{L16}, v4, vcc
        v_lshrrev_b32 v4, 1, v2
        v_xor_b32 v4, v4, v1
        s_and_b32 s4, s40, 1
        s_lshl_b32 s4, s4, 1
        s_cmp_eq_u32 s100, 3
        s_cselect_b32 s4, s40, s4
        s_lshl_b32 s5, s68, 2
        s_add_u32 s71, s5, s4
        s_lshl_b32 s4, s4, 12
        v_lshl_add_u32 v3, v3, 7, s4
        v_lshl_add_u32 v{AX}, v4, 4, v3
        v_xor_b32 v{AX+1}, 64, v{AX}
        v_add_u32 v{AX+2}, {2*SLOT}, v{AX}
        v_add_u32 v{AX+3}, {2*SLOT}, v{AX+1}
        v_bfe_u32 v3, v{LANE}, 2, 2
        v_lshl_add_u32 v4, v1, 3, v3
        v_lshlrev_b32 v4, 7, v4
        v_bfe_u32 v3, v{LANE}, 3, 2
        v_lshl_add_u32 v4, v3, 5, v4
        v_and_b32 v3, 3, v{LANE}
        v_lshl_add_u32 v4, v3, 3, v4
        s_lshr_b32 s7, s40, 1
        s_lshl_b32 s4, s7, 13
        s_add_u32 s4, s4, 16384
        v_add_u32 v{AW}, s4, v4
        """)
        for T in range(1, 4):
            A(f"v_xor_b32 v{AW+T}, {32*T}, v{AW}")
        for T in range(4):
            A(f"v_add_u32 v{AW+4+T}, {2*SLOT}, v{AW+T}")
        A.c("store base s65 and flag address s61 of this wave's tile")
        A(f"""
        s_add_u32 s69, s69, s7
        s_mul_i32 s4, s71, {R}
        s_lshl_b32 s5, s69, 12
        s_lshl_b32 s6, s69, 10
        s_add_u32 s6, s6, {73728 - 18*1024}
        s_cmp_eq_u32 s100, 2
        s_cselect_b32 s5, s6, s5
        s_add_u32 s65, s4, s5
        s_add_u32 s66, s65, {R}
        s_lshl_b32 s4, s97, 4
        s_add_u32 s4, s4, s68
        s_lshl_b32 s4, s4, 5
        s_add_u32 s61, s4, {F1}
        s_cmp_lt_u32 s69, 9
        s_cselect_b32 s98, {QSCALE}, 1.0
        s_mov_b32 s99, s98
        """)

    A("s_cmp_ge_u32 s2, 256")
    A("s_cbranch_scc1 K2_end")
    ST = Stamp(A, 0); ST.t(0)
    STS = OPT.get("st", ("astore,polled,loopend,fpolled", "loaded,polled,loopend,flag"))

    def sp(old, name):
        L = STS[0 if old else 1].split(",")
        if name in L: ST.t(1 + L.index(name))
    srd(A, sX, 0, XB)
    srd(A, sW, 8, 576 * 3456)
    srd(A, sWS, 88, WS_SIZE)
    srd(A, sDBG, 80, 256)
    A(f"""
    v_lshrrev_b32 v1, 6, v0
    v_and_b32 v{LANE}, 63, v0
    v_readfirstlane_b32 s38, v1
    v_lshlrev_b32 v{L16}, 4, v{LANE}
    s_and_b32 s3, s2, 7
    s_and_b32 s4, s2, 3
    s_bfe_u32 s5, s2, 0x20003
    s_lshl_b32 s68, s4, 2
    s_add_u32 s68, s68, s5
    s_lshr_b32 s6, s3, 2
    s_lshr_b32 s7, s2, 5
    s_mul_i32 s97, s6, 7
    s_add_u32 s97, s97, s7
    s_lshl_b32 s69, s97, 1
    s_cmp_ge_u32 s97, 9
    s_cselect_b32 s100, 2, 0
    s_cmp_lt_u32 s97, 13
    s_cselect_b32 s101, 1, 0
    s_lshr_b32 s9, s5, 1
    s_xor_b32 s9, s9, s6
    s_add_u32 s9, s9, 3
    s_cmp_eq_u32 s7, 7
    s_cselect_b32 s100, s9, s100
    s_cselect_b32 s101, 0, s101
    s_lshr_b32 s39, s38, 2
    s_and_b32 s40, s38, 3
    s_cmp_eq_u32 s39, 0
    s_cbranch_scc1 K2_old
    """)
    CR = OPT.get("cr", (1, 4, 1, 4, 1, 2, 1))
    A.c("projection tile: s68 token block (128), s97 channel tile (128), s100 kind (0 q/k, 2 v, 3 router, 4 none), s69 first block, s101 has a second block")
    A.c("=========== waves 4-7 first stage x and w_qkv for the projection (k chunks start at s71, for L2 locality only)")
    A(f"""
    s_setprio 2
    s_cmp_eq_u32 s100, 4
    s_cbranch_scc1 K2_loaded
    s_and_b32 s71, s7, {CR[0]}
    s_mul_i32 s71, s71, {CR[1]}
    s_and_b32 s9, s5, {CR[2]}
    s_mul_i32 s9, s9, {CR[3]}
    s_{"xor_b32" if len(CR) > 6 else "add_u32"} s71, s71, s9
    s_mul_i32 s9, s4, {CR[4]}
    s_add_u32 s71, s71, s9
    s_mul_i32 s9, s6, {CR[5]}
    s_add_u32 s71, s71, s9
    s_mul_i32 s9, s71, 57
    s_lshr_b32 s9, s9, 9
    s_mul_i32 s9, s9, 9
    s_sub_u32 s71, s71, s9
    s_cmp_eq_u32 s100, 3
    s_cselect_b32 s71, 0, s71
    v_lshrrev_b32 v2, 3, v{LANE}
    v_and_b32 v3, 7, v{LANE}
    v_lshrrev_b32 v4, 4, v{LANE}
    s_cmp_eq_u32 s100, 2
    s_cselect_b32 s9, 1, 2
    s_cselect_b32 s10, 1, 3
    s_lshl_b32 s9, s40, s9
    s_and_b32 s9, s9, 7
    v_and_b32 v5, s10, v4
    v_add_u32 v5, s9, v5
    v_xor_b32 v5, v3, v5
    s_lshl_b32 s9, s40, 3
    v_add_u32 v2, s9, v2
    s_lshl_b32 s10, s68, 7
    v_add_u32 v6, s10, v2
    v_mul_u32_u24 v6, 1152, v6
    v_lshl_add_u32 v10, v5, 4, v6
    v_and_b32 v4, 1, v4
    s_and_b32 s9, s40, 1
    s_lshl_b32 s9, s9, 2
    v_lshl_add_u32 v4, v4, 1, s9
    v_xor_b32 v3, v3, v4
    v_mul_u32_u24 v6, 3456, v2
    v_lshl_add_u32 v6, v3, 4, v6
    s_lshl_b32 s10, s69, 7
    v_add_u32 v11, s10, v6
    s_lshl_b32 s42, s40, 10
    s_cmp_eq_u32 s100, 3
    s_cselect_b32 s{sW+2}, 0, {576*3456}
    s_cmp_eq_u32 s101, 0
    s_cselect_b32 s{sWB+2}, 0, {576*3456}
    s_mov_b32 s{sWB+3}, 0x00020000
    s_waitcnt lgkmcnt(0)
    s_mov_b64 s[{sWB}:{sWB+1}], s[{sW}:{sW+1}]
    """)
    A.c("missing tiles stage zeros (empty descriptors)")

    def dma1(k):
        c, r = divmod(k, 8)
        u, isx = divmod(r, 2)
        slot = c % 4
        if r == 0: A(f"s_lshl_b32 s65, s71, 7\ns_mul_i32 s66, s71, {64*3456}")
        if not isx:
            t, hf = u % 2, u // 2
            A(f"s_add_u32 m0, s42, {slot*SLOT + 16384 + t*8192 + hf*4096}")
            A(f"s_add_u32 s67, s66, {hf*32*3456 + 128*t}")
            A(f"buffer_load_dwordx4 v11, s[{(sW, sWB)[t]}:{(sW, sWB)[t]+3}], s67 offen lds")
        else:
            A(f"s_add_u32 m0, s42, {slot*SLOT + u*4096}")
            A(f"s_add_u32 s67, s65, {u*36864}")
            A(f"buffer_load_dwordx4 v10, s[{sX}:{sX+3}], s67 offen lds")
        if r == 7: A("s_add_u32 s71, s71, 1\ns_cmp_eq_u32 s71, 9\ns_cselect_b32 s71, 0, s71")

    lead0, lead = OPT.get("lead", (8, 8))
    assert lead <= 16
    issued = 0
    for c in range(9):
        tgt = min(72, 8 * (c + 1) + (lead0 if c == 0 else lead))
        while issued < tgt:
            dma1(issued); issued += 1
        A(f"s_waitcnt vmcnt({issued - 8*(c+1)})")
        A("s_barrier")
    A("K2_loaded:")
    A("s_waitcnt lgkmcnt(0)")
    sp(0, "loaded")
    A(tagload)
    att_setup(False)
    presets()
    gettag()
    A("s_branch K2_young2")

    def p1_compute():
        A("K2_old:")
        A("s_setprio 3")
        if OPT.get("chain"): A("s_mov_b32 s96, 0")
        A(f"""
        v_mov_b32 v{CA}, {CNT}
        v_mov_b32 v{ONE}, 1
        v_mov_b32 v10, 0
        v_mov_b32 v11, 0
        v_mov_b32 v12, 0
        v_mov_b32 v13, 0
        """)
        if OPT.get("pre", 0):
            A.c("row-wise first touch of this die's share of x and w_qkv (speed only)")
            A(f"""
            s_lshr_b32 s8, s2, 3
            s_lshl_b32 s8, s8, 2
            s_add_u32 s8, s8, s40
            s_lshl_b32 s9, s4, 1
            s_add_u32 s9, s9, s6
            s_lshl_b32 s9, s9, 7
            s_add_u32 s9, s9, s8
            s_mul_i32 s9, s9, 2304
            v_min_u32 v2, 17, v{LANE}
            v_lshlrev_b32 v2, 7, v2
            s_mul_i32 s10, s4, 144
            s_add_u32 s10, s10, s8
            s_mul_i32 s10, s10, 3456
            s_mul_i32 s11, s6, 1792
            s_add_u32 s10, s10, s11
            s_cmp_lt_u32 s8, 16
            s_cselect_b32 s11, {128*3456}, 0
            v_and_b32 v3, 15, v{LANE}
            v_min_u32 v3, 13, v3
            v_lshlrev_b32 v3, 7, v3
            v_bfe_u32 v4, v{LANE}, 4, 1
            v_mad_u32_u24 v3, v4, s11, v3
            s_waitcnt lgkmcnt(0)
            buffer_load_dword v160, v2, s[{sX}:{sX+3}], s9 offen
            buffer_load_dword v160, v3, s[{sW}:{sW+3}], s10 offen
            """)
        A(f"""
        s_waitcnt lgkmcnt(0)
        s_or_b32 s4, s2, s40
        s_cmp_lg_u32 s4, 0
        s_cbranch_scc1 K2_notag
        """)
        A.c("hand-off tag of this launch: successor of the word the previous launch left, published through d_debug[0]")
        A(f"""
        s_mov_b32 s4, {EP}
        buffer_load_dword v14, off, {ws}, s4 sc1
        s_mov_b32 s5, 1664525
        s_waitcnt vmcnt(0)
        v_mul_lo_u32 v14, v14, s5
        v_add_u32 v14, 1013904223, v14
        v_max_u32 v14, 1, v14
        s_mov_b64 exec, 1
        buffer_store_dword v14, off, s[{sDBG}:{sDBG+3}], 0 sc1
        buffer_store_dword v14, off, {ws}, s4 sc1
        s_mov_b64 exec, -1
        K2_notag:
        ds_write_b128 v{CA}, v[10:13]
        ds_write_b128 v{CA}, v[10:13] offset:16
        ds_write_b128 v{CA}, v[10:13] offset:32
        s_load_dwordx2 s[4:5], s[0:1], 32
        s_load_dwordx2 s[6:7], s[0:1], 64
        """)
        srd(A, sG, 40, 576 * 9216)
        srd(A, sU, 48, 576 * 9216)
        srd(A, sD, 56, 4608 * 1152)
        A(f"""
        s_mov_b32 s10, 1152
        s_mov_b32 s11, 0x00020000
        s_waitcnt lgkmcnt(0)
        s_cmp_lt_u32 s40, 2
        s_cselect_b32 s8, s4, s6
        s_cselect_b32 s9, s5, s7
        s_cmp_lg_u32 s100, 3
        s_cbranch_scc1 K2_norgv
        s_lshl_b32 s4, s40, 10
        s_add_u32 m0, s4, {RGV}
        s_and_b32 s4, s4, 1024
        buffer_load_dwordx4 v{L16}, s[8:11], s4 offen lds
        K2_norgv:
        """)
        p1_addrs()
        att_setup(True)
        A.c("MoE stage 1: 96 rows x 64 columns of w_gate or w_up per wave; stage 2 (s64): 32 rows of w_down")
        A.c("slots a workgroup does not need pull w_o into its die's L2 instead (speed only)")
        nm = OPT.get('nomoe2')
        A(f"""
        s_load_dwordx2 s[6:7], s[0:1], 16
        s_lshr_b32 s4, s2, 3
        s_mul_i32 s41, s3, 18
        s_add_u32 s41, s41, s4
        s_mul_i32 s42, s40, {WREG}
        s_mul_i32 s9, s40, 9216
        s_sub_u32 s5, s4, 18
        s_cselect_b32 s5, s41, s5
        s_cselect_b32 s64, {0 if nm else 1}, 0
        s_mul_i32 s8, s5, 36864
        s_add_u32 s8, s8, s9
        s_add_u32 s9, s9, {DN}
        s_mul_i32 s5, s3, 27
        s_add_u32 s5, s5, s4
        s_sub_u32 s5, s5, 5
        s_max_i32 s5, s5, 0
        s_mul_i32 s58, s5, 3641
        s_lshr_b32 s58, s58, 16
        s_mul_i32 s10, s58, 18
        s_sub_u32 s5, s5, s10
        s_lshl_b32 s5, s5, 2
        s_add_u32 s5, s5, s40
        s_mul_i32 s59, s5, 24
        s_add_u32 s59, s59, s58
        s_lshl_b32 s59, s59, 9
        s_add_u32 s59, s59, {PG}
        s_sub_u32 s10, s58, 6
        s_cselect_b32 s58, s58, s10
        s_cselect_b64 s[{sG}:{sG+1}], s[{sG}:{sG+1}], s[{sU}:{sU+1}]
        s_mul_i32 s54, s58, {96*9216}
        s_lshl_b32 s5, s5, 7
        s_add_u32 s54, s54, s5
        s_mul_i32 s58, s58, 192
        s_mov_b32 s55, {8*9216}
        v_lshrrev_b32 v8, 3, v{LANE}
        v_mul_u32_u24 v8, {9216-128}, v8
        v_add_u32 v{GUA}, v8, v{L16}
        s_waitcnt lgkmcnt(0)
        s_cmp_lt_u32 s4, 18
        s_cselect_b64 s[{sD}:{sD+1}], s[{sD}:{sD+1}], s[6:7]
        s_cselect_b32 s{sD+2}, s{sD+2}, {576*1152}
        s_cmp_lt_u32 s4, 5
        s_cbranch_scc0 K2_st1
        s_mov_b64 s[{sG}:{sG+1}], s[6:7]
        s_mov_b32 s{sG+2}, {576*1152}
        s_lshl_b32 s4, s4, 2
        s_add_u32 s4, s4, s40
        s_add_u32 s4, s4, 504
        s_lshl_b32 s54, s4, 10
        s_mov_b32 s55, {20*1024}
        v_mov_b32 v{GUA}, v{L16}
        s_mov_b32 s59, {OOB}
        K2_st1:
        s_sub_u32 s54, s54, s55
        """)
        cs("setup")
        A("""
        s_cmp_eq_u32 s100, 3
        s_cbranch_scc1 K2_rg
        s_cmp_eq_u32 s100, 4
        s_cbranch_scc1 K2_idle2
        s_cmp_ge_u32 s69, 27
        s_cbranch_scc1 K2_idle
        s_cmp_eq_u32 s100, 2
        s_cbranch_scc1 K2_pv
        """)
        for vmode in (False, True):
            if vmode: A("K2_pv:")
            A.c("v tiles: D = x W (lane = channel, registers = tokens)" if vmode else "q / k tiles: D = W^T x^T (lane = token, registers = channels)")
            gemm(vmode)
            sp(1, "astore")
            cs("a stores")
            A("s_branch K2_p1done")
        A.c("---- no second tile in this workgroup")
        A("K2_idle:")
        for c in range(9): A("s_barrier")
        A("s_branch K2_idle3")
        A("K2_idle2:")
        if OPT.get("dwarm", 0):
            A.c("no projection work here: L2 warm-up (speed only) of half the w_down rows this die stages later")
            A(f"""
            s_load_dwordx2 s[4:5], s[0:1], 56
            s_mov_b32 s6, {4608*1152}
            s_mov_b32 s7, 0x00020000
            s_bfe_u32 s10, s2, 0x10003
            s_lshl_b32 s11, s3, 1
            s_add_u32 s10, s10, s11
            s_lshl_b32 s10, s10, 2
            s_add_u32 s10, s10, s40
            s_mul_i32 s10, s10, {81*1024}
            s_mov_b32 s11, 27
            s_waitcnt lgkmcnt(0)
            K2_dwarm:
            buffer_load_dwordx4 v[12:15], v{L16}, s[4:7], s10 offen
            buffer_load_dwordx4 v[12:15], v{L16}, s[4:7], s10 offen offset:1024
            buffer_load_dwordx4 v[12:15], v{L16}, s[4:7], s10 offen offset:2048
            s_add_u32 s10, s10, 3072
            s_sub_u32 s11, s11, 1
            s_cmp_lg_u32 s11, 0
            s_waitcnt vmcnt(12)
            s_cbranch_scc1 K2_dwarm
            """)
        A("K2_idle3:")
        A(tagload)
        gettag()
        A(f"s_mov_b32 s61, {OOB}")
        A("s_branch K2_p1done")
        A.c("---- router score and mix gate of 32 tokens per wave")
        A("K2_rg:")
        A(f"""
        v_lshrrev_b32 v1, 4, v{LANE}
        v_and_b32 v2, 31, v{LANE}
        v_and_b32 v3, 1, v{LANE}
        v_lshlrev_b32 v3, 11, v3
        v_lshl_add_u32 v3, v1, 4, v3
        v_add_u32 v{AW}, {RGV}, v3
        s_lshl_b32 s4, s71, 5
        v_add_u32 v{AW+1}, s4, v2
        v_cmp_lt_u32 vcc, 15, v2
        s_waitcnt vmcnt(0)
        """)
        for c in range(9):
            A("s_barrier")
            if c == 0: cs("B0")
            if c == 5: A(tagload)
            for n in (2 * c, 2 * c + 1):
                A(f"ds_read_b128 {vr(FR[n%2]+16,4)}, v{AW}{off(64*n)}")
                for a in range(2): A(xread(n, a, False))
            for n in (2 * c, 2 * c + 1):
                A(f"s_waitcnt lgkmcnt({3*(1-n%2)})")
                for a in range(2):
                    A(mf16(vr(ACC + 4 * a, 4), vr(FR[n % 2] + 16, 4), vr(FR[n % 2] + 4 * a, 4), "0" if n == 0 else vr(ACC + 4 * a, 4)))
        gettag()
        A("s_nop 3")
        cs("pass A")
        A(f"v_cndmask_b32 v{ACC}, v{ACC}, v{ACC+4}, vcc")
        A(f"v_cndmask_b32 v{ACC+1}, v{ACC+1}, v{ACC+5}, vcc")
        A(f"""
        s_mov_b32 s5, 0xffff0000
        v_cvt_pk_bf16_f32 v6, v{ACC+1}, v{ACC}
        v_lshlrev_b32 v4, 16, v6
        v_mul_f32 v4, {0x80000000 | LOG2E}, v4
        v_exp_f32 v4, v4
        v_ashrrev_i32 v7, 31, v6
        v_add_f32 v4, 1.0, v4
        v_rcp_f32 v4, v4
        v_or_b32 v7, 0x80000000, v7
        v_xor_b32 v6, v6, v7
        v_and_b32 v6, s5, v6
        v_sub_u32 v7, 0xffff, v{AW+1}
        v_or_b32 v6, v6, v7
        v_cvt_pk_bf16_f32 v4, v4, v4
        v_and_b32 v4, s5, v4
        v_mov_b32 v5, s{sTAG}
        v_lshlrev_b32 v7, 3, v{AW+1}
        s_mov_b32 s4, {GB}
        buffer_store_dwordx2 v[4:5], v7, {ws}, s4 offen sc1
        """)
        wave_top2_u32(A, 6, 7, 6, 7)
        A(f"""
        s_lshl_b32 s4, s71, 4
        s_add_u32 s4, s4, {RC}
        v_mov_b32 v8, s6
        v_mov_b32 v9, s{sTAG}
        v_mov_b32 v10, s7
        v_mov_b32 v11, s{sTAG}
        s_mov_b64 exec, 1
        buffer_store_dwordx4 v[8:11], off, {ws}, s4 sc1
        s_mov_b64 exec, -1
        s_mov_b32 s61, {OOB}
        """)
        sp(1, "astore")
        cs("a stores")
        A("K2_p1done:")
        presets()
        pflag(61)
        scratch_addrs(AS, 8192)
        sp(1, "aflag")
        cs("flag")

    def ldK(p):
        return [f"buffer_load_dwordx4 {vr(KP[p%3]+6*i,4)}, v{KA}, {ws}, s{sT[2*p]} offen{off(256*i)} sc1" for i in range(2)]

    def ldV(j):
        return ["s_mov_b64 exec, s[62:63]"] + \
            [f"buffer_load_dwordx4 {vr(VV[j%NB]+4*i,4)}, v{(VA, VA2)[j%2]}, {ws}, s{sT[(j & ~1)+i]} offen sc1" for i in range(2)] + \
            ["s_mov_b64 exec, -1"]

    def ldKE(g):
        return [f"buffer_load_dwordx4 {vr(KE+4*g,4)}, v{KEA}, {ws}, s{sT[4*g]} offen sc1"]

    QT = 32

    def ldQ(rp):
        return [f"buffer_load_dwordx4 {vr(QT+8*rp+4*i,4)}, v{KA}, {ws}, s{56+rp} offen{off(256*i)} sc1" for i in range(2)]

    def items(j):
        return ([ldKE(j // 4)] if j % 4 == 0 else []) + ([[l] for l in ldK(j // 2)] if j % 2 == 0 else []) + [ldV(j)]

    def kmov(kt):
        b = KP[(kt // 2) % 3]
        return f"v_mov_b64 {vr(b+4,2)}, {vr(b+8 if kt % 2 else b,2)}"

    def m2b(kt, c):
        u = kt % 4
        return (f"v_mfma_f32_32x32x4_2b_bf16 {vr(S[c],32)}, {vr(KE+4*(kt//4)+2*(u%2),2)}, {vr(QE+2*c,2)}, 0"
                f" cbsz:1 abid:{u//2}")

    def mm(kt, c, b):
        d = vr(S[c] + 16 * b, 16)
        return mfma(d, vr(KP[(kt // 2) % 3] + (2 if kt % 2 else 4), 4), vr(QM + 4 * (c + 2 * b), 4), d)

    def sm(kt, c, b, i):
        return (f"v_smfmac_f32_32x32x32_bf16 {vr(O[c+2*b],16)}, {vr(VV[kt%NB]+4*i,4)}, "
                f"{vr(S[c]+16*b+8*i,8)}, v{IDX}")

    def moe_dma(n):
        if n < 12:
            return [f"s_add_u32 m0, s42, {1024*n}", f"s_add_u32 s54, s54, s55",
                    f"buffer_load_dwordx4 v{GUA}, s[{sG}:{sG+3}], s54 offen{OPT.get('gunt', '')} lds"]
        n -= 12
        pre = [f"s_add_u32 m0, s9, {4096*(n//4)}", f"s_add_u32 s67, s8, {4096*(n//4)}"]
        return pre + [f"buffer_load_dwordx4 v{L16}, s[{sD}:{sD+3}], s67 offen{off(1024*(n%4))}{OPT.get('dnnt', '')} lds"]

    def xsel_dma(k):
        return [f"s_add_u32 m0, s42, {12288+1024*k}", "s_nop 0",
                f"buffer_load_dwordx4 v{L16}, s[{sX}:{sX+3}], s{10+k} offen lds"]

    def owrite(t):
        return [f"ds_write_b128 v{SW}, {vr(O[t],4)}{off(2048*t)}",
                f"ds_write_b128 v{SW}, {vr(O[t]+4,4)}{off(2048*t+1024)}",
                f"ds_write_b64 v{SW}, {vr(O[t]+8,2)}{off((6144, 6152, 7168)[t])}"]

    def scratch_addrs(base, stride):
        A(f"s_mul_i32 s4, s40, {stride}")
        A(f"s_add_u32 s4, s4, {base}")
        A(f"v_add_u32 v{SW}, s4, v{L16}")
        for t in range(3):
            A(f"s_xor_b32 s4, s40, {t ^ 3}")
            A(f"s_mul_i32 s4, s4, {stride}")
            A(f"s_add_u32 s4, s4, {base}")
            A(f"v_add_u32 v{RD+t}, s4, v{L16}")
        A(f"""
        v_bfe_u32 v{PM}, v{LANE}, 4, 1
        v_lshlrev_b32 v{PM}, 14, v{PM}
        v_lshrrev_b32 v{PE}, 5, v{LANE}
        v_lshl_add_u32 v{PM}, v{PE}, 8, v{PM}
        v_and_b32 v{PE}, 0xff, v{L16}
        v_add_u32 v{PM}, v{PM}, v{PE}
        v_and_b32 v{PE}, 31, v{LANE}
        v_lshlrev_b32 v{PE}, 2, v{PE}
        s_lshl_b32 s4, s39, 6
        s_lshl_b32 s5, s37, 2
        s_add_u32 s4, s4, s5
        s_add_u32 s4, s4, s40
        s_lshl_b32 s5, s4, 1
        s_and_b32 s6, s40, 1
        s_sub_u32 s5, s5, s6
        s_lshl_b32 s5, s5, 13
        s_lshl_b32 s6, s43, 9
        s_add_u32 s5, s5, s6
        s_add_u32 s65, s5, {OM}
        s_lshl_b32 s4, s4, 4
        s_add_u32 s4, s4, s43
        s_lshl_b32 s4, s4, 7
        s_add_u32 s66, s4, {OE}
        s_lshl_b32 s4, s39, 4
        s_add_u32 s4, s4, s37
        s_lshl_b32 s4, s4, 11
        s_lshl_b32 s5, s40, 6
        s_add_u32 s4, s4, s5
        s_lshl_b32 s5, s43, 2
        s_add_u32 s4, s4, s5
        s_add_u32 s61, s4, {FO}
        """)
        if FOM:
            A(f"""
            s_sub_u32 s4, s66, {OE}
            {"" if FOM == 2 else "s_lshr_b32 s4, s4, 11"}
            {"" if FOM == 2 else "s_lshl_b32 s4, s4, 7"}
            {"" if FOM == 2 else "s_add_u32 s4, s4, s5"}
            s_add_u32 s61, s4, {FO}
            """)
        A(f"""
        v_mov_b32 v{CA}, {CNT + (0 if base == AS else 12)}
        v_mov_b32 v{ONE}, 1
        """)

    def attention(old):
        pend = []

        def issue(lines, tag):
            for l in lines:
                if l.startswith("buffer_"):
                    pend.append(tag)
            return lines

        def wait_for(tag):
            last = max(i for i, t in enumerate(pend) if t == tag)
            n = len(pend) - 1 - last
            del pend[:last + 1]
            return f"s_waitcnt vmcnt({n})"

        if old: A("s_barrier")
        sp(old, "polled")
        if old: cs("polled")
        pro = issue([f"buffer_load_dwordx4 {vr(QT+16,4)}, v{QEA}, {ws}, s60 offen sc1"] + ldKE(0), "qe") + \
            issue(ldQ(0) + ldQ(1) + ldK(0), "q0") + issue(ldV(0), "g0") + issue(ldV(1), "g1")
        for l in pro:
            A(l)
            if not old and l.startswith("buffer_") and OPT.get("ypace", 0): A(f"s_sleep {OPT.get('ypace', 1)}")
        if old:
            A(f"s_mov_b32 s4, {RC}")
            for l in issue([f"buffer_load_dwordx4 {vr(CAND,4)}, v{L16}, {ws}, s4 offen sc1"], "cand"): A(l)
            A("s_barrier")
            cs("issued")
            csflush(0, 12)
        A(f"""
        v_mov_b32 v{IDX}, 0xdddddddd
        s_bitcmp0_b32 s36, 0
        s_cselect_b32 s4, -1, 0
        s_cselect_b32 s5, 0, -1
        s_bitcmp1_b32 s40, 0
        """)
        l = lab("K2_qsel")
        w0, w1 = wait_for("qe"), wait_for("q0")
        A(f"s_cbranch_scc1 {l}")
        for b0 in (1, 0):
            if b0 == 0: A(f"{l}:")
            A(w0)
            for c in range(2):
                A(f"v_and_b32 v{QE+2*c}, s4, v{QT+16+2*(c^b0)}")
                A(f"v_and_b32 v{QE+2*c+1}, s5, v{QT+17+2*(c^b0)}")
            A(m2b(0, 0))
            A(w1)
            for t in (0, 2, 1, 3):
                for ab in range(2):
                    A(f"v_mov_b64 {vr(QM+4*t+2*ab,2)}, {vr(QT+8*(t>>1)+4*ab+2*((t&1)^b0),2)}")
            if b0 == 1: A(f"s_branch {l}_d")
        A(f"{l}_d:")
        A(kmov(0))
        A("s_nop 7")
        A(mm(0, 0, 0))
        A(mm(0, 0, 1))
        A("s_nop 10")
        A(f"s_setprio {1 if old else 0}")
        sp(old, "first")
        XS = OPT.get("xsel", 9)
        TP = OPT.get("top2", 12)
        gsched = {}
        nx = 2
        for kt in range(16):
            for _ in range(2 if kt in OPT.get("ramp" if old else "yramp", (1, 3)) else 1):
                if nx <= min(15, kt + NB - 1):
                    gsched.setdefault(kt, []).append(nx); nx += 1
        dsched = {}
        d0, d1 = OPT.get("dma", (3, 29))
        order = range(21)
        for i, x in enumerate(order): dsched.setdefault(d0 + i * (d1 - d0) // 21, []).append(x)
        assert max(dsched) < 32
        touch = {}
        for kt in range(16):
            for c in range(2):
                n = 2 * kt + c
                cur = S[c]
                nxt = (kt, 1) if c == 0 else (kt + 1, 0)
                prv = (kt - 1, 1) if c == 0 else (kt, 0)
                has_next = n < 31
                ins = {}
                def at(p, l): ins.setdefault(p, []).extend(l if isinstance(l, list) else [l])
                if n > 0:
                    at(1, sm(prv[0], prv[1], 1, 1))
                L2 = OPT.get("lchain") == 2
                if c == 0:
                    if L2: at(1, "s_memtime s[82:83]")
                    todo = [(it, f"g{j}") for j in gsched.get(kt, []) for it in items(j)]
                    if old and kt == XS: todo += [(xsel_dma(0), "st1"), (xsel_dma(1), "st1")]
                    slots = [(0, 2), (0, 14), (0, 26), (1, 8), (1, 22), (1, 30)]
                    place = {sl: td for sl, td in zip(slots, todo)}
                    assert len(todo) <= len(slots)
                if c == 0 and L2: at(1, "s_memtime s[84:85]")
                if c == 1 and L2: at(4, "s_memtime s[86:87]")
                if c == 1 and has_next:
                    at(4, wait_for(f"g{kt+1}"))
                if c == 1 and L2:
                    at(4, "s_memtime s[88:89]")
                    at(30, ["s_waitcnt lgkmcnt(0)"] + sum([[f"s_sub_u32 s{82+2*q}, s{82+2*q}, s80", f"v_writelane_b32 v{PA}, s{82+2*q}, {4*kt+q}"] for q in range(4)], []))
                ev = [(p, td) for (cc, p), td in place.items() if cc == c]
                if old and n in touch: ev.append((19, (touch[n], "moe")))
                if old and not OPT.get("nomoe"):
                    for i, x in enumerate(dsched.get(n, [])): ev.append((6 + 10 * i, (moe_dma(x), "st1" if x < 12 else "moe")))
                if n == 0: ev.append((12, None))
                for p, td in sorted(ev, key=lambda e: e[0]):
                    at(p, wait_for("g0") if td is None else issue(*td))
                if c == 1 and has_next: at(10, kmov(kt + 1))
                if has_next:
                    at(4, m2b(*nxt))
                    at(20, mm(nxt[0], nxt[1], 0))
                    at(28, mm(nxt[0], nxt[1], 1))
                at(12, sm(kt, c, 0, 0))
                at(17, sm(kt, c, 0, 1))
                at(25, sm(kt, c, 1, 0))
                if OPT.get("lchain") == 1:
                    if c == 0: at(0, "s_memtime s[88:89]")
                    else: at(0, ["s_waitcnt lgkmcnt(0)", "s_sub_u32 s88, s88, s80", f"v_writelane_b32 v{PA}, s88, {kt}"])
                if old and n >= 27:
                    G, XF, WFs = 202, 148, [218, 222, 164, 168]
                    if n == 27:
                        for i, l in enumerate([f"v_lshrrev_b32 v{M1}, 4, v{LANE}", f"v_bfe_u32 v{M2}, v{LANE}, 2, 2",
                                               f"v_lshl_add_u32 v{M5}, v{M1}, 3, v{M2}", f"v_lshlrev_b32 v{M4}, 3, v{LANE}",
                                               f"v_lshl_add_u32 v{M0}, v{M5}, 7, s42", f"v_and_b32 v{M2}, 1, v{M2}",
                                               f"v_and_or_b32 v{M0}, v{M4}, 24, v{M0}", f"v_lshl_add_u32 v{M3}, v{M1}, 4, s42",
                                               f"v_lshl_add_u32 v{M3}, v{M2}, 10, v{M3}", f"v_mov_b32 v251, v{TAGV}",
                                               f"v_mov_b32 v253, v{TAGV}"]): at(8 + 2 * i, l)
                    elif n < 31:
                        assert "st1" not in pend
                        u = n - 28
                        at(2, f"ds_read_b128 {vr(XF,4)}, v{M3} offset:{12288+64*u}")
                        for t in range(4):
                            for a in range(2):
                                at(3 + 2 * t + a, f"ds_read_b64_tr_b16 {vr(WFs[t]+2*a,2)}, v{M0}{off(4096*u+512*a+32*t)}")
                            at((15, 19, 23, 30)[t], ([f"s_waitcnt lgkmcnt({(6, 0)[t]})"] if t < 2 else []) +
                               [mf16(vr(G + 4 * t, 4), vr(XF, 4), vr(WFs[t], 4), "0" if u == 0 else vr(G + 4 * t, 4))])
                    else:
                        at(7, ["s_mov_b32 s10, 0", "s_mov_b32 s11, -1", "s_add_u32 s4, s59, 6144",
                               f"v_cndmask_b32 v250, v{G}, v{G+4}, s[10:11]",
                               f"buffer_store_dwordx2 v[250:251], v{M4}, {ws}, s59 offen sc1"])
                        at(9, [f"v_cndmask_b32 v252, v{G+8}, v{G+12}, s[10:11]",
                               f"buffer_store_dwordx2 v[252:253], v{M4}, {ws}, s4 offen sc1"])
                if n == 31:
                    for t, p in ((0, 3), (2, 14), (1, 29)):
                        for i, l in enumerate(owrite(t)): at(p + i, l)
                if n == TP and old:
                    assert "cand" not in pend
                    B = Asm()
                    at(0, [f"v_cmp_ne_u32 vcc, s{sTAG}, v{CAND+1}", f"v_cmp_ne_u32 s[4:5], s{sTAG}, v{CAND+3}",
                           "s_or_b64 vcc, vcc, s[4:5]", "s_cbranch_scc1 K2_candspin", "K2_candok:"])
                    wave_max_u32(B, CAND, CAND + 1, 68)
                    B(f"s_nop 1\nv_cmp_ne_u32 vcc, s68, v{CAND}\ns_nop 1\nv_cndmask_b32 v{CAND}, v{CAND+2}, v{CAND}, vcc")
                    wave_max_u32(B, CAND, CAND + 1, 69)
                    B(f"""
                    s_nop 0
                    s_not_b32 s70, s68
                    s_not_b32 s71, s69
                    s_and_b32 s70, s70, 0x7ff
                    s_and_b32 s71, s71, 0x7ff
                    s_mul_i32 s10, s70, 1152
                    s_mul_i32 s11, s71, 1152
                    s_add_u32 s10, s10, s58
                    s_add_u32 s11, s11, s58
                    """)
                    p = -1
                    tail = []
                    for l in B.lines:
                        l = l.strip()
                        if l == "s_nop 1" and p + 2 <= 31:
                            p += 2
                        elif p + 2 > 31 or tail:
                            tail.append(l)
                        else:
                            at(p, l)
                    at(31, tail)
                for i in range(32):
                    A(f"v_exp_f32 v{cur+i}, v{cur+i}")
                    for l in ins.get(i, []):
                        if OPT.get("noload") and kt >= 2 and not l.startswith("v_"): continue
                        A(l)
        A("s_nop 1")
        A(sm(15, 1, 1, 1))
        sp(old, "loopend")
        if OPT.get("lchain"):
            A(f"""
            s_lshl_b32 s4, s2, 2
            s_add_u32 s4, s4, s40
            s_lshl_b32 s4, s4, 8
            s_add_u32 s4, s4, {0xD00000 + 0x40000*(0 if old else 1)}
            v_lshlrev_b32 v0, 2, v{LANE}
            buffer_store_dword v{PA}, v0, {ws}, s4 offen
            """)

    p1_compute()
    attention(True)
    if OPT.get("quit"):
        ST.flush(v=20)
        A("s_endpgm")
    if OPT.get("chain"): A("s_mov_b32 s96, 0")
    cs("loop end")
    A.c("---- MoE stage 2: fetch three partials per wave")
    PL = 184

    def pload():
        for q in range(3):
            A(f"buffer_load_dwordx2 {vr(PL+2*q,2)}, v{M4}, {ws}, s67 offen{off(512*q)} sc1")
    A(f"""
    s_and_b32 s4, s40, 1
    s_lshl_b32 s4, s4, 1
    s_lshr_b32 s5, s40, 1
    s_add_u32 s4, s4, s5
    s_lshl_b32 s5, s41, 2
    s_add_u32 s4, s4, s5
    s_mul_i32 s4, s4, 1536
    s_add_u32 s67, s4, {PG}
    s_cmp_eq_u32 s64, 0
    s_cbranch_scc1 K2_fin0
    """)
    pload()
    A("s_branch K2_fin0")

    A("K2_young2:")
    scratch_addrs(BS, 8192)
    sl0, sl1 = OPT.get("psleep", (10, 0))
    A(f"""
    s_barrier
    s_cmp_lg_u32 s40, 0
    s_cbranch_scc1 K2_p1seen
    s_mov_b32 s5, {SPIN}
    {f"s_sleep {sl0}" if sl0 else ""}
    K2_p1poll:
    buffer_load_dword v12, v{PA}, {ws}, 0 offen sc1
    buffer_load_dword v13, v{PA-2}, {ws}, 0 offen sc1
    s_sub_u32 s5, s5, 1
    s_cbranch_scc1 K2_p1seen
    s_waitcnt vmcnt(0)
    v_cmp_ne_u32 vcc, s{sTAG}, v12
    v_cmp_ne_u32 s[6:7], s{sTAG}, v13
    s_or_b64 vcc, vcc, s[6:7]
    s_cbranch_scc0 K2_p1seen
    {f"s_sleep {sl1}" if sl1 else ""}
    s_branch K2_p1poll
    K2_p1seen:
    s_barrier
    s_barrier
    """)
    attention(False)
    A("K2_fin0:")
    o = O[3]
    A.c("LDS executes a wave's operations in order: the count is bumped after this wave's writes, and reads issued")
    A.c("behind a count of 4 see every partial")
    A(f"""
    s_mov_b64 exec, 1
    ds_add_u32 v{CA}, v{ONE}
    s_mov_b64 exec, -1
    K2_fin1:
    ds_read_b32 v0, v{CA}
    """)
    for t in range(3):
        A(f"ds_read_b128 {vr(O[t],4)}, v{RD+t}{off(2048*t)}")
        A(f"ds_read_b128 {vr(O[t]+4,4)}, v{RD+t}{off(2048*t+1024)}")
        A(f"ds_read_b64 {vr(O[t]+8,2)}, v{RD+t}{off((6144, 6152, 7168)[t])}")
    A("""
    s_waitcnt lgkmcnt(9)
    v_readfirstlane_b32 s4, v0
    s_cmp_lt_u32 s4, 4
    s_cbranch_scc1 K2_fin1
    """)
    A(f"s_mov_b32 s4, {f32bits(2.0**-30)}")
    A(f"s_mov_b32 s5, {f32bits(2.0**60)}")
    for t in range(3):
        A(f"s_waitcnt lgkmcnt({3*(2-t)})")
        for i in range(5):
            A(f"v_pk_add_f32 {vr(o+2*i,2)}, {vr(o+2*i,2)}, {vr(O[t]+2*i,2)}")
    A.c("safety check of the unshifted softmax: denominator in [2^-30, 2^60], numerators finite; else redo with the true max")
    A(f"""
    v_cmp_le_f32 s[6:7], s4, v{o+9}
    v_cmp_ge_f32 s[8:9], s5, v{o+9}
    v_max3_f32 v0, abs(v{o}), abs(v{o+1}), abs(v{o+2})
    v_max3_f32 v1, abs(v{o+3}), abs(v{o+4}), abs(v{o+5})
    v_max3_f32 v2, abs(v{o+6}), abs(v{o+7}), abs(v{o+8})
    v_max3_f32 v0, v0, v1, v2
    s_and_b64 s[6:7], s[6:7], s[8:9]
    v_cmp_gt_f32 vcc, {f32bits(2.0**120)}, v0
    s_and_b64 vcc, vcc, s[6:7]
    s_cmp_eq_u64 vcc, exec
    {"s_nop 0" if OPT.get("noload") else "s_cbranch_scc0 K2_slow"}
    """)
    A("K2_fin:")
    A(f"""
    v_rcp_f32 v0, v{o+9}
    s_cmp_eq_u32 s39, 0
    v_mul_f32 v2, v{o+8}, v0
    v_mul_f32 v3, v{o+8}, v0
    """)
    for i in range(4):
        A(f"v_pk_mul_f32 {vr(o+2*i,2)}, {vr(o+2*i,2)}, v[0:1] op_sel_hi:[1,0]")
    A("v_permlane32_swap_b32 v2, v3")
    for i in range(4):
        A(f"v_cvt_pk_bf16_f32 v{4+i}, v{o+2*i}, v{o+2*i+1}")
    A(f"""
    v_cvt_pk_bf16_f32 v2, v2, v3
    buffer_store_dwordx4 v[4:7], v{PM}, {ws}, s65 offen sc1
    buffer_store_dword v2, v{PE}, {ws}, s66 offen sc1
    s_cbranch_scc1 K2_old2
    v_lshlrev_b32 v8, {FOS}, v{LANE}
    s_mov_b64 exec, 1
    ds_add_u32 v{CA}, v{ONE} offset:4
    s_mov_b64 exec, {FOX}
    s_waitcnt vmcnt(0)
    buffer_store_dword v{TAGV}, v8, {ws}, s61 offen sc1
    """)
    if gen1.DIAG:
        sp(0, "flag"); A("s_waitcnt vmcnt(0)")
    ST.flush(v=20)
    A("K2_end:")
    A("s_endpgm")

    A("K2_old2:")
    cs("fin")
    srd(A, sWO, 16, 576 * 1152)
    srd(A, sO, 72, XB)
    A(f"""
    v_lshlrev_b32 v8, 2, v{LANE}
    s_waitcnt vmcnt(2)
    s_cmp_eq_u32 s64, 0
    s_cbranch_scc1 K2_nop
    s_mov_b32 s5, {SPIN}
    K2_pchk:
    v_cmp_ne_u32 vcc, s{sTAG}, v{PL+1}
    v_cmp_ne_u32 s[8:9], s{sTAG}, v{PL+3}
    v_cmp_ne_u32 s[10:11], s{sTAG}, v{PL+5}
    s_or_b64 s[8:9], s[8:9], vcc
    s_or_b64 s[8:9], s[8:9], s[10:11]
    s_cbranch_scc0 K2_pok
    s_sleep 4
    """)
    pload()
    A(f"""
    s_sub_u32 s5, s5, 1
    s_waitcnt vmcnt(0)
    s_cbranch_scc0 K2_pchk
    K2_pok:
    s_lshl_b32 s4, s40, 8
    s_add_u32 s4, s4, {HP}
    v_add_f32 v10, v{PL}, v{PL+2}
    v_add_u32 v9, s4, v8
    v_add_f32 v10, v10, v{PL+4}
    ds_write_b32 v9, v10
    s_mul_i32 s6, s40, 288
    s_and_b32 s6, s6, 0xffc0
    s_add_u32 s5, s6, {DN}
    v_mul_u32_u24 v20, 1152, v{M5}
    v_and_b32 v21, 24, v{M4}
    v_add3_u32 v20, v20, v21, s5
    s_lshl_b32 s4, s40, 7
    s_add_u32 s4, s4, {HS}
    v_lshl_add_u32 v21, v{M1}, 4, s4
    v_lshl_add_u32 v21, v{M2}, 6, v21
    K2_nop:
    """)
    arrive(1)
    cs("partials")
    gwait(1)
    cs("gwait1")
    A("s_cmp_eq_u32 s64, 0")
    A("s_cbranch_scc1 K2_nost2")
    A.c("---- MoE: h = silu(gate) * up, then this wave's w_down column tiles")
    A(f"""
    v_add_u32 v9, {HP}, v8
    ds_read2st64_b32 v[10:11], v9 offset0:0 offset1:1
    ds_read2st64_b32 v[12:13], v9 offset0:2 offset1:3
    """)
    for t in range(5):
        for a in range(2):
            A(f"ds_read_b64_tr_b16 {vr(24+4*t+2*a,2)}, v20{off(4608*a+32*t)}")
    A(f"""
    s_lshl_b32 s4, s40, 7
    s_add_u32 s4, s4, {HS}
    v_and_b32 v16, 15, v{LANE}
    v_lshl_add_u32 v14, v16, 1, s4
    v_and_b32 v15, 32, v{LANE}
    v_and_b32 v9, 64, v8
    v_mul_u32_u24 v8, 36, v9
    v_add3_u32 v9, v9, v14, v15
    v_lshl_add_u32 v8, v15, 1, v8
    v_lshl_add_u32 v8, v16, 2, v8
    s_waitcnt lgkmcnt(10)
    v_pk_add_f32 v[10:11], v[10:11], v[12:13]
    v_mul_f32 v12, {0x80000000 | LOG2E}, v10
    v_exp_f32 v12, v12
    v_mul_f32 v10, v10, v11
    v_add_f32 v12, 1.0, v12
    v_rcp_f32 v12, v12
    s_mul_i32 s4, s41, 4608
    v_mul_f32 v10, v10, v12
    v_cvt_pk_bf16_f32 v10, v10, v10
    ds_write_b16 v9, v10
    ds_read_b128 v[12:15], v21
    """)
    for t in range(5, 10):
        for a in range(2):
            A(f"ds_read_b64_tr_b16 {vr(24+4*t+2*a,2)}, v20{off(4608*a+32*t)}")
    A(f"""
    s_lshl_b32 s5, s6, 1
    s_add_u32 s4, s4, s5
    s_add_u32 s5, s4, {YP}
    s_mov_b32 s10, 0
    s_mov_b32 s11, -1
    s_waitcnt lgkmcnt(10)
    """)
    Y = [128 + 4 * t for t in range(10)]
    for t in range(10):
        if t == 5: A("s_waitcnt lgkmcnt(0)")
        A(mf16(vr(Y[t], 4), "v[12:15]", vr(24 + 4 * t, 4), "0"))
    A("s_nop 1")
    for t in range(0, 10, 2):
        A(f"v_cndmask_b32 v{Y[t]}, v{Y[t]}, v{Y[t+1]}, s[10:11]")
        A(f"buffer_store_dword v{Y[t]}, v8, {ws}, s5 offen{off(64*t)} sc1")
    A("K2_nost2:")
    cs("down")
    ACC, BX, OF, WF, XR, GV = 0, 20, 40, 76, 216, 226
    B1, B2, E1, E2, OEA, FA, SG1, SG2 = 228, 229, 230, 231, 232, 233, 234, 235
    OUT, XA, XA2, TOK, B3, B4 = 240, 243, 244, 252, 238, 253
    T0 = 247
    YB = STG + 4 * 3072

    Y0 = WF
    nosel = OPT.get("nomoe2") or OPT.get("nosel")

    def yflag_load():
        A(f"buffer_load_dwordx4 {vr(Y0+96,4)}, v{T0+2}, {ws}, s65 offen sc1")

    def y_first():
        A(f"""
        s_lshr_b32 s6, s54, 2
        s_lshr_b32 s4, s70, 6
        s_cmp_eq_u32 s4, {"-1" if nosel else "s6"}
        s_cselect_b32 s64, 1, 0
        s_lshr_b32 s4, s71, 6
        s_cmp_eq_u32 s4, {"-1" if nosel else "s6"}
        s_cselect_b32 s4, 2, 0
        s_or_b32 s64, s64, s4
        s_cbranch_scc0 K2_noy0
        v_min_u32 v{T0+2}, 35, v{LANE}
        v_lshlrev_b32 v{T0+2}, 7, v{T0+2}
        s_mul_i32 s65, s40, {36*128}
        s_add_u32 s65, s65, {FY}
        """)
        yflag_load()
        A("K2_noy0:")

    def y_sum():
        A(f"""
        s_cmp_eq_u32 s64, 0
        s_cbranch_scc1 K2_noy1
        s_mov_b32 s5, {SPIN}
        K2_ypoll:
        v_cmp_ne_u32 vcc, s{sTAG}, v{Y0+96}
        v_cmp_ne_u32 s[8:9], s{sTAG}, v{Y0+97}
        v_cmp_ne_u32 s[10:11], s{sTAG}, v{Y0+98}
        s_or_b64 s[8:9], s[8:9], vcc
        v_cmp_ne_u32 vcc, s{sTAG}, v{Y0+99}
        s_or_b64 s[8:9], s[8:9], s[10:11]
        s_or_b64 s[8:9], s[8:9], vcc
        s_cbranch_scc0 K2_ypolled
        """)
        yflag_load()
        A(f"""
        s_sub_u32 s5, s5, 1
        s_waitcnt vmcnt(0)
        s_cbranch_scc0 K2_ypoll
        K2_ypolled:
        v_min_u32 v{T0}, 53, v{LANE}
        v_mul_u32_u24 v{T0+1}, 3641, v{T0}
        v_lshrrev_b32 v{T0+1}, 16, v{T0+1}
        v_mul_u32_u24 v{T0+1}, {4608-288}, v{T0+1}
        v_lshl_add_u32 v{T0}, v{T0}, 4, v{T0+1}
        s_lshl_b32 s6, s40, 10
        s_add_u32 s6, s6, {YB}
        v_add_u32 v{T0+1}, s6, v{L16}
        """)
        for sel in range(2):
            A(f"""
            s_bitcmp1_b32 s64, {sel}
            s_cbranch_scc0 K2_noyl{sel}
            s_lshl_b32 s6, s55, 1
            s_mul_i32 s7, s40, {36*4608}
            s_add_u32 s6, s6, s7
            s_add_u32 s6, s6, {YP + 2304*sel}
            """)
            for u in range(12):
                A(f"buffer_load_dwordx4 {vr(Y0+48*sel+4*u,4)}, v{T0}, {ws}, s6 offen sc1")
                A(f"s_add_u32 s6, s6, {3*4608}")
            A(f"K2_noyl{sel}:")
        A("K2_noy1:")

    def y_sum2(later):
        A(f"""
        s_cmp_eq_u32 s64, 0
        s_cbranch_scc1 K2_noy2
        s_waitcnt vmcnt({later})
        """)
        for sel in range(2):
            A(f"s_bitcmp1_b32 s64, {sel}")
            A(f"s_cbranch_scc0 K2_noys{sel}")
            y = Y0 + 48 * sel
            for u in range(1, 12):
                for hf in range(2):
                    A(f"v_pk_add_f32 {vr(y+2*hf,2)}, {vr(y+2*hf,2)}, {vr(y+4*u+2*hf,2)}")
            A(f"ds_write_b128 v{T0+1}, {vr(y,4)}{off(4096*sel)}")
            A(f"K2_noys{sel}:")
        arrive(5)
        A("K2_noy2:")

    if OPT.get("p3map", 1):
        A.c("projection tiles are dealt so that one die works on the same tokens (speed only)")
        A("s_mov_b32 s4, s37\ns_mov_b32 s37, s43\ns_mov_b32 s43, s4")
    A.c("s54 = 16-token tile of this wave, s55 = byte offset of the channel block")
    A(f"""
    s_lshl_b32 s54, s37, 3
    s_and_b32 s4, s43, 1
    s_lshl_b32 s4, s4, 2
    s_add_u32 s54, s54, s4
    s_add_u32 s54, s54, s40
    s_lshr_b32 s55, s43, 1
    s_mul_i32 s55, s55, 144
    v_mul_u32_u24 v0, 6554, v{LANE}
    v_lshrrev_b32 v0, 16, v0
    v_mul_u32_u24 v1, {1152-160}, v0
    s_mul_i32 s4, s40, {6*1152}
    s_add_u32 s4, s4, s55
    v_add3_u32 v{XA}, v1, v{L16}, s4
    s_mul_i32 s42, s40, 960
    v_and_b32 v3, 15, v{LANE}
    v_lshrrev_b32 v4, 4, v{LANE}
    s_lshl_b32 s8, s54, 4
    v_add_u32 v{TOK}, s8, v3
    v_and_b32 v6, 1, v4
    v_lshlrev_b32 v{XA2}, 3, v{TOK}
    s_mov_b32 s5, {GB}
    buffer_load_dwordx2 {vr(GV,2)}, v{XA2}, {ws}, s5 offen sc1
    s_mul_i32 s5, s40, 3072
    s_add_u32 s97, s5, {STG}
    s_mul_i32 s8, s8, 1152
    s_add_u32 s8, s8, s55
    """)
    for n in range(3):
        A(f"""
        v_add_u32 v5, {64*n}, v{LANE}
        v_mul_u32_u24 v7, 7282, v5
        v_lshrrev_b32 v7, 16, v7
        v_mul_u32_u24 v7, {1152-144}, v7
        v_lshl_add_u32 v7, v5, 4, v7
        v_add_u32 v{OUT+n}, s8, v7
        """)
    A(f"""
    v_cmp_gt_u32 vcc, 16, v{LANE}
    v_bfrev_b32 v5, -2
    s_lshr_b32 s6, s2, 3
    v_cndmask_b32 v{OUT+2}, v5, v{OUT+2}, vcc
    s_and_b32 s6, s6, 3
    s_mul_i32 s66, s6, 6
    s_mov_b32 s62, 0xdff7fdff
    s_mov_b32 s63, 0x7fdff7f
    """)
    A(f"""
    v_lshlrev_b32 v9, {FOS}, v{LANE}
    s_waitcnt vmcnt(1)
    s_mov_b64 exec, {FOX}
    buffer_store_dword v{TAGV}, v9, {ws}, s61 offen sc1
    s_lshl_b32 s4, s41, 7
    s_lshl_b32 s5, s40, 2
    s_add_u32 s4, s4, s5
    s_add_u32 s4, s4, {FY}
    s_cmp_eq_u32 s64, 0
    s_cselect_b32 s4, {OOB}, s4
    s_mov_b64 exec, 1
    buffer_store_dword v{TAGV}, off, {ws}, s4 sc1
    s_mov_b64 exec, -1
    """)
    cs("drain")

    def wodma(cnt):
        l = lab("K2_wodma")
        A(f"""
        s_mov_b32 s7, {cnt}
        s_mov_b64 exec, s[62:63]
        {l}:
        s_mul_i32 s4, s66, 3840
        s_add_u32 m0, s4, s42
        s_mul_i32 s67, s66, {24*1152}
        buffer_load_dwordx4 v{XA}, s[{sWO}:{sWO+3}], s67 offen lds
        s_add_u32 s66, s66, 1
        s_cmp_eq_u32 s66, 24
        s_cselect_b32 s66, 0, s66
        s_sub_u32 s7, s7, 1
        s_cmp_lg_u32 s7, 0
        s_waitcnt vmcnt({OPT.get('wopace', 3)})
        s_cbranch_scc1 {l}
        s_mov_b64 exec, -1
        """)

    def poll():
        l = lab("K2_poll")
        A(f"""
        s_add_u32 s6, s98, 4096
        s_mov_b32 s5, {SPIN}
        {l}:
        buffer_load_dword v{T0}, v{FA}, {ws}, s100 offen sc1
        s_sub_u32 s5, s5, 1
        s_cbranch_scc1 {l}_d
        s_waitcnt vmcnt(0)
        v_cmp_ne_u32 vcc, s{sTAG}, v{T0}
        s_cbranch_vccnz {l}
        {l}_d:
        """)

    def oloads():
        for ks in range(8):
            A(f"buffer_load_dwordx4 {vr(OF+4*ks,4)}, v{L16}, {ws}, s{98 if ks < 4 else 6} offen{off(1024*(ks%4))} sc1")
        for c in range(4):
            A(f"buffer_load_dword v{OF+32+c}, v{OEA}, {ws}, s99 offen{off(128*c)} sc1")

    wodma(4)
    A(f"""
    v_mul_u32_u24 v5, 144, v3
    v_add_u32 v5, s97, v5
    v_lshl_add_u32 v{SG1}, v4, 3, v5
    v_lshl_add_u32 v{SG2}, v6, 3, v5
    v_lshlrev_b32 v5, 2, v3
    v_lshl_add_u32 v{OEA}, v4, 9, v5
    v_lshlrev_b32 v{FA}, {7 if FOM == 2 else 2}, v3
    v_bfe_u32 v7, v{LANE}, 2, 2
    v_lshrrev_b32 v5, 1, v4
    v_mul_u32_u24 v5, 36, v5
    v_lshl_add_u32 v5, v6, 2, v5
    v_add_u32 v5, v5, v7
    v_mul_u32_u24 v5, 160, v5
    v_and_b32 v8, 3, v{LANE}
    v_and_b32 v9, 1, v{LANE}
    v_lshl_add_u32 v{B1}, v8, 3, v5
    v_lshl_add_u32 v{B2}, v9, 3, v5
    v_add_u32 v{B3}, {288*160}, v{B1}
    v_add_u32 v{B4}, {288*160}, v{B2}
    v_lshrrev_b32 v5, 1, v7
    v_lshl_add_u32 v5, v4, 2, v5
    v_mul_u32_u24 v5, 36, v5
    v_and_b32 v7, 1, v7
    v_add3_u32 v5, v5, v7, 16
    v_mul_u32_u24 v5, 160, v5
    v_lshl_add_u32 v{E1}, v8, 3, v5
    v_lshl_add_u32 v{E2}, v9, 3, v5
    s_lshl_b32 s4, s54, 13
    s_add_u32 s98, s4, {OM}
    s_lshr_b32 s4, s54, 2
    s_lshl_b32 s4, s4, 1
    s_and_b32 s5, s40, 1
    s_add_u32 s4, s4, s5
    s_lshl_b32 s4, s4, 11
    s_lshr_b32 s5, s40, 1
    s_lshl_b32 s5, s5, 6
    s_add_u32 s4, s4, s5
    s_add_u32 s99, s4, {OE}
    s_lshl_b32 s4, s37, 4
    s_add_u32 s4, s4, s43
    s_lshl_b32 s4, s4, 7
    s_and_b32 s5, s40, 1
    s_lshl_b32 s5, s5, 6
    s_add_u32 s4, s4, s5
    s_add_u32 s100, s4, {FO}
    s_mov_b32 s101, 0
    """)
    if FOM:
        A(f"""
        s_sub_u32 s4, s99, {OE}
        s_lshr_b32 s4, s4, 11
        s_lshl_b32 s4, s4, {7 if FOM == 1 else 11}
        s_add_u32 s100, s4, {FO}
        """)

    assert OPT.get('wopace', 3) <= 4
    for i in range(10):
        A(f"v_mov_b64 {vr(ACC+2*i,2)}, 0")
    wodma(20)
    cs("wo dma")
    y_first()
    poll()
    A("s_waitcnt vmcnt(0)")
    cs("polled")
    arrive(2)
    A(f"""
    s_mov_b32 s5, {SPIN}
    s_mov_b32 s6, {GB}
    K2_gchk:
    v_cmp_ne_u32 vcc, s{sTAG}, v{GV+1}
    s_cbranch_vccz K2_gok
    buffer_load_dwordx2 {vr(GV,2)}, v{XA2}, {ws}, s6 offen sc1
    s_sub_u32 s5, s5, 1
    s_waitcnt vmcnt(0)
    s_cbranch_scc0 K2_gchk
    K2_gok:
    """)
    y_sum()
    A("s_add_u32 s6, s98, 4096")
    oloads()
    gwait(2)
    cs("gwait2")
    for n in range(3):
        A(f"s_add_u32 m0, s97, {1024*n}")
        A("s_nop 0")
        A(f"buffer_load_dwordx4 v{OUT+n}, s[{sX}:{sX+3}], 0 offen lds")
    y_sum2(15)
    cs("yred")

    def wreads(ks):
        f = WF + 20 * (ks % 7)
        r = []
        for T in range(5):
            for a in range(2):
                if ks < 8:
                    b, im = ((B1, B3) if T < 4 else (B2, B4))[ks // 4], (72 * (ks % 4) + 8 * a) * 160
                else:
                    b, im = (E1 if T < 4 else E2), 72 * a * 160
                im += 32 * T
                r.append(f"ds_read_b64_tr_b16 {vr(f+4*T+2*a,2)}, v{b}{off(im)}")
        return r

    A("K2_p3:")
    for ks in range(7):
        for l in wreads(ks): A(l)
    cs("preload")
    A("s_cmp_lg_u32 s101, 0")
    A("s_cbranch_scc1 K2_pass1")
    sp(1, "ready")
    gwait(4, 2)
    sp(1, "window")
    cs("window")
    A("s_branch K2_mms")
    A("K2_pass1:")
    sp(1, "pre1")
    poll()
    if not OPT.get("chain"): sp(1, "fpolled")
    cs("polled")
    oloads()
    A("K2_mms:")
    A("s_waitcnt lgkmcnt(0)")
    for ks in range(9):
        A(f"s_waitcnt vmcnt({11-ks if ks < 8 else 0})" + (" lgkmcnt(0)" if ks == 7 else ""))
        f = WF + 20 * (ks % 7)
        late = wreads(ks + 6) if ks in (1, 2) else []
        for T in range(5):
            A(mf16(vr(ACC + 4 * T, 4), vr(f + 4 * T, 4), vr(OF + 4 * ks, 4), vr(ACC + 4 * T, 4)))
            for l in late[2 * T:2 * T + 2]: A(l)
    cs("mfma")
    A("s_cmp_eq_u32 s101, 0")
    A("s_cbranch_scc1 K2_mid")
    A(f"v_add_u32 v{T0}, s97, v{L16}")
    A("s_nop 1")
    for i in range(10):
        A(f"v_pk_fma_f32 {vr(ACC+2*i,2)}, {vr(ACC+2*i,2)}, {vr(GV,2)}, {vr(BX+2*i,2)}")
        A(f"v_cvt_pk_bf16_f32 v{XR+i}, v{ACC+2*i}, v{ACC+2*i+1}")
        if i % 2: A(f"ds_write_b64 v{SG1 if i < 8 else SG2}, {vr(XR+i-1,2)}{off(16*(i-1))}")
    for n in range(3):
        A(f"ds_read_b128 {vr(OF+4*n,4)}, v{T0}{off(1024*n)}")
    for n in range(3):
        A(f"s_waitcnt lgkmcnt({2-n})")
        A(f"buffer_store_dwordx4 {vr(OF+4*n,4)}, v{OUT+n}, s[{sO}:{sO+3}], 0 offen")
    cs("epilogue")
    if gen1.DIAG: A("s_waitcnt vmcnt(0)")
    cs("drain")
    csflush(1, 80)
    ST.flush(v=80)
    A("s_endpgm")

    A.c("---- between the halves: routed tokens of this wave's tile get sigmoid(r) * y; then b *= 1 - g")
    A("K2_mid:")
    for T in range(5):
        A(f"ds_read_b64 {vr(XR+2*T,2)}, v{SG1 if T < 4 else SG2}{off(32*T)}")
    for b in (B1, B2, B3, B4, E1, E2):
        A(f"v_add_u32 v{b}, {18*160}, v{b}")
    A("s_mov_b32 s5, 0xffff0000")
    A("s_waitcnt lgkmcnt(0)")
    for i in range(10):
        A(f"v_lshlrev_b32 v{BX+2*i}, 16, v{XR+i}")
        A(f"v_and_b32 v{BX+2*i+1}, s5, v{XR+i}")
    YT = OF
    for sel in range(2):
        A(f"""
        s_lshr_b32 s4, s{70+sel}, 4
        s_cmp_lg_u32 s4, {"-1" if OPT.get("nomoe2") or OPT.get("nosel") else "s54"}
        s_cbranch_scc1 K2_nosel{sel}
        """)
        gwait(5)
        if sel == 0:
            A.c("all 144 stage-2 flags were seen, so every workgroup has taken its tag: hand d_debug back as zero")
            A(f"v_mov_b32 v{T0}, 0")
            A(f"buffer_store_dword v{T0}, off, s[{sDBG}:{sDBG+3}], 0 sc1")
        A(f"""
        v_lshlrev_b32 v{T0}, 3, v{LANE}
        v_add_u32 v{T0+1}, {YB + 4096*sel}, v{T0}
        """)
        for k in range(12):
            A(f"ds_read_b64 {vr(YT+2*k,2)}, v{T0+1}{off(1024*(k//3)+288*(k%3))}")
        A(f"""
        v_add_u32 v{T0}, s97, v{T0}
        s_ashr_i32 s6, s{68+sel}, 31
        s_not_b32 s6, s6
        s_or_b32 s6, s6, 0x80000000
        s_xor_b32 s6, s6, s{68+sel}
        s_and_b32 s6, s6, 0xffff0000
        v_mov_b32 v{T0+3}, {0x80000000 | LOG2E}
        v_mul_f32 v{T0+3}, s6, v{T0+3}
        v_exp_f32 v{T0+3}, v{T0+3}
        v_lshrrev_b32 v{T0+2}, 4, v{LANE}
        v_add_f32 v{T0+3}, 1.0, v{T0+3}
        v_rcp_f32 v{T0+3}, v{T0+3}
        v_lshl_add_u32 v{T0+1}, v{T0+2}, 4, s97
        v_and_b32 v{T0+2}, 1, v{T0+2}
        v_lshl_add_u32 v{T0+2}, v{T0+2}, 4, s97
        s_waitcnt lgkmcnt(0)
        """)
        for k in range(1, 12):
            A(f"v_pk_add_f32 {vr(YT,2)}, {vr(YT,2)}, {vr(YT+2*k,2)}")
        A(f"ds_write_b64 v{T0}, {vr(YT,2)}")
        for p in range(4):
            A(f"ds_read_b128 {vr(YT+4+4*p,4)}, v{T0+1}{off(64*p)}")
        A(f"ds_read_b128 {vr(YT+20,4)}, v{T0+2} offset:256")
        A(f"""
        v_cmp_eq_u32 vcc, s{70+sel}, v{TOK}
        s_waitcnt lgkmcnt(0)
        s_and_saveexec_b64 s[8:9], vcc
        """)
        for i in range(20):
            A(f"v_fmac_f32 v{BX+i}, v{YT+4+i}, v{T0+3}")
        A("s_mov_b64 exec, s[8:9]")
        A(f"K2_nosel{sel}:")
    A(f"v_sub_f32 v{T0+1}, 1.0, v{GV}")
    A(f"v_mov_b32 v{GV+1}, v{GV}")
    for i in range(10):
        A(f"v_pk_mul_f32 {vr(BX+2*i,2)}, {vr(BX+2*i,2)}, {vr(T0+1,2)} op_sel_hi:[1,0]")
    A(f"""
    s_add_u32 s98, s98, {128*8192}
    s_add_u32 s99, s99, {64*2048}
    s_add_u32 s100, s100, {(256*128, 64*128, 64*2048)[FOM]}
    s_mov_b32 s101, 1
    """)
    cs("mid")
    A("s_branch K2_p3")

    A.c("---- slow path: two passes over all keys with the true row maximum (own q tile)")
    A("K2_slow:")
    M, KA, VA, VA2, KEA = 40, 42, 43, 44, 45
    lane_addrs(KA, VA, VA2, KEA)
    A(f"""
    s_and_b32 s4, s40, 1
    s_lshl_b32 s4, s4, 3
    s_add_u32 s59, s57, s4
    buffer_load_dwordx2 {vr(QE,2)}, v{KEA}, {ws}, s59 offen sc1
    buffer_load_dwordx2 {vr(QM,2)}, v{KA}, {ws}, s59 offen sc1
    buffer_load_dwordx2 {vr(QM+2,2)}, v{KA}, {ws}, s59 offen offset:256 sc1
    v_and_b32 v4, 31, v{LANE}
    v_or_b32 v5, 4, v4
    v_cmp_eq_u32 vcc, 21, v5
    v_mov_b32 v6, 0x3f803f80
    s_bitcmp0_b32 s36, 0
    v_cndmask_b32 v{VV[0]}, 0, v6, vcc
    s_cselect_b32 s4, -1, 0
    s_cselect_b32 s5, 0, -1
    """)
    for i in range(1, 8):
        A(f"v_mov_b32 v{VV[0]+i}, v{VV[0]}")
    for i in range(16):
        A(f"v_mov_b32 v{o+i}, 0")
    A(f"""
    v_mov_b32 v{M}, 0xff800000
    s_waitcnt vmcnt(0)
    v_and_b32 v{QE}, s4, v{QE}
    v_and_b32 v{QE+1}, s5, v{QE+1}
    """)
    for pas in range(2):
        A("s_mov_b32 s10, 0")
        A(f"K2_slow{pas}:")
        A(f"""
        s_lshr_b32 s8, s10, 1
        s_mul_i32 s8, s8, {2*R}
        s_add_u32 s8, s8, 36864
        s_and_b32 s9, s10, 1
        s_lshl_b32 s11, s9, 3
        s_add_u32 s11, s11, s8
        s_mul_i32 s9, s9, 18432
        s_add_u32 s8, s8, s9
        s_add_u32 s9, s8, {R}
        buffer_load_dwordx2 {vr(KP[0],2)}, v{KA}, {ws}, s11 offen sc1
        buffer_load_dwordx2 {vr(KP[0]+2,2)}, v{KA}, {ws}, s11 offen offset:256 sc1
        buffer_load_dwordx2 {vr(KE,2)}, v{KEA}, {ws}, s11 offen sc1
        """)
        if pas:
            A(f"""
            s_mov_b64 exec, s[62:63]
            buffer_load_dwordx4 {vr(VV[0],4)}, v{VA}, {ws}, s8 offen sc1
            buffer_load_dwordx4 {vr(VV[0]+4,4)}, v{VA}, {ws}, s9 offen sc1
            s_mov_b64 exec, -1
            """)
        A(f"""
        s_waitcnt vmcnt(0)
        v_mfma_f32_32x32x4_2b_bf16 v[0:31], {vr(KE,2)}, {vr(QE,2)}, 0
        s_nop 15
        s_nop 3
        {mfma("v[0:15]", vr(KP[0],4), vr(QM,4), "v[0:15]")}
        s_nop 15
        """)
        if not pas:
            for i in range(8):
                A(f"v_max3_f32 v{M}, v{M}, v{2*i}, v{2*i+1}")
        else:
            for i in range(16):
                A(f"v_sub_f32 v{i}, v{i}, v{M}")
            for i in range(16):
                A(f"v_exp_f32 v{i}, v{i}")
            A("s_nop 1")
            A(f"v_smfmac_f32_32x32x32_bf16 {vr(o,16)}, {vr(VV[0],4)}, v[0:7], v{IDX}")
            A(f"v_smfmac_f32_32x32x32_bf16 {vr(o,16)}, {vr(VV[0]+4,4)}, v[8:15], v{IDX}")
            A("s_nop 15")
        A(f"""
        s_add_u32 s10, s10, 1
        s_cmp_lt_u32 s10, 64
        s_cbranch_scc1 K2_slow{pas}
        """)
        if not pas:
            A(f"""
            v_mov_b32 v{M+1}, v{M}
            s_nop 1
            v_permlane32_swap_b32 v{M}, v{M+1}
            s_nop 1
            v_max_f32 v{M}, v{M}, v{M+1}
            """)
    A("s_branch K2_fin")
    A.c("---- router candidates not published yet (rare): wait for them")
    A(f"""
    {"K2_candok:" if OPT.get("noload") else ""}
    K2_candspin:
    s_mov_b32 s6, {SPIN}
    s_mov_b32 s7, {RC}
    K2_candspin1:
    buffer_load_dwordx4 {vr(CAND,4)}, v{L16}, {ws}, s7 offen sc1
    s_sub_u32 s6, s6, 1
    s_waitcnt vmcnt(0)
    s_cbranch_scc1 K2_candok
    v_cmp_ne_u32 vcc, s{sTAG}, v{CAND+1}
    v_cmp_ne_u32 s[4:5], s{sTAG}, v{CAND+3}
    s_or_b64 vcc, vcc, s[4:5]
    s_cbranch_scc1 K2_candspin1
    s_branch K2_candok
    """)
    return CNT + 48


def build():
    A = Asm()
    A('.amdgcn_target "amdgcn-amd-amdhsa--gfx950"')
    A(".text")
    lds = k23(A)
    A('.section .rodata,"a"')
    A(".p2align 6")
    A.raw(descriptor(NAME, 256, 256))
    head = ("; gated mix of a 32-head attention block and a top-2 routed SwiGLU FFN (S=2048, D=576), one launch\n"
            f"; @launch grid=(256,1,1) block=(512,1,1) lds={lds}\n")
    return head + A.text()


if __name__ == "__main__":
    out = sys.argv[1]
    gen1.DIAG = len(sys.argv) > 2 and sys.argv[2] == "diag"
    if len(sys.argv) > 3:
        OPT = eval(sys.argv[3]); gen1.OPT = OPT
    open(out, "w").write(build())
```

```python
import sys
sys.path.insert(0, "gen")
from asmlib import *
import gen1
from gen1 import YP, WS_SIZE, XB, f32bits, QSCALE, LOG2E, mfma, Stamp
NAME = "gated_mix__mha_block__moe_arch_mod__prompt_kernel"
R = 110592
GB = 0x6C0000
RC = 0x6C4000
F1 = 0xA60000
PG = 0xB00000
OOB = 0x7FFFFF00

OM = 0x700000
OE = 0x900000
FO = 0xA00000
FY = 0xA40000
EP = 0xA50000
OPT = {}
SPIN = 1 << 17


def mf16(d, a, b, c):
    return f"v_mfma_f32_16x16x32_bf16 {d}, {a}, {b}, {c}"


def k23(A):
    kernel_head(A, NAME)
    sDBG, sX, sG, sWS, sD, sU, sWO, sO = 12, 16, 20, 24, 28, 32, 72, 76
    sW, sWB = 20, 28
    S = [0, 32]
    O = [64, 80, 96, 112]
    QM, QE, KE = 128, 144, 148
    NB = 5
    KP = [164 + 10 * g for g in range(3)]
    VV = [194 + 8 * g for g in range(NB)]
    IDX, L16, VA, LANE = 236, 237, 238, 239
    KA, VA2, KEA, GUA, TAGV = 240, 241, 242, 234, 246
    CAND, PA, RET, ONE, CA = 250, 252, 253, 254, 255
    QEA = 251
    SW, PM, PE, RD = 243, 244, 245, 247
    DNA, DN5 = 245, 247
    M0, M1, M2, M3, M4, M5 = 234, 235, 238, 240, 241, 242
    sT = [44 + t for t in range(8)] + [72 + t for t in range(8)]
    sTAG = 53
    WREG = 14336
    AS = 4 * WREG
    DN = 92160
    BS = DN + 36864
    HP = BS + 4 * 8192
    HS = HP + 1024
    CNT = HS + 512
    STG = DN
    SLOT = 32768
    RGV = 4 * SLOT
    ws = f"s[{sWS}:{sWS+3}]"
    uid = [0]
    FOM = OPT.get("fo", 1)
    FOX, FOS = (("0xff", 8), ("1", 2), ("1\ns_mov_b32 exec_lo, -1", 2))[FOM]

    def lab(p):
        uid[0] += 1
        return f"{p}_{uid[0]}"

    def cs(name):
        if not OPT.get("chain"): return
        A("s_memtime s[88:89]")
        A("s_waitcnt lgkmcnt(0)")
        A("s_sub_u32 s88, s88, s80")
        A("s_mov_b32 m0, s96")
        A(f"v_writelane_b32 v{IDX}, s88, m0")
        A("s_add_u32 s96, s96, 1")
        A.c("stamp " + name)

    def csflush(k, v):
        if not OPT.get("chain"): return
        A(f"""
        s_lshl_b32 s4, s2, 2
        s_add_u32 s4, s4, s38
        s_lshl_b32 s4, s4, 8
        s_add_u32 s4, s4, {0xD00000 + 0x40000*k}
        v_lshlrev_b32 v{v}, 2, v{LANE}
        buffer_store_dword v{IDX}, v{v}, {ws}, s4 offen
        s_nop 1
        """)

    def arrive(k):
        A(f"""
        v_mov_b32 v{CA}, {CNT}
        v_mov_b32 v{ONE}, 1
        s_mov_b64 exec, 1
        ds_add_u32 v{CA}, v{ONE}{off(4*k)}
        s_mov_b64 exec, -1
        """)

    def gwait(k, sl=1):
        l = lab("K2_gw")
        A(f"""
        v_mov_b32 v{CA}, {CNT}
        {l}:
        ds_read_b32 v{ONE}, v{CA}{off(4*k)}
        s_waitcnt lgkmcnt(0)
        v_readfirstlane_b32 s4, v{ONE}
        s_cmp_ge_u32 s4, 4
        s_cbranch_scc1 {l}_d
        s_sleep {sl}
        s_branch {l}
        {l}_d:
        """)

    tagload = f"buffer_load_dword v{TAGV}, off, s[{sDBG}:{sDBG+3}], 0 sc1"

    def gettag():
        l = lab("K2_tag")
        A(f"""
        s_mov_b32 s5, {SPIN}
        {l}:
        s_waitcnt vmcnt(0)
        v_readfirstlane_b32 s{sTAG}, v{TAGV}
        s_cmp_lg_u32 s{sTAG}, 0
        s_cbranch_scc1 {l}_d
        s_sleep 8
        {tagload}
        s_sub_u32 s5, s5, 1
        s_cbranch_scc0 {l}
        {l}_d:
        """)

    def lane_addrs(KA, VA, VA2, KEA):
        A(f"""
        s_lshr_b32 s4, s36, 1
        s_mul_i32 s4, s4, {9*256}
        s_and_b32 s5, s36, 1
        s_mul_i32 s5, s5, {5*256}
        s_add_u32 s5, s5, s4
        s_add_u32 s4, s4, 1024
        v_and_b32 v4, 31, v{LANE}
        v_lshrrev_b32 v6, 5, v{LANE}
        v_lshrrev_b32 v5, 4, v4
        v_mul_u32_u24 v5, {R-256}, v5
        v_lshl_add_u32 v5, v4, 4, v5
        v_add_u32 v{KEA}, s4, v5
        v_add_u32 v{KA}, s5, v5
        v_lshl_add_u32 v{KA}, v6, 9, v{KA}
        s_mul_i32 s4, s36, 288
        s_add_u32 s4, s4, 36864
        v_min_u32 v5, 17, v4
        v_lshl_add_u32 v{VA}, v5, 4, s4
        v_mul_u32_u24 v5, 9216, v6
        v_add_u32 v{VA}, v{VA}, v5
        v_add_u32 v{VA2}, 18432, v{VA}
        """)

    def att_setup(old):
        A(f"""
        s_lshl_b32 s4, s3, 1
        s_bfe_u32 s5, s2, 0x10003
        s_add_u32 s43, s4, s5
        s_lshr_b32 s37, s2, 4
        s_lshl_b32 s36, s43, 1
        s_add_u32 s36, s36, s39
        """)
        A.c("s36 head, s37 q block (128), s38 wave, s39 head half, s40 key quarter, s43 head within half")
        lane_addrs(KA, VA, VA2, KEA)
        A(f"""
        s_mul_i32 s10, s37, {4*R}
        s_xor_b32 s11, s40, 3
        """)
        A.c("a 32-row tile = the same 16-token half of two neighbouring records; local q tile t is tile t ^ 3 ^ kq")
        A(f"""
        s_mov_b32 s60, s10
        s_lshr_b32 s4, s11, 1
        s_mul_i32 s5, s4, {2*R}
        s_add_u32 s56, s10, s5
        s_xor_b32 s5, s4, 1
        s_mul_i32 s5, s5, {2*R}
        s_add_u32 s57, s10, s5
        v_xor_b32 v5, s4, v6
        s_mov_b32 s4, {2*R}
        v_mad_u32_u24 v{QEA}, v5, s4, v{KEA}
        s_and_b32 s9, s37, {OPT.get("rot", 0)}
        s_and_b32 s5, s9, 1
        v_xor_b32 v5, s5, v6
        v_subrev_u32 v5, s5, v5
        v_mad_i32_i24 v{KEA}, v5, s4, v{KEA}
        s_mul_i32 s10, s40, {16*R}
        s_add_u32 s10, s10, 36864
        """)
        assert not OPT.get("rot", 0) & 1
        for m in range(8):
            A(f"s_xor_b32 s4, s9, {m}")
            A(f"s_mul_i32 s4, s4, {2*R}")
            A(f"s_add_u32 s{sT[2*m]}, s10, s4")
            A(f"s_add_u32 s{sT[2*m+1]}, s{sT[2*m]}, {R}")
        A("s_mov_b32 s62, 0x0011ffff\ns_mov_b32 s63, 0x0011ffff")
        if old: return
        A.c("projection flags of this head pair: lane = (k / v, first / last channel, token block), and the two q flags")
        A(f"""
        s_mul_i32 s4, s43, 36
        v_bfe_u32 v5, v{LANE}, 4, 1
        v_mad_u32_u24 v5, v5, 35, s4
        v_lshrrev_b32 v7, 7, v5
        v_lshl_add_u32 v7, v7, 4, s37
        s_mov_b32 s4, {F1}
        v_lshl_add_u32 v{PA-2}, v7, 5, s4
        v_mul_u32_u24 v7, 576, v6
        v_add_u32 v5, 576, v5
        v_add_u32 v5, v5, v7
        v_lshrrev_b32 v5, 7, v5
        v_and_b32 v7, 15, v{LANE}
        v_lshl_add_u32 v5, v5, 4, v7
        v_lshl_add_u32 v{PA}, v5, 5, s4
        """)

    ACC, PK, AX, AW, SA = 64, 128, 220, 224, 250
    FR = [0, 32]

    def acc(a, T):
        return ACC + 16 * a + 4 * T

    def epilogue(vmode, r):
        out = []
        for T in range(4):
            p = PK + 16 * r + 4 * T
            for a in (2 * r, 2 * r + 1):
                d = acc(a, T)
                if not vmode:
                    out += [f"v_pk_mul_f32 {vr(d+2*i,2)}, {vr(d+2*i,2)}, s[98:99]" for i in range(2)]
                out += [f"v_cvt_pk_bf16_f32 v{p+2*(a%2)+i}, v{d+2*i}, v{d+2*i+1}" for i in range(2)]
            out.append(f"buffer_store_dwordx4 {vr(p,4)}, v{SA}, {ws}, s{65+r} offen{off((256 if vmode else 1024)*T)} sc1")
        return out

    def xread(n, a, vmode):
        c, s_ = divmod(n, 2)
        k, o = divmod(c % 4, 2)
        to = (a // 2) * 4096 + (a % 2) * 512 if vmode else a * 2048
        return f"ds_read_b128 {vr(FR[n%2]+4*a,4)}, v{AX+2*k+s_}{off(o*SLOT+to)}"

    def reads(n, vmode):
        c, s_ = divmod(n, 2)
        k, o = divmod(c % 4, 2)
        w = [[(f"w{T}", f"ds_read_b64_tr_b16 {vr(FR[n%2]+16+4*T+2*a,2)}, v{AW+4*k+T}{off(o*SLOT+(32*s_+4*a)*128)}") for a in range(2)] for T in range(4)]
        x = [(f"x{a}", xread(n, a, vmode)) for a in range(4)]
        return [(f"{n}{t}", l) for t, l in w[0] + x[:1] + w[1] + w[2] + w[3] + x[1:]]

    def gemm(vmode):
        q = []

        def put(r):
            if OPT.get("nord") and len(r[0]) + int(r[0][0] > "1") > 3: return
            q.append(r[0]); A(r[1])

        def need(*tags):
            idx = [i for i, t in enumerate(q) if t in tags]
            if idx:
                A(f"s_waitcnt lgkmcnt({len(q) - 1 - max(idx)})")
                del q[:max(idx) + 1]
        A("s_barrier")
        sp(1, "b0")
        cs("B0")
        for r in reads(0, vmode): put(r)

        def mm1(n, a, T):
            need(f"{n}x{a}", f"{n}w{T}")
            d = vr(acc(a, T), 4)
            x, w = vr(FR[n % 2] + 4 * a, 4), vr(FR[n % 2] + 16 + 4 * T, 4)
            c = "0" if n == 0 else d
            A(mf16(d, x, w, c) if vmode else mf16(d, w, x, c))
        for n in range(16):
            Rn = reads(n + 1, vmode)
            bp = OPT.get("bp", (0, 6))[n == 15] if n % 2 else 0
            for i in range(16):
                if i == 0 and n > 0: need(f"{n}x0", f"{n}w0", f"{n}w1", f"{n}w2", f"{n}w3")
                mm1(n, i // 4, i % 4)
                if i == bp and n % 2 == 1:
                    need(f"{n}x3")
                    A("s_barrier")
                if i == 0 and n == OPT.get("tagstep", 8): A(tagload)
                if i == 0 and n == OPT.get("tagstep", 8) + 5: gettag()
                if i >= bp:
                    k = 1 if bp <= 2 else 2
                    for r in Rn[k * (i - bp):k * (i - bp) + k]: put(r)
        Rn = reads(17, vmode)
        for i in range(8):
            mm1(16, i // 4, i % 4)
            for r in Rn[2 * i:2 * i + 2]: put(r)
        for i in range(8): mm1(17, i % 2, i // 2)
        E = epilogue(vmode, 0)
        tail = [(16, 2 + i // 4, i % 4) for i in range(8)] + [(17, 2 + i % 2, i // 2) for i in range(8)]
        for i, t in enumerate(tail):
            mm1(*t)
            if not OPT.get("ilv", (1, 1))[vmode]:
                if i == 15:
                    for l in E: A(l)
            elif i >= 2:
                for l in E[(i - 2) * len(E) // 14:(i - 1) * len(E) // 14]: A(l)
        sp(1, "passa")
        cs("pass A")
        A("s_nop 1")
        for l in epilogue(vmode, 1): A(l)

    def pflag(sf):
        A(f"""
        v_lshlrev_b32 v12, 2, v{LANE}
        s_cmp_lg_u32 s40, 0
        s_waitcnt vmcnt(0)
        s_barrier
        s_cbranch_scc1 K2_noflag
        s_mov_b64 exec, 0xff
        buffer_store_dword v{TAGV}, v12, {ws}, s{sf} offen sc1
        s_mov_b64 exec, -1
        K2_noflag:
        """)

    def presets():
        A.c("V registers are preset: rows 17 and 21 are the all-ones rows that produce the softmax denominator")
        A.c("(1 + 127*2^-16 has the bit pattern 0x3f803f80 = two bf16 ones; the matrix unit fills 32 registers per instruction)")
        A(f"""
        v_and_b32 v4, 31, v{LANE}
        v_or_b32 v5, 4, v4
        v_cmp_eq_u32 vcc, 21, v5
        v_mov_b32 v6, 0x3afe3f80
        v_mov_b32 v8, 0x3f803f80
        v_cndmask_b32 v6, 0, v6, vcc
        v_mov_b32 v7, 0
        v_mov_b32 v9, 0
        v_mov_b32 v10, 0
        v_mov_b32 v11, 0
        v_mfma_f32_32x32x4_2b_bf16 {vr(170,32)}, v[8:9], v[6:7], 0
        v_mfma_f32_32x32x4_2b_bf16 {vr(202,32)}, v[8:9], v[6:7], 0
        v_mfma_f32_32x32x4_2b_bf16 {vr(O[0],32)}, v[10:11], v[10:11], 0
        v_mfma_f32_32x32x4_2b_bf16 {vr(O[2],32)}, v[10:11], v[10:11], 0
        s_nop 3
        """)

    def p1_addrs():
        A.c("wave = 64 tokens (s40 & 1) x one 64-channel tile (s40 >> 1); v tiles map row 4g+j of tile a to token 8g+4a+j")
        A(f"""
        v_lshrrev_b32 v1, 4, v{LANE}
        v_and_b32 v2, 15, v{LANE}
        v_and_b32 v3, 12, v2
        v_add_u32 v3, v3, v2
        s_cmp_eq_u32 s100, 2
        s_cselect_b64 vcc, -1, 0
        v_cndmask_b32 v3, v2, v3, vcc
        v_mul_u32_u24 v4, 9216, v1
        v_lshl_add_u32 v4, v2, 4, v4
        v_cndmask_b32 v{SA}, v{L16}, v4, vcc
        v_lshrrev_b32 v4, 1, v2
        v_xor_b32 v4, v4, v1
        s_and_b32 s4, s40, 1
        s_lshl_b32 s4, s4, 1
        s_cmp_eq_u32 s100, 3
        s_cselect_b32 s4, s40, s4
        s_lshl_b32 s5, s68, 2
        s_add_u32 s71, s5, s4
        s_lshl_b32 s4, s4, 12
        v_lshl_add_u32 v3, v3, 7, s4
        v_lshl_add_u32 v{AX}, v4, 4, v3
        v_xor_b32 v{AX+1}, 64, v{AX}
        v_add_u32 v{AX+2}, {2*SLOT}, v{AX}
        v_add_u32 v{AX+3}, {2*SLOT}, v{AX+1}
        v_bfe_u32 v3, v{LANE}, 2, 2
        v_lshl_add_u32 v4, v1, 3, v3
        v_lshlrev_b32 v4, 7, v4
        v_bfe_u32 v3, v{LANE}, 3, 2
        v_lshl_add_u32 v4, v3, 5, v4
        v_and_b32 v3, 3, v{LANE}
        v_lshl_add_u32 v4, v3, 3, v4
        s_lshr_b32 s7, s40, 1
        s_lshl_b32 s4, s7, 13
        s_add_u32 s4, s4, 16384
        v_add_u32 v{AW}, s4, v4
        """)
        for T in range(1, 4):
            A(f"v_xor_b32 v{AW+T}, {32*T}, v{AW}")
        for T in range(4):
            A(f"v_add_u32 v{AW+4+T}, {2*SLOT}, v{AW+T}")
        A.c("store base s65 and flag address s61 of this wave's tile")
        A(f"""
        s_add_u32 s69, s69, s7
        s_mul_i32 s4, s71, {R}
        s_lshl_b32 s5, s69, 12
        s_lshl_b32 s6, s69, 10
        s_add_u32 s6, s6, {73728 - 18*1024}
        s_cmp_eq_u32 s100, 2
        s_cselect_b32 s5, s6, s5
        s_add_u32 s65, s4, s5
        s_add_u32 s66, s65, {R}
        s_lshl_b32 s4, s97, 4
        s_add_u32 s4, s4, s68
        s_lshl_b32 s4, s4, 5
        s_add_u32 s61, s4, {F1}
        s_cmp_lt_u32 s69, 9
        s_cselect_b32 s98, {QSCALE}, 1.0
        s_mov_b32 s99, s98
        """)

    A("s_cmp_ge_u32 s2, 256")
    A("s_cbranch_scc1 K2_end")
    ST = Stamp(A, 0); ST.t(0)
    STS = OPT.get("st", ("astore,polled,loopend,fpolled", "loaded,polled,loopend,flag"))

    def sp(old, name):
        L = STS[0 if old else 1].split(",")
        if name in L: ST.t(1 + L.index(name))
    srd(A, sX, 0, XB)
    srd(A, sW, 8, 576 * 3456)
    srd(A, sWS, 88, WS_SIZE)
    srd(A, sDBG, 80, 256)
    A(f"""
    v_lshrrev_b32 v1, 6, v0
    v_and_b32 v{LANE}, 63, v0
    v_readfirstlane_b32 s38, v1
    v_lshlrev_b32 v{L16}, 4, v{LANE}
    s_and_b32 s3, s2, 7
    s_and_b32 s4, s2, 3
    s_bfe_u32 s5, s2, 0x20003
    s_lshl_b32 s68, s4, 2
    s_add_u32 s68, s68, s5
    s_lshr_b32 s6, s3, 2
    s_lshr_b32 s7, s2, 5
    s_mul_i32 s97, s6, 7
    s_add_u32 s97, s97, s7
    s_lshl_b32 s69, s97, 1
    s_cmp_ge_u32 s97, 9
    s_cselect_b32 s100, 2, 0
    s_cmp_lt_u32 s97, 13
    s_cselect_b32 s101, 1, 0
    s_lshr_b32 s9, s5, 1
    s_xor_b32 s9, s9, s6
    s_add_u32 s9, s9, 3
    s_cmp_eq_u32 s7, 7
    s_cselect_b32 s100, s9, s100
    s_cselect_b32 s101, 0, s101
    s_lshr_b32 s39, s38, 2
    s_and_b32 s40, s38, 3
    s_cmp_eq_u32 s39, 0
    s_cbranch_scc1 K2_old
    """)
    CR = OPT.get("cr", (1, 4, 1, 4, 1, 2, 1))
    A.c("projection tile: s68 token block (128), s97 channel tile (128), s100 kind (0 q/k, 2 v, 3 router, 4 none), s69 first block, s101 has a second block")
    A.c("=========== waves 4-7 first stage x and w_qkv for the projection (k chunks start at s71, for L2 locality only)")
    A(f"""
    s_setprio 2
    s_cmp_eq_u32 s100, 4
    s_cbranch_scc1 K2_loaded
    s_and_b32 s71, s7, {CR[0]}
    s_mul_i32 s71, s71, {CR[1]}
    s_and_b32 s9, s5, {CR[2]}
    s_mul_i32 s9, s9, {CR[3]}
    s_{"xor_b32" if len(CR) > 6 else "add_u32"} s71, s71, s9
    s_mul_i32 s9, s4, {CR[4]}
    s_add_u32 s71, s71, s9
    s_mul_i32 s9, s6, {CR[5]}
    s_add_u32 s71, s71, s9
    s_mul_i32 s9, s71, 57
    s_lshr_b32 s9, s9, 9
    s_mul_i32 s9, s9, 9
    s_sub_u32 s71, s71, s9
    s_cmp_eq_u32 s100, 3
    s_cselect_b32 s71, 0, s71
    v_lshrrev_b32 v2, 3, v{LANE}
    v_and_b32 v3, 7, v{LANE}
    v_lshrrev_b32 v4, 4, v{LANE}
    s_cmp_eq_u32 s100, 2
    s_cselect_b32 s9, 1, 2
    s_cselect_b32 s10, 1, 3
    s_lshl_b32 s9, s40, s9
    s_and_b32 s9, s9, 7
    v_and_b32 v5, s10, v4
    v_add_u32 v5, s9, v5
    v_xor_b32 v5, v3, v5
    s_lshl_b32 s9, s40, 3
    v_add_u32 v2, s9, v2
    s_lshl_b32 s10, s68, 7
    v_add_u32 v6, s10, v2
    v_mul_u32_u24 v6, 1152, v6
    v_lshl_add_u32 v10, v5, 4, v6
    v_and_b32 v4, 1, v4
    s_and_b32 s9, s40, 1
    s_lshl_b32 s9, s9, 2
    v_lshl_add_u32 v4, v4, 1, s9
    v_xor_b32 v3, v3, v4
    v_mul_u32_u24 v6, 3456, v2
    v_lshl_add_u32 v6, v3, 4, v6
    s_lshl_b32 s10, s69, 7
    v_add_u32 v11, s10, v6
    s_lshl_b32 s42, s40, 10
    s_cmp_eq_u32 s100, 3
    s_cselect_b32 s{sW+2}, 0, {576*3456}
    s_cmp_eq_u32 s101, 0
    s_cselect_b32 s{sWB+2}, 0, {576*3456}
    s_mov_b32 s{sWB+3}, 0x00020000
    s_waitcnt lgkmcnt(0)
    s_mov_b64 s[{sWB}:{sWB+1}], s[{sW}:{sW+1}]
    """)
    A.c("missing tiles stage zeros (empty descriptors)")

    def dma1(k):
        c, r = divmod(k, 8)
        u, isx = divmod(r, 2)
        slot = c % 4
        if r == 0: A(f"s_lshl_b32 s65, s71, 7\ns_mul_i32 s66, s71, {64*3456}")
        if not isx:
            t, hf = u % 2, u // 2
            A(f"s_add_u32 m0, s42, {slot*SLOT + 16384 + t*8192 + hf*4096}")
            A(f"s_add_u32 s67, s66, {hf*32*3456 + 128*t}")
            A(f"buffer_load_dwordx4 v11, s[{(sW, sWB)[t]}:{(sW, sWB)[t]+3}], s67 offen lds")
        else:
            A(f"s_add_u32 m0, s42, {slot*SLOT + u*4096}")
            A(f"s_add_u32 s67, s65, {u*36864}")
            A(f"buffer_load_dwordx4 v10, s[{sX}:{sX+3}], s67 offen lds")
        if r == 7: A("s_add_u32 s71, s71, 1\ns_cmp_eq_u32 s71, 9\ns_cselect_b32 s71, 0, s71")

    lead0, lead = OPT.get("lead", (8, 8))
    assert lead <= 16
    issued = 0
    for c in range(9):
        tgt = min(72, 8 * (c + 1) + (lead0 if c == 0 else lead))
        while issued < tgt:
            dma1(issued); issued += 1
        A(f"s_waitcnt vmcnt({issued - 8*(c+1)})")
        A("s_barrier")
    A("K2_loaded:")
    A("s_waitcnt lgkmcnt(0)")
    sp(0, "loaded")
    A(tagload)
    att_setup(False)
    presets()
    gettag()
    A("s_branch K2_young2")

    def p1_compute():
        A("K2_old:")
        A("s_setprio 3")
        if OPT.get("chain"): A("s_mov_b32 s96, 0")
        A(f"""
        v_mov_b32 v{CA}, {CNT}
        v_mov_b32 v{ONE}, 1
        v_mov_b32 v10, 0
        v_mov_b32 v11, 0
        v_mov_b32 v12, 0
        v_mov_b32 v13, 0
        """)
        if OPT.get("cpf", 0):
            A.c("pull this kernel's code into the die's L2, three lines per wave (speed only)")
            A(f"""
            s_getpc_b64 s[8:9]
            K2_pc:
            s_sub_u32 s8, s8, K2_pc - {NAME}
            s_subb_u32 s9, s9, 0
            s_lshr_b32 s10, s2, 3
            s_lshl_b32 s10, s10, 2
            s_add_u32 s10, s10, s40
            v_min_u32 v2, 2, v{LANE}
            v_lshl_add_u32 v2, v2, 7, s10
            v_min_u32 v2, (K2_codeend - {NAME}) / 128, v2
            v_lshlrev_b32 v2, 7, v2
            v_mov_b32 v3, s9
            v_add_co_u32 v2, vcc, s8, v2
            s_nop 1
            v_addc_co_u32 v3, vcc, 0, v3, vcc
            global_load_dword v161, v[2:3], off
            """)
        if OPT.get("pre", 0):
            A.c("row-wise first touch of this die's share of x and w_qkv (speed only)")
            A(f"""
            s_lshr_b32 s8, s2, 3
            s_lshl_b32 s8, s8, 2
            s_add_u32 s8, s8, s40
            s_lshl_b32 s9, s4, 1
            s_add_u32 s9, s9, s6
            s_lshl_b32 s9, s9, 7
            s_add_u32 s9, s9, s8
            s_mul_i32 s9, s9, 2304
            v_min_u32 v2, 17, v{LANE}
            v_lshlrev_b32 v2, 7, v2
            s_mul_i32 s10, s4, 144
            s_add_u32 s10, s10, s8
            s_mul_i32 s10, s10, 3456
            s_mul_i32 s11, s6, 1792
            s_add_u32 s10, s10, s11
            s_cmp_lt_u32 s8, 16
            s_cselect_b32 s11, {128*3456}, 0
            v_and_b32 v3, 15, v{LANE}
            v_min_u32 v3, 13, v3
            v_lshlrev_b32 v3, 7, v3
            v_bfe_u32 v4, v{LANE}, 4, 1
            v_mad_u32_u24 v3, v4, s11, v3
            s_waitcnt lgkmcnt(0)
            buffer_load_dword v160, v2, s[{sX}:{sX+3}], s9 offen
            buffer_load_dword v160, v3, s[{sW}:{sW+3}], s10 offen
            """)
        A(f"""
        s_waitcnt lgkmcnt(0)
        s_or_b32 s4, s2, s40
        s_cmp_lg_u32 s4, 0
        s_cbranch_scc1 K2_notag
        """)
        A.c("hand-off tag of this launch: successor of the word the previous launch left, published through d_debug[0]")
        A(f"""
        s_mov_b32 s4, {EP}
        buffer_load_dword v14, off, {ws}, s4 sc1
        s_mov_b32 s5, 1664525
        s_waitcnt vmcnt(0)
        v_mul_lo_u32 v14, v14, s5
        v_add_u32 v14, 1013904223, v14
        v_max_u32 v14, 1, v14
        s_mov_b64 exec, 1
        buffer_store_dword v14, off, s[{sDBG}:{sDBG+3}], 0 sc1
        buffer_store_dword v14, off, {ws}, s4 sc1
        s_mov_b64 exec, -1
        K2_notag:
        ds_write_b128 v{CA}, v[10:13]
        ds_write_b128 v{CA}, v[10:13] offset:16
        ds_write_b128 v{CA}, v[10:13] offset:32
        s_load_dwordx2 s[4:5], s[0:1], 32
        s_load_dwordx2 s[6:7], s[0:1], 64
        """)
        srd(A, sG, 40, 576 * 9216)
        srd(A, sU, 48, 576 * 9216)
        srd(A, sD, 56, 4608 * 1152)
        A(f"""
        s_mov_b32 s10, 1152
        s_mov_b32 s11, 0x00020000
        s_waitcnt lgkmcnt(0)
        s_cmp_lt_u32 s40, 2
        s_cselect_b32 s8, s4, s6
        s_cselect_b32 s9, s5, s7
        s_cmp_lg_u32 s100, 3
        s_cbranch_scc1 K2_norgv
        s_lshl_b32 s4, s40, 10
        s_add_u32 m0, s4, {RGV}
        s_and_b32 s4, s4, 1024
        buffer_load_dwordx4 v{L16}, s[8:11], s4 offen lds
        K2_norgv:
        """)
        p1_addrs()
        att_setup(True)
        A.c("MoE stage 1: 96 rows x 64 columns of w_gate or w_up per wave; stage 2 (s64): 32 rows of w_down")
        A.c("slots a workgroup does not need pull w_o into its die's L2 instead (speed only)")
        nm = OPT.get('nomoe2')
        A(f"""
        s_load_dwordx2 s[6:7], s[0:1], 16
        s_lshr_b32 s4, s2, 3
        s_mul_i32 s41, s3, 18
        s_add_u32 s41, s41, s4
        s_mul_i32 s42, s40, {WREG}
        s_mul_i32 s9, s40, 9216
        s_sub_u32 s5, s4, 18
        s_cselect_b32 s5, s41, s5
        s_cselect_b32 s64, {0 if nm else 1}, 0
        s_mul_i32 s8, s5, 36864
        s_add_u32 s8, s8, s9
        s_add_u32 s9, s9, {DN}
        s_mul_i32 s5, s3, 27
        s_add_u32 s5, s5, s4
        s_sub_u32 s5, s5, 5
        s_max_i32 s5, s5, 0
        s_mul_i32 s58, s5, 3641
        s_lshr_b32 s58, s58, 16
        s_mul_i32 s10, s58, 18
        s_sub_u32 s5, s5, s10
        s_lshl_b32 s5, s5, 2
        s_add_u32 s5, s5, s40
        s_mul_i32 s59, s5, 24
        s_add_u32 s59, s59, s58
        s_lshl_b32 s59, s59, 9
        s_add_u32 s59, s59, {PG}
        s_sub_u32 s10, s58, 6
        s_cselect_b32 s58, s58, s10
        s_cselect_b64 s[{sG}:{sG+1}], s[{sG}:{sG+1}], s[{sU}:{sU+1}]
        s_mul_i32 s54, s58, {96*9216}
        s_lshl_b32 s5, s5, 7
        s_add_u32 s54, s54, s5
        s_mul_i32 s58, s58, 192
        s_mov_b32 s55, {8*9216}
        v_lshrrev_b32 v8, 3, v{LANE}
        v_mul_u32_u24 v8, {9216-128}, v8
        v_add_u32 v{GUA}, v8, v{L16}
        s_waitcnt lgkmcnt(0)
        s_cmp_lt_u32 s4, 18
        s_cselect_b64 s[{sD}:{sD+1}], s[{sD}:{sD+1}], s[6:7]
        s_cselect_b32 s{sD+2}, s{sD+2}, {576*1152}
        s_cmp_lt_u32 s4, 5
        s_cbranch_scc0 K2_st1
        s_mov_b64 s[{sG}:{sG+1}], s[6:7]
        s_mov_b32 s{sG+2}, {576*1152}
        s_lshl_b32 s4, s4, 2
        s_add_u32 s4, s4, s40
        s_add_u32 s4, s4, 504
        s_lshl_b32 s54, s4, 10
        s_mov_b32 s55, {20*1024}
        v_mov_b32 v{GUA}, v{L16}
        s_mov_b32 s59, {OOB}
        K2_st1:
        s_sub_u32 s54, s54, s55
        """)
        cs("setup")
        A("""
        s_cmp_eq_u32 s100, 3
        s_cbranch_scc1 K2_rg
        s_cmp_eq_u32 s100, 4
        s_cbranch_scc1 K2_idle2
        s_cmp_ge_u32 s69, 27
        s_cbranch_scc1 K2_idle
        s_cmp_eq_u32 s100, 2
        s_cbranch_scc1 K2_pv
        """)
        for vmode in (False, True):
            if vmode: A("K2_pv:")
            A.c("v tiles: D = x W (lane = channel, registers = tokens)" if vmode else "q / k tiles: D = W^T x^T (lane = token, registers = channels)")
            gemm(vmode)
            sp(1, "astore")
            cs("a stores")
            A("s_branch K2_p1done")
        A.c("---- no second tile in this workgroup")
        A("K2_idle:")
        for c in range(9): A("s_barrier")
        A("s_branch K2_idle3")
        A("K2_idle2:")
        if OPT.get("dwarm", 0):
            A.c("no projection work here: L2 warm-up (speed only) of half the w_down rows this die stages later")
            A(f"""
            s_load_dwordx2 s[4:5], s[0:1], 56
            s_mov_b32 s6, {4608*1152}
            s_mov_b32 s7, 0x00020000
            s_bfe_u32 s10, s2, 0x10003
            s_lshl_b32 s11, s3, 1
            s_add_u32 s10, s10, s11
            s_lshl_b32 s10, s10, 2
            s_add_u32 s10, s10, s40
            s_mul_i32 s10, s10, {81*1024}
            s_mov_b32 s11, 27
            s_waitcnt lgkmcnt(0)
            K2_dwarm:
            buffer_load_dwordx4 v[12:15], v{L16}, s[4:7], s10 offen
            buffer_load_dwordx4 v[12:15], v{L16}, s[4:7], s10 offen offset:1024
            buffer_load_dwordx4 v[12:15], v{L16}, s[4:7], s10 offen offset:2048
            s_add_u32 s10, s10, 3072
            s_sub_u32 s11, s11, 1
            s_cmp_lg_u32 s11, 0
            s_waitcnt vmcnt(12)
            s_cbranch_scc1 K2_dwarm
            """)
        A("K2_idle3:")
        A(tagload)
        gettag()
        A(f"s_mov_b32 s61, {OOB}")
        A("s_branch K2_p1done")
        A.c("---- router score and mix gate of 32 tokens per wave")
        A("K2_rg:")
        A(f"""
        v_lshrrev_b32 v1, 4, v{LANE}
        v_and_b32 v2, 31, v{LANE}
        v_and_b32 v3, 1, v{LANE}
        v_lshlrev_b32 v3, 11, v3
        v_lshl_add_u32 v3, v1, 4, v3
        v_add_u32 v{AW}, {RGV}, v3
        s_lshl_b32 s4, s71, 5
        v_add_u32 v{AW+1}, s4, v2
        v_cmp_lt_u32 vcc, 15, v2
        s_waitcnt vmcnt(0)
        """)
        for c in range(9):
            A("s_barrier")
            if c == 0: cs("B0")
            if c == 5: A(tagload)
            for n in (2 * c, 2 * c + 1):
                A(f"ds_read_b128 {vr(FR[n%2]+16,4)}, v{AW}{off(64*n)}")
                for a in range(2): A(xread(n, a, False))
            for n in (2 * c, 2 * c + 1):
                A(f"s_waitcnt lgkmcnt({3*(1-n%2)})")
                for a in range(2):
                    A(mf16(vr(ACC + 4 * a, 4), vr(FR[n % 2] + 16, 4), vr(FR[n % 2] + 4 * a, 4), "0" if n == 0 else vr(ACC + 4 * a, 4)))
        gettag()
        A("s_nop 3")
        cs("pass A")
        A(f"v_cndmask_b32 v{ACC}, v{ACC}, v{ACC+4}, vcc")
        A(f"v_cndmask_b32 v{ACC+1}, v{ACC+1}, v{ACC+5}, vcc")
        A(f"""
        s_mov_b32 s5, 0xffff0000
        v_cvt_pk_bf16_f32 v6, v{ACC+1}, v{ACC}
        v_lshlrev_b32 v4, 16, v6
        v_mul_f32 v4, {0x80000000 | LOG2E}, v4
        v_exp_f32 v4, v4
        v_ashrrev_i32 v7, 31, v6
        v_add_f32 v4, 1.0, v4
        v_rcp_f32 v4, v4
        v_or_b32 v7, 0x80000000, v7
        v_xor_b32 v6, v6, v7
        v_and_b32 v6, s5, v6
        v_sub_u32 v7, 0xffff, v{AW+1}
        v_or_b32 v6, v6, v7
        v_cvt_pk_bf16_f32 v4, v4, v4
        v_and_b32 v4, s5, v4
        v_mov_b32 v5, s{sTAG}
        v_lshlrev_b32 v7, 3, v{AW+1}
        s_mov_b32 s4, {GB}
        buffer_store_dwordx2 v[4:5], v7, {ws}, s4 offen sc1
        """)
        wave_top2_u32(A, 6, 7, 6, 7)
        A(f"""
        s_lshl_b32 s4, s71, 4
        s_add_u32 s4, s4, {RC}
        v_mov_b32 v8, s6
        v_mov_b32 v9, s{sTAG}
        v_mov_b32 v10, s7
        v_mov_b32 v11, s{sTAG}
        s_mov_b64 exec, 1
        buffer_store_dwordx4 v[8:11], off, {ws}, s4 sc1
        s_mov_b64 exec, -1
        s_mov_b32 s61, {OOB}
        """)
        sp(1, "astore")
        cs("a stores")
        A("K2_p1done:")
        presets()
        pflag(61)
        scratch_addrs(AS, 8192)
        sp(1, "aflag")
        cs("flag")

    def ldK(p):
        return [f"buffer_load_dwordx4 {vr(KP[p%3]+6*i,4)}, v{KA}, {ws}, s{sT[2*p]} offen{off(256*i)} sc1" for i in range(2)]

    def ldV(j):
        return ["s_mov_b64 exec, s[62:63]"] + \
            [f"buffer_load_dwordx4 {vr(VV[j%NB]+4*i,4)}, v{(VA, VA2)[j%2]}, {ws}, s{sT[(j & ~1)+i]} offen sc1" for i in range(2)] + \
            ["s_mov_b64 exec, -1"]

    def ldKE(g):
        return [f"buffer_load_dwordx4 {vr(KE+4*g,4)}, v{KEA}, {ws}, s{sT[4*g]} offen sc1"]

    QT = 32

    def ldQ(rp):
        return [f"buffer_load_dwordx4 {vr(QT+8*rp+4*i,4)}, v{KA}, {ws}, s{56+rp} offen{off(256*i)} sc1" for i in range(2)]

    def items(j):
        return ([ldKE(j // 4)] if j % 4 == 0 else []) + ([[l] for l in ldK(j // 2)] if j % 2 == 0 else []) + [ldV(j)]

    def kmov(kt):
        b = KP[(kt // 2) % 3]
        return f"v_mov_b64 {vr(b+4,2)}, {vr(b+8 if kt % 2 else b,2)}"

    def m2b(kt, c):
        u = kt % 4
        return (f"v_mfma_f32_32x32x4_2b_bf16 {vr(S[c],32)}, {vr(KE+4*(kt//4)+2*(u%2),2)}, {vr(QE+2*c,2)}, 0"
                f" cbsz:1 abid:{u//2}")

    def mm(kt, c, b):
        d = vr(S[c] + 16 * b, 16)
        return mfma(d, vr(KP[(kt // 2) % 3] + (2 if kt % 2 else 4), 4), vr(QM + 4 * (c + 2 * b), 4), d)

    def sm(kt, c, b, i):
        return (f"v_smfmac_f32_32x32x32_bf16 {vr(O[c+2*b],16)}, {vr(VV[kt%NB]+4*i,4)}, "
                f"{vr(S[c]+16*b+8*i,8)}, v{IDX}")

    def moe_dma(n):
        if n < 12:
            return [f"s_add_u32 m0, s42, {1024*n}", f"s_add_u32 s54, s54, s55",
                    f"buffer_load_dwordx4 v{GUA}, s[{sG}:{sG+3}], s54 offen{OPT.get('gunt', '')} lds"]
        n -= 12
        pre = [f"s_add_u32 m0, s9, {4096*(n//4)}", f"s_add_u32 s67, s8, {4096*(n//4)}"]
        return pre + [f"buffer_load_dwordx4 v{L16}, s[{sD}:{sD+3}], s67 offen{off(1024*(n%4))}{OPT.get('dnnt', '')} lds"]

    def xsel_dma(k):
        return [f"s_add_u32 m0, s42, {12288+1024*k}", "s_nop 0",
                f"buffer_load_dwordx4 v{L16}, s[{sX}:{sX+3}], s{10+k} offen lds"]

    def owrite(t):
        return [f"ds_write_b128 v{SW}, {vr(O[t],4)}{off(2048*t)}",
                f"ds_write_b128 v{SW}, {vr(O[t]+4,4)}{off(2048*t+1024)}",
                f"ds_write_b64 v{SW}, {vr(O[t]+8,2)}{off((6144, 6152, 7168)[t])}"]

    def scratch_addrs(base, stride):
        A(f"s_mul_i32 s4, s40, {stride}")
        A(f"s_add_u32 s4, s4, {base}")
        A(f"v_add_u32 v{SW}, s4, v{L16}")
        for t in range(3):
            A(f"s_xor_b32 s4, s40, {t ^ 3}")
            A(f"s_mul_i32 s4, s4, {stride}")
            A(f"s_add_u32 s4, s4, {base}")
            A(f"v_add_u32 v{RD+t}, s4, v{L16}")
        A(f"""
        v_bfe_u32 v{PM}, v{LANE}, 4, 1
        v_lshlrev_b32 v{PM}, 14, v{PM}
        v_lshrrev_b32 v{PE}, 5, v{LANE}
        v_lshl_add_u32 v{PM}, v{PE}, 8, v{PM}
        v_and_b32 v{PE}, 0xff, v{L16}
        v_add_u32 v{PM}, v{PM}, v{PE}
        v_and_b32 v{PE}, 31, v{LANE}
        v_lshlrev_b32 v{PE}, 2, v{PE}
        s_lshl_b32 s4, s39, 6
        s_lshl_b32 s5, s37, 2
        s_add_u32 s4, s4, s5
        s_add_u32 s4, s4, s40
        s_lshl_b32 s5, s4, 1
        s_and_b32 s6, s40, 1
        s_sub_u32 s5, s5, s6
        s_lshl_b32 s5, s5, 13
        s_lshl_b32 s6, s43, 9
        s_add_u32 s5, s5, s6
        s_add_u32 s65, s5, {OM}
        s_lshl_b32 s4, s4, 4
        s_add_u32 s4, s4, s43
        s_lshl_b32 s4, s4, 7
        s_add_u32 s66, s4, {OE}
        s_lshl_b32 s4, s39, 4
        s_add_u32 s4, s4, s37
        s_lshl_b32 s4, s4, 11
        s_lshl_b32 s5, s40, 6
        s_add_u32 s4, s4, s5
        s_lshl_b32 s5, s43, 2
        s_add_u32 s4, s4, s5
        s_add_u32 s61, s4, {FO}
        """)
        if FOM:
            A(f"""
            s_sub_u32 s4, s66, {OE}
            {"" if FOM == 2 else "s_lshr_b32 s4, s4, 11"}
            {"" if FOM == 2 else "s_lshl_b32 s4, s4, 7"}
            {"" if FOM == 2 else "s_add_u32 s4, s4, s5"}
            s_add_u32 s61, s4, {FO}
            """)
        A(f"""
        v_mov_b32 v{CA}, {CNT + (0 if base == AS else 12)}
        v_mov_b32 v{ONE}, 1
        """)

    def attention(old):
        pend = []

        def issue(lines, tag):
            for l in lines:
                if l.startswith("buffer_"):
                    pend.append(tag)
            return lines

        def wait_for(tag):
            last = max(i for i, t in enumerate(pend) if t == tag)
            n = len(pend) - 1 - last
            del pend[:last + 1]
            return f"s_waitcnt vmcnt({n})"

        if old: A("s_barrier")
        sp(old, "polled")
        if old: cs("polled")
        pro = issue([f"buffer_load_dwordx4 {vr(QT+16,4)}, v{QEA}, {ws}, s60 offen sc1"] + ldKE(0), "qe") + \
            issue(ldQ(0) + ldQ(1) + ldK(0), "q0") + issue(ldV(0), "g0") + issue(ldV(1), "g1")
        for l in pro:
            A(l)
            if not old and l.startswith("buffer_") and OPT.get("ypace", 0): A(f"s_sleep {OPT.get('ypace', 1)}")
        if old:
            A(f"s_mov_b32 s4, {RC}")
            for l in issue([f"buffer_load_dwordx4 {vr(CAND,4)}, v{L16}, {ws}, s4 offen sc1"], "cand"): A(l)
            A("s_barrier")
            cs("issued")
            csflush(0, 12)
        A(f"""
        v_mov_b32 v{IDX}, 0xdddddddd
        s_bitcmp0_b32 s36, 0
        s_cselect_b32 s4, -1, 0
        s_cselect_b32 s5, 0, -1
        s_bitcmp1_b32 s40, 0
        """)
        l = lab("K2_qsel")
        w0, w1 = wait_for("qe"), wait_for("q0")
        A(f"s_cbranch_scc1 {l}")
        for b0 in (1, 0):
            if b0 == 0: A(f"{l}:")
            A(w0)
            for c in range(2):
                A(f"v_and_b32 v{QE+2*c}, s4, v{QT+16+2*(c^b0)}")
                A(f"v_and_b32 v{QE+2*c+1}, s5, v{QT+17+2*(c^b0)}")
            A(m2b(0, 0))
            A(w1)
            for t in (0, 2, 1, 3):
                for ab in range(2):
                    A(f"v_mov_b64 {vr(QM+4*t+2*ab,2)}, {vr(QT+8*(t>>1)+4*ab+2*((t&1)^b0),2)}")
            if b0 == 1: A(f"s_branch {l}_d")
        A(f"{l}_d:")
        A(kmov(0))
        A("s_nop 7")
        A(mm(0, 0, 0))
        A(mm(0, 0, 1))
        A("s_nop 10")
        A(f"s_setprio {1 if old else 0}")
        sp(old, "first")
        XS = OPT.get("xsel", 9)
        TP = OPT.get("top2", 12)
        gsched = {}
        nx = 2
        for kt in range(16):
            for _ in range(2 if kt in OPT.get("ramp" if old else "yramp", (1, 3)) else 1):
                if nx <= min(15, kt + NB - 1):
                    gsched.setdefault(kt, []).append(nx); nx += 1
        dsched = {}
        d0, d1 = OPT.get("dma", (3, 29))
        order = range(21)
        for i, x in enumerate(order): dsched.setdefault(d0 + i * (d1 - d0) // 21, []).append(x)
        assert max(dsched) < 32
        touch = {}
        for kt in range(16):
            for c in range(2):
                n = 2 * kt + c
                cur = S[c]
                nxt = (kt, 1) if c == 0 else (kt + 1, 0)
                prv = (kt - 1, 1) if c == 0 else (kt, 0)
                has_next = n < 31
                ins = {}
                def at(p, l): ins.setdefault(p, []).extend(l if isinstance(l, list) else [l])
                if n > 0:
                    at(1, sm(prv[0], prv[1], 1, 1))
                L2 = OPT.get("lchain") == 2
                if c == 0:
                    if L2: at(1, "s_memtime s[82:83]")
                    todo = [(it, f"g{j}") for j in gsched.get(kt, []) for it in items(j)]
                    if old and kt == XS: todo += [(xsel_dma(0), "st1"), (xsel_dma(1), "st1")]
                    slots = [(0, 2), (0, 14), (0, 26), (1, 8), (1, 22), (1, 30)]
                    place = {sl: td for sl, td in zip(slots, todo)}
                    assert len(todo) <= len(slots)
                if c == 0 and L2: at(1, "s_memtime s[84:85]")
                if c == 1 and L2: at(4, "s_memtime s[86:87]")
                if c == 1 and has_next:
                    at(4, wait_for(f"g{kt+1}"))
                if c == 1 and L2:
                    at(4, "s_memtime s[88:89]")
                    at(30, ["s_waitcnt lgkmcnt(0)"] + sum([[f"s_sub_u32 s{82+2*q}, s{82+2*q}, s80", f"v_writelane_b32 v{PA}, s{82+2*q}, {4*kt+q}"] for q in range(4)], []))
                ev = [(p, td) for (cc, p), td in place.items() if cc == c]
                if old and n in touch: ev.append((19, (touch[n], "moe")))
                if old and not OPT.get("nomoe"):
                    for i, x in enumerate(dsched.get(n, [])): ev.append((6 + 10 * i, (moe_dma(x), "st1" if x < 12 else "moe")))
                if n == 0: ev.append((12, None))
                for p, td in sorted(ev, key=lambda e: e[0]):
                    at(p, wait_for("g0") if td is None else issue(*td))
                if c == 1 and has_next: at(10, kmov(kt + 1))
                if has_next:
                    at(4, m2b(*nxt))
                    at(20, mm(nxt[0], nxt[1], 0))
                    at(28, mm(nxt[0], nxt[1], 1))
                at(12, sm(kt, c, 0, 0))
                at(17, sm(kt, c, 0, 1))
                at(25, sm(kt, c, 1, 0))
                if OPT.get("lchain") == 1:
                    if c == 0: at(0, "s_memtime s[88:89]")
                    else: at(0, ["s_waitcnt lgkmcnt(0)", "s_sub_u32 s88, s88, s80", f"v_writelane_b32 v{PA}, s88, {kt}"])
                if old and n >= 27:
                    G, XF, WFs = 202, 148, [218, 222, 164, 168]
                    if n == 27:
                        for i, l in enumerate([f"v_lshrrev_b32 v{M1}, 4, v{LANE}", f"v_bfe_u32 v{M2}, v{LANE}, 2, 2",
                                               f"v_lshl_add_u32 v{M5}, v{M1}, 3, v{M2}", f"v_lshlrev_b32 v{M4}, 3, v{LANE}",
                                               f"v_lshl_add_u32 v{M0}, v{M5}, 7, s42", f"v_and_b32 v{M2}, 1, v{M2}",
                                               f"v_and_or_b32 v{M0}, v{M4}, 24, v{M0}", f"v_lshl_add_u32 v{M3}, v{M1}, 4, s42",
                                               f"v_lshl_add_u32 v{M3}, v{M2}, 10, v{M3}", f"v_mov_b32 v251, v{TAGV}",
                                               f"v_mov_b32 v253, v{TAGV}"]): at(8 + 2 * i, l)
                    elif n < 31:
                        assert "st1" not in pend
                        u = n - 28
                        at(2, f"ds_read_b128 {vr(XF,4)}, v{M3} offset:{12288+64*u}")
                        for t in range(4):
                            for a in range(2):
                                at(3 + 2 * t + a, f"ds_read_b64_tr_b16 {vr(WFs[t]+2*a,2)}, v{M0}{off(4096*u+512*a+32*t)}")
                            at((15, 19, 23, 30)[t], ([f"s_waitcnt lgkmcnt({(6, 0)[t]})"] if t < 2 else []) +
                               [mf16(vr(G + 4 * t, 4), vr(XF, 4), vr(WFs[t], 4), "0" if u == 0 else vr(G + 4 * t, 4))])
                    else:
                        at(7, ["s_mov_b32 s10, 0", "s_mov_b32 s11, -1", "s_add_u32 s4, s59, 6144",
                               f"v_cndmask_b32 v250, v{G}, v{G+4}, s[10:11]",
                               f"buffer_store_dwordx2 v[250:251], v{M4}, {ws}, s59 offen sc1"])
                        at(9, [f"v_cndmask_b32 v252, v{G+8}, v{G+12}, s[10:11]",
                               f"buffer_store_dwordx2 v[252:253], v{M4}, {ws}, s4 offen sc1"])
                if n == 31:
                    for t, p in ((0, 3), (2, 14), (1, 29)):
                        for i, l in enumerate(owrite(t)): at(p + i, l)
                if n == TP and old:
                    assert "cand" not in pend
                    B = Asm()
                    at(0, [f"v_cmp_ne_u32 vcc, s{sTAG}, v{CAND+1}", f"v_cmp_ne_u32 s[4:5], s{sTAG}, v{CAND+3}",
                           "s_or_b64 vcc, vcc, s[4:5]", "s_cbranch_scc1 K2_candspin", "K2_candok:"])
                    wave_max_u32(B, CAND, CAND + 1, 68)
                    B(f"s_nop 1\nv_cmp_ne_u32 vcc, s68, v{CAND}\ns_nop 1\nv_cndmask_b32 v{CAND}, v{CAND+2}, v{CAND}, vcc")
                    wave_max_u32(B, CAND, CAND + 1, 69)
                    B(f"""
                    s_nop 0
                    s_not_b32 s70, s68
                    s_not_b32 s71, s69
                    s_and_b32 s70, s70, 0x7ff
                    s_and_b32 s71, s71, 0x7ff
                    s_mul_i32 s10, s70, 1152
                    s_mul_i32 s11, s71, 1152
                    s_add_u32 s10, s10, s58
                    s_add_u32 s11, s11, s58
                    """)
                    p = -1
                    tail = []
                    for l in B.lines:
                        l = l.strip()
                        if l == "s_nop 1" and p + 2 <= 31:
                            p += 2
                        elif p + 2 > 31 or tail:
                            tail.append(l)
                        else:
                            at(p, l)
                    at(31, tail)
                for i in range(32):
                    A(f"v_exp_f32 v{cur+i}, v{cur+i}")
                    for l in ins.get(i, []):
                        if OPT.get("noload") and kt >= 2 and not l.startswith("v_"): continue
                        A(l)
        A("s_nop 1")
        A(sm(15, 1, 1, 1))
        sp(old, "loopend")
        if OPT.get("lchain"):
            A(f"""
            s_lshl_b32 s4, s2, 2
            s_add_u32 s4, s4, s40
            s_lshl_b32 s4, s4, 8
            s_add_u32 s4, s4, {0xD00000 + 0x40000*(0 if old else 1)}
            v_lshlrev_b32 v0, 2, v{LANE}
            buffer_store_dword v{PA}, v0, {ws}, s4 offen
            """)

    p1_compute()
    attention(True)
    if OPT.get("quit"):
        ST.flush(v=20)
        A("s_endpgm")
    if OPT.get("chain"): A("s_mov_b32 s96, 0")
    cs("loop end")
    A.c("---- MoE stage 2: fetch three partials per wave")
    PL = 184

    def pload():
        for q in range(3):
            A(f"buffer_load_dwordx2 {vr(PL+2*q,2)}, v{M4}, {ws}, s67 offen{off(512*q)} sc1")
    A(f"""
    s_and_b32 s4, s40, 1
    s_lshl_b32 s4, s4, 1
    s_lshr_b32 s5, s40, 1
    s_add_u32 s4, s4, s5
    s_lshl_b32 s5, s41, 2
    s_add_u32 s4, s4, s5
    s_mul_i32 s4, s4, 1536
    s_add_u32 s67, s4, {PG}
    s_cmp_eq_u32 s64, 0
    s_cbranch_scc1 K2_fin0
    """)
    pload()
    A("s_branch K2_fin0")

    A("K2_young2:")
    scratch_addrs(BS, 8192)
    sl0, sl1 = OPT.get("psleep", (10, 0))
    A(f"""
    s_barrier
    s_cmp_lg_u32 s40, 0
    s_cbranch_scc1 K2_p1seen
    s_mov_b32 s5, {SPIN}
    {f"s_sleep {sl0}" if sl0 else ""}
    K2_p1poll:
    buffer_load_dword v12, v{PA}, {ws}, 0 offen sc1
    buffer_load_dword v13, v{PA-2}, {ws}, 0 offen sc1
    s_sub_u32 s5, s5, 1
    s_cbranch_scc1 K2_p1seen
    s_waitcnt vmcnt(0)
    v_cmp_ne_u32 vcc, s{sTAG}, v12
    v_cmp_ne_u32 s[6:7], s{sTAG}, v13
    s_or_b64 vcc, vcc, s[6:7]
    s_cbranch_scc0 K2_p1seen
    {f"s_sleep {sl1}" if sl1 else ""}
    s_branch K2_p1poll
    K2_p1seen:
    s_barrier
    s_barrier
    """)
    attention(False)
    A("K2_fin0:")
    o = O[3]
    A.c("LDS executes a wave's operations in order: the count is bumped after this wave's writes, and reads issued")
    A.c("behind a count of 4 see every partial")
    A(f"""
    s_mov_b64 exec, 1
    ds_add_u32 v{CA}, v{ONE}
    s_mov_b64 exec, -1
    K2_fin1:
    ds_read_b32 v0, v{CA}
    """)
    for t in range(3):
        A(f"ds_read_b128 {vr(O[t],4)}, v{RD+t}{off(2048*t)}")
        A(f"ds_read_b128 {vr(O[t]+4,4)}, v{RD+t}{off(2048*t+1024)}")
        A(f"ds_read_b64 {vr(O[t]+8,2)}, v{RD+t}{off((6144, 6152, 7168)[t])}")
    A("""
    s_waitcnt lgkmcnt(9)
    v_readfirstlane_b32 s4, v0
    s_cmp_lt_u32 s4, 4
    s_cbranch_scc1 K2_fin1
    """)
    A(f"s_mov_b32 s4, {f32bits(2.0**-30)}")
    A(f"s_mov_b32 s5, {f32bits(2.0**60)}")
    for t in range(3):
        A(f"s_waitcnt lgkmcnt({3*(2-t)})")
        for i in range(5):
            A(f"v_pk_add_f32 {vr(o+2*i,2)}, {vr(o+2*i,2)}, {vr(O[t]+2*i,2)}")
    A.c("safety check of the unshifted softmax: denominator in [2^-30, 2^60], numerators finite; else redo with the true max")
    A(f"""
    v_cmp_le_f32 s[6:7], s4, v{o+9}
    v_cmp_ge_f32 s[8:9], s5, v{o+9}
    v_max3_f32 v0, abs(v{o}), abs(v{o+1}), abs(v{o+2})
    v_max3_f32 v1, abs(v{o+3}), abs(v{o+4}), abs(v{o+5})
    v_max3_f32 v2, abs(v{o+6}), abs(v{o+7}), abs(v{o+8})
    v_max3_f32 v0, v0, v1, v2
    s_and_b64 s[6:7], s[6:7], s[8:9]
    v_cmp_gt_f32 vcc, {f32bits(2.0**120)}, v0
    s_and_b64 vcc, vcc, s[6:7]
    s_cmp_eq_u64 vcc, exec
    {"s_nop 0" if OPT.get("noload") else "s_cbranch_scc0 K2_slow"}
    """)
    A("K2_fin:")
    A(f"""
    v_rcp_f32 v0, v{o+9}
    s_cmp_eq_u32 s39, 0
    v_mul_f32 v2, v{o+8}, v0
    v_mul_f32 v3, v{o+8}, v0
    """)
    for i in range(4):
        A(f"v_pk_mul_f32 {vr(o+2*i,2)}, {vr(o+2*i,2)}, v[0:1] op_sel_hi:[1,0]")
    A("v_permlane32_swap_b32 v2, v3")
    for i in range(4):
        A(f"v_cvt_pk_bf16_f32 v{4+i}, v{o+2*i}, v{o+2*i+1}")
    A(f"""
    v_cvt_pk_bf16_f32 v2, v2, v3
    buffer_store_dwordx4 v[4:7], v{PM}, {ws}, s65 offen sc1
    buffer_store_dword v2, v{PE}, {ws}, s66 offen sc1
    s_cbranch_scc1 K2_old2
    v_lshlrev_b32 v8, {FOS}, v{LANE}
    s_mov_b64 exec, 1
    ds_add_u32 v{CA}, v{ONE} offset:4
    s_mov_b64 exec, {FOX}
    s_waitcnt vmcnt(0)
    buffer_store_dword v{TAGV}, v8, {ws}, s61 offen sc1
    """)
    if gen1.DIAG:
        sp(0, "flag"); A("s_waitcnt vmcnt(0)")
    ST.flush(v=20)
    A("K2_end:")
    A("s_endpgm")

    A("K2_old2:")
    cs("fin")
    srd(A, sWO, 16, 576 * 1152)
    srd(A, sO, 72, XB)
    A(f"""
    v_lshlrev_b32 v8, 2, v{LANE}
    s_waitcnt vmcnt(2)
    s_cmp_eq_u32 s64, 0
    s_cbranch_scc1 K2_nop
    s_mov_b32 s5, {SPIN}
    K2_pchk:
    v_cmp_ne_u32 vcc, s{sTAG}, v{PL+1}
    v_cmp_ne_u32 s[8:9], s{sTAG}, v{PL+3}
    v_cmp_ne_u32 s[10:11], s{sTAG}, v{PL+5}
    s_or_b64 s[8:9], s[8:9], vcc
    s_or_b64 s[8:9], s[8:9], s[10:11]
    s_cbranch_scc0 K2_pok
    s_sleep 4
    """)
    pload()
    A(f"""
    s_sub_u32 s5, s5, 1
    s_waitcnt vmcnt(0)
    s_cbranch_scc0 K2_pchk
    K2_pok:
    s_lshl_b32 s4, s40, 8
    s_add_u32 s4, s4, {HP}
    v_add_f32 v10, v{PL}, v{PL+2}
    v_add_u32 v9, s4, v8
    v_add_f32 v10, v10, v{PL+4}
    ds_write_b32 v9, v10
    s_mul_i32 s6, s40, 288
    s_and_b32 s6, s6, 0xffc0
    s_add_u32 s5, s6, {DN}
    v_mul_u32_u24 v20, 1152, v{M5}
    v_and_b32 v21, 24, v{M4}
    v_add3_u32 v20, v20, v21, s5
    s_lshl_b32 s4, s40, 7
    s_add_u32 s4, s4, {HS}
    v_lshl_add_u32 v21, v{M1}, 4, s4
    v_lshl_add_u32 v21, v{M2}, 6, v21
    K2_nop:
    """)
    arrive(1)
    cs("partials")
    gwait(1)
    cs("gwait1")
    A("s_cmp_eq_u32 s64, 0")
    A("s_cbranch_scc1 K2_nost2")
    A.c("---- MoE: h = silu(gate) * up, then this wave's w_down column tiles")
    A(f"""
    v_add_u32 v9, {HP}, v8
    ds_read2st64_b32 v[10:11], v9 offset0:0 offset1:1
    ds_read2st64_b32 v[12:13], v9 offset0:2 offset1:3
    """)
    for t in range(5):
        for a in range(2):
            A(f"ds_read_b64_tr_b16 {vr(24+4*t+2*a,2)}, v20{off(4608*a+32*t)}")
    A(f"""
    s_lshl_b32 s4, s40, 7
    s_add_u32 s4, s4, {HS}
    v_and_b32 v16, 15, v{LANE}
    v_lshl_add_u32 v14, v16, 1, s4
    v_and_b32 v15, 32, v{LANE}
    v_and_b32 v9, 64, v8
    v_mul_u32_u24 v8, 36, v9
    v_add3_u32 v9, v9, v14, v15
    v_lshl_add_u32 v8, v15, 1, v8
    v_lshl_add_u32 v8, v16, 2, v8
    s_waitcnt lgkmcnt(10)
    v_pk_add_f32 v[10:11], v[10:11], v[12:13]
    v_mul_f32 v12, {0x80000000 | LOG2E}, v10
    v_exp_f32 v12, v12
    v_mul_f32 v10, v10, v11
    v_add_f32 v12, 1.0, v12
    v_rcp_f32 v12, v12
    s_mul_i32 s4, s41, 4608
    v_mul_f32 v10, v10, v12
    v_cvt_pk_bf16_f32 v10, v10, v10
    ds_write_b16 v9, v10
    ds_read_b128 v[12:15], v21
    """)
    for t in range(5, 10):
        for a in range(2):
            A(f"ds_read_b64_tr_b16 {vr(24+4*t+2*a,2)}, v20{off(4608*a+32*t)}")
    A(f"""
    s_lshl_b32 s5, s6, 1
    s_add_u32 s4, s4, s5
    s_add_u32 s5, s4, {YP}
    s_mov_b32 s10, 0
    s_mov_b32 s11, -1
    s_waitcnt lgkmcnt(10)
    """)
    Y = [128 + 4 * t for t in range(10)]
    for t in range(10):
        if t == 5: A("s_waitcnt lgkmcnt(0)")
        A(mf16(vr(Y[t], 4), "v[12:15]", vr(24 + 4 * t, 4), "0"))
    A("s_nop 1")
    for t in range(0, 10, 2):
        A(f"v_cndmask_b32 v{Y[t]}, v{Y[t]}, v{Y[t+1]}, s[10:11]")
        A(f"buffer_store_dword v{Y[t]}, v8, {ws}, s5 offen{off(64*t)} sc1")
    A("K2_nost2:")
    cs("down")
    ACC, BX, OF, WF, XR, GV = 0, 20, 40, 76, 216, 226
    B1, B2, E1, E2, OEA, FA, SG1, SG2 = 228, 229, 230, 231, 232, 233, 234, 235
    OUT, XA, XA2, TOK, B3, B4 = 240, 243, 244, 252, 238, 253
    T0 = 247
    YB = STG + 4 * 3072

    Y0 = WF
    nosel = OPT.get("nomoe2") or OPT.get("nosel")

    def yflag_load():
        A(f"buffer_load_dwordx4 {vr(Y0+96,4)}, v{T0+2}, {ws}, s65 offen sc1")

    def y_first():
        A(f"""
        s_lshr_b32 s6, s54, 2
        s_lshr_b32 s4, s70, 6
        s_cmp_eq_u32 s4, {"-1" if nosel else "s6"}
        s_cselect_b32 s64, 1, 0
        s_lshr_b32 s4, s71, 6
        s_cmp_eq_u32 s4, {"-1" if nosel else "s6"}
        s_cselect_b32 s4, 2, 0
        s_or_b32 s64, s64, s4
        s_cbranch_scc0 K2_noy0
        v_min_u32 v{T0+2}, 35, v{LANE}
        v_lshlrev_b32 v{T0+2}, 7, v{T0+2}
        s_mul_i32 s65, s40, {36*128}
        s_add_u32 s65, s65, {FY}
        """)
        yflag_load()
        A("K2_noy0:")

    def y_sum():
        A(f"""
        s_cmp_eq_u32 s64, 0
        s_cbranch_scc1 K2_noy1
        s_mov_b32 s5, {SPIN}
        K2_ypoll:
        v_cmp_ne_u32 vcc, s{sTAG}, v{Y0+96}
        v_cmp_ne_u32 s[8:9], s{sTAG}, v{Y0+97}
        v_cmp_ne_u32 s[10:11], s{sTAG}, v{Y0+98}
        s_or_b64 s[8:9], s[8:9], vcc
        v_cmp_ne_u32 vcc, s{sTAG}, v{Y0+99}
        s_or_b64 s[8:9], s[8:9], s[10:11]
        s_or_b64 s[8:9], s[8:9], vcc
        s_cbranch_scc0 K2_ypolled
        """)
        yflag_load()
        A(f"""
        s_sub_u32 s5, s5, 1
        s_waitcnt vmcnt(0)
        s_cbranch_scc0 K2_ypoll
        K2_ypolled:
        v_min_u32 v{T0}, 53, v{LANE}
        v_mul_u32_u24 v{T0+1}, 3641, v{T0}
        v_lshrrev_b32 v{T0+1}, 16, v{T0+1}
        v_mul_u32_u24 v{T0+1}, {4608-288}, v{T0+1}
        v_lshl_add_u32 v{T0}, v{T0}, 4, v{T0+1}
        s_lshl_b32 s6, s40, 10
        s_add_u32 s6, s6, {YB}
        v_add_u32 v{T0+1}, s6, v{L16}
        """)
        for sel in range(2):
            A(f"""
            s_bitcmp1_b32 s64, {sel}
            s_cbranch_scc0 K2_noyl{sel}
            s_lshl_b32 s6, s55, 1
            s_mul_i32 s7, s40, {36*4608}
            s_add_u32 s6, s6, s7
            s_add_u32 s6, s6, {YP + 2304*sel}
            """)
            for u in range(12):
                A(f"buffer_load_dwordx4 {vr(Y0+48*sel+4*u,4)}, v{T0}, {ws}, s6 offen sc1")
                A(f"s_add_u32 s6, s6, {3*4608}")
            A(f"K2_noyl{sel}:")
        A("K2_noy1:")

    def y_sum2(later):
        A(f"""
        s_cmp_eq_u32 s64, 0
        s_cbranch_scc1 K2_noy2
        s_waitcnt vmcnt({later})
        """)
        for sel in range(2):
            A(f"s_bitcmp1_b32 s64, {sel}")
            A(f"s_cbranch_scc0 K2_noys{sel}")
            y = Y0 + 48 * sel
            for u in range(1, 12):
                for hf in range(2):
                    A(f"v_pk_add_f32 {vr(y+2*hf,2)}, {vr(y+2*hf,2)}, {vr(y+4*u+2*hf,2)}")
            A(f"ds_write_b128 v{T0+1}, {vr(y,4)}{off(4096*sel)}")
            A(f"K2_noys{sel}:")
        arrive(5)
        A("K2_noy2:")

    if OPT.get("p3map", 1):
        A.c("projection tiles are dealt so that one die works on the same tokens (speed only)")
        A("s_mov_b32 s4, s37\ns_mov_b32 s37, s43\ns_mov_b32 s43, s4")
    A.c("s54 = 16-token tile of this wave, s55 = byte offset of the channel block")
    A(f"""
    s_lshl_b32 s54, s37, 3
    s_and_b32 s4, s43, 1
    s_lshl_b32 s4, s4, 2
    s_add_u32 s54, s54, s4
    s_add_u32 s54, s54, s40
    s_lshr_b32 s55, s43, 1
    s_mul_i32 s55, s55, 144
    v_mul_u32_u24 v0, 6554, v{LANE}
    v_lshrrev_b32 v0, 16, v0
    v_mul_u32_u24 v1, {1152-160}, v0
    s_mul_i32 s4, s40, {6*1152}
    s_add_u32 s4, s4, s55
    v_add3_u32 v{XA}, v1, v{L16}, s4
    s_mul_i32 s42, s40, 960
    v_and_b32 v3, 15, v{LANE}
    v_lshrrev_b32 v4, 4, v{LANE}
    s_lshl_b32 s8, s54, 4
    v_add_u32 v{TOK}, s8, v3
    v_and_b32 v6, 1, v4
    v_lshlrev_b32 v{XA2}, 3, v{TOK}
    s_mov_b32 s5, {GB}
    buffer_load_dwordx2 {vr(GV,2)}, v{XA2}, {ws}, s5 offen sc1
    s_mul_i32 s5, s40, 3072
    s_add_u32 s97, s5, {STG}
    s_mul_i32 s8, s8, 1152
    s_add_u32 s8, s8, s55
    """)
    for n in range(3):
        A(f"""
        v_add_u32 v5, {64*n}, v{LANE}
        v_mul_u32_u24 v7, 7282, v5
        v_lshrrev_b32 v7, 16, v7
        v_mul_u32_u24 v7, {1152-144}, v7
        v_lshl_add_u32 v7, v5, 4, v7
        v_add_u32 v{OUT+n}, s8, v7
        """)
    A(f"""
    v_cmp_gt_u32 vcc, 16, v{LANE}
    v_bfrev_b32 v5, -2
    s_lshr_b32 s6, s2, 3
    v_cndmask_b32 v{OUT+2}, v5, v{OUT+2}, vcc
    s_and_b32 s6, s6, 3
    s_mul_i32 s66, s6, 6
    s_mov_b32 s62, 0xdff7fdff
    s_mov_b32 s63, 0x7fdff7f
    """)
    A(f"""
    v_lshlrev_b32 v9, {FOS}, v{LANE}
    s_waitcnt vmcnt(1)
    s_mov_b64 exec, {FOX}
    buffer_store_dword v{TAGV}, v9, {ws}, s61 offen sc1
    s_lshl_b32 s4, s41, 7
    s_lshl_b32 s5, s40, 2
    s_add_u32 s4, s4, s5
    s_add_u32 s4, s4, {FY}
    s_cmp_eq_u32 s64, 0
    s_cselect_b32 s4, {OOB}, s4
    s_mov_b64 exec, 1
    buffer_store_dword v{TAGV}, off, {ws}, s4 sc1
    s_mov_b64 exec, -1
    """)
    cs("drain")

    def wodma(cnt):
        l = lab("K2_wodma")
        A(f"""
        s_mov_b32 s7, {cnt}
        s_mov_b64 exec, s[62:63]
        {l}:
        s_mul_i32 s4, s66, 3840
        s_add_u32 m0, s4, s42
        s_mul_i32 s67, s66, {24*1152}
        buffer_load_dwordx4 v{XA}, s[{sWO}:{sWO+3}], s67 offen lds
        s_add_u32 s66, s66, 1
        s_cmp_eq_u32 s66, 24
        s_cselect_b32 s66, 0, s66
        s_sub_u32 s7, s7, 1
        s_cmp_lg_u32 s7, 0
        s_waitcnt vmcnt({OPT.get('wopace', 3)})
        s_cbranch_scc1 {l}
        s_mov_b64 exec, -1
        """)

    def poll():
        l = lab("K2_poll")
        A(f"""
        s_add_u32 s6, s98, 4096
        s_mov_b32 s5, {SPIN}
        {l}:
        buffer_load_dword v{T0}, v{FA}, {ws}, s100 offen sc1
        s_sub_u32 s5, s5, 1
        s_cbranch_scc1 {l}_d
        s_waitcnt vmcnt(0)
        v_cmp_ne_u32 vcc, s{sTAG}, v{T0}
        s_cbranch_vccnz {l}
        {l}_d:
        """)

    def oloads():
        for ks in range(8):
            A(f"buffer_load_dwordx4 {vr(OF+4*ks,4)}, v{L16}, {ws}, s{98 if ks < 4 else 6} offen{off(1024*(ks%4))} sc1")
        for c in range(4):
            A(f"buffer_load_dword v{OF+32+c}, v{OEA}, {ws}, s99 offen{off(128*c)} sc1")

    wodma(4)
    A(f"""
    v_mul_u32_u24 v5, 144, v3
    v_add_u32 v5, s97, v5
    v_lshl_add_u32 v{SG1}, v4, 3, v5
    v_lshl_add_u32 v{SG2}, v6, 3, v5
    v_lshlrev_b32 v5, 2, v3
    v_lshl_add_u32 v{OEA}, v4, 9, v5
    v_lshlrev_b32 v{FA}, {7 if FOM == 2 else 2}, v3
    v_bfe_u32 v7, v{LANE}, 2, 2
    v_lshrrev_b32 v5, 1, v4
    v_mul_u32_u24 v5, 36, v5
    v_lshl_add_u32 v5, v6, 2, v5
    v_add_u32 v5, v5, v7
    v_mul_u32_u24 v5, 160, v5
    v_and_b32 v8, 3, v{LANE}
    v_and_b32 v9, 1, v{LANE}
    v_lshl_add_u32 v{B1}, v8, 3, v5
    v_lshl_add_u32 v{B2}, v9, 3, v5
    v_add_u32 v{B3}, {288*160}, v{B1}
    v_add_u32 v{B4}, {288*160}, v{B2}
    v_lshrrev_b32 v5, 1, v7
    v_lshl_add_u32 v5, v4, 2, v5
    v_mul_u32_u24 v5, 36, v5
    v_and_b32 v7, 1, v7
    v_add3_u32 v5, v5, v7, 16
    v_mul_u32_u24 v5, 160, v5
    v_lshl_add_u32 v{E1}, v8, 3, v5
    v_lshl_add_u32 v{E2}, v9, 3, v5
    s_lshl_b32 s4, s54, 13
    s_add_u32 s98, s4, {OM}
    s_lshr_b32 s4, s54, 2
    s_lshl_b32 s4, s4, 1
    s_and_b32 s5, s40, 1
    s_add_u32 s4, s4, s5
    s_lshl_b32 s4, s4, 11
    s_lshr_b32 s5, s40, 1
    s_lshl_b32 s5, s5, 6
    s_add_u32 s4, s4, s5
    s_add_u32 s99, s4, {OE}
    s_lshl_b32 s4, s37, 4
    s_add_u32 s4, s4, s43
    s_lshl_b32 s4, s4, 7
    s_and_b32 s5, s40, 1
    s_lshl_b32 s5, s5, 6
    s_add_u32 s4, s4, s5
    s_add_u32 s100, s4, {FO}
    s_mov_b32 s101, 0
    """)
    if FOM:
        A(f"""
        s_sub_u32 s4, s99, {OE}
        s_lshr_b32 s4, s4, 11
        s_lshl_b32 s4, s4, {7 if FOM == 1 else 11}
        s_add_u32 s100, s4, {FO}
        """)

    assert OPT.get('wopace', 3) <= 4
    for i in range(10):
        A(f"v_mov_b64 {vr(ACC+2*i,2)}, 0")
    wodma(20)
    cs("wo dma")
    y_first()
    poll()
    A("s_waitcnt vmcnt(0)")
    cs("polled")
    arrive(2)
    A(f"""
    s_mov_b32 s5, {SPIN}
    s_mov_b32 s6, {GB}
    K2_gchk:
    v_cmp_ne_u32 vcc, s{sTAG}, v{GV+1}
    s_cbranch_vccz K2_gok
    buffer_load_dwordx2 {vr(GV,2)}, v{XA2}, {ws}, s6 offen sc1
    s_sub_u32 s5, s5, 1
    s_waitcnt vmcnt(0)
    s_cbranch_scc0 K2_gchk
    K2_gok:
    """)
    y_sum()
    A("s_add_u32 s6, s98, 4096")
    oloads()
    gwait(2)
    cs("gwait2")
    for n in range(3):
        A(f"s_add_u32 m0, s97, {1024*n}")
        A("s_nop 0")
        A(f"buffer_load_dwordx4 v{OUT+n}, s[{sX}:{sX+3}], 0 offen lds")
    y_sum2(15)
    cs("yred")

    def wreads(ks):
        f = WF + 20 * (ks % 7)
        r = []
        for T in range(5):
            for a in range(2):
                if ks < 8:
                    b, im = ((B1, B3) if T < 4 else (B2, B4))[ks // 4], (72 * (ks % 4) + 8 * a) * 160
                else:
                    b, im = (E1 if T < 4 else E2), 72 * a * 160
                im += 32 * T
                r.append(f"ds_read_b64_tr_b16 {vr(f+4*T+2*a,2)}, v{b}{off(im)}")
        return r

    A("K2_p3:")
    for ks in range(7):
        for l in wreads(ks): A(l)
    cs("preload")
    A("s_cmp_lg_u32 s101, 0")
    A("s_cbranch_scc1 K2_pass1")
    sp(1, "ready")
    gwait(4, 2)
    sp(1, "window")
    cs("window")
    A("s_branch K2_mms")
    A("K2_pass1:")
    sp(1, "pre1")
    poll()
    if not OPT.get("chain"): sp(1, "fpolled")
    cs("polled")
    oloads()
    A("K2_mms:")
    A("s_waitcnt lgkmcnt(0)")
    for ks in range(9):
        A(f"s_waitcnt vmcnt({11-ks if ks < 8 else 0})" + (" lgkmcnt(0)" if ks == 7 else ""))
        f = WF + 20 * (ks % 7)
        late = wreads(ks + 6) if ks in (1, 2) else []
        for T in range(5):
            A(mf16(vr(ACC + 4 * T, 4), vr(f + 4 * T, 4), vr(OF + 4 * ks, 4), vr(ACC + 4 * T, 4)))
            for l in late[2 * T:2 * T + 2]: A(l)
    cs("mfma")
    A("s_cmp_eq_u32 s101, 0")
    A("s_cbranch_scc1 K2_mid")
    A(f"v_add_u32 v{T0}, s97, v{L16}")
    A("s_nop 1")
    for i in range(10):
        A(f"v_pk_fma_f32 {vr(ACC+2*i,2)}, {vr(ACC+2*i,2)}, {vr(GV,2)}, {vr(BX+2*i,2)}")
        A(f"v_cvt_pk_bf16_f32 v{XR+i}, v{ACC+2*i}, v{ACC+2*i+1}")
        if i % 2: A(f"ds_write_b64 v{SG1 if i < 8 else SG2}, {vr(XR+i-1,2)}{off(16*(i-1))}")
    for n in range(3):
        A(f"ds_read_b128 {vr(OF+4*n,4)}, v{T0}{off(1024*n)}")
    for n in range(3):
        A(f"s_waitcnt lgkmcnt({2-n})")
        A(f"buffer_store_dwordx4 {vr(OF+4*n,4)}, v{OUT+n}, s[{sO}:{sO+3}], 0 offen")
    cs("epilogue")
    if gen1.DIAG: A("s_waitcnt vmcnt(0)")
    cs("drain")
    csflush(1, 80)
    ST.flush(v=80)
    A("s_endpgm")

    A.c("---- between the halves: routed tokens of this wave's tile get sigmoid(r) * y; then b *= 1 - g")
    A("K2_mid:")
    for T in range(5):
        A(f"ds_read_b64 {vr(XR+2*T,2)}, v{SG1 if T < 4 else SG2}{off(32*T)}")
    for b in (B1, B2, B3, B4, E1, E2):
        A(f"v_add_u32 v{b}, {18*160}, v{b}")
    A("s_mov_b32 s5, 0xffff0000")
    A("s_waitcnt lgkmcnt(0)")
    for i in range(10):
        A(f"v_lshlrev_b32 v{BX+2*i}, 16, v{XR+i}")
        A(f"v_and_b32 v{BX+2*i+1}, s5, v{XR+i}")
    YT = OF
    for sel in range(2):
        A(f"""
        s_lshr_b32 s4, s{70+sel}, 4
        s_cmp_lg_u32 s4, {"-1" if OPT.get("nomoe2") or OPT.get("nosel") else "s54"}
        s_cbranch_scc1 K2_nosel{sel}
        """)
        gwait(5)
        if sel == 0:
            A.c("all 144 stage-2 flags were seen, so every workgroup has taken its tag: hand d_debug back as zero")
            A(f"v_mov_b32 v{T0}, 0")
            A(f"buffer_store_dword v{T0}, off, s[{sDBG}:{sDBG+3}], 0 sc1")
        A(f"""
        v_lshlrev_b32 v{T0}, 3, v{LANE}
        v_add_u32 v{T0+1}, {YB + 4096*sel}, v{T0}
        """)
        for k in range(12):
            A(f"ds_read_b64 {vr(YT+2*k,2)}, v{T0+1}{off(1024*(k//3)+288*(k%3))}")
        A(f"""
        v_add_u32 v{T0}, s97, v{T0}
        s_ashr_i32 s6, s{68+sel}, 31
        s_not_b32 s6, s6
        s_or_b32 s6, s6, 0x80000000
        s_xor_b32 s6, s6, s{68+sel}
        s_and_b32 s6, s6, 0xffff0000
        v_mov_b32 v{T0+3}, {0x80000000 | LOG2E}
        v_mul_f32 v{T0+3}, s6, v{T0+3}
        v_exp_f32 v{T0+3}, v{T0+3}
        v_lshrrev_b32 v{T0+2}, 4, v{LANE}
        v_add_f32 v{T0+3}, 1.0, v{T0+3}
        v_rcp_f32 v{T0+3}, v{T0+3}
        v_lshl_add_u32 v{T0+1}, v{T0+2}, 4, s97
        v_and_b32 v{T0+2}, 1, v{T0+2}
        v_lshl_add_u32 v{T0+2}, v{T0+2}, 4, s97
        s_waitcnt lgkmcnt(0)
        """)
        for k in range(1, 12):
            A(f"v_pk_add_f32 {vr(YT,2)}, {vr(YT,2)}, {vr(YT+2*k,2)}")
        A(f"ds_write_b64 v{T0}, {vr(YT,2)}")
        for p in range(4):
            A(f"ds_read_b128 {vr(YT+4+4*p,4)}, v{T0+1}{off(64*p)}")
        A(f"ds_read_b128 {vr(YT+20,4)}, v{T0+2} offset:256")
        A(f"""
        v_cmp_eq_u32 vcc, s{70+sel}, v{TOK}
        s_waitcnt lgkmcnt(0)
        s_and_saveexec_b64 s[8:9], vcc
        """)
        for i in range(20):
            A(f"v_fmac_f32 v{BX+i}, v{YT+4+i}, v{T0+3}")
        A("s_mov_b64 exec, s[8:9]")
        A(f"K2_nosel{sel}:")
    A(f"v_sub_f32 v{T0+1}, 1.0, v{GV}")
    A(f"v_mov_b32 v{GV+1}, v{GV}")
    for i in range(10):
        A(f"v_pk_mul_f32 {vr(BX+2*i,2)}, {vr(BX+2*i,2)}, {vr(T0+1,2)} op_sel_hi:[1,0]")
    A(f"""
    s_add_u32 s98, s98, {128*8192}
    s_add_u32 s99, s99, {64*2048}
    s_add_u32 s100, s100, {(256*128, 64*128, 64*2048)[FOM]}
    s_mov_b32 s101, 1
    """)
    cs("mid")
    A("s_branch K2_p3")

    A.c("---- slow path: two passes over all keys with the true row maximum (own q tile)")
    A("K2_slow:")
    M, KA, VA, VA2, KEA = 40, 42, 43, 44, 45
    lane_addrs(KA, VA, VA2, KEA)
    A(f"""
    s_and_b32 s4, s40, 1
    s_lshl_b32 s4, s4, 3
    s_add_u32 s59, s57, s4
    buffer_load_dwordx2 {vr(QE,2)}, v{KEA}, {ws}, s59 offen sc1
    buffer_load_dwordx2 {vr(QM,2)}, v{KA}, {ws}, s59 offen sc1
    buffer_load_dwordx2 {vr(QM+2,2)}, v{KA}, {ws}, s59 offen offset:256 sc1
    v_and_b32 v4, 31, v{LANE}
    v_or_b32 v5, 4, v4
    v_cmp_eq_u32 vcc, 21, v5
    v_mov_b32 v6, 0x3f803f80
    s_bitcmp0_b32 s36, 0
    v_cndmask_b32 v{VV[0]}, 0, v6, vcc
    s_cselect_b32 s4, -1, 0
    s_cselect_b32 s5, 0, -1
    """)
    for i in range(1, 8):
        A(f"v_mov_b32 v{VV[0]+i}, v{VV[0]}")
    for i in range(16):
        A(f"v_mov_b32 v{o+i}, 0")
    A(f"""
    v_mov_b32 v{M}, 0xff800000
    s_waitcnt vmcnt(0)
    v_and_b32 v{QE}, s4, v{QE}
    v_and_b32 v{QE+1}, s5, v{QE+1}
    """)
    for pas in range(2):
        A("s_mov_b32 s10, 0")
        A(f"K2_slow{pas}:")
        A(f"""
        s_lshr_b32 s8, s10, 1
        s_mul_i32 s8, s8, {2*R}
        s_add_u32 s8, s8, 36864
        s_and_b32 s9, s10, 1
        s_lshl_b32 s11, s9, 3
        s_add_u32 s11, s11, s8
        s_mul_i32 s9, s9, 18432
        s_add_u32 s8, s8, s9
        s_add_u32 s9, s8, {R}
        buffer_load_dwordx2 {vr(KP[0],2)}, v{KA}, {ws}, s11 offen sc1
        buffer_load_dwordx2 {vr(KP[0]+2,2)}, v{KA}, {ws}, s11 offen offset:256 sc1
        buffer_load_dwordx2 {vr(KE,2)}, v{KEA}, {ws}, s11 offen sc1
        """)
        if pas:
            A(f"""
            s_mov_b64 exec, s[62:63]
            buffer_load_dwordx4 {vr(VV[0],4)}, v{VA}, {ws}, s8 offen sc1
            buffer_load_dwordx4 {vr(VV[0]+4,4)}, v{VA}, {ws}, s9 offen sc1
            s_mov_b64 exec, -1
            """)
        A(f"""
        s_waitcnt vmcnt(0)
        v_mfma_f32_32x32x4_2b_bf16 v[0:31], {vr(KE,2)}, {vr(QE,2)}, 0
        s_nop 15
        s_nop 3
        {mfma("v[0:15]", vr(KP[0],4), vr(QM,4), "v[0:15]")}
        s_nop 15
        """)
        if not pas:
            for i in range(8):
                A(f"v_max3_f32 v{M}, v{M}, v{2*i}, v{2*i+1}")
        else:
            for i in range(16):
                A(f"v_sub_f32 v{i}, v{i}, v{M}")
            for i in range(16):
                A(f"v_exp_f32 v{i}, v{i}")
            A("s_nop 1")
            A(f"v_smfmac_f32_32x32x32_bf16 {vr(o,16)}, {vr(VV[0],4)}, v[0:7], v{IDX}")
            A(f"v_smfmac_f32_32x32x32_bf16 {vr(o,16)}, {vr(VV[0]+4,4)}, v[8:15], v{IDX}")
            A("s_nop 15")
        A(f"""
        s_add_u32 s10, s10, 1
        s_cmp_lt_u32 s10, 64
        s_cbranch_scc1 K2_slow{pas}
        """)
        if not pas:
            A(f"""
            v_mov_b32 v{M+1}, v{M}
            s_nop 1
            v_permlane32_swap_b32 v{M}, v{M+1}
            s_nop 1
            v_max_f32 v{M}, v{M}, v{M+1}
            """)
    A("s_branch K2_fin")
    A.c("---- router candidates not published yet (rare): wait for them")
    A(f"""
    {"K2_candok:" if OPT.get("noload") else ""}
    K2_candspin:
    s_mov_b32 s6, {SPIN}
    s_mov_b32 s7, {RC}
    K2_candspin1:
    buffer_load_dwordx4 {vr(CAND,4)}, v{L16}, {ws}, s7 offen sc1
    s_sub_u32 s6, s6, 1
    s_waitcnt vmcnt(0)
    s_cbranch_scc1 K2_candok
    v_cmp_ne_u32 vcc, s{sTAG}, v{CAND+1}
    v_cmp_ne_u32 s[4:5], s{sTAG}, v{CAND+3}
    s_or_b64 vcc, vcc, s[4:5]
    s_cbranch_scc1 K2_candspin1
    s_branch K2_candok
    """)
    A("K2_codeend:")
    A("s_endpgm")
    return CNT + 48


def build():
    A = Asm()
    A('.amdgcn_target "amdgcn-amd-amdhsa--gfx950"')
    A(".text")
    lds = k23(A)
    A('.section .rodata,"a"')
    A(".p2align 6")
    A.raw(descriptor(NAME, 256, 256))
    head = ("; gated mix of a 32-head attention block and a top-2 routed SwiGLU FFN (S=2048, D=576), one launch\n"
            f"; @launch grid=(256,1,1) block=(512,1,1) lds={lds}\n")
    return head + A.text()


if __name__ == "__main__":
    out = sys.argv[1]
    gen1.DIAG = len(sys.argv) > 2 and sys.argv[2] == "diag"
    if len(sys.argv) > 3:
        OPT = eval(sys.argv[3]); gen1.OPT = OPT
    open(out, "w").write(build())
```

```python
import sys
sys.path.insert(0, "gen")
from asmlib import *
import gen1
from gen1 import YP, WS_SIZE, XB, f32bits, QSCALE, LOG2E, mfma, Stamp
NAME = "gated_mix__mha_block__moe_arch_mod__prompt_kernel"
R = 110592
GB = 0x6C0000
RC = 0x6C4000
F1 = 0xA60000
PG = 0xB00000
WP = 0xE00000
OOB = 0x7FFFFF00

OM = 0x700000
OE = 0x900000
FO = 0xA00000
FY = 0xA40000
EP = 0xA50000
OPT = {}
SPIN = 1 << 17


def mf16(d, a, b, c):
    return f"v_mfma_f32_16x16x32_bf16 {d}, {a}, {b}, {c}"


def k23(A):
    kernel_head(A, NAME)
    sDBG, sX, sG, sWS, sD, sU, sWO, sO = 12, 16, 20, 24, 28, 32, 72, 76
    sW, sWB = 20, 28
    S = [0, 32]
    O = [64, 80, 96, 112]
    QM, QE, KE = 128, 144, 148
    NB = 5
    KP = [164 + 10 * g for g in range(3)]
    VV = [194 + 8 * g for g in range(NB)]
    IDX, L16, VA, LANE = 236, 237, 238, 239
    KA, VA2, KEA, GUA, TAGV = 240, 241, 242, 234, 246
    CAND, PA, RET, ONE, CA = 250, 252, 253, 254, 255
    QEA = 251
    SW, PM, PE, RD = 243, 244, 245, 247
    DNA, DN5 = 245, 247
    M0, M3, M4, GQA = 152, 153, 154, 155
    TA = 235
    sT = [44 + t for t in range(8)] + [72 + t for t in range(8)]
    sTAG = 53
    WREG = 14336
    AS = 0
    DN = 4 * WREG
    STG = DN + 36864
    TB = STG + 4 * 3072
    BS = 129024
    HP = BS + 4 * 8192
    HS = HP + 1024
    CNT = HS + 512
    SLOT = 32768
    RGV = 4 * SLOT
    ws = f"s[{sWS}:{sWS+3}]"
    uid = [0]
    FOM = OPT.get("fo", 1)
    FOX, FOS = (("0xff", 8), ("1", 2), ("1\ns_mov_b32 exec_lo, -1", 2))[FOM]

    def lab(p):
        uid[0] += 1
        return f"{p}_{uid[0]}"

    def cs(name):
        if not OPT.get("chain"): return
        A("s_memtime s[88:89]")
        A("s_waitcnt lgkmcnt(0)")
        A("s_sub_u32 s88, s88, s80")
        A("s_mov_b32 m0, s96")
        A(f"v_writelane_b32 v{IDX}, s88, m0")
        A("s_add_u32 s96, s96, 1")
        A.c("stamp " + name)

    def csflush(k, v):
        if not OPT.get("chain"): return
        A(f"""
        s_lshl_b32 s4, s2, 2
        s_add_u32 s4, s4, s38
        s_lshl_b32 s4, s4, 8
        s_add_u32 s4, s4, {0xD00000 + 0x40000*k}
        v_lshlrev_b32 v{v}, 2, v{LANE}
        buffer_store_dword v{IDX}, v{v}, {ws}, s4 offen
        s_nop 1
        """)

    def arrive(k):
        A(f"""
        v_mov_b32 v{CA}, {CNT}
        v_mov_b32 v{ONE}, 1
        s_mov_b64 exec, 1
        ds_add_u32 v{CA}, v{ONE}{off(4*k)}
        s_mov_b64 exec, -1
        """)

    def gwait(k, sl=1):
        l = lab("K2_gw")
        A(f"""
        v_mov_b32 v{CA}, {CNT}
        {l}:
        ds_read_b32 v{ONE}, v{CA}{off(4*k)}
        s_waitcnt lgkmcnt(0)
        v_readfirstlane_b32 s4, v{ONE}
        s_cmp_ge_u32 s4, 4
        s_cbranch_scc1 {l}_d
        s_sleep {sl}
        s_branch {l}
        {l}_d:
        """)

    tagload = f"buffer_load_dword v{TAGV}, off, s[{sDBG}:{sDBG+3}], 0 sc1"

    def gettag():
        l = lab("K2_tag")
        A(f"""
        s_mov_b32 s5, {SPIN}
        {l}:
        s_waitcnt vmcnt(0)
        v_readfirstlane_b32 s{sTAG}, v{TAGV}
        s_cmp_lg_u32 s{sTAG}, 0
        s_cbranch_scc1 {l}_d
        s_sleep 8
        {tagload}
        s_sub_u32 s5, s5, 1
        s_cbranch_scc0 {l}
        {l}_d:
        """)

    def lane_addrs(KA, VA, VA2, KEA):
        A(f"""
        s_lshr_b32 s4, s36, 1
        s_mul_i32 s4, s4, {9*256}
        s_and_b32 s5, s36, 1
        s_mul_i32 s5, s5, {5*256}
        s_add_u32 s5, s5, s4
        s_add_u32 s4, s4, 1024
        v_and_b32 v4, 31, v{LANE}
        v_lshrrev_b32 v6, 5, v{LANE}
        v_lshrrev_b32 v5, 4, v4
        v_mul_u32_u24 v5, {R-256}, v5
        v_lshl_add_u32 v5, v4, 4, v5
        v_add_u32 v{KEA}, s4, v5
        v_add_u32 v{KA}, s5, v5
        v_lshl_add_u32 v{KA}, v6, 9, v{KA}
        s_mul_i32 s4, s36, 288
        s_add_u32 s4, s4, 36864
        v_min_u32 v5, 17, v4
        v_lshl_add_u32 v{VA}, v5, 4, s4
        v_mul_u32_u24 v5, 9216, v6
        v_add_u32 v{VA}, v{VA}, v5
        v_add_u32 v{VA2}, 18432, v{VA}
        """)

    def att_setup(old):
        A(f"""
        s_lshl_b32 s4, s3, 1
        s_bfe_u32 s5, s2, 0x10003
        s_add_u32 s43, s4, s5
        s_lshr_b32 s37, s2, 4
        s_lshl_b32 s36, s43, 1
        s_add_u32 s36, s36, s39
        """)
        A.c("s36 head, s37 q block (128), s38 wave, s39 head half, s40 key quarter, s43 head within half")
        lane_addrs(KA, VA, VA2, KEA)
        A(f"""
        s_mul_i32 s10, s37, {4*R}
        s_xor_b32 s11, s40, 3
        """)
        A.c("a 32-row tile = the same 16-token half of two neighbouring records; local q tile t is tile t ^ 3 ^ kq")
        A(f"""
        s_mov_b32 s60, s10
        s_lshr_b32 s4, s11, 1
        s_mul_i32 s5, s4, {2*R}
        s_add_u32 s56, s10, s5
        s_xor_b32 s5, s4, 1
        s_mul_i32 s5, s5, {2*R}
        s_add_u32 s57, s10, s5
        v_xor_b32 v5, s4, v6
        s_mov_b32 s4, {2*R}
        v_mad_u32_u24 v{QEA}, v5, s4, v{KEA}
        s_and_b32 s9, s37, {OPT.get("rot", 0)}
        s_and_b32 s5, s9, 1
        v_xor_b32 v5, s5, v6
        v_subrev_u32 v5, s5, v5
        v_mad_i32_i24 v{KEA}, v5, s4, v{KEA}
        s_mul_i32 s10, s40, {16*R}
        s_add_u32 s10, s10, 36864
        """)
        assert not OPT.get("rot", 0) & 1
        for m in range(8):
            A(f"s_xor_b32 s4, s9, {m}")
            A(f"s_mul_i32 s4, s4, {2*R}")
            A(f"s_add_u32 s{sT[2*m]}, s10, s4")
            A(f"s_add_u32 s{sT[2*m+1]}, s{sT[2*m]}, {R}")
        A("s_mov_b32 s62, 0x0011ffff\ns_mov_b32 s63, 0x0011ffff")
        if old: return
        A.c("projection flags of this head pair: lane = (k / v, first / last channel, token block), the two q flags and the two flags of the packed w_o block")
        A(f"""
        s_mul_i32 s4, s43, 36
        v_bfe_u32 v5, v{LANE}, 4, 1
        v_mad_u32_u24 v5, v5, 35, s4
        v_lshrrev_b32 v7, 7, v5
        v_lshl_add_u32 v7, v7, 4, s37
        s_and_b32 s4, s37, 14
        s_add_u32 s4, s4, {224 - 2}
        v_lshrrev_b32 v8, 4, v{LANE}
        v_cmp_lt_u32 vcc, 1, v8
        v_add_u32 v8, s4, v8
        s_mov_b32 s4, {F1}
        v_cndmask_b32 v7, v7, v8, vcc
        v_lshl_add_u32 v{PA-2}, v7, 5, s4
        v_mul_u32_u24 v7, 576, v6
        v_add_u32 v5, 576, v5
        v_add_u32 v5, v5, v7
        v_lshrrev_b32 v5, 7, v5
        v_and_b32 v7, 15, v{LANE}
        v_lshl_add_u32 v5, v5, 4, v7
        v_lshl_add_u32 v{PA}, v5, 5, s4
        """)

    ACC, PK, AX, AW, SA = 64, 128, 220, 224, 250
    FR = [0, 32]

    def acc(a, T):
        return ACC + 16 * a + 4 * T

    def epilogue(vmode, r):
        out = []
        for T in range(4):
            p = PK + 16 * r + 4 * T
            for a in (2 * r, 2 * r + 1):
                d = acc(a, T)
                if not vmode:
                    out += [f"v_pk_mul_f32 {vr(d+2*i,2)}, {vr(d+2*i,2)}, s[98:99]" for i in range(2)]
                out += [f"v_cvt_pk_bf16_f32 v{p+2*(a%2)+i}, v{d+2*i}, v{d+2*i+1}" for i in range(2)]
            out.append(f"buffer_store_dwordx4 {vr(p,4)}, v{SA}, {ws}, s{65+r} offen{off((256 if vmode else 1024)*T)} sc1")
        return out

    def xread(n, a, vmode):
        c, s_ = divmod(n, 2)
        k, o = divmod(c % 4, 2)
        to = (a // 2) * 4096 + (a % 2) * 512 if vmode else a * 2048
        return f"ds_read_b128 {vr(FR[n%2]+4*a,4)}, v{AX+2*k+s_}{off(o*SLOT+to)}"

    def reads(n, vmode):
        c, s_ = divmod(n, 2)
        k, o = divmod(c % 4, 2)
        w = [[(f"w{T}", f"ds_read_b64_tr_b16 {vr(FR[n%2]+16+4*T+2*a,2)}, v{AW+4*k+T}{off(o*SLOT+(32*s_+4*a)*128)}") for a in range(2)] for T in range(4)]
        x = [(f"x{a}", xread(n, a, vmode)) for a in range(4)]
        return [(f"{n}{t}", l) for t, l in w[0] + x[:1] + w[1] + w[2] + w[3] + x[1:]]

    def gemm(vmode):
        q = []

        def put(r):
            if OPT.get("nord") and len(r[0]) + int(r[0][0] > "1") > 3: return
            q.append(r[0]); A(r[1])

        def need(*tags):
            idx = [i for i, t in enumerate(q) if t in tags]
            if idx:
                A(f"s_waitcnt lgkmcnt({len(q) - 1 - max(idx)})")
                del q[:max(idx) + 1]
        A("s_barrier")
        sp(1, "b0")
        cs("B0")
        for r in reads(0, vmode): put(r)

        def mm1(n, a, T):
            need(f"{n}x{a}", f"{n}w{T}")
            d = vr(acc(a, T), 4)
            x, w = vr(FR[n % 2] + 4 * a, 4), vr(FR[n % 2] + 16 + 4 * T, 4)
            c = "0" if n == 0 else d
            A(mf16(d, x, w, c) if vmode else mf16(d, w, x, c))
        for n in range(16):
            Rn = reads(n + 1, vmode)
            bp = OPT.get("bp", (0, 6))[n == 15] if n % 2 else 0
            for i in range(16):
                if i == 0 and n > 0: need(f"{n}x0", f"{n}w0", f"{n}w1", f"{n}w2", f"{n}w3")
                mm1(n, i // 4, i % 4)
                if i == bp and n % 2 == 1:
                    need(f"{n}x3")
                    A("s_barrier")
                if i == 0 and n == OPT.get("tagstep", 8): A(tagload)
                if i == 0 and n == OPT.get("tagstep", 8) + 5: gettag()
                if i >= bp:
                    k = 1 if bp <= 2 else 2
                    for r in Rn[k * (i - bp):k * (i - bp) + k]: put(r)
        Rn = reads(17, vmode)
        for i in range(8):
            mm1(16, i // 4, i % 4)
            for r in Rn[2 * i:2 * i + 2]: put(r)
        for i in range(8): mm1(17, i % 2, i // 2)
        E = epilogue(vmode, 0)
        tail = [(16, 2 + i // 4, i % 4) for i in range(8)] + [(17, 2 + i % 2, i // 2) for i in range(8)]
        for i, t in enumerate(tail):
            mm1(*t)
            if not OPT.get("ilv", (1, 1))[vmode]:
                if i == 15:
                    for l in E: A(l)
            elif i >= 2:
                for l in E[(i - 2) * len(E) // 14:(i - 1) * len(E) // 14]: A(l)
        sp(1, "passa")
        cs("pass A")
        A("s_nop 1")
        for l in epilogue(vmode, 1): A(l)

    def pflag(sf):
        A(f"""
        v_lshlrev_b32 v12, 2, v{LANE}
        s_cmp_lg_u32 s40, 0
        s_waitcnt vmcnt(0)
        s_barrier
        s_cbranch_scc1 K2_noflag
        s_mov_b64 exec, 0xff
        buffer_store_dword v{TAGV}, v12, {ws}, s{sf} offen sc1
        s_mov_b64 exec, -1
        K2_noflag:
        """)

    def presets():
        A.c("V registers are preset: rows 17 and 21 are the all-ones rows that produce the softmax denominator")
        A.c("(1 + 127*2^-16 has the bit pattern 0x3f803f80 = two bf16 ones; the matrix unit fills 32 registers per instruction)")
        A(f"""
        v_and_b32 v4, 31, v{LANE}
        v_or_b32 v5, 4, v4
        v_cmp_eq_u32 vcc, 21, v5
        v_mov_b32 v6, 0x3afe3f80
        v_mov_b32 v8, 0x3f803f80
        v_cndmask_b32 v6, 0, v6, vcc
        v_mov_b32 v7, 0
        v_mov_b32 v9, 0
        v_mov_b32 v10, 0
        v_mov_b32 v11, 0
        v_mfma_f32_32x32x4_2b_bf16 {vr(170,32)}, v[8:9], v[6:7], 0
        v_mfma_f32_32x32x4_2b_bf16 {vr(202,32)}, v[8:9], v[6:7], 0
        v_mfma_f32_32x32x4_2b_bf16 {vr(O[0],32)}, v[10:11], v[10:11], 0
        v_mfma_f32_32x32x4_2b_bf16 {vr(O[2],32)}, v[10:11], v[10:11], 0
        s_nop 3
        """)

    def p1_addrs():
        A.c("wave = 64 tokens (s40 & 1) x one 64-channel tile (s40 >> 1); v tiles map row 4g+j of tile a to token 8g+4a+j")
        A(f"""
        v_lshrrev_b32 v1, 4, v{LANE}
        v_and_b32 v2, 15, v{LANE}
        v_and_b32 v3, 12, v2
        v_add_u32 v3, v3, v2
        s_cmp_eq_u32 s100, 2
        s_cselect_b64 vcc, -1, 0
        v_cndmask_b32 v3, v2, v3, vcc
        v_mul_u32_u24 v4, 9216, v1
        v_lshl_add_u32 v4, v2, 4, v4
        v_cndmask_b32 v{SA}, v{L16}, v4, vcc
        v_lshrrev_b32 v4, 1, v2
        v_xor_b32 v4, v4, v1
        s_and_b32 s4, s40, 1
        s_lshl_b32 s4, s4, 1
        s_cmp_eq_u32 s100, 3
        s_cselect_b32 s4, s40, s4
        s_lshl_b32 s5, s68, 2
        s_add_u32 s71, s5, s4
        s_lshl_b32 s4, s4, 12
        v_lshl_add_u32 v3, v3, 7, s4
        v_lshl_add_u32 v{AX}, v4, 4, v3
        v_xor_b32 v{AX+1}, 64, v{AX}
        v_add_u32 v{AX+2}, {2*SLOT}, v{AX}
        v_add_u32 v{AX+3}, {2*SLOT}, v{AX+1}
        v_bfe_u32 v3, v{LANE}, 2, 2
        v_lshl_add_u32 v4, v1, 3, v3
        v_lshlrev_b32 v4, 7, v4
        v_bfe_u32 v3, v{LANE}, 3, 2
        v_lshl_add_u32 v4, v3, 5, v4
        v_and_b32 v3, 3, v{LANE}
        v_lshl_add_u32 v4, v3, 3, v4
        s_lshr_b32 s7, s40, 1
        s_lshl_b32 s4, s7, 13
        s_add_u32 s4, s4, 16384
        v_add_u32 v{AW}, s4, v4
        """)
        for T in range(1, 4):
            A(f"v_xor_b32 v{AW+T}, {32*T}, v{AW}")
        for T in range(4):
            A(f"v_add_u32 v{AW+4+T}, {2*SLOT}, v{AW+T}")
        A.c("store base s65 and flag address s61 of this wave's tile")
        A(f"""
        s_add_u32 s69, s69, s7
        s_mul_i32 s4, s71, {R}
        s_lshl_b32 s5, s69, 12
        s_lshl_b32 s6, s69, 10
        s_add_u32 s6, s6, {73728 - 18*1024}
        s_cmp_eq_u32 s100, 2
        s_cselect_b32 s5, s6, s5
        s_add_u32 s65, s4, s5
        s_add_u32 s66, s65, {R}
        s_lshl_b32 s4, s97, 4
        s_add_u32 s4, s4, s68
        s_lshl_b32 s4, s4, 5
        s_add_u32 s61, s4, {F1}
        s_cmp_lt_u32 s69, 9
        s_cselect_b32 s98, {QSCALE}, 1.0
        s_mov_b32 s99, s98
        """)

    A("s_cmp_ge_u32 s2, 256")
    A("s_cbranch_scc1 K2_end")
    ST = Stamp(A, 0); ST.t(0)
    STS = OPT.get("st", ("astore,polled,loopend,fpolled", "loaded,polled,loopend,flag"))

    def sp(old, name):
        L = STS[0 if old else 1].split(",")
        if name in L: ST.t(1 + L.index(name))
    srd(A, sX, 0, XB)
    srd(A, sW, 8, 576 * 3456)
    srd(A, sWS, 88, WS_SIZE)
    srd(A, sDBG, 80, 256)
    A(f"""
    v_lshrrev_b32 v1, 6, v0
    v_and_b32 v{LANE}, 63, v0
    v_readfirstlane_b32 s38, v1
    v_lshlrev_b32 v{L16}, 4, v{LANE}
    s_and_b32 s3, s2, 7
    s_and_b32 s4, s2, 3
    s_bfe_u32 s5, s2, 0x20003
    s_lshl_b32 s68, s4, 2
    s_add_u32 s68, s68, s5
    s_lshr_b32 s6, s3, 2
    s_lshr_b32 s7, s2, 5
    s_mul_i32 s97, s6, 7
    s_add_u32 s97, s97, s7
    s_lshl_b32 s69, s97, 1
    s_cmp_ge_u32 s97, 9
    s_cselect_b32 s100, 2, 0
    s_cmp_lt_u32 s97, 13
    s_cselect_b32 s101, 1, 0
    s_lshr_b32 s9, s5, 1
    s_xor_b32 s9, s9, s6
    s_add_u32 s9, s9, 3
    s_cmp_eq_u32 s7, 7
    s_cselect_b32 s100, s9, s100
    s_cselect_b32 s101, 0, s101
    s_lshr_b32 s39, s38, 2
    s_and_b32 s40, s38, 3
    s_cmp_eq_u32 s39, 0
    s_cbranch_scc1 K2_old
    """)
    CR = OPT.get("cr", (1, 4, 1, 4, 1, 2, 1))
    A.c("projection tile: s68 token block (128), s97 channel tile (128), s100 kind (0 q/k, 2 v, 3 router, 4 none), s69 first block, s101 has a second block")
    A.c("=========== waves 4-7 first stage x and w_qkv for the projection (k chunks start at s71, for L2 locality only)")
    A(f"""
    s_setprio 2
    s_cmp_eq_u32 s100, 4
    s_cbranch_scc1 K2_lastbar
    s_and_b32 s71, s7, {CR[0]}
    s_mul_i32 s71, s71, {CR[1]}
    s_and_b32 s9, s5, {CR[2]}
    s_mul_i32 s9, s9, {CR[3]}
    s_{"xor_b32" if len(CR) > 6 else "add_u32"} s71, s71, s9
    s_mul_i32 s9, s4, {CR[4]}
    s_add_u32 s71, s71, s9
    s_mul_i32 s9, s6, {CR[5]}
    s_add_u32 s71, s71, s9
    s_mul_i32 s9, s71, 57
    s_lshr_b32 s9, s9, 9
    s_mul_i32 s9, s9, 9
    s_sub_u32 s71, s71, s9
    s_cmp_eq_u32 s100, 3
    s_cselect_b32 s71, 0, s71
    v_lshrrev_b32 v2, 3, v{LANE}
    v_and_b32 v3, 7, v{LANE}
    v_lshrrev_b32 v4, 4, v{LANE}
    s_cmp_eq_u32 s100, 2
    s_cselect_b32 s9, 1, 2
    s_cselect_b32 s10, 1, 3
    s_lshl_b32 s9, s40, s9
    s_and_b32 s9, s9, 7
    v_and_b32 v5, s10, v4
    v_add_u32 v5, s9, v5
    v_xor_b32 v5, v3, v5
    s_lshl_b32 s9, s40, 3
    v_add_u32 v2, s9, v2
    s_lshl_b32 s10, s68, 7
    v_add_u32 v6, s10, v2
    v_mul_u32_u24 v6, 1152, v6
    v_lshl_add_u32 v10, v5, 4, v6
    v_and_b32 v4, 1, v4
    s_and_b32 s9, s40, 1
    s_lshl_b32 s9, s9, 2
    v_lshl_add_u32 v4, v4, 1, s9
    v_xor_b32 v3, v3, v4
    v_mul_u32_u24 v6, 3456, v2
    v_lshl_add_u32 v6, v3, 4, v6
    s_lshl_b32 s10, s69, 7
    v_add_u32 v11, s10, v6
    s_lshl_b32 s42, s40, 10
    s_cmp_eq_u32 s100, 3
    s_cselect_b32 s{sW+2}, 0, {576*3456}
    s_cmp_eq_u32 s101, 0
    s_cselect_b32 s{sWB+2}, 0, {576*3456}
    s_mov_b32 s{sWB+3}, 0x00020000
    s_waitcnt lgkmcnt(0)
    s_mov_b64 s[{sWB}:{sWB+1}], s[{sW}:{sW+1}]
    """)
    A.c("missing tiles stage zeros (empty descriptors)")

    def dma1(k):
        c, r = divmod(k, 8)
        u, isx = divmod(r, 2)
        slot = c % 4
        if r == 0: A(f"s_lshl_b32 s65, s71, 7\ns_mul_i32 s66, s71, {64*3456}")
        if not isx:
            t, hf = u % 2, u // 2
            A(f"s_add_u32 m0, s42, {slot*SLOT + 16384 + t*8192 + hf*4096}")
            A(f"s_add_u32 s67, s66, {hf*32*3456 + 128*t}")
            A(f"buffer_load_dwordx4 v11, s[{(sW, sWB)[t]}:{(sW, sWB)[t]+3}], s67 offen{OPT.get('wnt', '')} lds")
        else:
            A(f"s_add_u32 m0, s42, {slot*SLOT + u*4096}")
            A(f"s_add_u32 s67, s65, {u*36864}")
            A(f"buffer_load_dwordx4 v10, s[{sX}:{sX+3}], s67 offen{OPT.get('xnt', '')} lds")
        if r == 7: A("s_add_u32 s71, s71, 1\ns_cmp_eq_u32 s71, 9\ns_cselect_b32 s71, 0, s71")

    lead0, lead = OPT.get("lead", (8, 8))
    assert lead <= 16
    issued = 0
    for c in range(9):
        tgt = min(72, 8 * (c + 1) + (lead0 if c == 0 else lead))
        while issued < tgt:
            dma1(issued); issued += 1
        A(f"s_waitcnt vmcnt({issued - 8*(c+1)})")
        if c == 8: A("K2_lastbar:")
        A("s_barrier")
    A("K2_loaded:")
    A("s_waitcnt lgkmcnt(0)")
    sp(0, "loaded")
    A(tagload)
    att_setup(False)
    presets()
    gettag()
    A("s_branch K2_young2")

    OAT = 60

    def tables():
        A.c("addresses for the later phases are worked out now and parked in LDS")
        A.c("output projection tile: 64 tokens x 72 channels per workgroup, dealt so that one die shares tokens (speed only)")
        A.c("s32 = 16-token tile of this wave, s33 = byte offset of the channel block, s34 row base, s35 packed w_o")
        A(f"""
        s_lshl_b32 s32, s43, 3
        s_and_b32 s4, s37, 1
        s_lshl_b32 s4, s4, 2
        s_add_u32 s32, s32, s4
        s_add_u32 s32, s32, s40
        s_lshr_b32 s33, s37, 1
        s_mul_i32 s33, s33, 144
        s_mul_i32 s34, s32, {16*1152}
        s_add_u32 s34, s34, s33
        s_mul_i32 s35, s33, 640
        s_add_u32 s35, s35, {WP}
        s_mul_i32 s4, s40, 3072
        s_add_u32 s97, s4, {STG}
        s_lshl_b32 s4, s32, 13
        s_add_u32 s98, s4, {OM}
        s_add_u32 s101, s98, 4096
        s_lshr_b32 s4, s32, 2
        s_lshl_b32 s4, s4, 1
        s_and_b32 s5, s40, 1
        s_add_u32 s4, s4, s5
        s_lshl_b32 s5, s4, 7
        s_add_u32 s100, s5, {FO}
        s_lshl_b32 s4, s4, 11
        s_lshr_b32 s5, s40, 1
        s_lshl_b32 s5, s5, 6
        s_add_u32 s4, s4, s5
        s_add_u32 s99, s4, {OE}
        s_mul_i32 s4, s40, 5120
        s_add_u32 s4, s4, {TB}
        v_add_u32 v{TA}, s4, v{L16}
        v_and_b32 v3, 15, v{LANE}
        v_lshrrev_b32 v4, 4, v{LANE}
        v_bfe_u32 v5, v{LANE}, 2, 2
        v_lshl_add_u32 v7, v4, 3, v5
        v_and_b32 v5, 1, v5
        v_and_b32 v6, 1, v4
        v_lshlrev_b32 v18, 3, v{LANE}
        v_and_b32 v8, 24, v18
        v_lshl_add_u32 v16, v7, 7, s42
        v_add_u32 v16, v16, v8
        v_lshl_add_u32 v17, v4, 4, s42
        v_lshl_add_u32 v17, v5, 10, v17
        v_and_b32 v19, 64, v{PE}
        v_add_lshl_u32 v19, v19, v{PE}, 1
        ds_write_b128 v{TA}, v[16:19]
        v_lshlrev_b32 v9, 2, v{LANE}
        v_add_u32 v21, {HP}, v9
        s_lshl_b32 s4, s40, 8
        v_add_u32 v20, s4, v21
        s_mul_i32 s4, s40, 288
        s_and_b32 s4, s4, 0xffc0
        s_add_u32 s5, s4, {DN}
        v_mul_u32_u24 v22, 1152, v7
        v_add3_u32 v22, v22, v8, s5
        s_lshl_b32 s5, s40, 7
        s_add_u32 s5, s5, {HS}
        v_lshl_add_u32 v23, v4, 4, s5
        v_lshl_add_u32 v23, v5, 6, v23
        ds_write_b128 v{TA}, v[20:23] offset:1024
        v_and_b32 v10, 32, v{LANE}
        v_lshl_add_u32 v24, v3, 1, s5
        v_lshl_add_u32 v24, v6, 6, v24
        v_add_u32 v24, v24, v10
        v_lshlrev_b32 v26, 2, v3
        v_mul_u32_u24 v25, 2304, v6
        v_lshl_add_u32 v25, v10, 1, v25
        s_lshl_b32 s4, s4, 1
        v_add3_u32 v25, v25, v26, s4
        v_lshlrev_b32 v27, 3, v3
        ds_write_b128 v{TA}, v[24:27] offset:2048
        v_mul_u32_u24 v11, 7282, v{LANE}
        v_lshrrev_b32 v11, 16, v11
        v_mul_u32_u24 v11, {1152-144}, v11
        v_add_u32 v{OAT}, v11, v{L16}
        v_mul_u32_u24 v11, 144, v3
        v_add_u32 v11, s97, v11
        v_lshl_add_u32 v{OAT+1}, v4, 3, v11
        v_lshl_add_u32 v{OAT+2}, v6, 3, v11
        v_lshl_add_u32 v{OAT+3}, v4, 9, v26
        ds_write_b128 v{TA}, {vr(OAT,4)} offset:3072
        v_add_u32 v28, 46080, v{L16}
        v_add_u32 v29, s97, v{L16}
        ds_write_b64 v{TA}, v[28:29] offset:4096
        """)

    def p1_compute():
        A("K2_old:")
        A("s_setprio 3")
        if OPT.get("chain"): A("s_mov_b32 s96, 0")
        A(f"""
        v_mov_b32 v{CA}, {CNT}
        v_mov_b32 v{ONE}, 1
        v_mov_b32 v10, 0
        v_mov_b32 v11, 0
        v_mov_b32 v12, 0
        v_mov_b32 v13, 0
        """)
        if OPT.get("cpf", 0):
            A.c("pull this kernel's code into the die's L2, three lines per wave (speed only)")
            A(f"""
            s_getpc_b64 s[8:9]
            K2_pc:
            s_sub_u32 s8, s8, K2_pc - {NAME}
            s_subb_u32 s9, s9, 0
            s_lshr_b32 s10, s2, 3
            s_lshl_b32 s10, s10, 2
            s_add_u32 s10, s10, s40
            v_min_u32 v2, 2, v{LANE}
            v_lshl_add_u32 v2, v2, 7, s10
            v_min_u32 v2, (K2_codeend - {NAME}) / 128, v2
            v_lshlrev_b32 v2, 7, v2
            v_mov_b32 v3, s9
            v_add_co_u32 v2, vcc, s8, v2
            s_nop 1
            v_addc_co_u32 v3, vcc, 0, v3, vcc
            global_load_dword v161, v[2:3], off
            """)
        if OPT.get("pre", 0):
            A.c("row-wise first touch of this die's share of x and w_qkv (speed only)")
            A(f"""
            s_lshr_b32 s8, s2, 3
            s_lshl_b32 s8, s8, 2
            s_add_u32 s8, s8, s40
            s_lshl_b32 s9, s4, 1
            s_add_u32 s9, s9, s6
            s_lshl_b32 s9, s9, 7
            s_add_u32 s9, s9, s8
            s_mul_i32 s9, s9, 2304
            v_min_u32 v2, 17, v{LANE}
            v_lshlrev_b32 v2, 7, v2
            s_mul_i32 s10, s4, 144
            s_add_u32 s10, s10, s8
            s_mul_i32 s10, s10, 3456
            s_mul_i32 s11, s6, 1792
            s_add_u32 s10, s10, s11
            s_cmp_lt_u32 s8, 16
            s_cselect_b32 s11, {128*3456}, 0
            v_and_b32 v3, 15, v{LANE}
            v_min_u32 v3, 13, v3
            v_lshlrev_b32 v3, 7, v3
            v_bfe_u32 v4, v{LANE}, 4, 1
            v_mad_u32_u24 v3, v4, s11, v3
            s_waitcnt lgkmcnt(0)
            buffer_load_dword v160, v2, s[{sX}:{sX+3}], s9 offen
            buffer_load_dword v160, v3, s[{sW}:{sW+3}], s10 offen
            """)
        A(f"""
        s_waitcnt lgkmcnt(0)
        s_or_b32 s4, s2, s40
        s_cmp_lg_u32 s4, 0
        s_cbranch_scc1 K2_notag
        """)
        A.c("hand-off tag of this launch: successor of the word the previous launch left, published through d_debug[0]")
        A(f"""
        s_mov_b32 s4, {EP}
        buffer_load_dword v14, off, {ws}, s4 sc1
        s_mov_b32 s5, 1664525
        s_waitcnt vmcnt(0)
        v_mul_lo_u32 v14, v14, s5
        v_add_u32 v14, 1013904223, v14
        v_max_u32 v14, 1, v14
        s_mov_b64 exec, 1
        buffer_store_dword v14, off, s[{sDBG}:{sDBG+3}], 0 sc1
        buffer_store_dword v14, off, {ws}, s4 sc1
        s_mov_b64 exec, -1
        K2_notag:
        ds_write_b128 v{CA}, v[10:13]
        ds_write_b128 v{CA}, v[10:13] offset:16
        ds_write_b128 v{CA}, v[10:13] offset:32
        s_load_dwordx2 s[4:5], s[0:1], 32
        s_load_dwordx2 s[6:7], s[0:1], 64
        """)
        srd(A, sG, 40, 576 * 9216)
        srd(A, sU, 48, 576 * 9216)
        srd(A, sD, 56, 4608 * 1152)
        A(f"""
        s_mov_b32 s10, 1152
        s_mov_b32 s11, 0x00020000
        s_waitcnt lgkmcnt(0)
        s_cmp_lt_u32 s40, 2
        s_cselect_b32 s8, s4, s6
        s_cselect_b32 s9, s5, s7
        s_cmp_lg_u32 s100, 3
        s_cbranch_scc1 K2_norgv
        s_lshl_b32 s4, s40, 10
        s_add_u32 m0, s4, {RGV}
        s_and_b32 s4, s4, 1024
        buffer_load_dwordx4 v{L16}, s[8:11], s4 offen lds
        K2_norgv:
        """)
        p1_addrs()
        att_setup(True)
        A.c("MoE stage 1: 96 rows x 64 columns of w_gate or w_up per wave; stage 2 (s64): 32 rows of w_down")
        A.c("staging slots a workgroup does not need get an empty descriptor")
        nm = OPT.get('nomoe2')
        A(f"""
        s_lshr_b32 s4, s2, 3
        s_mul_i32 s41, s3, 18
        s_add_u32 s41, s41, s4
        s_mul_i32 s42, s40, {WREG}
        s_mul_i32 s9, s40, 9216
        s_cmp_lt_u32 s4, 18
        s_cselect_b32 s{sD+2}, s{sD+2}, 0
        s_cselect_b32 s64, {0 if nm else 1}, 0
        s_mul_i32 s8, s41, 36864
        s_add_u32 s8, s8, s9
        s_add_u32 s9, s9, {DN}
        s_mul_i32 s5, s3, 27
        s_add_u32 s5, s5, s4
        s_sub_u32 s5, s5, 5
        s_max_i32 s5, s5, 0
        s_mul_i32 s58, s5, 3641
        s_lshr_b32 s58, s58, 16
        s_mul_i32 s10, s58, 18
        s_sub_u32 s5, s5, s10
        s_lshl_b32 s5, s5, 2
        s_add_u32 s5, s5, s40
        s_mul_i32 s59, s5, 24
        s_add_u32 s59, s59, s58
        s_lshl_b32 s59, s59, 9
        s_add_u32 s59, s59, {PG}
        s_sub_u32 s10, s58, 6
        s_cselect_b32 s58, s58, s10
        s_cselect_b64 s[{sG}:{sG+1}], s[{sG}:{sG+1}], s[{sU}:{sU+1}]
        s_mul_i32 s54, s58, {96*9216}
        s_lshl_b32 s5, s5, 7
        s_add_u32 s54, s54, s5
        s_mul_i32 s58, s58, 192
        v_lshrrev_b32 v8, 3, v{LANE}
        v_mul_u32_u24 v8, {9216-128}, v8
        v_add_u32 v{GUA}, v8, v{L16}
        s_cmp_lt_u32 s4, 5
        s_cselect_b32 s{sG+2}, 0, s{sG+2}
        s_cselect_b32 s59, {OOB}, s59
        """)
        cs("setup")
        A("""
        s_cmp_eq_u32 s100, 3
        s_cbranch_scc1 K2_rg
        s_cmp_eq_u32 s100, 4
        s_cbranch_scc1 K2_idle2
        s_cmp_ge_u32 s69, 27
        s_cbranch_scc1 K2_idle
        s_cmp_eq_u32 s100, 2
        s_cbranch_scc1 K2_pv
        """)
        for vmode in (False, True):
            if vmode: A("K2_pv:")
            A.c("v tiles: D = x W (lane = channel, registers = tokens)" if vmode else "q / k tiles: D = W^T x^T (lane = token, registers = channels)")
            gemm(vmode)
            sp(1, "astore")
            cs("a stores")
            A("s_branch K2_p1done")
        A.c("---- no second tile in this workgroup")
        A("K2_idle:")
        for c in range(9): A("s_barrier")
        A(tagload)
        gettag()
        A(f"s_mov_b32 s61, {OOB}")
        A("s_branch K2_p1done")
        A.c("---- no projection tile at all: re-pack one head half (s5) of one 72-channel block (s3) of w_o as MFMA fragments")
        A("K2_idle2:")
        A(f"""
        s_load_dwordx2 s[68:69], s[0:1], 16
        s_mov_b32 s70, {576*1152}
        s_mov_b32 s71, 0x00020000
        s_bfe_u32 s5, s2, 0x10003
        v_mul_u32_u24 v0, 6554, v{LANE}
        v_lshrrev_b32 v0, 16, v0
        v_mul_u32_u24 v1, {1152-160}, v0
        s_mul_i32 s6, s40, 144
        s_mul_i32 s7, s5, 18
        s_add_u32 s6, s6, s7
        s_mul_i32 s4, s6, 1152
        s_mul_i32 s10, s3, 144
        s_add_u32 s4, s4, s10
        v_add3_u32 v2, v1, v{L16}, s4
        s_mul_i32 s6, s6, 160
        s_mul_i32 s7, s7, 160
        s_mov_b32 s10, 0xdff7fdff
        s_mov_b32 s11, 0x7fdff7f
        s_waitcnt lgkmcnt(0)
        s_mov_b64 exec, s[10:11]
        """)
        for u in range(12):
            row = 36 * (u // 3) + 6 * (u % 3)
            A(f"s_add_u32 m0, s6, {row*160}")
            A(f"s_mov_b32 s67, {row*1152}")
            A(f"buffer_load_dwordx4 v2, s[68:71], s67 offen lds")
        A(f"""
        s_mov_b64 exec, -1
        v_lshrrev_b32 v4, 4, v{LANE}
        v_and_b32 v6, 1, v4
        v_bfe_u32 v7, v{LANE}, 2, 2
        v_lshrrev_b32 v5, 1, v4
        v_mul_u32_u24 v5, 36, v5
        v_lshl_add_u32 v5, v6, 2, v5
        v_add_u32 v5, v5, v7
        v_mul_u32_u24 v5, 160, v5
        v_add_u32 v5, s6, v5
        v_and_b32 v8, 3, v{LANE}
        v_and_b32 v9, 1, v{LANE}
        v_lshl_add_u32 v10, v8, 3, v5
        v_lshl_add_u32 v11, v9, 3, v5
        v_lshrrev_b32 v5, 1, v7
        v_lshl_add_u32 v5, v4, 2, v5
        v_mul_u32_u24 v5, 36, v5
        v_and_b32 v7, 1, v7
        v_add3_u32 v5, v5, v7, 16
        v_mul_u32_u24 v5, 160, v5
        v_add_u32 v5, s7, v5
        v_lshl_add_u32 v12, v8, 3, v5
        s_lshl_b32 s4, s40, 5
        v_add_u32 v12, s4, v12
        v_lshl_add_u32 v13, v9, 3, v5
        s_lshl_b32 s4, s3, 1
        s_add_u32 s4, s4, s5
        s_lshl_b32 s61, s4, 5
        s_add_u32 s61, s61, {F1 + 224*32}
        s_mul_i32 s4, s4, 46080
        s_add_u32 s7, s4, {WP + 40960}
        s_mul_i32 s6, s40, 10240
        s_add_u32 s6, s6, s4
        s_add_u32 s6, s6, {WP}
        s_lshl_b32 s10, s40, 10
        s_add_u32 s10, s10, s7
        s_add_u32 s7, s7, 4096
        s_waitcnt vmcnt(0)
        s_barrier
        """)
        A(tagload)
        for f in range(12):
            for a in range(2):
                if f < 10:
                    ks, T = divmod(f, 5)
                    A(f"ds_read_b64_tr_b16 {vr(16+4*f+2*a,2)}, v{10 if T < 4 else 11}{off((72*ks+8*a)*160+32*T)}")
                else:
                    A(f"ds_read_b64_tr_b16 {vr(16+4*f+2*a,2)}, v{2+f}{off(72*a*160+128*(f-10))}")
        gettag()
        A("s_waitcnt lgkmcnt(0)")
        for f in range(10):
            if f in (4, 8): A("s_add_u32 s6, s6, 4096")
            A(f"buffer_store_dwordx4 {vr(16+4*f,4)}, v{L16}, {ws}, s6 offen{off(1024*(f%4))} sc1")
        A(f"buffer_store_dwordx4 v[56:59], v{L16}, {ws}, s10 offen sc1")
        A(f"buffer_store_dwordx4 v[60:63], v{L16}, {ws}, s7 offen sc1")
        A("s_branch K2_p1done")
        A.c("---- router score and mix gate of 32 tokens per wave")
        A("K2_rg:")
        A(f"""
        v_lshrrev_b32 v1, 4, v{LANE}
        v_and_b32 v2, 31, v{LANE}
        v_and_b32 v3, 1, v{LANE}
        v_lshlrev_b32 v3, 11, v3
        v_lshl_add_u32 v3, v1, 4, v3
        v_add_u32 v{AW}, {RGV}, v3
        s_lshl_b32 s4, s71, 5
        v_add_u32 v{AW+1}, s4, v2
        v_cmp_lt_u32 vcc, 15, v2
        s_waitcnt vmcnt(0)
        """)
        for c in range(9):
            A("s_barrier")
            if c == 0: cs("B0")
            if c == 5: A(tagload)
            for n in (2 * c, 2 * c + 1):
                A(f"ds_read_b128 {vr(FR[n%2]+16,4)}, v{AW}{off(64*n)}")
                for a in range(2): A(xread(n, a, False))
            for n in (2 * c, 2 * c + 1):
                A(f"s_waitcnt lgkmcnt({3*(1-n%2)})")
                for a in range(2):
                    A(mf16(vr(ACC + 4 * a, 4), vr(FR[n % 2] + 16, 4), vr(FR[n % 2] + 4 * a, 4), "0" if n == 0 else vr(ACC + 4 * a, 4)))
        gettag()
        A("s_nop 3")
        cs("pass A")
        A(f"v_cndmask_b32 v{ACC}, v{ACC}, v{ACC+4}, vcc")
        A(f"v_cndmask_b32 v{ACC+1}, v{ACC+1}, v{ACC+5}, vcc")
        A(f"""
        s_mov_b32 s5, 0xffff0000
        v_cvt_pk_bf16_f32 v6, v{ACC+1}, v{ACC}
        v_lshlrev_b32 v4, 16, v6
        v_mul_f32 v4, {0x80000000 | LOG2E}, v4
        v_exp_f32 v4, v4
        v_ashrrev_i32 v7, 31, v6
        v_add_f32 v4, 1.0, v4
        v_rcp_f32 v4, v4
        v_or_b32 v7, 0x80000000, v7
        v_xor_b32 v6, v6, v7
        v_and_b32 v6, s5, v6
        v_sub_u32 v7, 0xffff, v{AW+1}
        v_or_b32 v6, v6, v7
        v_cvt_pk_bf16_f32 v4, v4, v4
        v_and_b32 v4, s5, v4
        v_mov_b32 v5, s{sTAG}
        v_lshlrev_b32 v7, 3, v{AW+1}
        s_mov_b32 s4, {GB}
        buffer_store_dwordx2 v[4:5], v7, {ws}, s4 offen sc1
        """)
        wave_top2_u32(A, 6, 7, 6, 7)
        A(f"""
        s_lshl_b32 s4, s71, 4
        s_add_u32 s4, s4, {RC}
        v_mov_b32 v8, s6
        v_mov_b32 v9, s{sTAG}
        v_mov_b32 v10, s7
        v_mov_b32 v11, s{sTAG}
        s_mov_b64 exec, 1
        buffer_store_dwordx4 v[8:11], off, {ws}, s4 sc1
        s_mov_b64 exec, -1
        s_mov_b32 s61, {OOB}
        """)
        sp(1, "astore")
        cs("a stores")
        A("K2_p1done:")
        presets()
        pflag(61)
        scratch_addrs(AS, WREG)
        tables()
        sp(1, "aflag")
        cs("flag")

    def ldK(p):
        return [f"buffer_load_dwordx4 {vr(KP[p%3]+6*i,4)}, v{KA}, {ws}, s{sT[2*p]} offen{off(256*i)} sc1" for i in range(2)]

    def ldV(j):
        return ["s_mov_b64 exec, s[62:63]"] + \
            [f"buffer_load_dwordx4 {vr(VV[j%NB]+4*i,4)}, v{(VA, VA2)[j%2]}, {ws}, s{sT[(j & ~1)+i]} offen sc1" for i in range(2)] + \
            ["s_mov_b64 exec, -1"]

    def ldKE(g):
        return [f"buffer_load_dwordx4 {vr(KE+4*g,4)}, v{KEA}, {ws}, s{sT[4*g]} offen sc1"]

    QT = 32

    def ldQ(rp):
        return [f"buffer_load_dwordx4 {vr(QT+8*rp+4*i,4)}, v{KA}, {ws}, s{56+rp} offen{off(256*i)} sc1" for i in range(2)]

    def items(j):
        return ([ldKE(j // 4)] if j % 4 == 0 else []) + ([[l] for l in ldK(j // 2)] if j % 2 == 0 else []) + [ldV(j)]

    def kmov(kt):
        b = KP[(kt // 2) % 3]
        return f"v_mov_b64 {vr(b+4,2)}, {vr(b+8 if kt % 2 else b,2)}"

    def m2b(kt, c):
        u = kt % 4
        return (f"v_mfma_f32_32x32x4_2b_bf16 {vr(S[c],32)}, {vr(KE+4*(kt//4)+2*(u%2),2)}, {vr(QE+2*c,2)}, 0"
                f" cbsz:1 abid:{u//2}")

    def mm(kt, c, b):
        d = vr(S[c] + 16 * b, 16)
        return mfma(d, vr(KP[(kt // 2) % 3] + (2 if kt % 2 else 4), 4), vr(QM + 4 * (c + 2 * b), 4), d)

    def sm(kt, c, b, i):
        return (f"v_smfmac_f32_32x32x32_bf16 {vr(O[c+2*b],16)}, {vr(VV[kt%NB]+4*i,4)}, "
                f"{vr(S[c]+16*b+8*i,8)}, v{IDX}")

    def moe_dma(n):
        if n < 12:
            return [f"s_add_u32 m0, s42, {1024*n}", f"s_add_u32 s67, s54, {8*9216*n}",
                    f"buffer_load_dwordx4 v{GUA}, s[{sG}:{sG+3}], s67 offen{OPT.get('gunt', ' nt')} lds"]
        n -= 12
        pre = [f"s_add_u32 m0, s9, {4096*(n//4)}", f"s_add_u32 s67, s8, {4096*(n//4)}"]
        return pre + [f"buffer_load_dwordx4 v{L16}, s[{sD}:{sD+3}], s67 offen{off(1024*(n%4))}{OPT.get('dnnt', ' nt')} lds"]

    def xsel_dma(k):
        return [f"s_add_u32 m0, s42, {12288+1024*k}", "s_nop 0",
                f"buffer_load_dwordx4 v{L16}, s[{sX}:{sX+3}], s{10+k} offen lds"]

    GQ = 190
    gqload = [f"buffer_load_dwordx2 {vr(GQ,2)}, v{a}, {ws}, s52 offen sc1" for a in (234, GQA)]

    def owrite(t):
        return [f"ds_write_b128 v{SW}, {vr(O[t],4)}{off(2048*t)}",
                f"ds_write_b128 v{SW}, {vr(O[t]+4,4)}{off(2048*t+1024)}",
                f"ds_write_b64 v{SW}, {vr(O[t]+8,2)}{off((6144, 6152, 7168)[t])}"]

    def scratch_addrs(base, stride):
        A(f"s_mul_i32 s4, s40, {stride}")
        A(f"s_add_u32 s4, s4, {base}")
        A(f"v_add_u32 v{SW}, s4, v{L16}")
        for t in range(3):
            A(f"s_xor_b32 s4, s40, {t ^ 3}")
            A(f"s_mul_i32 s4, s4, {stride}")
            A(f"s_add_u32 s4, s4, {base}")
            A(f"v_add_u32 v{RD+t}, s4, v{L16}")
        A(f"""
        v_bfe_u32 v{PM}, v{LANE}, 4, 1
        v_lshlrev_b32 v{PM}, 14, v{PM}
        v_lshrrev_b32 v{PE}, 5, v{LANE}
        v_lshl_add_u32 v{PM}, v{PE}, 8, v{PM}
        v_and_b32 v{PE}, 0xff, v{L16}
        v_add_u32 v{PM}, v{PM}, v{PE}
        v_and_b32 v{PE}, 31, v{LANE}
        v_lshlrev_b32 v{PE}, 2, v{PE}
        s_lshl_b32 s4, s39, 6
        s_lshl_b32 s5, s37, 2
        s_add_u32 s4, s4, s5
        s_add_u32 s4, s4, s40
        s_lshl_b32 s5, s4, 1
        s_and_b32 s6, s40, 1
        s_sub_u32 s5, s5, s6
        s_lshl_b32 s5, s5, 13
        s_lshl_b32 s6, s43, 9
        s_add_u32 s5, s5, s6
        s_add_u32 s65, s5, {OM}
        s_lshl_b32 s4, s4, 4
        s_add_u32 s4, s4, s43
        s_lshl_b32 s4, s4, 7
        s_add_u32 s66, s4, {OE}
        s_lshl_b32 s4, s37, 10
        s_lshr_b32 s5, s40, 1
        s_lshl_b32 s5, s5, 9
        s_add_u32 s4, s4, s5
        s_and_b32 s5, s40, 1
        s_lshl_b32 s5, s5, 7
        s_add_u32 s4, s4, s5
        s_add_u32 s52, s4, {GB}
        s_lshl_b32 s4, s39, 4
        s_add_u32 s4, s4, s37
        s_lshl_b32 s4, s4, 11
        s_lshl_b32 s5, s40, 6
        s_add_u32 s4, s4, s5
        s_lshl_b32 s5, s43, 2
        s_add_u32 s4, s4, s5
        s_add_u32 s61, s4, {FO}
        """)
        if FOM:
            A(f"""
            s_sub_u32 s4, s66, {OE}
            {"" if FOM == 2 else "s_lshr_b32 s4, s4, 11"}
            {"" if FOM == 2 else "s_lshl_b32 s4, s4, 7"}
            {"" if FOM == 2 else "s_add_u32 s4, s4, s5"}
            s_add_u32 s61, s4, {FO}
            """)
        A(f"""
        v_mov_b32 v{CA}, {CNT + (0 if base == AS else 12)}
        v_mov_b32 v{ONE}, 1
        """)

    def attention(old):
        pend = []

        def issue(lines, tag):
            for l in lines:
                if l.startswith("buffer_"):
                    pend.append(tag)
            return lines

        def wait_for(tag):
            last = max(i for i, t in enumerate(pend) if t == tag)
            n = len(pend) - 1 - last
            del pend[:last + 1]
            return f"s_waitcnt vmcnt({n})"

        if old: A("s_barrier")
        sp(old, "polled")
        if old: cs("polled")
        pro = issue([f"buffer_load_dwordx4 {vr(QT+16,4)}, v{QEA}, {ws}, s60 offen sc1"] + ldKE(0), "qe") + \
            issue(ldQ(0) + ldQ(1) + ldK(0), "q0") + issue(ldV(0), "g0") + issue(ldV(1), "g1")
        for l in pro:
            A(l)
            if not old and l.startswith("buffer_") and OPT.get("ypace", 0): A(f"s_sleep {OPT.get('ypace', 1)}")
        if not old:
            A("v_mov_b64 v[250:251], -1\nv_mov_b64 v[252:253], -1")
        if old:
            A(f"s_mov_b32 s4, {RC}")
            for l in issue([f"buffer_load_dwordx4 {vr(CAND,4)}, v{L16}, {ws}, s4 offen sc1"], "cand"): A(l)
            A("s_barrier")
            cs("issued")
            csflush(0, 12)
        A(f"""
        v_mov_b32 v{IDX}, 0xdddddddd
        s_bitcmp0_b32 s36, 0
        s_cselect_b32 s4, -1, 0
        s_cselect_b32 s5, 0, -1
        s_bitcmp1_b32 s40, 0
        """)
        l = lab("K2_qsel")
        w0, w1 = wait_for("qe"), wait_for("q0")
        A(f"s_cbranch_scc1 {l}")
        for b0 in (1, 0):
            if b0 == 0: A(f"{l}:")
            A(w0)
            for c in range(2):
                A(f"v_and_b32 v{QE+2*c}, s4, v{QT+16+2*(c^b0)}")
                A(f"v_and_b32 v{QE+2*c+1}, s5, v{QT+17+2*(c^b0)}")
            A(m2b(0, 0))
            A(w1)
            for t in (0, 2, 1, 3):
                for ab in range(2):
                    A(f"v_mov_b64 {vr(QM+4*t+2*ab,2)}, {vr(QT+8*(t>>1)+4*ab+2*((t&1)^b0),2)}")
            if b0 == 1: A(f"s_branch {l}_d")
        A(f"{l}_d:")
        A(kmov(0))
        A("s_nop 7")
        A(mm(0, 0, 0))
        A(mm(0, 0, 1))
        A("s_nop 10")
        A(f"s_setprio {1 if old else 0}")
        sp(old, "first")
        MK, MK2 = OPT.get("mk", (1, 5))
        XS = OPT.get("xsel", 9)
        TP = OPT.get("top2", 12)
        gsched = {}
        nx = 2
        for kt in range(16):
            for _ in range(2 if kt in OPT.get("ramp" if old else "yramp", (1, 3)) else 1):
                if nx <= min(15, kt + NB - 1):
                    gsched.setdefault(kt, []).append(nx); nx += 1
        dsched = {}
        d0, d1 = OPT.get("dma", (3, 29))
        order = range(21)
        for i, x in enumerate(order): dsched.setdefault(d0 + i * (d1 - d0) // 21, []).append(x)
        assert max(dsched) < 30
        touch = {}
        for kt in range(16):
            for c in range(2):
                n = 2 * kt + c
                cur = S[c]
                nxt = (kt, 1) if c == 0 else (kt + 1, 0)
                prv = (kt - 1, 1) if c == 0 else (kt, 0)
                has_next = n < 31
                ins = {}
                def at(p, l): ins.setdefault(p, []).extend(l if isinstance(l, list) else [l])
                if n > 0:
                    at(1, sm(prv[0], prv[1], 1, 1))
                L2 = OPT.get("lchain") == 2
                if c == 0:
                    if L2: at(1, "s_memtime s[82:83]")
                    todo = [(it, f"g{j}") for j in gsched.get(kt, []) for it in items(j)]
                    if old and kt == XS: todo += [(xsel_dma(0), "st1"), (xsel_dma(1), "st1")]
                    slots = [(0, 2), (0, 14), (0, 26), (1, 8), (1, 22), (1, 30)]
                    place = {sl: td for sl, td in zip(slots, todo)}
                    assert len(todo) <= len(slots)
                if c == 0 and L2: at(1, "s_memtime s[84:85]")
                if c == 1 and L2: at(4, "s_memtime s[86:87]")
                if c == 1 and has_next:
                    at(4, wait_for(f"g{kt+1}"))
                if c == 1 and L2:
                    at(4, "s_memtime s[88:89]")
                    at(30, ["s_waitcnt lgkmcnt(0)"] + sum([[f"s_sub_u32 s{82+2*q}, s{82+2*q}, s80", f"v_writelane_b32 v{PA}, s{82+2*q}, {4*kt+q}"] for q in range(4)], []))
                ev = [(p, td) for (cc, p), td in place.items() if cc == c]
                if old and n in touch: ev.append((19, (touch[n], "moe")))
                if old and not OPT.get("nomoe"):
                    for i, x in enumerate(dsched.get(n, [])): ev.append((6 + 10 * i, (moe_dma(x), "st1" if x < 12 else "moe")))
                XP = OPT.get("xp", 24)
                if old and n == XP - 1:
                    at(8, f"ds_read_b32 v250, v{TA} offset:3072")
                if old and XP <= n < XP + 3:
                    k = n - XP
                    ev.append((18, ((["s_waitcnt lgkmcnt(0)"] if k == 0 else []) +
                                    [f"s_add_u32 m0, s97, {1008*k}", f"s_add_u32 s4, s34, {7*1152*k}",
                                     f"buffer_load_dwordx4 v250, s[{sX}:{sX+3}], s4 offen lds"], "moe")))
                if not old and n == MK:
                    ev.append((18, ([f"buffer_store_dwordx4 v[250:253], v{PM}, {ws}, s65 offen sc1"], "mark")))
                    ev.append((20, ([f"buffer_store_dword v250, v{PE}, {ws}, s66 offen sc1"], "mark")))
                if n == 0: ev.append((12, None))
                for p, td in sorted(ev, key=lambda e: e[0]):
                    at(p, wait_for("g0") if td is None else issue(*td))
                if c == 1 and has_next: at(10, kmov(kt + 1))
                if has_next:
                    at(4, m2b(*nxt))
                    at(20, mm(nxt[0], nxt[1], 0))
                    at(28, mm(nxt[0], nxt[1], 1))
                at(12, sm(kt, c, 0, 0))
                at(17, sm(kt, c, 0, 1))
                at(25, sm(kt, c, 1, 0))
                if OPT.get("lchain") == 1:
                    if c == 0: at(0, "s_memtime s[88:89]")
                    else: at(0, ["s_waitcnt lgkmcnt(0)", "s_sub_u32 s88, s88, s80", f"v_writelane_b32 v{PA}, s88, {kt}"])
                if not old and n == MK2:
                    assert "mark" not in pend
                    at(6, ["s_mov_b64 exec, 1", f"ds_add_u32 v{CA}, v{ONE} offset:12", "s_mov_b64 exec, -1"])
                if n == 24:
                    if old:
                        at(2, f"ds_read_b128 {vr(M0,4)}, v{TA}")
                        at(26, "s_waitcnt lgkmcnt(0)")
                    at(27, issue([gqload[old]], "gq"))
                if n == 30:
                    at(0, [wait_for("gq"), f"v_cmp_ne_u32 vcc, s{sTAG}, v{GQ+1}", f"s_cbranch_vccnz K2_gqspin{int(old)}", f"K2_gqok{int(old)}:"])
                if old and n >= 27:
                    G, XF, WFs = 202, 148, [218, 222, 164, 168]
                    if n == 27:
                        at(8, f"v_mov_b32 v251, v{TAGV}")
                        at(14, f"v_mov_b32 v253, v{TAGV}")
                    elif n < 31:
                        assert "st1" not in pend
                        u = n - 28
                        at(2, f"ds_read_b128 {vr(XF,4)}, v{M3} offset:{12288+64*u}")
                        for t in range(4):
                            for a in range(2):
                                at(3 + 2 * t + a, f"ds_read_b64_tr_b16 {vr(WFs[t]+2*a,2)}, v{M0}{off(4096*u+512*a+32*t)}")
                            at((15, 19, 23, 30)[t], ([f"s_waitcnt lgkmcnt({(6, 0)[t]})"] if t < 2 else []) +
                               [mf16(vr(G + 4 * t, 4), vr(XF, 4), vr(WFs[t], 4), "0" if u == 0 else vr(G + 4 * t, 4))])
                    else:
                        at(7, ["s_mov_b32 s10, 0", "s_mov_b32 s11, -1", "s_add_u32 s4, s59, 6144",
                               f"v_cndmask_b32 v250, v{G}, v{G+4}, s[10:11]",
                               f"buffer_store_dwordx2 v[250:251], v{M4}, {ws}, s59 offen sc1"])
                        at(9, [f"v_cndmask_b32 v252, v{G+8}, v{G+12}, s[10:11]",
                               f"buffer_store_dwordx2 v[252:253], v{M4}, {ws}, s4 offen sc1"])
                if n == 31:
                    for t, p in ((0, 3), (2, 14), (1, 29)):
                        for i, l in enumerate(owrite(t)): at(p + i, l)
                if n == TP and old:
                    assert "cand" not in pend
                    B = Asm()
                    at(0, [f"v_cmp_ne_u32 vcc, s{sTAG}, v{CAND+1}", f"v_cmp_ne_u32 s[4:5], s{sTAG}, v{CAND+3}",
                           "s_or_b64 vcc, vcc, s[4:5]", "s_cbranch_scc1 K2_candspin", "K2_candok:"])
                    wave_max_u32(B, CAND, CAND + 1, 68)
                    B(f"s_nop 1\nv_cmp_ne_u32 vcc, s68, v{CAND}\ns_nop 1\nv_cndmask_b32 v{CAND}, v{CAND+2}, v{CAND}, vcc")
                    wave_max_u32(B, CAND, CAND + 1, 69)
                    B(f"""
                    s_nop 0
                    s_not_b32 s70, s68
                    s_not_b32 s71, s69
                    s_and_b32 s70, s70, 0x7ff
                    s_and_b32 s71, s71, 0x7ff
                    s_mul_i32 s10, s70, 1152
                    s_mul_i32 s11, s71, 1152
                    s_add_u32 s10, s10, s58
                    s_add_u32 s11, s11, s58
                    """)
                    p = -1
                    tail = []
                    for l in B.lines:
                        l = l.strip()
                        if l == "s_nop 1" and p + 2 <= 31:
                            p += 2
                        elif p + 2 > 31 or tail:
                            tail.append(l)
                        else:
                            at(p, l)
                    at(31, tail)
                for i in range(32):
                    A(f"v_exp_f32 v{cur+i}, v{cur+i}")
                    for l in ins.get(i, []):
                        if OPT.get("noload") and kt >= 2 and not l.startswith("v_"): continue
                        A(l)
        A("s_nop 1")
        A(sm(15, 1, 1, 1))
        sp(old, "loopend")
        if OPT.get("lchain"):
            A(f"""
            s_lshl_b32 s4, s2, 2
            s_add_u32 s4, s4, s40
            s_lshl_b32 s4, s4, 8
            s_add_u32 s4, s4, {0xD00000 + 0x40000*(0 if old else 1)}
            v_lshlrev_b32 v0, 2, v{LANE}
            buffer_store_dword v{PA}, v0, {ws}, s4 offen
            """)

    p1_compute()
    attention(True)
    if OPT.get("quit"):
        ST.flush(v=20)
        A("s_endpgm")
    if OPT.get("chain"): A("s_mov_b32 s96, 0")
    cs("loop end")
    A.c("---- MoE stage 2: fetch three partials per wave")
    PL = 184

    def pload():
        for q in range(3):
            A(f"buffer_load_dwordx2 {vr(PL+2*q,2)}, v{M4}, {ws}, s67 offen{off(512*q)} sc1")
    A(f"""
    s_and_b32 s4, s40, 1
    s_lshl_b32 s4, s4, 1
    s_lshr_b32 s5, s40, 1
    s_add_u32 s4, s4, s5
    s_lshl_b32 s5, s41, 2
    s_add_u32 s4, s4, s5
    s_mul_i32 s4, s4, 1536
    s_add_u32 s67, s4, {PG}
    s_cmp_eq_u32 s64, 0
    s_cbranch_scc1 K2_fin0
    """)
    pload()
    A("s_branch K2_fin0")

    A("K2_young2:")
    scratch_addrs(BS, 8192)
    A(f"v_and_b32 v234, 64, v{PE}\nv_add_lshl_u32 v234, v234, v{PE}, 1")
    sl0, sl1 = OPT.get("psleep", (10, 0))
    A(f"""
    s_barrier
    s_cmp_lg_u32 s40, 0
    s_cbranch_scc1 K2_p1seen
    s_mov_b32 s5, {SPIN}
    {f"s_sleep {sl0}" if sl0 else ""}
    K2_p1poll:
    buffer_load_dword v12, v{PA}, {ws}, 0 offen sc1
    buffer_load_dword v13, v{PA-2}, {ws}, 0 offen sc1
    s_sub_u32 s5, s5, 1
    s_cbranch_scc1 K2_p1seen
    s_waitcnt vmcnt(0)
    v_cmp_ne_u32 vcc, s{sTAG}, v12
    v_cmp_ne_u32 s[6:7], s{sTAG}, v13
    s_or_b64 vcc, vcc, s[6:7]
    s_cbranch_scc0 K2_p1seen
    {f"s_sleep {sl1}" if sl1 else ""}
    s_branch K2_p1poll
    K2_p1seen:
    s_barrier
    s_barrier
    """)
    attention(False)
    A("K2_fin0:")
    o = O[3]
    A.c("LDS executes a wave's operations in order: the count is bumped after this wave's writes, and reads issued")
    A.c("behind a count of 4 see every partial")
    A(f"""
    s_setprio 2
    s_mov_b64 exec, 1
    ds_add_u32 v{CA}, v{ONE}
    s_mov_b64 exec, -1
    K2_fin1:
    ds_read_b32 v0, v{CA}
    """)
    for t in range(3):
        A(f"ds_read_b128 {vr(O[t],4)}, v{RD+t}{off(2048*t)}")
        A(f"ds_read_b128 {vr(O[t]+4,4)}, v{RD+t}{off(2048*t+1024)}")
        A(f"ds_read_b64 {vr(O[t]+8,2)}, v{RD+t}{off((6144, 6152, 7168)[t])}")
    A("""
    s_waitcnt lgkmcnt(9)
    v_readfirstlane_b32 s4, v0
    s_cmp_lt_u32 s4, 4
    s_cbranch_scc1 K2_fin1
    """)
    A(f"s_mov_b32 s4, {f32bits(2.0**-30)}")
    A(f"s_mov_b32 s5, {f32bits(2.0**60)}")
    for t in range(3):
        A(f"s_waitcnt lgkmcnt({3*(2-t)})")
        for i in range(5):
            A(f"v_pk_add_f32 {vr(o+2*i,2)}, {vr(o+2*i,2)}, {vr(O[t]+2*i,2)}")
    A.c("safety check of the unshifted softmax: denominator in [2^-30, 2^60], numerators finite; else redo with the true max")
    A(f"""
    v_cmp_le_f32 s[6:7], s4, v{o+9}
    v_cmp_ge_f32 s[8:9], s5, v{o+9}
    v_max3_f32 v0, abs(v{o}), abs(v{o+1}), abs(v{o+2})
    v_max3_f32 v1, abs(v{o+3}), abs(v{o+4}), abs(v{o+5})
    v_max3_f32 v2, abs(v{o+6}), abs(v{o+7}), abs(v{o+8})
    v_max3_f32 v0, v0, v1, v2
    s_and_b64 s[6:7], s[6:7], s[8:9]
    v_cmp_gt_f32 vcc, {f32bits(2.0**120)}, v0
    s_and_b64 vcc, vcc, s[6:7]
    s_cmp_eq_u64 vcc, exec
    {"s_nop 0" if OPT.get("noload") else "s_cbranch_scc0 K2_slow"}
    """)
    A("K2_fin:")
    A(f"""
    v_rcp_f32 v0, v{o+9}
    s_cmp_eq_u32 s39, 0
    v_mul_f32 v0, v0, v{GQ}
    v_mul_f32 v2, v{o+8}, v0
    v_mul_f32 v3, v{o+8}, v0
    """)
    for i in range(4):
        A(f"v_pk_mul_f32 {vr(o+2*i,2)}, {vr(o+2*i,2)}, v[0:1] op_sel_hi:[1,0]")
    A("v_permlane32_swap_b32 v2, v3")
    for i in range(4):
        A(f"v_cvt_pk_bf16_f32 v{4+i}, v{o+2*i}, v{o+2*i+1}")
    for i in range(4):
        A(f"v_min_u32 v{4+i}, -2, v{4+i}")
    A(f"""
    buffer_store_dwordx4 v[4:7], v{PM}, {ws}, s65 offen sc1
    v_cvt_pk_bf16_f32 v2, v2, v3
    v_min_u32 v2, -2, v2
    buffer_store_dword v2, v{PE}, {ws}, s66 offen sc1
    s_cbranch_scc1 K2_old2
    s_mov_b64 exec, 1
    ds_add_u32 v{CA}, v{ONE} offset:4
    """)
    if gen1.DIAG:
        sp(0, "flag"); A("s_waitcnt vmcnt(0)")
    ST.flush(v=20)
    A("K2_end:")
    A("s_endpgm")

    A("K2_old2:")
    cs("fin")
    HPW, HPR, DNA, HA, HW, YA, FA, GA = range(208, 216)
    OUT, SG1, SG2, OEA, B1, SR, TV, SV = 240, 241, 242, 243, 248, 249, 252, 250
    ACC, OF, WF = 0, 20, 56
    XR, GV, T0 = 72, 244, 112
    srd(A, sO, 72, XB)
    gload = f"buffer_load_dwordx2 {vr(GV,2)}, v{GA}, {ws}, s52 offen sc1"
    A(f"""
    ds_read_b128 {vr(HPW,4)}, v{TA} offset:1024
    ds_read_b128 {vr(HW,4)}, v{TA} offset:2048
    ds_read_b128 {vr(OUT,4)}, v{TA} offset:3072
    ds_read_b64 {vr(B1,2)}, v{TA} offset:4096
    s_lshl_b32 s4, s32, 7
    s_add_u32 s52, s4, {GB}
    s_lshl_b32 s42, s40, 11
    s_add_u32 s66, s35, s42
    s_waitcnt vmcnt(2) lgkmcnt(0)
    s_cmp_eq_u32 s64, 0
    s_cbranch_scc1 K2_nop
    s_mov_b32 s5, {SPIN}
    K2_pchk:
    v_cmp_ne_u32 vcc, s{sTAG}, v{PL+1}
    v_cmp_ne_u32 s[8:9], s{sTAG}, v{PL+3}
    v_cmp_ne_u32 s[10:11], s{sTAG}, v{PL+5}
    s_or_b64 s[8:9], s[8:9], vcc
    s_or_b64 s[8:9], s[8:9], s[10:11]
    s_cbranch_scc0 K2_pok
    s_sleep 4
    """)
    pload()
    A(f"""
    s_sub_u32 s5, s5, 1
    s_waitcnt vmcnt(0)
    s_cbranch_scc0 K2_pchk
    K2_pok:
    v_add_f32 v10, v{PL}, v{PL+2}
    v_add_f32 v10, v10, v{PL+4}
    ds_write_b32 v{HPW}, v10
    K2_nop:
    """)
    arrive(1)
    A(gload)
    for T in range(5):
        A(f"ds_read_b64 {vr(XR+2*T,2)}, v{SG1 if T < 4 else SG2}{off(32*T)}")
    cs("partials")
    gwait(1)
    cs("gwait1")
    wpos = [0]

    def wodma(cnt, paced=True):
        for u in range(wpos[0], wpos[0] + cnt):
            if u == 11:
                A(f"s_sub_u32 s66, s66, s42\ns_mov_b32 s42, 0")
            A(f"s_add_u32 m0, s42, {8192*u}")
            A(f"s_add_u32 s67, s66, {8192*u}")
            for h in range(2):
                A(f"buffer_load_dwordx4 v{L16}, {ws}, s67 offen{off(1024*h)} sc1 lds")
            if paced: A(f"s_waitcnt vmcnt({OPT.get('wopace', 4)})")
        wpos[0] += cnt

    wodma(2, False)
    A("s_cmp_eq_u32 s64, 0")
    A("s_cbranch_scc1 K2_nost2")
    A.c("---- MoE: h = silu(gate) * up, then this wave's w_down column tiles")
    A(f"""
    ds_read2st64_b32 v[10:11], v{HPR} offset0:0 offset1:1
    ds_read2st64_b32 v[12:13], v{HPR} offset0:2 offset1:3
    """)
    for t in range(5):
        for a in range(2):
            A(f"ds_read_b64_tr_b16 {vr(24+4*t+2*a,2)}, v{DNA}{off(4608*a+32*t)}")
    A(f"""
    s_waitcnt lgkmcnt(10)
    v_pk_add_f32 v[10:11], v[10:11], v[12:13]
    v_mul_f32 v12, {0x80000000 | LOG2E}, v10
    v_exp_f32 v12, v12
    v_mul_f32 v10, v10, v11
    v_add_f32 v12, 1.0, v12
    v_rcp_f32 v12, v12
    s_mul_i32 s4, s41, 4608
    v_mul_f32 v10, v10, v12
    v_cvt_pk_bf16_f32 v10, v10, v10
    ds_write_b16 v{HW}, v10
    ds_read_b128 v[12:15], v{HA}
    """)
    for t in range(5, 10):
        for a in range(2):
            A(f"ds_read_b64_tr_b16 {vr(24+4*t+2*a,2)}, v{DNA}{off(4608*a+32*t)}")
    A(f"""
    s_add_u32 s5, s4, {YP}
    s_mov_b32 s10, 0
    s_mov_b32 s11, -1
    s_waitcnt lgkmcnt(10)
    """)
    Y = [128 + 4 * t for t in range(10)]
    for t in range(10):
        if t == 5: A("s_waitcnt lgkmcnt(0)")
        A(mf16(vr(Y[t], 4), "v[12:15]", vr(24 + 4 * t, 4), "0"))
    A("s_nop 1")
    for t in range(0, 10, 2):
        A(f"v_cndmask_b32 v{Y[t]}, v{Y[t]}, v{Y[t+1]}, s[10:11]")
        A(f"buffer_store_dword v{Y[t]}, v{YA}, {ws}, s5 offen{off(64*t)} sc1")
    A("K2_nost2:")
    arrive(7)
    cs("down")
    Y0 = WF
    nosel = OPT.get("nomoe2") or OPT.get("nosel")

    def yflag_load():
        A(f"buffer_load_dwordx4 {vr(Y0+48,4)}, v{T0+2}, {ws}, s65 offen sc1")

    def y_first():
        A(f"""
        s_lshr_b32 s6, s32, 2
        s_lshr_b32 s4, s70, 6
        s_cmp_eq_u32 s4, {"-1" if nosel else "s6"}
        s_cselect_b32 s64, 1, 0
        s_lshr_b32 s4, s71, 6
        s_cmp_eq_u32 s4, {"-1" if nosel else "s6"}
        s_cselect_b32 s4, 2, 0
        s_or_b32 s64, s64, s4
        s_cbranch_scc0 K2_noy0
        v_min_u32 v{T0+2}, 35, v{LANE}
        v_lshlrev_b32 v{T0+2}, 7, v{T0+2}
        s_mul_i32 s65, s40, {36*128}
        s_add_u32 s65, s65, {FY}
        """)
        yflag_load()
        A("K2_noy0:")

    def y_sum():
        A(f"""
        s_cmp_eq_u32 s64, 0
        s_cbranch_scc1 K2_noy1
        s_mov_b32 s5, {SPIN}
        K2_ypoll:
        v_cmp_ne_u32 vcc, s{sTAG}, v{Y0+48}
        v_cmp_ne_u32 s[8:9], s{sTAG}, v{Y0+49}
        v_cmp_ne_u32 s[10:11], s{sTAG}, v{Y0+50}
        s_or_b64 s[8:9], s[8:9], vcc
        v_cmp_ne_u32 vcc, s{sTAG}, v{Y0+51}
        s_or_b64 s[8:9], s[8:9], s[10:11]
        s_or_b64 s[8:9], s[8:9], vcc
        s_cbranch_scc0 K2_ypolled
        """)
        yflag_load()
        A(f"""
        s_sub_u32 s5, s5, 1
        s_waitcnt vmcnt(0)
        s_cbranch_scc0 K2_ypoll
        K2_ypolled:
        v_min_u32 v{T0}, 53, v{LANE}
        v_mul_u32_u24 v{T0+1}, 3641, v{T0}
        v_lshrrev_b32 v{T0+1}, 16, v{T0+1}
        v_mul_u32_u24 v{T0+1}, {4608-288}, v{T0+1}
        v_lshl_add_u32 v{T0}, v{T0}, 4, v{T0+1}
        """)
        A(f"""
        s_lshl_b32 s6, s33, 1
        s_mul_i32 s7, s40, {36*4608}
        s_add_u32 s6, s6, s7
        s_add_u32 s65, s6, {YP}
        s_bitcmp1_b32 s64, 0
        s_cselect_b32 s6, 0, 2304
        s_cselect_b32 s7, 0, 1024
        s_add_u32 s6, s6, s65
        v_add_u32 v{T0+1}, s7, v{TA}
        """)
        yloads()
        A("K2_noy1:")

    def yloads():
        for u in range(12):
            A(f"buffer_load_dwordx4 {vr(Y0+4*u,4)}, v{T0}, {ws}, s6 offen sc1")
            A(f"s_add_u32 s6, s6, {3*4608}")

    def y_sum2(later):
        A(f"""
        s_cmp_eq_u32 s64, 0
        s_cbranch_scc1 K2_noy2
        s_waitcnt vmcnt({later})
        K2_ysum:
        """)
        for u in range(1, 12):
            for hf in range(2):
                A(f"v_pk_add_f32 {vr(Y0+2*hf,2)}, {vr(Y0+2*hf,2)}, {vr(Y0+4*u+2*hf,2)}")
        A(f"""
        ds_write_b128 v{T0+1}, {vr(Y0,4)}
        s_cmp_lg_u32 s64, 3
        s_cbranch_scc1 K2_ydone
        s_mov_b32 s64, 2
        s_add_u32 s6, s65, 2304
        s_waitcnt lgkmcnt(0)
        v_add_u32 v{T0+1}, 1024, v{TA}
        """)
        yloads()
        A("s_waitcnt vmcnt(0)\ns_branch K2_ysum\nK2_ydone:")
        arrive(5)
        A("K2_noy2:")

    def poll():
        l = lab("K2_poll")
        A(f"""
        s_mov_b32 s5, {SPIN}
        {l}:
        buffer_load_dword v{T0}, v{FA}, {ws}, s100 offen sc1
        s_sub_u32 s5, s5, 1
        s_cbranch_scc1 {l}_d
        s_waitcnt vmcnt(0)
        v_cmp_ne_u32 vcc, s{sTAG}, v{T0}
        s_cbranch_vccnz {l}
        {l}_d:
        """)

    def oload(ks):
        if ks < 8:
            return [f"buffer_load_dwordx4 {vr(OF+4*ks,4)}, v{L16}, {ws}, s{98 if ks < 4 else 101} offen{off(1024*(ks%4))} sc1"]
        return [f"buffer_load_dword v{OF+32+c}, v{OEA}, {ws}, s99 offen{off(128*c)} sc1" for c in range(4)]

    A.c("---- the accumulators start as (1 - g) * b; b = x, plus sigmoid(r) * y on the routed tokens")
    A("s_mov_b32 s5, 0xffff0000")
    for i in range(10):
        A(f"v_lshlrev_b32 v{ACC+2*i}, 16, v{XR+i}")
        A(f"v_and_b32 v{ACC+2*i+1}, s5, v{XR+i}")
    wodma(3)
    assert OPT.get('wopace', 4) <= 6 and FOM == 1
    A.c("the paced waits above covered the o and y stores")
    A.c("the half-A flag also tells that waves 4-7 have marked their slots")
    gwait(6)
    A(f"""
    s_lshl_b32 s4, s41, 7
    s_lshl_b32 s5, s40, 2
    s_add_u32 s4, s4, s5
    s_add_u32 s4, s4, {FY}
    s_cmp_eq_u32 s64, 0
    s_cselect_b32 s4, {OOB}, s4
    s_mov_b64 exec, 1
    buffer_store_dword v{TAGV}, off, {ws}, s61 sc1
    buffer_store_dword v{TAGV}, off, {ws}, s4 sc1
    s_mov_b64 exec, -1
    s_mov_b32 s5, {SPIN}
    K2_gchk:
    v_cmp_ne_u32 vcc, s{sTAG}, v{GV+1}
    s_cbranch_vccz K2_gok
    {gload}
    s_sub_u32 s5, s5, 1
    s_waitcnt vmcnt(0)
    s_cbranch_scc0 K2_gchk
    K2_gok:
    v_sub_f32 v{GV}, 1.0, v{GV}
    v_lshlrev_b32 v{TV-1}, 5, v{FA}
    """)
    for i in range(10):
        A(f"v_pk_mul_f32 {vr(ACC+2*i,2)}, {vr(ACC+2*i,2)}, {vr(GV,2)} op_sel_hi:[1,0]")
    cs("flags")
    gwait(7)
    wodma(7)
    cs("wo dma")
    y_first()
    poll()
    A("s_waitcnt vmcnt(0)")
    cs("polled")
    arrive(2)
    y_sum()
    for ks in range(9):
        for l in oload(ks): A(l)

    def wreads(ks, X):
        return [f"ds_read_b128 {vr(WF+20*ks+4*T,4)}, v{B1 if X else L16}{off(1024*(5*ks+T))}" for T in range(5)]

    def p3mm(ks):
        return [mf16(vr(ACC + 4 * T, 4), vr(WF + 20 * ks + 4 * T, 4), vr(OF + 4 * ks, 4), vr(ACC + 4 * T, 4)) for T in range(5)]

    A(f"""
    s_add_u32 s98, s98, {128*8192}
    s_add_u32 s101, s101, {128*8192}
    s_add_u32 s99, s99, {64*2048}
    s_add_u32 s6, s34, {7*1152}
    s_add_u32 s7, s34, {14*1152}
    s_mov_b64 s[62:63], s[6:7]
    """)
    gwait(2)
    for ks in range(3, 8):
        for l in wreads(ks, 0): A(l)
    y_sum2(12)
    cs("yred")
    for ks in (0, 1, 2, 8):
        for l in wreads(ks, 0): A(l)
    cs("preload")
    sp(1, "ready")
    gwait(OPT.get("win", 4), 2)
    A("s_setprio 0")
    A("s_waitcnt vmcnt(0)")
    sp(1, "window")
    cs("window")
    GATE = OPT.get("egate", 1)
    epoll = f"buffer_load_dword v{TV+1}, v{TV-1}, {ws}, s99 offen sc1"
    A.c("---- half A; its registers are refilled for half B as they come free")
    for ks in range(10):
        fill = wreads(ks - 1, 1) if ks else []
        if ks == OPT.get("p0", 6): fill = [epoll] + fill
        mm5 = p3mm(ks) if ks < 9 else [None] * 5
        for T in range(5):
            if mm5[T]: A(mm5[T])
            for l in fill[T * len(fill) // 5:(T + 1) * len(fill) // 5]: A(l)
    cs("mfma")
    sp(1, "pre1")

    A.c("---- routed tokens of this wave's tile get (1 - g) * sigmoid(r) * y")
    YT, T0 = OF, OF + 28
    for sel in range(2):
        A(f"""
        s_lshr_b32 s4, s{70+sel}, 4
        s_cmp_lg_u32 s4, {"-1" if OPT.get("nomoe2") or OPT.get("nosel") else "s32"}
        s_cbranch_scc1 K2_nosel{sel}
        """)
        gwait(5)
        A(f"""
        v_lshlrev_b32 v{T0}, 3, v{LANE}
        v_add_u32 v{T0+1}, {TB + 1024*sel}, v{T0}
        """)
        for k in range(12):
            A(f"ds_read_b64 {vr(YT+2*k,2)}, v{T0+1}{off(5120*(k//3)+288*(k%3))}")
        A(f"""
        v_add_u32 v{T0}, s97, v{T0}
        s_ashr_i32 s6, s{68+sel}, 31
        s_not_b32 s6, s6
        s_or_b32 s6, s6, 0x80000000
        s_xor_b32 s6, s6, s{68+sel}
        s_and_b32 s6, s6, 0xffff0000
        v_mov_b32 v{T0+3}, {0x80000000 | LOG2E}
        v_mul_f32 v{T0+3}, s6, v{T0+3}
        v_exp_f32 v{T0+3}, v{T0+3}
        v_lshrrev_b32 v{T0+2}, 4, v{LANE}
        v_add_f32 v{T0+3}, 1.0, v{T0+3}
        v_rcp_f32 v{T0+3}, v{T0+3}
        v_lshl_add_u32 v{T0+1}, v{T0+2}, 4, s97
        v_and_b32 v{T0+2}, 1, v{T0+2}
        v_lshl_add_u32 v{T0+2}, v{T0+2}, 4, s97
        s_waitcnt lgkmcnt(0)
        """)
        for k in range(1, 12):
            A(f"v_pk_add_f32 {vr(YT,2)}, {vr(YT,2)}, {vr(YT+2*k,2)}")
        A(f"ds_write_b64 v{T0}, {vr(YT,2)}")
        for p in range(4):
            A(f"ds_read_b128 {vr(YT+4+4*p,4)}, v{T0+1}{off(64*p)}")
        A(f"ds_read_b128 {vr(YT+20,4)}, v{T0+2} offset:256")
        A(f"""
        s_and_b32 s6, s{70+sel}, 15
        s_lshl_b32 s6, s6, 7
        v_mul_f32 v{T0+3}, v{T0+3}, v{GV}
        v_cmp_eq_u32 vcc, s6, v{TV-1}
        s_waitcnt lgkmcnt(0)
        s_and_saveexec_b64 s[8:9], vcc
        """)
        for i in range(20):
            A(f"v_fmac_f32 v{ACC+i}, v{YT+4+i}, v{T0+3}")
        A("s_mov_b64 exec, s[8:9]")
        A(f"K2_nosel{sel}:")
    A.c("---- half B: one word per producer is watched first; the bulk is then fetched, used, and checked for empty words")
    A.c("(the accumulators are saved so that the pass can be repeated)")
    assert OPT.get("win", 4) == 4
    A(f"s_mul_i32 s4, s40, 5120\ns_add_u32 s4, s4, {BS}\nv_add_u32 v{SV}, s4, v{L16}")
    for i in range(5):
        A(f"ds_write_b128 v{SV}, {vr(ACC+4*i,4)}{off(1024*i)}")
    A(f"""
    s_mov_b32 s5, {SPIN}
    K2_epoll:
    s_waitcnt vmcnt(0)
    v_cmp_eq_u32 vcc, -1, v{TV+1}
    s_cbranch_vccz K2_eseen
    {epoll}
    s_sub_u32 s5, s5, 1
    s_cbranch_scc0 K2_epoll
    s_mov_b32 s5, 0
    K2_eseen:
    """)
    sp(1, "eseen")
    for ks in range(9):
        for l in oload(ks): A(l)
    A(f"v_mov_b32 v{TV}, 0")
    for ks in range(9):
        A(f"s_waitcnt vmcnt({11-ks if ks < 8 else 0})" + (" lgkmcnt(0)" if ks == 0 else ""))
        f = OF + 4 * ks
        for T, l in enumerate(p3mm(ks)):
            A(l)
            if T < 2: A(f"v_max3_u32 v{TV}, v{TV}, v{f+2*T}, v{f+2*T+1}")
            if T == 2 and ks == 8: A(f"v_cmp_eq_u32 vcc, -1, v{TV}")
    A("s_cbranch_vccnz K2_redo")
    A("K2_out:")
    if not OPT.get("chain"): sp(1, "fpolled")
    cs("halfB")
    A("s_nop 0")
    for i in range(10):
        A(f"v_cvt_pk_bf16_f32 v{XR+i}, v{ACC+2*i}, v{ACC+2*i+1}")
        if i % 2: A(f"ds_write_b64 v{SG1 if i < 8 else SG2}, {vr(XR+i-1,2)}{off(16*(i-1))}")
    for n in range(3):
        A(f"ds_read_b128 {vr(WF+4*n,4)}, v{SR}{off(1008*n)}")
    for n in range(3):
        if n == 2: A("s_mov_b64 exec, 0x3ffff")
        A(f"s_waitcnt lgkmcnt({2-n})")
        A(f"buffer_store_dwordx4 {vr(WF+4*n,4)}, v{OUT}, s[{sO}:{sO+3}], s{(34, 62, 63)[n]} offen")
    A.c("the owner of the first routed token saw all 144 stage-2 flags, so every workgroup has taken its tag: hand d_debug back as zero")
    A(f"""
    s_lshr_b32 s4, s70, 4
    s_cmp_lg_u32 s4, s32
    s_cbranch_scc1 K2_fini
    v_mov_b32 v{TV}, 0
    buffer_store_dword v{TV}, off, s[{sDBG}:{sDBG+3}], 0 sc1
    K2_fini:
    """)
    if gen1.DIAG: A("s_mov_b64 exec, -1")
    cs("epilogue")
    if gen1.DIAG: A("s_waitcnt vmcnt(0)")
    cs("drain")
    csflush(1, 100)
    ST.flush(v=100)
    A("s_endpgm")
    A("K2_redo:\ns_sub_u32 s5, s5, 1\ns_cbranch_scc1 K2_out\ns_nop 7")
    for i in range(5):
        A(f"ds_read_b128 {vr(ACC+4*i,4)}, v{SV}{off(1024*i)}")
    A("s_branch K2_eseen")

    A.c("---- slow path: two passes over all keys with the true row maximum (own q tile)")
    A("K2_slow:")
    M, KA, VA, VA2, KEA = 40, 42, 43, 44, 45
    lane_addrs(KA, VA, VA2, KEA)
    A(f"""
    s_and_b32 s4, s40, 1
    s_lshl_b32 s4, s4, 3
    s_add_u32 s59, s57, s4
    buffer_load_dwordx2 {vr(QE,2)}, v{KEA}, {ws}, s59 offen sc1
    buffer_load_dwordx2 {vr(QM,2)}, v{KA}, {ws}, s59 offen sc1
    buffer_load_dwordx2 {vr(QM+2,2)}, v{KA}, {ws}, s59 offen offset:256 sc1
    v_and_b32 v4, 31, v{LANE}
    v_or_b32 v5, 4, v4
    v_cmp_eq_u32 vcc, 21, v5
    v_mov_b32 v6, 0x3f803f80
    s_bitcmp0_b32 s36, 0
    v_cndmask_b32 v{VV[0]}, 0, v6, vcc
    s_cselect_b32 s4, -1, 0
    s_cselect_b32 s5, 0, -1
    """)
    for i in range(1, 8):
        A(f"v_mov_b32 v{VV[0]+i}, v{VV[0]}")
    for i in range(16):
        A(f"v_mov_b32 v{o+i}, 0")
    A(f"""
    v_mov_b32 v{M}, 0xff800000
    s_waitcnt vmcnt(0)
    v_and_b32 v{QE}, s4, v{QE}
    v_and_b32 v{QE+1}, s5, v{QE+1}
    """)
    for pas in range(2):
        A("s_mov_b32 s10, 0")
        A(f"K2_slow{pas}:")
        A(f"""
        s_lshr_b32 s8, s10, 1
        s_mul_i32 s8, s8, {2*R}
        s_add_u32 s8, s8, 36864
        s_and_b32 s9, s10, 1
        s_lshl_b32 s11, s9, 3
        s_add_u32 s11, s11, s8
        s_mul_i32 s9, s9, 18432
        s_add_u32 s8, s8, s9
        s_add_u32 s9, s8, {R}
        buffer_load_dwordx2 {vr(KP[0],2)}, v{KA}, {ws}, s11 offen sc1
        buffer_load_dwordx2 {vr(KP[0]+2,2)}, v{KA}, {ws}, s11 offen offset:256 sc1
        buffer_load_dwordx2 {vr(KE,2)}, v{KEA}, {ws}, s11 offen sc1
        """)
        if pas:
            A(f"""
            s_mov_b64 exec, s[62:63]
            buffer_load_dwordx4 {vr(VV[0],4)}, v{VA}, {ws}, s8 offen sc1
            buffer_load_dwordx4 {vr(VV[0]+4,4)}, v{VA}, {ws}, s9 offen sc1
            s_mov_b64 exec, -1
            """)
        A(f"""
        s_waitcnt vmcnt(0)
        v_mfma_f32_32x32x4_2b_bf16 v[0:31], {vr(KE,2)}, {vr(QE,2)}, 0
        s_nop 15
        s_nop 3
        {mfma("v[0:15]", vr(KP[0],4), vr(QM,4), "v[0:15]")}
        s_nop 15
        """)
        if not pas:
            for i in range(8):
                A(f"v_max3_f32 v{M}, v{M}, v{2*i}, v{2*i+1}")
        else:
            for i in range(16):
                A(f"v_sub_f32 v{i}, v{i}, v{M}")
            for i in range(16):
                A(f"v_exp_f32 v{i}, v{i}")
            A("s_nop 1")
            A(f"v_smfmac_f32_32x32x32_bf16 {vr(o,16)}, {vr(VV[0],4)}, v[0:7], v{IDX}")
            A(f"v_smfmac_f32_32x32x32_bf16 {vr(o,16)}, {vr(VV[0]+4,4)}, v[8:15], v{IDX}")
            A("s_nop 15")
        A(f"""
        s_add_u32 s10, s10, 1
        s_cmp_lt_u32 s10, 64
        s_cbranch_scc1 K2_slow{pas}
        """)
        if not pas:
            A(f"""
            v_mov_b32 v{M+1}, v{M}
            s_nop 1
            v_permlane32_swap_b32 v{M}, v{M+1}
            s_nop 1
            v_max_f32 v{M}, v{M}, v{M+1}
            """)
    A("s_branch K2_fin")
    for r in range(2):
        A(f"""
        K2_gqspin{r}:
        s_mov_b32 s6, {SPIN}
        K2_gqspin{r}1:
        {gqload[r]}
        s_sub_u32 s6, s6, 1
        s_waitcnt vmcnt(0)
        s_cbranch_scc1 K2_gqok{r}
        v_cmp_ne_u32 vcc, s{sTAG}, v{GQ+1}
        s_cbranch_vccnz K2_gqspin{r}1
        s_branch K2_gqok{r}
        """)
    A.c("---- router candidates not published yet (rare): wait for them")
    A(f"""
    {"K2_candok:" if OPT.get("noload") else ""}
    K2_candspin:
    s_mov_b32 s6, {SPIN}
    s_mov_b32 s7, {RC}
    K2_candspin1:
    buffer_load_dwordx4 {vr(CAND,4)}, v{L16}, {ws}, s7 offen sc1
    s_sub_u32 s6, s6, 1
    s_waitcnt vmcnt(0)
    s_cbranch_scc1 K2_candok
    v_cmp_ne_u32 vcc, s{sTAG}, v{CAND+1}
    v_cmp_ne_u32 s[4:5], s{sTAG}, v{CAND+3}
    s_or_b64 vcc, vcc, s[4:5]
    s_cbranch_scc1 K2_candspin1
    s_branch K2_candok
    """)
    A("K2_codeend:")
    A("s_endpgm")
    return CNT + 48


def build():
    A = Asm()
    A('.amdgcn_target "amdgcn-amd-amdhsa--gfx950"')
    A(".text")
    lds = k23(A)
    A('.section .rodata,"a"')
    A(".p2align 6")
    A.raw(descriptor(NAME, 256, 256))
    head = ("; gated mix of a 32-head attention block and a top-2 routed SwiGLU FFN (S=2048, D=576), one launch\n"
            f"; @launch grid=(256,1,1) block=(512,1,1) lds={lds}\n")
    return head + A.text()


if __name__ == "__main__":
    out = sys.argv[1]
    gen1.DIAG = len(sys.argv) > 2 and sys.argv[2] == "diag"
    if len(sys.argv) > 3:
        OPT = eval(sys.argv[3]); gen1.OPT = OPT
    open(out, "w").write(build())
```

```python
import sys
sys.path.insert(0, "gen")
from asmlib import *
import gen1
from gen1 import YP, WS_SIZE, XB, f32bits, QSCALE, LOG2E, mfma, Stamp
NAME = "gated_mix__mha_block__moe_arch_mod__prompt_kernel"
R = 110592
GB = 0x6C0000
RC = 0x6C4000
F1 = 0xA60000
PG = 0xB00000
WP = 0xE00000
OOB = 0x7FFFFF00

OM = 0x700000
OE = 0x900000
FO = 0xA00000
FY = 0xA40000
EP = 0xA50000
OPT = {}
SPIN = 1 << 17


def mf16(d, a, b, c):
    return f"v_mfma_f32_16x16x32_bf16 {d}, {a}, {b}, {c}"


def k23(A):
    kernel_head(A, NAME)
    sDBG, sX, sG, sWS, sD, sU, sWO, sO = 12, 16, 20, 24, 28, 32, 72, 76
    sW, sWB = 20, 28
    S = [0, 32]
    O = [64, 80, 96, 112]
    QM, QE, KE = 128, 144, 148
    NB = 5
    KP = [164 + 10 * g for g in range(3)]
    VV = [194 + 8 * g for g in range(NB)]
    IDX, L16, VA, LANE = 236, 237, 238, 239
    KA, VA2, KEA, GUA, TAGV = 240, 241, 242, 234, 246
    CAND, PA, RET, ONE, CA = 250, 252, 253, 254, 255
    QEA = 251
    SW, PM, PE, RD = 243, 244, 245, 247
    DNA, DN5 = 245, 247
    M0, M3, M4, GQA = 152, 153, 154, 155
    TA = 235
    sT = [44 + t for t in range(8)] + [72 + t for t in range(8)]
    sTAG = 53
    WREG = 14336
    AS = 0
    DN = 4 * WREG
    STG = DN + 36864
    TB = STG + 4 * 3072
    BS = 129024
    HP = BS + 4 * 8192
    HS = HP + 1024
    CNT = HS + 512
    SLOT = 32768
    RGV = 4 * SLOT
    ws = f"s[{sWS}:{sWS+3}]"
    uid = [0]
    FOM = OPT.get("fo", 1)
    FOX, FOS = (("0xff", 8), ("1", 2), ("1\ns_mov_b32 exec_lo, -1", 2))[FOM]

    def lab(p):
        uid[0] += 1
        return f"{p}_{uid[0]}"

    def cs(name):
        if not OPT.get("chain"): return
        A("s_memtime s[88:89]")
        A("s_waitcnt lgkmcnt(0)")
        A("s_sub_u32 s88, s88, s80")
        A("s_mov_b32 m0, s96")
        A(f"v_writelane_b32 v{IDX}, s88, m0")
        A("s_add_u32 s96, s96, 1")
        A.c("stamp " + name)

    def csflush(k, v):
        if not OPT.get("chain"): return
        A(f"""
        s_lshl_b32 s4, s2, 2
        s_add_u32 s4, s4, s38
        s_lshl_b32 s4, s4, 8
        s_add_u32 s4, s4, {0xD00000 + 0x40000*k}
        v_lshlrev_b32 v{v}, 2, v{LANE}
        buffer_store_dword v{IDX}, v{v}, {ws}, s4 offen
        s_nop 1
        """)

    def arrive(k):
        A(f"""
        s_mov_b64 exec, 1
        ds_add_u32 v{CA}, v{ONE}{off(4*k)}
        s_mov_b64 exec, -1
        """)

    def gwait(k, sl=1):
        l = lab("K2_gw")
        A(f"""
        {l}:
        ds_read_b32 v247, v{CA}{off(4*k)}
        s_waitcnt lgkmcnt(0)
        v_readfirstlane_b32 s4, v247
        s_cmp_ge_u32 s4, 4
        s_cbranch_scc1 {l}_d
        s_sleep {sl}
        s_branch {l}
        {l}_d:
        """)

    tagload = f"buffer_load_dword v{TAGV}, off, s[{sDBG}:{sDBG+3}], 0 sc1"

    def gettag():
        l = lab("K2_tag")
        A(f"""
        s_mov_b32 s5, {SPIN}
        {l}:
        s_waitcnt vmcnt(0)
        v_readfirstlane_b32 s{sTAG}, v{TAGV}
        s_cmp_lg_u32 s{sTAG}, 0
        s_cbranch_scc1 {l}_d
        s_sleep 8
        {tagload}
        s_sub_u32 s5, s5, 1
        s_cbranch_scc0 {l}
        {l}_d:
        """)

    def lane_addrs(KA, VA, VA2, KEA):
        A(f"""
        s_lshr_b32 s4, s36, 1
        s_mul_i32 s4, s4, {9*256}
        s_and_b32 s5, s36, 1
        s_mul_i32 s5, s5, {5*256}
        s_add_u32 s5, s5, s4
        s_add_u32 s4, s4, 1024
        v_and_b32 v4, 31, v{LANE}
        v_lshrrev_b32 v6, 5, v{LANE}
        v_lshrrev_b32 v5, 4, v4
        v_mul_u32_u24 v5, {R-256}, v5
        v_lshl_add_u32 v5, v4, 4, v5
        v_add_u32 v{KEA}, s4, v5
        v_add_u32 v{KA}, s5, v5
        v_lshl_add_u32 v{KA}, v6, 9, v{KA}
        s_mul_i32 s4, s36, 288
        s_add_u32 s4, s4, 36864
        v_min_u32 v5, 17, v4
        v_lshl_add_u32 v{VA}, v5, 4, s4
        v_mul_u32_u24 v5, 9216, v6
        v_add_u32 v{VA}, v{VA}, v5
        v_add_u32 v{VA2}, 18432, v{VA}
        """)

    def att_setup(old):
        A(f"""
        s_lshl_b32 s4, s3, 1
        s_bfe_u32 s5, s2, 0x10003
        s_add_u32 s43, s4, s5
        s_lshr_b32 s37, s2, 4
        s_lshl_b32 s36, s43, 1
        s_add_u32 s36, s36, s39
        """)
        A.c("s36 head, s37 q block (128), s38 wave, s39 head half, s40 key quarter, s43 head within half")
        lane_addrs(KA, VA, VA2, KEA)
        A(f"""
        s_mul_i32 s10, s37, {4*R}
        s_xor_b32 s11, s40, 3
        """)
        A.c("a 32-row tile = the same 16-token half of two neighbouring records; local q tile t is tile t ^ 3 ^ kq")
        A(f"""
        s_mov_b32 s60, s10
        s_lshr_b32 s4, s11, 1
        s_mul_i32 s5, s4, {2*R}
        s_add_u32 s56, s10, s5
        s_xor_b32 s5, s4, 1
        s_mul_i32 s5, s5, {2*R}
        s_add_u32 s57, s10, s5
        v_xor_b32 v5, s4, v6
        s_mov_b32 s4, {2*R}
        v_mad_u32_u24 v{QEA}, v5, s4, v{KEA}
        s_and_b32 s9, s37, {OPT.get("rot", 0)}
        s_and_b32 s5, s9, 1
        v_xor_b32 v5, s5, v6
        v_subrev_u32 v5, s5, v5
        v_mad_i32_i24 v{KEA}, v5, s4, v{KEA}
        s_mul_i32 s10, s40, {16*R}
        s_add_u32 s10, s10, 36864
        """)
        assert not OPT.get("rot", 0) & 1
        for m in range(8):
            A(f"s_xor_b32 s4, s9, {m}")
            A(f"s_mul_i32 s4, s4, {2*R}")
            A(f"s_add_u32 s{sT[2*m]}, s10, s4")
            A(f"s_add_u32 s{sT[2*m+1]}, s{sT[2*m]}, {R}")
        A("s_mov_b32 s62, 0x0011ffff\ns_mov_b32 s63, 0x0011ffff")
        if not old: return
        A.c("projection flags of this head pair: lane = (k / v, first / last channel, token block), the two q flags and the two flags of the packed w_o block")
        A(f"""
        s_mul_i32 s4, s43, 36
        v_bfe_u32 v5, v{LANE}, 4, 1
        v_mad_u32_u24 v5, v5, 35, s4
        v_lshrrev_b32 v7, 7, v5
        v_lshl_add_u32 v7, v7, 4, s37
        s_and_b32 s4, s37, 14
        s_add_u32 s4, s4, {224 - 2}
        v_lshrrev_b32 v8, 4, v{LANE}
        v_cmp_lt_u32 vcc, 1, v8
        v_add_u32 v8, s4, v8
        s_mov_b32 s4, {F1}
        v_cndmask_b32 v7, v7, v8, vcc
        v_lshl_add_u32 v{PA+1}, v7, 5, s4
        v_mul_u32_u24 v7, 576, v6
        v_add_u32 v5, 576, v5
        v_add_u32 v5, v5, v7
        v_lshrrev_b32 v5, 7, v5
        v_and_b32 v7, 15, v{LANE}
        v_lshl_add_u32 v5, v5, 4, v7
        v_lshl_add_u32 v{PA}, v5, 5, s4
        """)

    ACC, PK, AX, AW, SA = 64, 128, 220, 224, 250
    FR = [0, 32]

    def acc(a, T):
        return ACC + 16 * a + 4 * T

    def epilogue(vmode, r, scale):
        out = []
        for T in range(4):
            p = PK + 16 * r + 4 * T
            for a in (2 * r, 2 * r + 1):
                d = acc(a, T)
                if scale:
                    out += [f"v_pk_mul_f32 {vr(d+2*i,2)}, {vr(d+2*i,2)}, s[98:99]" for i in range(2)]
                out += [f"v_cvt_pk_bf16_f32 v{p+2*(a%2)+i}, v{d+2*i}, v{d+2*i+1}" for i in range(2)]
            out.append(f"buffer_store_dwordx4 {vr(p,4)}, v{SA}, {ws}, s{65+r} offen{off((256 if vmode else 1024)*T)} sc1")
        return out

    def xread(n, a, vmode):
        c, s_ = divmod(n, 2)
        k, o = divmod(c % 4, 2)
        to = (a // 2) * 4096 + (a % 2) * 512 if vmode else a * 2048
        return f"ds_read_b128 {vr(FR[n%2]+4*a,4)}, v{AX+2*k+s_}{off(o*SLOT+to)}"

    def reads(n, vmode):
        c, s_ = divmod(n, 2)
        k, o = divmod(c % 4, 2)
        w = [[(f"w{T}", f"ds_read_b64_tr_b16 {vr(FR[n%2]+16+4*T+2*a,2)}, v{AW+4*k+T}{off(o*SLOT+(32*s_+4*a)*128)}") for a in range(2)] for T in range(4)]
        x = [(f"x{a}", xread(n, a, vmode)) for a in range(4)]
        return [(f"{n}{t}", l) for t, l in w[0] + x[:1] + w[1] + w[2] + w[3] + x[1:]]

    def gemm(vmode):
        q = []

        def put(r):
            if OPT.get("nord") and len(r[0]) + int(r[0][0] > "1") > 3: return
            q.append(r[0]); A(r[1])

        def need(*tags):
            idx = [i for i, t in enumerate(q) if t in tags]
            if idx:
                A(f"s_waitcnt lgkmcnt({len(q) - 1 - max(idx)})")
                del q[:max(idx) + 1]
        A("s_barrier")
        sp(1, "b0")
        cs("B0")
        for r in reads(0, vmode): put(r)

        def mm1(n, a, T):
            need(f"{n}x{a}", f"{n}w{T}")
            d = vr(acc(a, T), 4)
            x, w = vr(FR[n % 2] + 4 * a, 4), vr(FR[n % 2] + 16 + 4 * T, 4)
            c = "0" if n == 0 else d
            A(mf16(d, x, w, c) if vmode else mf16(d, w, x, c))
        for n in range(16):
            Rn = reads(n + 1, vmode)
            bp = OPT.get("bp", (0, 6))[n == 15] if n % 2 else 0
            for i in range(16):
                if i == 0 and n > 0: need(f"{n}x0", f"{n}w0", f"{n}w1", f"{n}w2", f"{n}w3")
                mm1(n, i // 4, i % 4)
                if i == bp and n % 2 == 1:
                    need(f"{n}x3")
                    A("s_barrier")
                if i == 0 and n == OPT.get("tagstep", 8): A(tagload)
                if i == 0 and n == OPT.get("tagstep", 8) + 5: gettag()
                if i >= bp:
                    k = 1 if bp <= 2 else 2
                    for r in Rn[k * (i - bp):k * (i - bp) + k]: put(r)
        Rn = reads(17, vmode)
        for i in range(8):
            mm1(16, i // 4, i % 4)
            for r in Rn[2 * i:2 * i + 2]: put(r)
        for i in range(8): mm1(17, i % 2, i // 2)
        q0 = list(q)
        if not vmode: A("s_cmp_lt_u32 s69, 9\ns_cbranch_scc1 K2_qtail")
        for scale in ((False,) if vmode else (False, True)):
            q[:] = q0
            if scale: A("K2_qtail:")
            E = epilogue(vmode, 0, scale)
            tail = [(16, 2 + i // 4, i % 4) for i in range(8)] + [(17, 2 + i % 2, i // 2) for i in range(8)]
            for i, t in enumerate(tail):
                mm1(*t)
                if not OPT.get("ilv", (1, 1))[not scale]:
                    if i == 15:
                        for l in E: A(l)
                elif i >= 2:
                    for l in E[(i - 2) * len(E) // 14:(i - 1) * len(E) // 14]: A(l)
            sp(1, "passa")
            cs("pass A")
            A("s_nop 1")
            for l in epilogue(vmode, 1, scale): A(l)
            sp(1, "astore")
            cs("a stores")
            A("s_branch K2_p1done")

    def pflag(sf):
        A(f"""
        v_lshlrev_b32 v12, 2, v{LANE}
        s_cmp_lg_u32 s40, 0
        s_waitcnt vmcnt(0)
        s_barrier
        s_cbranch_scc1 K2_noflag
        s_mov_b64 exec, 0xff
        buffer_store_dword v{TAGV}, v12, {ws}, s{sf} offen sc1
        s_mov_b64 exec, -1
        K2_noflag:
        """)

    def presets():
        A.c("V registers are preset: rows 17 and 21 are the all-ones rows that produce the softmax denominator")
        A.c("(1 + 127*2^-16 has the bit pattern 0x3f803f80 = two bf16 ones; the matrix unit fills 32 registers per instruction)")
        A(f"""
        v_and_b32 v4, 31, v{LANE}
        v_or_b32 v5, 4, v4
        v_cmp_eq_u32 vcc, 21, v5
        v_mov_b32 v6, 0x3afe3f80
        v_mov_b32 v8, 0x3f803f80
        v_cndmask_b32 v6, 0, v6, vcc
        v_mov_b32 v7, 0
        v_mov_b32 v9, 0
        v_mov_b32 v10, 0
        v_mov_b32 v11, 0
        v_mfma_f32_32x32x4_2b_bf16 {vr(170,32)}, v[8:9], v[6:7], 0
        v_mfma_f32_32x32x4_2b_bf16 {vr(202,32)}, v[8:9], v[6:7], 0
        v_mfma_f32_32x32x4_2b_bf16 {vr(O[0],32)}, v[10:11], v[10:11], 0
        v_mfma_f32_32x32x4_2b_bf16 {vr(O[2],32)}, v[10:11], v[10:11], 0
        s_nop 3
        """)

    def p1_addrs():
        A.c("wave = 64 tokens (s40 & 1) x one 64-channel tile (s40 >> 1); v tiles map row 4g+j of tile a to token 8g+4a+j")
        A(f"""
        v_lshrrev_b32 v1, 4, v{LANE}
        v_and_b32 v2, 15, v{LANE}
        v_and_b32 v3, 12, v2
        v_add_u32 v3, v3, v2
        s_cmp_eq_u32 s100, 2
        s_cselect_b64 vcc, -1, 0
        v_cndmask_b32 v3, v2, v3, vcc
        v_mul_u32_u24 v4, 9216, v1
        v_lshl_add_u32 v4, v2, 4, v4
        v_cndmask_b32 v{SA}, v{L16}, v4, vcc
        v_lshrrev_b32 v4, 1, v2
        v_xor_b32 v4, v4, v1
        s_and_b32 s4, s40, 1
        s_lshl_b32 s4, s4, 1
        s_cmp_eq_u32 s100, 3
        s_cselect_b32 s4, s40, s4
        s_lshl_b32 s5, s68, 2
        s_add_u32 s71, s5, s4
        s_lshl_b32 s4, s4, 12
        v_lshl_add_u32 v3, v3, 7, s4
        v_lshl_add_u32 v{AX}, v4, 4, v3
        v_xor_b32 v{AX+1}, 64, v{AX}
        v_add_u32 v{AX+2}, {2*SLOT}, v{AX}
        v_add_u32 v{AX+3}, {2*SLOT}, v{AX+1}
        v_bfe_u32 v3, v{LANE}, 2, 2
        v_lshl_add_u32 v4, v1, 3, v3
        v_lshlrev_b32 v4, 7, v4
        v_bfe_u32 v3, v{LANE}, 3, 2
        v_lshl_add_u32 v4, v3, 5, v4
        v_and_b32 v3, 3, v{LANE}
        v_lshl_add_u32 v4, v3, 3, v4
        s_lshr_b32 s7, s40, 1
        s_lshl_b32 s4, s7, 13
        s_add_u32 s4, s4, 16384
        v_add_u32 v{AW}, s4, v4
        """)
        for T in range(1, 4):
            A(f"v_xor_b32 v{AW+T}, {32*T}, v{AW}")
        for T in range(4):
            A(f"v_add_u32 v{AW+4+T}, {2*SLOT}, v{AW+T}")
        A.c("store base s65 and flag address s61 of this wave's tile")
        A(f"""
        s_add_u32 s69, s69, s7
        s_mul_i32 s4, s71, {R}
        s_lshl_b32 s5, s69, 12
        s_lshl_b32 s6, s69, 10
        s_add_u32 s6, s6, {73728 - 18*1024}
        s_cmp_eq_u32 s100, 2
        s_cselect_b32 s5, s6, s5
        s_add_u32 s65, s4, s5
        s_add_u32 s66, s65, {R}
        s_lshl_b32 s4, s97, 4
        s_add_u32 s4, s4, s68
        s_lshl_b32 s4, s4, 5
        s_add_u32 s61, s4, {F1}
        s_mov_b32 s98, {QSCALE}
        s_mov_b32 s99, s98
        """)

    A("s_cmp_ge_u32 s2, 256")
    A("s_cbranch_scc1 K2_end")
    ST = Stamp(A, 0); ST.t(0)
    STS = OPT.get("st", ("astore,polled,loopend,fpolled", "loaded,polled,loopend,flag"))

    def sp(old, name):
        L = STS[0 if old else 1].split(",")
        if name in L: ST.t(1 + L.index(name))
    srd(A, sX, 0, XB)
    srd(A, sW, 8, 576 * 3456)
    srd(A, sWS, 88, WS_SIZE)
    srd(A, sDBG, 80, 256)
    A(f"""
    v_lshrrev_b32 v1, 6, v0
    v_and_b32 v{LANE}, 63, v0
    v_readfirstlane_b32 s38, v1
    v_lshlrev_b32 v{L16}, 4, v{LANE}
    s_and_b32 s3, s2, 7
    s_and_b32 s4, s2, 3
    s_bfe_u32 s5, s2, 0x20003
    s_lshl_b32 s68, s4, 2
    s_add_u32 s68, s68, s5
    s_lshr_b32 s6, s3, 2
    s_lshr_b32 s7, s2, 5
    s_mul_i32 s97, s6, 7
    s_add_u32 s97, s97, s7
    s_lshl_b32 s69, s97, 1
    s_cmp_ge_u32 s97, 9
    s_cselect_b32 s100, 2, 0
    s_cmp_lt_u32 s97, 13
    s_cselect_b32 s101, 1, 0
    s_lshr_b32 s9, s5, 1
    s_xor_b32 s9, s9, s6
    s_add_u32 s9, s9, 3
    s_cmp_eq_u32 s7, 7
    s_cselect_b32 s100, s9, s100
    s_cselect_b32 s101, 0, s101
    s_lshr_b32 s39, s38, 2
    s_and_b32 s40, s38, 3
    s_cmp_eq_u32 s39, 0
    s_cbranch_scc1 K2_old
    """)
    CR = OPT.get("cr", (1, 4, 1, 4, 1, 2, 1))
    A.c("projection tile: s68 token block (128), s97 channel tile (128), s100 kind (0 q/k, 2 v, 3 router, 4 none), s69 first block, s101 has a second block")
    A.c("=========== waves 4-7 first stage x and w_qkv for the projection (k chunks start at s71, for L2 locality only)")
    A(f"""
    s_setprio 2
    s_cmp_eq_u32 s100, 4
    s_cbranch_scc1 K2_lastbar
    s_and_b32 s71, s7, {CR[0]}
    s_mul_i32 s71, s71, {CR[1]}
    s_and_b32 s9, s5, {CR[2]}
    s_mul_i32 s9, s9, {CR[3]}
    s_{"xor_b32" if len(CR) > 6 else "add_u32"} s71, s71, s9
    s_mul_i32 s9, s4, {CR[4]}
    s_add_u32 s71, s71, s9
    s_mul_i32 s9, s6, {CR[5]}
    s_add_u32 s71, s71, s9
    s_mul_i32 s9, s71, 57
    s_lshr_b32 s9, s9, 9
    s_mul_i32 s9, s9, 9
    s_sub_u32 s71, s71, s9
    s_cmp_eq_u32 s100, 3
    s_cselect_b32 s71, 0, s71
    v_lshrrev_b32 v2, 3, v{LANE}
    v_and_b32 v3, 7, v{LANE}
    v_lshrrev_b32 v4, 4, v{LANE}
    s_cmp_eq_u32 s100, 2
    s_cselect_b32 s9, 1, 2
    s_cselect_b32 s10, 1, 3
    s_lshl_b32 s9, s40, s9
    s_and_b32 s9, s9, 7
    v_and_b32 v5, s10, v4
    v_add_u32 v5, s9, v5
    v_xor_b32 v5, v3, v5
    s_lshl_b32 s9, s40, 3
    v_add_u32 v2, s9, v2
    s_lshl_b32 s10, s68, 7
    v_add_u32 v6, s10, v2
    v_mul_u32_u24 v6, 1152, v6
    v_lshl_add_u32 v10, v5, 4, v6
    v_and_b32 v4, 1, v4
    s_and_b32 s9, s40, 1
    s_lshl_b32 s9, s9, 2
    v_lshl_add_u32 v4, v4, 1, s9
    v_xor_b32 v3, v3, v4
    v_mul_u32_u24 v6, 3456, v2
    v_lshl_add_u32 v6, v3, 4, v6
    s_lshl_b32 s10, s69, 7
    v_add_u32 v11, s10, v6
    s_lshl_b32 s42, s40, 10
    s_cmp_eq_u32 s100, 3
    s_cselect_b32 s{sW+2}, 0, {576*3456}
    s_cmp_eq_u32 s101, 0
    s_cselect_b32 s{sWB+2}, 0, {576*3456}
    s_mov_b32 s{sWB+3}, 0x00020000
    s_waitcnt lgkmcnt(0)
    s_mov_b64 s[{sWB}:{sWB+1}], s[{sW}:{sW+1}]
    """)
    A.c("missing tiles stage zeros (empty descriptors)")

    def dma1(k):
        c, r = divmod(k, 8)
        u, isx = divmod(r, 2)
        slot = c % 4
        if r == 0: A(f"s_lshl_b32 s65, s71, 7\ns_mul_i32 s66, s71, {64*3456}")
        if not isx:
            t, hf = u % 2, u // 2
            A(f"s_add_u32 m0, s42, {slot*SLOT + 16384 + t*8192 + hf*4096}")
            A(f"s_add_u32 s67, s66, {hf*32*3456 + 128*t}")
            A(f"buffer_load_dwordx4 v11, s[{(sW, sWB)[t]}:{(sW, sWB)[t]+3}], s67 offen{OPT.get('wnt', '')} lds")
        else:
            A(f"s_add_u32 m0, s42, {slot*SLOT + u*4096}")
            A(f"s_add_u32 s67, s65, {u*36864}")
            A(f"buffer_load_dwordx4 v10, s[{sX}:{sX+3}], s67 offen{OPT.get('xnt', '')} lds")
        if r == 7: A("s_add_u32 s71, s71, 1\ns_cmp_eq_u32 s71, 9\ns_cselect_b32 s71, 0, s71")

    lead0, lead = OPT.get("lead", (8, 8))
    assert lead <= 16
    issued = 0
    for c in range(9):
        tgt = min(72, 8 * (c + 1) + (lead0 if c == 0 else lead))
        while issued < tgt:
            dma1(issued); issued += 1
        A(f"s_waitcnt vmcnt({issued - 8*(c+1)})")
        if c == 8: A("K2_lastbar:")
        A("s_barrier")
    A("K2_loaded:")
    A("s_waitcnt lgkmcnt(0)")
    sp(0, "loaded")
    A(tagload)
    att_setup(False)
    presets()
    gettag()
    A("s_branch K2_young2")

    OAT = 60

    def tables():
        A.c("output projection tile: 64 tokens x 72 channels per workgroup, dealt so that one die shares tokens (speed only)")
        A.c("s32 = 16-token tile of this wave, s33 = byte offset of the channel block, s34 row base, s35 packed w_o")
        A(f"""
        s_lshl_b32 s32, s43, 3
        s_and_b32 s4, s37, 1
        s_lshl_b32 s4, s4, 2
        s_add_u32 s32, s32, s4
        s_add_u32 s32, s32, s40
        s_lshr_b32 s33, s37, 1
        s_mul_i32 s33, s33, 144
        s_mul_i32 s34, s32, {16*1152}
        s_add_u32 s34, s34, s33
        s_mul_i32 s35, s33, 640
        s_add_u32 s35, s35, {WP}
        s_mul_i32 s4, s40, 3072
        s_add_u32 s97, s4, {STG}
        s_lshl_b32 s4, s32, 13
        s_add_u32 s98, s4, {OM}
        s_add_u32 s101, s98, 4096
        s_lshr_b32 s4, s32, 2
        s_lshl_b32 s4, s4, 1
        s_and_b32 s5, s40, 1
        s_add_u32 s4, s4, s5
        s_lshl_b32 s5, s4, 7
        s_add_u32 s100, s5, {FO}
        s_lshl_b32 s4, s4, 11
        s_lshr_b32 s5, s40, 1
        s_lshl_b32 s5, s5, 6
        s_add_u32 s4, s4, s5
        s_add_u32 s99, s4, {OE}
        s_mul_i32 s4, s40, 5120
        s_add_u32 s4, s4, {TB}
        v_add_u32 v{TA}, s4, v{L16}
        """)

    def tables_lane():
        A.c("per-lane addresses that wave s40 needs in the later phases are worked out here and parked in LDS")
        A(f"""
        s_mul_i32 s42, s40, {WREG}
        s_mul_i32 s4, s40, 3072
        s_add_u32 s97, s4, {STG}
        s_mul_i32 s4, s40, 5120
        s_add_u32 s4, s4, {TB}
        v_add_u32 v{TA}, s4, v{L16}
        v_and_b32 v3, 15, v{LANE}
        v_lshrrev_b32 v4, 4, v{LANE}
        v_bfe_u32 v5, v{LANE}, 2, 2
        v_lshl_add_u32 v7, v4, 3, v5
        v_and_b32 v5, 1, v5
        v_and_b32 v6, 1, v4
        v_lshlrev_b32 v18, 3, v{LANE}
        v_and_b32 v8, 24, v18
        v_lshl_add_u32 v16, v7, 7, s42
        v_add_u32 v16, v16, v8
        v_lshl_add_u32 v17, v4, 4, s42
        v_lshl_add_u32 v17, v5, 10, v17
        v_and_b32 v19, 64, v{PE}
        v_add_lshl_u32 v19, v19, v{PE}, 1
        v_lshlrev_b32 v9, 2, v{LANE}
        v_add_u32 v21, {HP}, v9
        s_lshl_b32 s4, s40, 8
        v_add_u32 v20, s4, v21
        s_mul_i32 s4, s40, 288
        s_and_b32 s4, s4, 0xffc0
        s_add_u32 s5, s4, {DN}
        v_mul_u32_u24 v22, 1152, v7
        v_add3_u32 v22, v22, v8, s5
        s_lshl_b32 s5, s40, 7
        s_add_u32 s5, s5, {HS}
        v_lshl_add_u32 v23, v4, 4, s5
        v_lshl_add_u32 v23, v5, 6, v23
        v_and_b32 v10, 32, v{LANE}
        v_lshl_add_u32 v24, v3, 1, s5
        v_lshl_add_u32 v24, v6, 6, v24
        v_add_u32 v24, v24, v10
        v_lshlrev_b32 v26, 2, v3
        v_mul_u32_u24 v25, 2304, v6
        v_lshl_add_u32 v25, v10, 1, v25
        s_lshl_b32 s4, s4, 1
        v_add3_u32 v25, v25, v26, s4
        v_lshlrev_b32 v27, 3, v3
        v_mul_u32_u24 v11, 7282, v{LANE}
        v_lshrrev_b32 v11, 16, v11
        v_mul_u32_u24 v11, {1152-144}, v11
        v_add_u32 v{OAT}, v11, v{L16}
        v_mul_u32_u24 v11, 144, v3
        v_add_u32 v11, s97, v11
        v_lshl_add_u32 v{OAT+1}, v4, 3, v11
        v_lshl_add_u32 v{OAT+2}, v6, 3, v11
        v_lshl_add_u32 v{OAT+3}, v4, 9, v26
        v_add_u32 v28, 46080, v{L16}
        v_add_u32 v29, s97, v{L16}
        """)

    def tables_store():
        A(f"""
        ds_write_b128 v{TA}, v[16:19]
        ds_write_b128 v{TA}, v[20:23] offset:1024
        ds_write_b128 v{TA}, v[24:27] offset:2048
        ds_write_b128 v{TA}, {vr(OAT,4)} offset:3072
        ds_write_b64 v{TA}, v[28:29] offset:4096
        """)

    def p1_compute():
        A("K2_old:")
        A("s_setprio 3")
        if OPT.get("chain"): A("s_mov_b32 s96, 0")
        A(f"""
        v_mov_b32 v{CA}, {CNT}
        v_mov_b32 v{ONE}, 1
        v_mov_b32 v10, 0
        v_mov_b32 v11, 0
        v_mov_b32 v12, 0
        v_mov_b32 v13, 0
        """)
        if OPT.get("cpf", 1):
            A.c("pull this kernel's code into the die's L2, three lines per wave (speed only)")
            A(f"""
            s_getpc_b64 s[8:9]
            K2_pc:
            s_sub_u32 s8, s8, K2_pc - {NAME}
            s_subb_u32 s9, s9, 0
            s_lshr_b32 s10, s2, 3
            s_lshl_b32 s10, s10, 2
            s_add_u32 s10, s10, s40
            v_min_u32 v2, 2, v{LANE}
            v_lshl_add_u32 v2, v2, 7, s10
            v_min_u32 v2, (K2_codeend - {NAME}) / 128, v2
            v_lshlrev_b32 v2, 7, v2
            v_mov_b32 v3, s9
            v_add_co_u32 v2, vcc, s8, v2
            s_nop 1
            v_addc_co_u32 v3, vcc, 0, v3, vcc
            global_load_dword v161, v[2:3], off
            """)
        if OPT.get("pre", 0):
            A.c("row-wise first touch of this die's share of x and w_qkv (speed only)")
            A(f"""
            s_lshr_b32 s8, s2, 3
            s_lshl_b32 s8, s8, 2
            s_add_u32 s8, s8, s40
            s_lshl_b32 s9, s4, 1
            s_add_u32 s9, s9, s6
            s_lshl_b32 s9, s9, 7
            s_add_u32 s9, s9, s8
            s_mul_i32 s9, s9, 2304
            v_min_u32 v2, 17, v{LANE}
            v_lshlrev_b32 v2, 7, v2
            s_mul_i32 s10, s4, 144
            s_add_u32 s10, s10, s8
            s_mul_i32 s10, s10, 3456
            s_mul_i32 s11, s6, 1792
            s_add_u32 s10, s10, s11
            s_cmp_lt_u32 s8, 16
            s_cselect_b32 s11, {128*3456}, 0
            v_and_b32 v3, 15, v{LANE}
            v_min_u32 v3, 13, v3
            v_lshlrev_b32 v3, 7, v3
            v_bfe_u32 v4, v{LANE}, 4, 1
            v_mad_u32_u24 v3, v4, s11, v3
            s_waitcnt lgkmcnt(0)
            buffer_load_dword v160, v2, s[{sX}:{sX+3}], s9 offen
            buffer_load_dword v160, v3, s[{sW}:{sW+3}], s10 offen
            """)
        A(f"""
        s_waitcnt lgkmcnt(0)
        s_or_b32 s4, s2, s40
        s_cmp_lg_u32 s4, 0
        s_cbranch_scc1 K2_notag
        """)
        A.c("hand-off tag of this launch: successor of the word the previous launch left, published through d_debug[0]")
        A(f"""
        s_mov_b32 s4, {EP}
        buffer_load_dword v14, off, {ws}, s4 sc1
        s_mov_b32 s5, 1664525
        s_waitcnt vmcnt(0)
        v_mul_lo_u32 v14, v14, s5
        v_add_u32 v14, 1013904223, v14
        v_max_u32 v14, 1, v14
        s_mov_b64 exec, 1
        buffer_store_dword v14, off, s[{sDBG}:{sDBG+3}], 0 sc1
        buffer_store_dword v14, off, {ws}, s4 sc1
        s_mov_b64 exec, -1
        K2_notag:
        ds_write_b128 v{CA}, v[10:13]
        ds_write_b128 v{CA}, v[10:13] offset:16
        ds_write_b128 v{CA}, v[10:13] offset:32
        s_load_dwordx2 s[4:5], s[0:1], 32
        s_load_dwordx2 s[6:7], s[0:1], 64
        """)
        srd(A, sG, 40, 576 * 9216)
        srd(A, sU, 48, 576 * 9216)
        srd(A, sD, 56, 4608 * 1152)
        A(f"""
        s_mov_b32 s10, 1152
        s_mov_b32 s11, 0x00020000
        s_waitcnt lgkmcnt(0)
        s_cmp_lt_u32 s40, 2
        s_cselect_b32 s8, s4, s6
        s_cselect_b32 s9, s5, s7
        s_cmp_lg_u32 s100, 3
        s_cbranch_scc1 K2_norgv
        s_lshl_b32 s4, s40, 10
        s_add_u32 m0, s4, {RGV}
        s_and_b32 s4, s4, 1024
        buffer_load_dwordx4 v{L16}, s[8:11], s4 offen lds
        K2_norgv:
        """)
        p1_addrs()
        att_setup(True)
        A.c("MoE stage 1: 96 rows x 64 columns of w_gate or w_up per wave; stage 2 (s64): 32 rows of w_down")
        A.c("staging slots a workgroup does not need get an empty descriptor")
        nm = OPT.get('nomoe2')
        A(f"""
        s_lshr_b32 s4, s2, 3
        s_mul_i32 s41, s3, 18
        s_add_u32 s41, s41, s4
        s_mul_i32 s42, s40, {WREG}
        s_mul_i32 s9, s40, 9216
        s_cmp_lt_u32 s4, 18
        s_cselect_b32 s{sD+2}, s{sD+2}, 0
        s_cselect_b32 s64, {0 if nm else 1}, 0
        s_mul_i32 s8, s41, 36864
        s_add_u32 s8, s8, s9
        s_add_u32 s9, s9, {DN}
        s_mul_i32 s5, s3, 27
        s_add_u32 s5, s5, s4
        s_sub_u32 s5, s5, 5
        s_max_i32 s5, s5, 0
        s_mul_i32 s58, s5, 3641
        s_lshr_b32 s58, s58, 16
        s_mul_i32 s10, s58, 18
        s_sub_u32 s5, s5, s10
        s_lshl_b32 s5, s5, 2
        s_add_u32 s5, s5, s40
        s_mul_i32 s59, s5, 24
        s_add_u32 s59, s59, s58
        s_lshl_b32 s59, s59, 9
        s_add_u32 s59, s59, {PG}
        s_sub_u32 s10, s58, 6
        s_cselect_b32 s58, s58, s10
        s_cselect_b64 s[{sG}:{sG+1}], s[{sG}:{sG+1}], s[{sU}:{sU+1}]
        s_mul_i32 s54, s58, {96*9216}
        s_lshl_b32 s5, s5, 7
        s_add_u32 s54, s54, s5
        s_mul_i32 s58, s58, 192
        v_lshrrev_b32 v8, 3, v{LANE}
        v_mul_u32_u24 v8, {9216-128}, v8
        v_add_u32 v{GUA}, v8, v{L16}
        s_cmp_lt_u32 s4, 5
        s_cselect_b32 s{sG+2}, 0, s{sG+2}
        s_cselect_b32 s59, {OOB}, s59
        """)
        cs("setup")
        A("""
        s_cmp_eq_u32 s100, 3
        s_cbranch_scc1 K2_rg
        s_cmp_eq_u32 s100, 4
        s_cbranch_scc1 K2_idle2
        s_cmp_ge_u32 s69, 27
        s_cbranch_scc1 K2_idle
        s_cmp_eq_u32 s100, 2
        s_cbranch_scc1 K2_pv
        """)
        for vmode in (False, True):
            if vmode: A("K2_pv:")
            A.c("v tiles: D = x W (lane = channel, registers = tokens)" if vmode else "q / k tiles: D = W^T x^T (lane = token, registers = channels)")
            gemm(vmode)
        A.c("---- no second tile in this workgroup")
        A("K2_idle:")
        for c in range(9): A("s_barrier")
        A(tagload)
        gettag()
        A(f"s_mov_b32 s61, {OOB}")
        A("s_branch K2_p1done")
        A.c("---- no projection tile at all: re-pack one head half (s5) of one 72-channel block (s3) of w_o as MFMA fragments")
        A("K2_idle2:")
        A(f"""
        s_load_dwordx2 s[68:69], s[0:1], 16
        s_mov_b32 s70, {576*1152}
        s_mov_b32 s71, 0x00020000
        s_bfe_u32 s5, s2, 0x10003
        v_mul_u32_u24 v0, 6554, v{LANE}
        v_lshrrev_b32 v0, 16, v0
        v_mul_u32_u24 v1, {1152-160}, v0
        s_mul_i32 s6, s40, 144
        s_mul_i32 s7, s5, 18
        s_add_u32 s6, s6, s7
        s_mul_i32 s4, s6, 1152
        s_mul_i32 s10, s3, 144
        s_add_u32 s4, s4, s10
        v_add3_u32 v2, v1, v{L16}, s4
        s_mul_i32 s6, s6, 160
        s_mul_i32 s7, s7, 160
        s_mov_b32 s10, 0xdff7fdff
        s_mov_b32 s11, 0x7fdff7f
        s_waitcnt lgkmcnt(0)
        s_mov_b64 exec, s[10:11]
        """)
        for u in range(12):
            row = 36 * (u // 3) + 6 * (u % 3)
            A(f"s_add_u32 m0, s6, {row*160}")
            A(f"s_mov_b32 s67, {row*1152}")
            A(f"buffer_load_dwordx4 v2, s[68:71], s67 offen lds")
        A(f"""
        s_mov_b64 exec, -1
        v_lshrrev_b32 v4, 4, v{LANE}
        v_and_b32 v6, 1, v4
        v_bfe_u32 v7, v{LANE}, 2, 2
        v_lshrrev_b32 v5, 1, v4
        v_mul_u32_u24 v5, 36, v5
        v_lshl_add_u32 v5, v6, 2, v5
        v_add_u32 v5, v5, v7
        v_mul_u32_u24 v5, 160, v5
        v_add_u32 v5, s6, v5
        v_and_b32 v8, 3, v{LANE}
        v_and_b32 v9, 1, v{LANE}
        v_lshl_add_u32 v10, v8, 3, v5
        v_lshl_add_u32 v11, v9, 3, v5
        v_lshrrev_b32 v5, 1, v7
        v_lshl_add_u32 v5, v4, 2, v5
        v_mul_u32_u24 v5, 36, v5
        v_and_b32 v7, 1, v7
        v_add3_u32 v5, v5, v7, 16
        v_mul_u32_u24 v5, 160, v5
        v_add_u32 v5, s7, v5
        v_lshl_add_u32 v12, v8, 3, v5
        s_lshl_b32 s4, s40, 5
        v_add_u32 v12, s4, v12
        v_lshl_add_u32 v13, v9, 3, v5
        s_lshl_b32 s4, s3, 1
        s_add_u32 s4, s4, s5
        s_lshl_b32 s61, s4, 5
        s_add_u32 s61, s61, {F1 + 224*32}
        s_mul_i32 s4, s4, 46080
        s_add_u32 s7, s4, {WP + 40960}
        s_mul_i32 s6, s40, 10240
        s_add_u32 s6, s6, s4
        s_add_u32 s6, s6, {WP}
        s_lshl_b32 s10, s40, 10
        s_add_u32 s10, s10, s7
        s_add_u32 s7, s7, 4096
        s_waitcnt vmcnt(0)
        s_barrier
        """)
        A(tagload)
        for f in range(12):
            for a in range(2):
                if f < 10:
                    ks, T = divmod(f, 5)
                    A(f"ds_read_b64_tr_b16 {vr(16+4*f+2*a,2)}, v{10 if T < 4 else 11}{off((72*ks+8*a)*160+32*T)}")
                else:
                    A(f"ds_read_b64_tr_b16 {vr(16+4*f+2*a,2)}, v{2+f}{off(72*a*160+128*(f-10))}")
        gettag()
        A("s_waitcnt lgkmcnt(0)")
        for f in range(10):
            if f in (4, 8): A("s_add_u32 s6, s6, 4096")
            A(f"buffer_store_dwordx4 {vr(16+4*f,4)}, v{L16}, {ws}, s6 offen{off(1024*(f%4))} sc1")
        A(f"buffer_store_dwordx4 v[56:59], v{L16}, {ws}, s10 offen sc1")
        A(f"buffer_store_dwordx4 v[60:63], v{L16}, {ws}, s7 offen sc1")
        A("s_branch K2_p1done")
        A.c("---- router score and mix gate of 32 tokens per wave")
        A("K2_rg:")
        A(f"""
        v_lshrrev_b32 v1, 4, v{LANE}
        v_and_b32 v2, 31, v{LANE}
        v_and_b32 v3, 1, v{LANE}
        v_lshlrev_b32 v3, 11, v3
        v_lshl_add_u32 v3, v1, 4, v3
        v_add_u32 v{AW}, {RGV}, v3
        s_lshl_b32 s4, s71, 5
        v_add_u32 v{AW+1}, s4, v2
        v_cmp_lt_u32 vcc, 15, v2
        s_waitcnt vmcnt(0)
        """)
        for c in range(9):
            A("s_barrier")
            if c == 0: cs("B0")
            if c == 5: A(tagload)
            for n in (2 * c, 2 * c + 1):
                A(f"ds_read_b128 {vr(FR[n%2]+16,4)}, v{AW}{off(64*n)}")
                for a in range(2): A(xread(n, a, False))
            for n in (2 * c, 2 * c + 1):
                A(f"s_waitcnt lgkmcnt({3*(1-n%2)})")
                for a in range(2):
                    A(mf16(vr(ACC + 4 * a, 4), vr(FR[n % 2] + 16, 4), vr(FR[n % 2] + 4 * a, 4), "0" if n == 0 else vr(ACC + 4 * a, 4)))
        gettag()
        A("s_nop 3")
        cs("pass A")
        A(f"v_cndmask_b32 v{ACC}, v{ACC}, v{ACC+4}, vcc")
        A(f"v_cndmask_b32 v{ACC+1}, v{ACC+1}, v{ACC+5}, vcc")
        A(f"""
        s_mov_b32 s5, 0xffff0000
        v_cvt_pk_bf16_f32 v6, v{ACC+1}, v{ACC}
        v_lshlrev_b32 v4, 16, v6
        v_mul_f32 v4, {0x80000000 | LOG2E}, v4
        v_exp_f32 v4, v4
        v_ashrrev_i32 v7, 31, v6
        v_add_f32 v4, 1.0, v4
        v_rcp_f32 v4, v4
        v_or_b32 v7, 0x80000000, v7
        v_xor_b32 v6, v6, v7
        v_and_b32 v6, s5, v6
        v_sub_u32 v7, 0xffff, v{AW+1}
        v_or_b32 v6, v6, v7
        v_cvt_pk_bf16_f32 v4, v4, v4
        v_and_b32 v4, s5, v4
        v_mov_b32 v5, s{sTAG}
        v_lshlrev_b32 v7, 3, v{AW+1}
        s_mov_b32 s4, {GB}
        buffer_store_dwordx2 v[4:5], v7, {ws}, s4 offen sc1
        """)
        wave_top2_u32(A, 6, 7, 6, 7)
        A(f"""
        s_lshl_b32 s4, s71, 4
        s_add_u32 s4, s4, {RC}
        v_mov_b32 v8, s6
        v_mov_b32 v9, s{sTAG}
        v_mov_b32 v10, s7
        v_mov_b32 v11, s{sTAG}
        s_mov_b64 exec, 1
        buffer_store_dwordx4 v[8:11], off, {ws}, s4 sc1
        s_mov_b64 exec, -1
        s_mov_b32 s61, {OOB}
        """)
        sp(1, "astore")
        cs("a stores")
        A("K2_p1done:")
        A("s_mov_b32 s55, s61")
        presets()
        scratch_addrs(AS, WREG)
        tables()
        pflag(55)
        sp(1, "aflag")
        cs("flag")

    def ldK(p):
        return [f"buffer_load_dwordx4 {vr(KP[p%3]+6*i,4)}, v{KA}, {ws}, s{sT[2*p]} offen{off(256*i)} sc1" for i in range(2)]

    def ldV(j):
        return ["s_mov_b64 exec, s[62:63]"] + \
            [f"buffer_load_dwordx4 {vr(VV[j%NB]+4*i,4)}, v{(VA, VA2)[j%2]}, {ws}, s{sT[(j & ~1)+i]} offen sc1" for i in range(2)] + \
            ["s_mov_b64 exec, -1"]

    def ldKE(g):
        return [f"buffer_load_dwordx4 {vr(KE+4*g,4)}, v{KEA}, {ws}, s{sT[4*g]} offen sc1"]

    QT = 32

    def ldQ(rp):
        return [f"buffer_load_dwordx4 {vr(QT+8*rp+4*i,4)}, v{KA}, {ws}, s{56+rp} offen{off(256*i)} sc1" for i in range(2)]

    def items(j):
        return ([ldKE(j // 4)] if j % 4 == 0 else []) + ([[l] for l in ldK(j // 2)] if j % 2 == 0 else []) + [ldV(j)]

    def kmov(kt):
        b = KP[(kt // 2) % 3]
        return f"v_mov_b64 {vr(b+4,2)}, {vr(b+8 if kt % 2 else b,2)}"

    def m2b(kt, c):
        u = kt % 4
        return (f"v_mfma_f32_32x32x4_2b_bf16 {vr(S[c],32)}, {vr(KE+4*(kt//4)+2*(u%2),2)}, {vr(QE+2*c,2)}, 0"
                f" cbsz:1 abid:{u//2}")

    def mm(kt, c, b):
        d = vr(S[c] + 16 * b, 16)
        return mfma(d, vr(KP[(kt // 2) % 3] + (2 if kt % 2 else 4), 4), vr(QM + 4 * (c + 2 * b), 4), d)

    def sm(kt, c, b, i):
        return (f"v_smfmac_f32_32x32x32_bf16 {vr(O[c+2*b],16)}, {vr(VV[kt%NB]+4*i,4)}, "
                f"{vr(S[c]+16*b+8*i,8)}, v{IDX}")

    def moe_dma(n):
        if n < 12:
            return [f"s_add_u32 m0, s42, {1024*n}", f"s_add_u32 s67, s54, {8*9216*n}",
                    f"buffer_load_dwordx4 v{GUA}, s[{sG}:{sG+3}], s67 offen{OPT.get('gunt', ' nt')} lds"]
        n -= 12
        pre = [f"s_add_u32 m0, s9, {4096*(n//4)}", f"s_add_u32 s67, s8, {4096*(n//4)}"]
        return pre + [f"buffer_load_dwordx4 v{L16}, s[{sD}:{sD+3}], s67 offen{off(1024*(n%4))}{OPT.get('dnnt', ' nt')} lds"]

    def xsel_dma(k):
        return [f"s_add_u32 m0, s42, {12288+1024*k}", "s_nop 0",
                f"buffer_load_dwordx4 v{L16}, s[{sX}:{sX+3}], s{10+k} offen lds"]

    GQ = 190
    gqload = [f"buffer_load_dwordx2 {vr(d,2)}, v{a}, {ws}, s52 offen sc1" for d, a in ((250, 234), (GQ, GQA))]

    def owrite(t):
        return [f"ds_write_b128 v{SW}, {vr(O[t],4)}{off(2048*t)}",
                f"ds_write_b128 v{SW}, {vr(O[t]+4,4)}{off(2048*t+1024)}",
                f"ds_write_b64 v{SW}, {vr(O[t]+8,2)}{off((6144, 6152, 7168)[t])}"]

    def scratch_addrs(base, stride):
        A(f"s_mul_i32 s4, s40, {stride}")
        A(f"s_add_u32 s4, s4, {base}")
        A(f"v_add_u32 v{SW}, s4, v{L16}")
        for t in range(3):
            A(f"s_xor_b32 s4, s40, {t ^ 3}")
            A(f"s_mul_i32 s4, s4, {stride}")
            A(f"s_add_u32 s4, s4, {base}")
            A(f"v_add_u32 v{RD+t}, s4, v{L16}")
        A(f"""
        v_bfe_u32 v{PM}, v{LANE}, 4, 1
        v_lshlrev_b32 v{PM}, 14, v{PM}
        v_lshrrev_b32 v{PE}, 5, v{LANE}
        v_lshl_add_u32 v{PM}, v{PE}, 8, v{PM}
        v_and_b32 v{PE}, 0xff, v{L16}
        v_add_u32 v{PM}, v{PM}, v{PE}
        v_and_b32 v{PE}, 31, v{LANE}
        v_lshlrev_b32 v{PE}, 2, v{PE}
        s_lshl_b32 s4, s39, 6
        s_lshl_b32 s5, s37, 2
        s_add_u32 s4, s4, s5
        s_add_u32 s4, s4, s40
        s_lshl_b32 s5, s4, 1
        s_and_b32 s6, s40, 1
        s_sub_u32 s5, s5, s6
        s_lshl_b32 s5, s5, 13
        s_lshl_b32 s6, s43, 9
        s_add_u32 s5, s5, s6
        s_add_u32 s65, s5, {OM}
        s_lshl_b32 s4, s4, 4
        s_add_u32 s4, s4, s43
        s_lshl_b32 s4, s4, 7
        s_add_u32 s66, s4, {OE}
        s_lshl_b32 s4, s37, 10
        s_lshr_b32 s5, s40, 1
        s_lshl_b32 s5, s5, 9
        s_add_u32 s4, s4, s5
        s_and_b32 s5, s40, 1
        s_lshl_b32 s5, s5, 7
        s_add_u32 s4, s4, s5
        s_add_u32 s52, s4, {GB}
        s_lshl_b32 s4, s39, 4
        s_add_u32 s4, s4, s37
        s_lshl_b32 s4, s4, 11
        s_lshl_b32 s5, s40, 6
        s_add_u32 s4, s4, s5
        s_lshl_b32 s5, s43, 2
        s_add_u32 s4, s4, s5
        s_add_u32 s61, s4, {FO}
        """)
        if FOM:
            A(f"""
            s_sub_u32 s4, s66, {OE}
            {"" if FOM == 2 else "s_lshr_b32 s4, s4, 11"}
            {"" if FOM == 2 else "s_lshl_b32 s4, s4, 7"}
            {"" if FOM == 2 else "s_add_u32 s4, s4, s5"}
            s_add_u32 s61, s4, {FO}
            """)
        A(f"""
        v_mov_b32 v{CA}, {CNT + (0 if base == AS else 12)}
        v_mov_b32 v{ONE}, 1
        """)

    def attention(old):
        pend = []

        def issue(lines, tag):
            for l in lines:
                if l.startswith("buffer_"):
                    pend.append(tag)
            return lines

        def wait_for(tag):
            last = max(i for i, t in enumerate(pend) if t == tag)
            n = len(pend) - 1 - last
            del pend[:last + 1]
            return f"s_waitcnt vmcnt({n})"

        if old:
            sl0, sl1 = OPT.get("psleep", (10, 0))
            A.c("wave 1 watches the flags; the barrier releases the others")
            A(f"""
            s_cmp_lg_u32 s40, 1
            s_cbranch_scc1 K2_p1seen
    s_mov_b32 s5, {SPIN}
    {f"s_sleep {sl0}" if sl0 else ""}
    K2_p1poll:
    buffer_load_dword v12, v{PA}, {ws}, 0 offen sc1
    buffer_load_dword v13, v{PA+1}, {ws}, 0 offen sc1
    s_sub_u32 s5, s5, 1
    s_cbranch_scc1 K2_p1seen
    s_waitcnt vmcnt(0)
    v_cmp_ne_u32 vcc, s{sTAG}, v12
    v_cmp_ne_u32 s[6:7], s{sTAG}, v13
    s_or_b64 vcc, vcc, s[6:7]
    s_cbranch_scc0 K2_p1seen
    {f"s_sleep {sl1}" if sl1 else ""}
    s_branch K2_p1poll
    K2_p1seen:
            s_barrier
            """)
        sp(old, "polled")
        if old: cs("polled")
        pro = issue([f"buffer_load_dwordx4 {vr(QT+16,4)}, v{QEA}, {ws}, s60 offen sc1"] + ldKE(0), "qe") + \
            issue(ldK(0) + ldQ(0), "q0") + issue(ldQ(1), "q1") + issue(ldV(0)[:-1], "g0") + issue(ldV(1)[1:], "g1")
        NP = OPT.get("np", (3, 2))[not old]
        LATE = OPT.get("late", 0)
        if not LATE:
            for j in range(2, NP): pro += issue(sum(items(j), []), f"g{j}")
        for l in pro:
            A(l)
            if not old and l.startswith("buffer_") and OPT.get("ypace", 0): A(f"s_sleep {OPT.get('ypace', 1)}")
        if not old:
            A("v_mov_b64 v[250:251], -1\nv_mov_b64 v[252:253], -1")
        if old:
            if not LATE: A("s_barrier")
            cs("issued")
            csflush(0, 12)
        A(f"""
        v_mov_b32 v{IDX}, 0xdddddddd
        s_bitcmp0_b32 s36, 0
        s_cselect_b32 s4, -1, 0
        s_cselect_b32 s5, 0, -1
        s_bitcmp1_b32 s40, 0
        """)
        l = lab("K2_qsel")
        w0 = wait_for("qe")
        more = []
        if LATE:
            for j in range(2, NP): more += issue(sum(items(j), []), f"g{j}")
            if old: more.append("s_barrier")
        w1, w2 = wait_for("q0"), wait_for("q1")
        A(f"s_cbranch_scc1 {l}")
        for b0 in (1, 0):
            if b0 == 0: A(f"{l}:")
            A(w0)
            for c in range(2):
                A(f"v_and_b32 v{QE+2*c}, s4, v{QT+16+2*(c^b0)}")
                A(f"v_and_b32 v{QE+2*c+1}, s5, v{QT+17+2*(c^b0)}")
            A(m2b(0, 0))
            for x in more: A(x)
            if len(more) < 12: A(f"s_nop {11 - len(more)}")
            for rp in range(2):
                A((w1, w2)[rp])
                if rp == 0: A(kmov(0))
                for t in (2 * rp, 2 * rp + 1):
                    for ab in range(2):
                        A(f"v_mov_b64 {vr(QM+4*t+2*ab,2)}, {vr(QT+8*(t>>1)+4*ab+2*((t&1)^b0),2)}")
                A(mm(0, 0, rp))
            if b0 == 1: A(f"s_branch {l}_d")
        A(f"{l}_d:")
        A("s_nop 4")
        A(f"s_setprio {1 if old else 0}")
        sp(old, "first")
        MK, MK2 = OPT.get("mk", (1, 5))
        XS = OPT.get("xsel", 9)
        TP = OPT.get("top2", 12)
        gsched = {}
        nx = NP
        for kt in range(NP - 2, 16):
            for _ in range(2 if kt in OPT.get("ramp" if old else "yramp", (1, 3)) else 1):
                if nx <= min(15, kt + NB - 1):
                    gsched.setdefault(kt, []).append(nx); nx += 1
        dsched = {}
        d0, d1 = OPT.get("dma", (3, 29))
        order = range(21)
        for i, x in enumerate(order): dsched.setdefault(d0 + i * (d1 - d0) // 21, []).append(x)
        assert max(dsched) < 30
        touch = {}
        for kt in range(16):
            for c in range(2):
                n = 2 * kt + c
                cur = S[c]
                nxt = (kt, 1) if c == 0 else (kt + 1, 0)
                prv = (kt - 1, 1) if c == 0 else (kt, 0)
                has_next = n < 31
                ins = {}
                def at(p, l): ins.setdefault(p, []).extend(l if isinstance(l, list) else [l])
                if n > 0:
                    at(1, sm(prv[0], prv[1], 1, 1))
                L2 = OPT.get("lchain") == 2
                if c == 0:
                    if L2: at(1, "s_memtime s[82:83]")
                    todo = [(it, f"g{j}") for j in gsched.get(kt, []) for it in items(j)]
                    if old and kt == XS: todo += [(xsel_dma(0), "st1"), (xsel_dma(1), "st1")]
                    slots = [(0, 2), (0, 14), (0, 26), (1, 8), (1, 22), (1, 30)]
                    place = {sl: td for sl, td in zip(slots, todo)}
                    assert len(todo) <= len(slots)
                if c == 0 and L2: at(1, "s_memtime s[84:85]")
                if c == 1 and L2: at(4, "s_memtime s[86:87]")
                if c == 1 and has_next:
                    at(4, wait_for(f"g{kt+1}"))
                if c == 1 and L2:
                    at(4, "s_memtime s[88:89]")
                    at(30, ["s_waitcnt lgkmcnt(0)"] + sum([[f"s_sub_u32 s{82+2*q}, s{82+2*q}, s80", f"v_writelane_b32 v{PA}, s{82+2*q}, {4*kt+q}"] for q in range(4)], []))
                ev = [(p, td) for (cc, p), td in place.items() if cc == c]
                if old and n in touch: ev.append((19, (touch[n], "moe")))
                if old and not OPT.get("nomoe"):
                    for i, x in enumerate(dsched.get(n, [])): ev.append((6 + 10 * i, (moe_dma(x), "st1" if x < 12 else "moe")))
                if old and n == TP - 8:
                    ev.append((18, ([f"s_mov_b32 s4, {RC}", f"buffer_load_dwordx4 {vr(CAND,4)}, v{L16}, {ws}, s4 offen sc1"], "cand")))
                XP = OPT.get("xp", 24)
                if old and n == XP - 1:
                    at(8, f"ds_read_b32 v250, v{TA} offset:3072")
                if old and XP <= n < XP + 3:
                    k = n - XP
                    ev.append((18, ((["s_waitcnt lgkmcnt(0)"] if k == 0 else []) +
                                    [f"s_add_u32 m0, s97, {1008*k}", f"s_add_u32 s4, s34, {7*1152*k}",
                                     f"buffer_load_dwordx4 v250, s[{sX}:{sX+3}], s4 offen lds"], "moe")))
                if not old and n == MK:
                    ev.append((18, ([f"buffer_store_dwordx4 v[250:253], v{PM}, {ws}, s65 offen sc1"], "mark")))
                    ev.append((20, ([f"buffer_store_dword v250, v{PE}, {ws}, s66 offen sc1"], "mark")))
                if not old and n == MK2: ev.append((18, ([gqload[0]], "gq")))
                if n == 0: ev.append((12, None))
                for p, td in sorted(ev, key=lambda e: e[0]):
                    at(p, wait_for("g0") if td is None else issue(*td))
                if c == 1 and has_next: at(10, kmov(kt + 1))
                if has_next:
                    at(4, m2b(*nxt))
                    at(20, mm(nxt[0], nxt[1], 0))
                    at(28, mm(nxt[0], nxt[1], 1))
                at(12, sm(kt, c, 0, 0))
                at(17, sm(kt, c, 0, 1))
                at(25, sm(kt, c, 1, 0))
                if OPT.get("lchain") == 1:
                    if c == 0: at(0, "s_memtime s[88:89]")
                    else: at(0, ["s_waitcnt lgkmcnt(0)", "s_sub_u32 s88, s88, s80", f"v_writelane_b32 v{PA}, s88, {kt}"])
                if not old and n == MK2:
                    assert "mark" not in pend
                    at(6, ["s_mov_b64 exec, 1", f"ds_add_u32 v{CA}, v{ONE} offset:12", "s_mov_b64 exec, -1"])
                if n == 24:
                    if old:
                        at(2, f"ds_read_b128 {vr(M0,4)}, v{TA}")
                        at(26, "s_waitcnt lgkmcnt(0)")
                        at(27, issue([gqload[old]], "gq"))
                    else:
                        assert "gq" not in pend
                        at(6, [f"v_cmp_ne_u32 vcc, s{sTAG}, v251", f"s_cbranch_vccnz K2_gqspin0", f"K2_gqok0:"])
                        at(9, f"v_mov_b32 v{GQ}, v250")
                if n == 30 and old:
                    at(0, [wait_for("gq"), f"v_cmp_ne_u32 vcc, s{sTAG}, v{GQ+1}", f"s_cbranch_vccnz K2_gqspin1", f"K2_gqok1:"])
                if old and n >= 27:
                    G, XF, WFs = 202, 148, [218, 222, 164, 168]
                    if n == 27:
                        at(8, f"v_mov_b32 v251, v{TAGV}")
                        at(14, f"v_mov_b32 v253, v{TAGV}")
                    elif n < 31:
                        assert "st1" not in pend
                        u = n - 28
                        at(2, f"ds_read_b128 {vr(XF,4)}, v{M3} offset:{12288+64*u}")
                        for t in range(4):
                            for a in range(2):
                                at(3 + 2 * t + a, f"ds_read_b64_tr_b16 {vr(WFs[t]+2*a,2)}, v{M0}{off(4096*u+512*a+32*t)}")
                            at((15, 19, 23, 30)[t], ([f"s_waitcnt lgkmcnt({(6, 0)[t]})"] if t < 2 else []) +
                               [mf16(vr(G + 4 * t, 4), vr(XF, 4), vr(WFs[t], 4), "0" if u == 0 else vr(G + 4 * t, 4))])
                    else:
                        at(7, ["s_mov_b32 s10, 0", "s_mov_b32 s11, -1", "s_add_u32 s4, s59, 6144",
                               f"v_cndmask_b32 v250, v{G}, v{G+4}, s[10:11]",
                               f"buffer_store_dwordx2 v[250:251], v{M4}, {ws}, s59 offen sc1"])
                        at(9, [f"v_cndmask_b32 v252, v{G+8}, v{G+12}, s[10:11]",
                               f"buffer_store_dwordx2 v[252:253], v{M4}, {ws}, s4 offen sc1"])
                if n == 31:
                    for t, p in ((0, 3), (2, 14), (1, 29)):
                        for i, l in enumerate(owrite(t)): at(p + i, l)
                if n == TP and old:
                    assert "cand" not in pend
                    B = Asm()
                    at(0, [f"v_cmp_ne_u32 vcc, s{sTAG}, v{CAND+1}", f"v_cmp_ne_u32 s[4:5], s{sTAG}, v{CAND+3}",
                           "s_or_b64 vcc, vcc, s[4:5]", "s_cbranch_scc1 K2_candspin", "K2_candok:"])
                    wave_max_u32(B, CAND, CAND + 1, 68)
                    B(f"s_nop 1\nv_cmp_ne_u32 vcc, s68, v{CAND}\ns_nop 1\nv_cndmask_b32 v{CAND}, v{CAND+2}, v{CAND}, vcc")
                    wave_max_u32(B, CAND, CAND + 1, 69)
                    B(f"""
                    s_nop 0
                    s_not_b32 s70, s68
                    s_not_b32 s71, s69
                    s_and_b32 s70, s70, 0x7ff
                    s_and_b32 s71, s71, 0x7ff
                    s_mul_i32 s10, s70, 1152
                    s_mul_i32 s11, s71, 1152
                    s_add_u32 s10, s10, s58
                    s_add_u32 s11, s11, s58
                    """)
                    p = -1
                    tail = []
                    for l in B.lines:
                        l = l.strip()
                        if l == "s_nop 1" and p + 2 <= 31:
                            p += 2
                        elif p + 2 > 31 or tail:
                            tail.append(l)
                        else:
                            at(p, l)
                    at(31, tail)
                sp(old, f"p{n}")
                for i in range(32):
                    A(f"v_exp_f32 v{cur+i}, v{cur+i}")
                    for l in ins.get(i, []):
                        if OPT.get("noload") and kt >= 2 and not l.startswith(("v_smfmac", "v_mfma_f32_32", "v_mov_b64", "K2_")): continue
                        A(l)
        A("s_nop 1")
        A(sm(15, 1, 1, 1))
        sp(old, "loopend")
        if OPT.get("lchain"):
            A(f"""
            s_lshl_b32 s4, s2, 2
            s_add_u32 s4, s4, s40
            s_lshl_b32 s4, s4, 8
            s_add_u32 s4, s4, {0xD00000 + 0x40000*(0 if old else 1)}
            v_lshlrev_b32 v0, 2, v{LANE}
            buffer_store_dword v{PA}, v0, {ws}, s4 offen
            """)

    p1_compute()
    attention(True)
    if OPT.get("quit"):
        ST.flush(v=20)
        A("s_endpgm")
    if OPT.get("chain"): A("s_mov_b32 s96, 0")
    cs("loop end")
    A.c("---- MoE stage 2: fetch three partials per wave")
    PL = 184

    def pload():
        for q in range(3):
            A(f"buffer_load_dwordx2 {vr(PL+2*q,2)}, v{M4}, {ws}, s67 offen{off(512*q)} sc1")
    A(f"""
    s_and_b32 s4, s40, 1
    s_lshl_b32 s4, s4, 1
    s_lshr_b32 s5, s40, 1
    s_add_u32 s4, s4, s5
    s_lshl_b32 s5, s41, 2
    s_add_u32 s4, s4, s5
    s_mul_i32 s4, s4, 1536
    s_add_u32 s67, s4, {PG}
    s_cmp_eq_u32 s64, 0
    s_cbranch_scc1 K2_fin0
    """)
    pload()
    A("s_branch K2_fin0")

    A("K2_young2:")
    scratch_addrs(BS, 8192)
    A("s_barrier")
    tables_lane()
    tables_store()
    A(f"v_mov_b32 v234, v19\ns_waitcnt lgkmcnt(0)\ns_barrier\ns_barrier")
    attention(False)
    A("K2_fin0:")
    o = O[3]
    A.c("LDS executes a wave's operations in order: the count is bumped after this wave's writes, and reads issued")
    A.c("behind a count of 4 see every partial")
    A(f"""
    s_setprio 2
    s_mov_b64 exec, 1
    ds_add_u32 v{CA}, v{ONE}
    s_mov_b64 exec, -1
    K2_fin1:
    ds_read_b32 v0, v{CA}
    """)
    for t in range(3):
        A(f"ds_read_b128 {vr(O[t],4)}, v{RD+t}{off(2048*t)}")
        A(f"ds_read_b128 {vr(O[t]+4,4)}, v{RD+t}{off(2048*t+1024)}")
        A(f"ds_read_b64 {vr(O[t]+8,2)}, v{RD+t}{off((6144, 6152, 7168)[t])}")
    A("""
    s_waitcnt lgkmcnt(9)
    v_readfirstlane_b32 s4, v0
    s_cmp_lt_u32 s4, 4
    s_cbranch_scc1 K2_finwait
    """)
    A(f"s_mov_b32 s4, {f32bits(2.0**-30)}")
    A(f"s_mov_b32 s5, {f32bits(2.0**60)}")
    for t in range(3):
        A(f"s_waitcnt lgkmcnt({3*(2-t)})")
        for i in range(5):
            A(f"v_pk_add_f32 {vr(o+2*i,2)}, {vr(o+2*i,2)}, {vr(O[t]+2*i,2)}")
    A.c("safety check of the unshifted softmax: denominator in [2^-30, 2^60], numerators finite; else redo with the true max")
    A(f"""
    v_cmp_le_f32 s[6:7], s4, v{o+9}
    v_cmp_ge_f32 s[8:9], s5, v{o+9}
    v_max3_f32 v0, abs(v{o}), abs(v{o+1}), abs(v{o+2})
    v_max3_f32 v1, abs(v{o+3}), abs(v{o+4}), abs(v{o+5})
    v_max3_f32 v2, abs(v{o+6}), abs(v{o+7}), abs(v{o+8})
    v_max3_f32 v0, v0, v1, v2
    s_and_b64 s[6:7], s[6:7], s[8:9]
    v_cmp_gt_f32 vcc, {f32bits(2.0**120)}, v0
    s_and_b64 vcc, vcc, s[6:7]
    s_cmp_eq_u64 vcc, exec
    {"s_nop 0" if OPT.get("noload") else "s_cbranch_scc0 K2_slow"}
    """)
    A("K2_fin:")
    A(f"""
    v_rcp_f32 v0, v{o+9}
    s_cmp_eq_u32 s39, 0
    v_mul_f32 v0, v0, v{GQ}
    v_mul_f32 v2, v{o+8}, v0
    v_mul_f32 v3, v{o+8}, v0
    """)
    for i in range(4):
        A(f"v_pk_mul_f32 {vr(o+2*i,2)}, {vr(o+2*i,2)}, v[0:1] op_sel_hi:[1,0]")
    A("v_permlane32_swap_b32 v2, v3")
    for i in range(4):
        A(f"v_cvt_pk_bf16_f32 v{4+i}, v{o+2*i}, v{o+2*i+1}")
    for i in range(4):
        A(f"v_min_u32 v{4+i}, -2, v{4+i}")
    A(f"""
    buffer_store_dwordx4 v[4:7], v{PM}, {ws}, s65 offen sc1
    v_cvt_pk_bf16_f32 v2, v2, v3
    v_min_u32 v2, -2, v2
    buffer_store_dword v2, v{PE}, {ws}, s66 offen sc1
    s_cbranch_scc1 K2_old2
    s_mov_b64 exec, 1
    ds_add_u32 v{CA}, v{ONE} offset:4
    """)
    if gen1.DIAG:
        sp(0, "flag"); A("s_waitcnt vmcnt(0)")
    ST.flush(v=20)
    A("K2_end:")
    A("s_endpgm")

    A("K2_old2:")
    cs("fin")
    HPW, HPR, DNA, HA, HW, YA, FA, GA = range(208, 216)
    OUT, SG1, SG2, OEA, B1, SR, TV, SV = 240, 241, 242, 243, 248, 249, 252, 250
    ACC, OF, WF = 0, 20, 56
    XR, GV, T0 = 72, 244, 112
    srd(A, sO, 72, XB)
    gload = f"buffer_load_dwordx2 {vr(GV,2)}, v{GA}, {ws}, s52 offen sc1"
    A(f"""
    ds_read_b128 {vr(HPW,4)}, v{TA} offset:1024
    ds_read_b128 {vr(HW,4)}, v{TA} offset:2048
    ds_read_b128 {vr(OUT,4)}, v{TA} offset:3072
    ds_read_b64 {vr(B1,2)}, v{TA} offset:4096
    s_lshl_b32 s4, s32, 7
    s_add_u32 s52, s4, {GB}
    s_lshl_b32 s42, s40, 11
    s_add_u32 s66, s35, s42
    s_waitcnt vmcnt(2) lgkmcnt(0)
    s_cmp_eq_u32 s64, 0
    s_cbranch_scc1 K2_nop
    s_mov_b32 s5, {SPIN}
    K2_pchk:
    v_cmp_ne_u32 vcc, s{sTAG}, v{PL+1}
    v_cmp_ne_u32 s[8:9], s{sTAG}, v{PL+3}
    v_cmp_ne_u32 s[10:11], s{sTAG}, v{PL+5}
    s_or_b64 s[8:9], s[8:9], vcc
    s_or_b64 s[8:9], s[8:9], s[10:11]
    s_cbranch_scc0 K2_pok
    s_sleep 4
    """)
    pload()
    A(f"""
    s_sub_u32 s5, s5, 1
    s_waitcnt vmcnt(0)
    s_cbranch_scc0 K2_pchk
    K2_pok:
    v_add_f32 v10, v{PL}, v{PL+2}
    v_add_f32 v10, v10, v{PL+4}
    ds_write_b32 v{HPW}, v10
    K2_nop:
    """)
    arrive(1)
    A(gload)
    cs("partials")
    gwait(1)
    cs("gwait1")
    wpos = [0]

    def wodma(cnt, paced=True):
        for u in range(wpos[0], wpos[0] + cnt):
            if u == 11:
                A(f"s_sub_u32 s66, s66, s42\ns_mov_b32 s42, 0")
            A(f"s_add_u32 m0, s42, {8192*u}")
            A(f"s_add_u32 s67, s66, {8192*u}")
            for h in range(2):
                A(f"buffer_load_dwordx4 v{L16}, {ws}, s67 offen{off(1024*h)} sc1 lds")
            if paced: A(f"s_waitcnt vmcnt({OPT.get('wopace', 4)})")
        wpos[0] += cnt

    wodma(2, False)
    A("s_cmp_eq_u32 s64, 0")
    A("s_cbranch_scc1 K2_nost2")
    A.c("---- MoE: h = silu(gate) * up, then this wave's w_down column tiles")
    A(f"""
    ds_read2st64_b32 v[10:11], v{HPR} offset0:0 offset1:1
    ds_read2st64_b32 v[12:13], v{HPR} offset0:2 offset1:3
    """)
    for t in range(5):
        for a in range(2):
            A(f"ds_read_b64_tr_b16 {vr(24+4*t+2*a,2)}, v{DNA}{off(4608*a+32*t)}")
    A(f"""
    s_waitcnt lgkmcnt(10)
    v_pk_add_f32 v[10:11], v[10:11], v[12:13]
    v_mul_f32 v12, {0x80000000 | LOG2E}, v10
    v_exp_f32 v12, v12
    v_mul_f32 v10, v10, v11
    v_add_f32 v12, 1.0, v12
    v_rcp_f32 v12, v12
    s_mul_i32 s4, s41, 4608
    v_mul_f32 v10, v10, v12
    v_cvt_pk_bf16_f32 v10, v10, v10
    ds_write_b16 v{HW}, v10
    ds_read_b128 v[12:15], v{HA}
    """)
    for t in range(5, 10):
        for a in range(2):
            A(f"ds_read_b64_tr_b16 {vr(24+4*t+2*a,2)}, v{DNA}{off(4608*a+32*t)}")
    A(f"""
    s_add_u32 s5, s4, {YP}
    s_mov_b32 s10, 0
    s_mov_b32 s11, -1
    s_waitcnt lgkmcnt(10)
    """)
    Y = [128 + 4 * t for t in range(10)]
    for t in range(10):
        if t == 5: A("s_waitcnt lgkmcnt(0)")
        A(mf16(vr(Y[t], 4), "v[12:15]", vr(24 + 4 * t, 4), "0"))
    A("s_nop 1")
    for t in range(0, 10, 2):
        A(f"v_cndmask_b32 v{Y[t]}, v{Y[t]}, v{Y[t+1]}, s[10:11]")
        A(f"buffer_store_dword v{Y[t]}, v{YA}, {ws}, s5 offen{off(64*t)} sc1")
    A("K2_nost2:")
    arrive(7)
    cs("down")
    Y0 = WF
    nosel = OPT.get("nomoe2") or OPT.get("nosel")

    def yflag_load():
        A(f"buffer_load_dwordx4 {vr(Y0+48,4)}, v{T0+2}, {ws}, s65 offen sc1")

    def y_first():
        A(f"""
        s_lshr_b32 s6, s32, 2
        s_lshr_b32 s4, s70, 6
        s_cmp_eq_u32 s4, {"-1" if nosel else "s6"}
        s_cselect_b32 s64, 1, 0
        s_lshr_b32 s4, s71, 6
        s_cmp_eq_u32 s4, {"-1" if nosel else "s6"}
        s_cselect_b32 s4, 2, 0
        s_or_b32 s64, s64, s4
        s_cbranch_scc0 K2_noy0
        v_min_u32 v{T0+2}, 35, v{LANE}
        v_lshlrev_b32 v{T0+2}, 7, v{T0+2}
        s_mul_i32 s65, s40, {36*128}
        s_add_u32 s65, s65, {FY}
        """)
        yflag_load()
        A("K2_noy0:")

    def y_sum():
        A(f"""
        s_cmp_eq_u32 s64, 0
        s_cbranch_scc1 K2_noy1
        s_mov_b32 s5, {SPIN}
        K2_ypoll:
        v_cmp_ne_u32 vcc, s{sTAG}, v{Y0+48}
        v_cmp_ne_u32 s[8:9], s{sTAG}, v{Y0+49}
        v_cmp_ne_u32 s[10:11], s{sTAG}, v{Y0+50}
        s_or_b64 s[8:9], s[8:9], vcc
        v_cmp_ne_u32 vcc, s{sTAG}, v{Y0+51}
        s_or_b64 s[8:9], s[8:9], s[10:11]
        s_or_b64 s[8:9], s[8:9], vcc
        s_cbranch_scc0 K2_ypolled
        """)
        yflag_load()
        A(f"""
        s_sub_u32 s5, s5, 1
        s_waitcnt vmcnt(0)
        s_cbranch_scc0 K2_ypoll
        K2_ypolled:
        v_min_u32 v{T0}, 53, v{LANE}
        v_mul_u32_u24 v{T0+1}, 3641, v{T0}
        v_lshrrev_b32 v{T0+1}, 16, v{T0+1}
        v_mul_u32_u24 v{T0+1}, {4608-288}, v{T0+1}
        v_lshl_add_u32 v{T0}, v{T0}, 4, v{T0+1}
        """)
        A(f"""
        s_lshl_b32 s6, s33, 1
        s_mul_i32 s7, s40, {36*4608}
        s_add_u32 s6, s6, s7
        s_add_u32 s65, s6, {YP}
        s_bitcmp1_b32 s64, 0
        s_cselect_b32 s6, 0, 2304
        s_cselect_b32 s7, 0, 1024
        s_add_u32 s6, s6, s65
        v_add_u32 v{T0+1}, s7, v{TA}
        """)
        yloads()
        A("K2_noy1:")

    def yloads():
        for u in range(12):
            A(f"buffer_load_dwordx4 {vr(Y0+4*u,4)}, v{T0}, {ws}, s6 offen sc1")
            A(f"s_add_u32 s6, s6, {3*4608}")
            if OPT.get("space") and u % 2: A(f"s_waitcnt vmcnt({OPT['space']})")

    def y_sum2(later):
        A(f"""
        s_cmp_eq_u32 s64, 0
        s_cbranch_scc1 K2_noy2
        s_waitcnt vmcnt({later})
        K2_ysum:
        """)
        for u in range(1, 12):
            for hf in range(2):
                A(f"v_pk_add_f32 {vr(Y0+2*hf,2)}, {vr(Y0+2*hf,2)}, {vr(Y0+4*u+2*hf,2)}")
        A(f"""
        ds_write_b128 v{T0+1}, {vr(Y0,4)}
        s_cmp_lg_u32 s64, 3
        s_cbranch_scc1 K2_ydone
        s_mov_b32 s64, 2
        s_add_u32 s6, s65, 2304
        s_waitcnt lgkmcnt(0)
        v_add_u32 v{T0+1}, 1024, v{TA}
        """)
        yloads()
        A("s_waitcnt vmcnt(0)\ns_branch K2_ysum\nK2_ydone:")
        arrive(5)
        A("K2_noy2:")

    def poll():
        l = lab("K2_poll")
        A(f"""
        s_mov_b32 s5, {SPIN}
        {l}:
        buffer_load_dword v{T0}, v{FA}, {ws}, s100 offen sc1
        s_sub_u32 s5, s5, 1
        s_cbranch_scc1 {l}_d
        s_waitcnt vmcnt(0)
        v_cmp_ne_u32 vcc, s{sTAG}, v{T0}
        s_cbranch_vccnz {l}
        {l}_d:
        """)

    def oload(ks):
        if ks < 8:
            return [f"buffer_load_dwordx4 {vr(OF+4*ks,4)}, v{L16}, {ws}, s{98 if ks < 4 else 101} offen{off(1024*(ks%4))} sc1"]
        return [f"buffer_load_dword v{OF+32+c}, v{OEA}, {ws}, s99 offen{off(128*c)} sc1" for c in range(4)]

    wodma(3)
    assert OPT.get('wopace', 4) <= 6 and FOM == 1
    A.c("the paced waits above covered the o and y stores")
    A.c("the half-A flag also tells that waves 4-7 have marked their slots")
    gwait(6)
    A(f"""
    s_lshl_b32 s4, s41, 7
    s_lshl_b32 s5, s40, 2
    s_add_u32 s4, s4, s5
    s_add_u32 s4, s4, {FY}
    s_cmp_eq_u32 s64, 0
    s_cselect_b32 s4, {OOB}, s4
    s_mov_b64 exec, 1
    buffer_store_dword v{TAGV}, off, {ws}, s61 sc1
    buffer_store_dword v{TAGV}, off, {ws}, s4 sc1
    s_mov_b64 exec, -1
    s_mov_b32 s5, {SPIN}
    K2_gchk:
    v_cmp_ne_u32 vcc, s{sTAG}, v{GV+1}
    s_cbranch_vccz K2_gok
    {gload}
    s_sub_u32 s5, s5, 1
    s_waitcnt vmcnt(0)
    s_cbranch_scc0 K2_gchk
    K2_gok:
    v_lshlrev_b32 v{TV-1}, 5, v{FA}
    """)
    cs("flags")
    gwait(7)
    wodma(7)
    cs("wo dma")
    y_first()
    poll()
    A("s_waitcnt vmcnt(0)")
    cs("polled")
    arrive(2)
    y_sum()
    for ks in range(9):
        for l in oload(ks): A(l)
        if OPT.get("space") and ks % 2: A(f"s_waitcnt vmcnt({OPT['space']})")

    def wreads(ks, X):
        return [f"ds_read_b128 {vr(WF+20*ks+4*T,4)}, v{B1 if X else L16}{off(1024*(5*ks+T))}" for T in range(5)]

    def p3mm(ks, first=False):
        return [mf16(vr(ACC + 4 * T, 4), vr(WF + 20 * ks + 4 * T, 4), vr(OF + 4 * ks, 4), "0" if first else vr(ACC + 4 * T, 4)) for T in range(5)]

    A(f"""
    s_add_u32 s98, s98, {128*8192}
    s_add_u32 s101, s101, {128*8192}
    s_add_u32 s99, s99, {64*2048}
    s_add_u32 s6, s34, {7*1152}
    s_add_u32 s7, s34, {14*1152}
    s_mov_b64 s[62:63], s[6:7]
    """)
    gwait(2)
    for ks in range(3, 8):
        for l in wreads(ks, 0): A(l)
    y_sum2(12)
    cs("yred")
    for ks in (0, 1, 2, 8):
        for l in wreads(ks, 0): A(l)
    cs("preload")
    sp(1, "ready")
    gwait(OPT.get("win", 4), OPT.get("wsl", 2))
    A("s_setprio 0")
    A("s_waitcnt vmcnt(0)")
    sp(1, "window")
    cs("window")
    GATE = OPT.get("egate", 1)
    epoll = f"buffer_load_dword v{TV+1}, v{TV-1}, {ws}, s99 offen sc1"
    A.c("---- half A; its registers are refilled for half B as they come free")
    for ks in range(10):
        fill = wreads(ks - 1, 1) if ks else []
        if ks == OPT.get("p0", 6): fill = [epoll] + fill
        if ks == 8: fill = [f"ds_read_b64 {vr(OF+2*T,2)}, v{SG1 if T < 4 else SG2}{off(32*T)}" for T in range(5)] + fill
        mm5 = p3mm(ks, ks == 0) if ks < 9 else [None] * 5
        for T in range(5):
            if mm5[T]: A(mm5[T])
            for l in fill[T * len(fill) // 5:(T + 1) * len(fill) // 5]: A(l)
    cs("mfma")
    sp(1, "pre1")

    A.c("---- add (1 - g) * x")
    A(f"s_mov_b32 s5, 0xffff0000\nv_sub_f32 v{GV}, 1.0, v{GV}\ns_waitcnt lgkmcnt(10)")
    for i in range(10):
        A(f"v_lshlrev_b32 v{OF+12+2*i}, 16, v{OF+i}")
        A(f"v_and_b32 v{OF+13+2*i}, s5, v{OF+i}")
    for i in range(10):
        A(f"v_pk_fma_f32 {vr(ACC+2*i,2)}, {vr(OF+12+2*i,2)}, {vr(GV,2)}, {vr(ACC+2*i,2)} op_sel_hi:[1,0,1]")
    A.c("---- routed tokens of this wave's tile get (1 - g) * sigmoid(r) * y")
    YT, T0 = OF, OF + 28
    for sel in range(2):
        A(f"""
        s_lshr_b32 s4, s{70+sel}, 4
        s_cmp_lg_u32 s4, {"-1" if OPT.get("nomoe2") or OPT.get("nosel") else "s32"}
        s_cbranch_scc1 K2_nosel{sel}
        """)
        gwait(5)
        A(f"""
        v_lshlrev_b32 v{T0}, 3, v{LANE}
        v_add_u32 v{T0+1}, {TB + 1024*sel}, v{T0}
        """)
        for k in range(12):
            A(f"ds_read_b64 {vr(YT+2*k,2)}, v{T0+1}{off(5120*(k//3)+288*(k%3))}")
        A(f"""
        v_add_u32 v{T0}, s97, v{T0}
        s_ashr_i32 s6, s{68+sel}, 31
        s_not_b32 s6, s6
        s_or_b32 s6, s6, 0x80000000
        s_xor_b32 s6, s6, s{68+sel}
        s_and_b32 s6, s6, 0xffff0000
        v_mov_b32 v{T0+3}, {0x80000000 | LOG2E}
        v_mul_f32 v{T0+3}, s6, v{T0+3}
        v_exp_f32 v{T0+3}, v{T0+3}
        v_lshrrev_b32 v{T0+2}, 4, v{LANE}
        v_add_f32 v{T0+3}, 1.0, v{T0+3}
        v_rcp_f32 v{T0+3}, v{T0+3}
        v_lshl_add_u32 v{T0+1}, v{T0+2}, 4, s97
        v_and_b32 v{T0+2}, 1, v{T0+2}
        v_lshl_add_u32 v{T0+2}, v{T0+2}, 4, s97
        s_waitcnt lgkmcnt(0)
        """)
        for k in range(1, 12):
            A(f"v_pk_add_f32 {vr(YT,2)}, {vr(YT,2)}, {vr(YT+2*k,2)}")
        A(f"ds_write_b64 v{T0}, {vr(YT,2)}")
        for p in range(4):
            A(f"ds_read_b128 {vr(YT+4+4*p,4)}, v{T0+1}{off(64*p)}")
        A(f"ds_read_b128 {vr(YT+20,4)}, v{T0+2} offset:256")
        A(f"""
        s_and_b32 s6, s{70+sel}, 15
        s_lshl_b32 s6, s6, 7
        v_mul_f32 v{T0+3}, v{T0+3}, v{GV}
        v_cmp_eq_u32 vcc, s6, v{TV-1}
        s_waitcnt lgkmcnt(0)
        s_and_saveexec_b64 s[8:9], vcc
        """)
        for i in range(20):
            A(f"v_fmac_f32 v{ACC+i}, v{YT+4+i}, v{T0+3}")
        A("s_mov_b64 exec, s[8:9]")
        A(f"K2_nosel{sel}:")
    A.c("---- half B: one word per producer is watched first; the bulk is then fetched, used, and checked for empty words")
    A.c("(the accumulators are saved so that the pass can be repeated)")
    assert OPT.get("win", 4) == 4
    A(f"s_mul_i32 s4, s40, 5120\ns_add_u32 s4, s4, {BS}\nv_add_u32 v{SV}, s4, v{L16}")
    for i in range(5):
        A(f"ds_write_b128 v{SV}, {vr(ACC+4*i,4)}{off(1024*i)}")
    A(f"""
    s_mov_b32 s5, {SPIN}
    K2_epoll:
    s_waitcnt vmcnt(0)
    v_cmp_eq_u32 vcc, -1, v{TV+1}
    s_cbranch_vccz K2_eseen
    {epoll}
    s_sub_u32 s5, s5, 1
    s_cbranch_scc0 K2_epoll
    s_mov_b32 s5, 0
    K2_eseen:
    """)
    sp(1, "eseen")
    for ks in range(9):
        for l in oload(ks): A(l)
    A(f"v_mov_b32 v{TV}, 0")
    for ks in range(9):
        A(f"s_waitcnt vmcnt({11-ks if ks < 8 else 0})" + (" lgkmcnt(0)" if ks == 0 else ""))
        f = OF + 4 * ks
        for T, l in enumerate(p3mm(ks)):
            A(l)
            if T < 2: A(f"v_max3_u32 v{TV}, v{TV}, v{f+2*T}, v{f+2*T+1}")
            if T == 2 and ks == 8: A(f"v_cmp_eq_u32 vcc, -1, v{TV}")
    A("s_cbranch_vccnz K2_redo")
    A("K2_out:")
    if not OPT.get("chain"): sp(1, "fpolled")
    cs("halfB")
    A("s_nop 0")
    for i in range(10):
        A(f"v_cvt_pk_bf16_f32 v{XR+i}, v{ACC+2*i}, v{ACC+2*i+1}")
        if i % 2: A(f"ds_write_b64 v{SG1 if i < 8 else SG2}, {vr(XR+i-1,2)}{off(16*(i-1))}")
    for n in range(3):
        A(f"ds_read_b128 {vr(WF+4*n,4)}, v{SR}{off(1008*n)}")
    for n in range(3):
        if n == 2: A("s_mov_b64 exec, 0x3ffff")
        A(f"s_waitcnt lgkmcnt({2-n})")
        A(f"buffer_store_dwordx4 {vr(WF+4*n,4)}, v{OUT}, s[{sO}:{sO+3}], s{(34, 62, 63)[n]} offen")
    A.c("the owner of the first routed token saw all 144 stage-2 flags, so every workgroup has taken its tag: hand d_debug back as zero")
    A(f"""
    s_lshr_b32 s4, s70, 4
    s_cmp_lg_u32 s4, s32
    s_cbranch_scc1 K2_fini
    v_mov_b32 v{TV}, 0
    buffer_store_dword v{TV}, off, s[{sDBG}:{sDBG+3}], 0 sc1
    K2_fini:
    """)
    if gen1.DIAG: A("s_mov_b64 exec, -1")
    cs("epilogue")
    if gen1.DIAG: A("s_waitcnt vmcnt(0)")
    cs("drain")
    csflush(1, 100)
    ST.flush(v=100)
    A("s_endpgm")
    A("K2_redo:\ns_sub_u32 s5, s5, 1\ns_cbranch_scc1 K2_out\ns_nop 7")
    for i in range(5):
        A(f"ds_read_b128 {vr(ACC+4*i,4)}, v{SV}{off(1024*i)}")
    A("s_branch K2_eseen")

    A.c("---- slow path: two passes over all keys with the true row maximum (own q tile)")
    A("K2_slow:")
    M, KA, VA, VA2, KEA = 40, 42, 43, 44, 45
    lane_addrs(KA, VA, VA2, KEA)
    A(f"""
    s_and_b32 s4, s40, 1
    s_lshl_b32 s4, s4, 3
    s_add_u32 s59, s57, s4
    buffer_load_dwordx2 {vr(QE,2)}, v{KEA}, {ws}, s59 offen sc1
    buffer_load_dwordx2 {vr(QM,2)}, v{KA}, {ws}, s59 offen sc1
    buffer_load_dwordx2 {vr(QM+2,2)}, v{KA}, {ws}, s59 offen offset:256 sc1
    v_and_b32 v4, 31, v{LANE}
    v_or_b32 v5, 4, v4
    v_cmp_eq_u32 vcc, 21, v5
    v_mov_b32 v6, 0x3f803f80
    s_bitcmp0_b32 s36, 0
    v_cndmask_b32 v{VV[0]}, 0, v6, vcc
    s_cselect_b32 s4, -1, 0
    s_cselect_b32 s5, 0, -1
    """)
    for i in range(1, 8):
        A(f"v_mov_b32 v{VV[0]+i}, v{VV[0]}")
    for i in range(16):
        A(f"v_mov_b32 v{o+i}, 0")
    A(f"""
    v_mov_b32 v{M}, 0xff800000
    s_waitcnt vmcnt(0)
    v_and_b32 v{QE}, s4, v{QE}
    v_and_b32 v{QE+1}, s5, v{QE+1}
    """)
    for pas in range(2):
        A("s_mov_b32 s10, 0")
        A(f"K2_slow{pas}:")
        A(f"""
        s_lshr_b32 s8, s10, 1
        s_mul_i32 s8, s8, {2*R}
        s_add_u32 s8, s8, 36864
        s_and_b32 s9, s10, 1
        s_lshl_b32 s11, s9, 3
        s_add_u32 s11, s11, s8
        s_mul_i32 s9, s9, 18432
        s_add_u32 s8, s8, s9
        s_add_u32 s9, s8, {R}
        buffer_load_dwordx2 {vr(KP[0],2)}, v{KA}, {ws}, s11 offen sc1
        buffer_load_dwordx2 {vr(KP[0]+2,2)}, v{KA}, {ws}, s11 offen offset:256 sc1
        buffer_load_dwordx2 {vr(KE,2)}, v{KEA}, {ws}, s11 offen sc1
        """)
        if pas:
            A(f"""
            s_mov_b64 exec, s[62:63]
            buffer_load_dwordx4 {vr(VV[0],4)}, v{VA}, {ws}, s8 offen sc1
            buffer_load_dwordx4 {vr(VV[0]+4,4)}, v{VA}, {ws}, s9 offen sc1
            s_mov_b64 exec, -1
            """)
        A(f"""
        s_waitcnt vmcnt(0)
        v_mfma_f32_32x32x4_2b_bf16 v[0:31], {vr(KE,2)}, {vr(QE,2)}, 0
        s_nop 15
        s_nop 3
        {mfma("v[0:15]", vr(KP[0],4), vr(QM,4), "v[0:15]")}
        s_nop 15
        """)
        if not pas:
            for i in range(8):
                A(f"v_max3_f32 v{M}, v{M}, v{2*i}, v{2*i+1}")
        else:
            for i in range(16):
                A(f"v_sub_f32 v{i}, v{i}, v{M}")
            for i in range(16):
                A(f"v_exp_f32 v{i}, v{i}")
            A("s_nop 1")
            A(f"v_smfmac_f32_32x32x32_bf16 {vr(o,16)}, {vr(VV[0],4)}, v[0:7], v{IDX}")
            A(f"v_smfmac_f32_32x32x32_bf16 {vr(o,16)}, {vr(VV[0]+4,4)}, v[8:15], v{IDX}")
            A("s_nop 15")
        A(f"""
        s_add_u32 s10, s10, 1
        s_cmp_lt_u32 s10, 64
        s_cbranch_scc1 K2_slow{pas}
        """)
        if not pas:
            A(f"""
            v_mov_b32 v{M+1}, v{M}
            s_nop 1
            v_permlane32_swap_b32 v{M}, v{M+1}
            s_nop 1
            v_max_f32 v{M}, v{M}, v{M+1}
            """)
    A("s_branch K2_fin")
    for r in range(2):
        A(f"""
        K2_gqspin{r}:
        s_mov_b32 s6, {SPIN}
        K2_gqspin{r}1:
        {gqload[r]}
        s_sub_u32 s6, s6, 1
        s_waitcnt vmcnt(0)
        s_cbranch_scc1 K2_gqok{r}
        v_cmp_ne_u32 vcc, s{sTAG}, v{(251, GQ+1)[r]}
        s_cbranch_vccnz K2_gqspin{r}1
        s_branch K2_gqok{r}
        """)
    A.c("---- partials still missing: watch the count alone, then read again")
    A(f"""
    K2_finwait:
    ds_read_b32 v0, v{CA}
    s_waitcnt lgkmcnt(0)
    v_readfirstlane_b32 s4, v0
    s_cmp_lt_u32 s4, {OPT.get("fw", 3)}
    s_cbranch_scc0 K2_fin1
    {"s_sleep 1" if OPT.get("fsl") else ""}
    s_branch K2_finwait
    """)
    A.c("---- router candidates not published yet (rare): wait for them")
    A(f"""
    K2_candspin:
    s_mov_b32 s6, {SPIN}
    s_mov_b32 s7, {RC}
    K2_candspin1:
    buffer_load_dwordx4 {vr(CAND,4)}, v{L16}, {ws}, s7 offen sc1
    s_sub_u32 s6, s6, 1
    s_waitcnt vmcnt(0)
    s_cbranch_scc1 K2_candok
    v_cmp_ne_u32 vcc, s{sTAG}, v{CAND+1}
    v_cmp_ne_u32 s[4:5], s{sTAG}, v{CAND+3}
    s_or_b64 vcc, vcc, s[4:5]
    s_cbranch_scc1 K2_candspin1
    s_branch K2_candok
    """)
    A("K2_codeend:")
    A("s_endpgm")
    return CNT + 48


def build():
    A = Asm()
    A('.amdgcn_target "amdgcn-amd-amdhsa--gfx950"')
    A(".text")
    lds = k23(A)
    A('.section .rodata,"a"')
    A(".p2align 6")
    A.raw(descriptor(NAME, 256, 256))
    head = ("; gated mix of a 32-head attention block and a top-2 routed SwiGLU FFN (S=2048, D=576), one launch\n"
            f"; @launch grid=(256,1,1) block=(512,1,1) lds={lds}\n")
    return head + A.text()


if __name__ == "__main__":
    out = sys.argv[1]
    gen1.DIAG = len(sys.argv) > 2 and sys.argv[2] == "diag"
    if len(sys.argv) > 3:
        OPT = eval(sys.argv[3]); gen1.OPT = OPT
    open(out, "w").write(build())
```

```python
import sys
sys.path.insert(0, "gen")
from asmlib import *
import gen1
from gen1 import YP, WS_SIZE, XB, f32bits, QSCALE, LOG2E, mfma, Stamp
NAME = "gated_mix__mha_block__moe_arch_mod__prompt_kernel"
R = 110592
VS = 9216
GB = 0x6F8000
RC = 0x6FC000
F1 = 0xA60000
PG = 0xB00000
WP = 0xE00000
OOB = 0x7FFFFF00

OM = 0x700000
OE = 0x900000
FO = 0xA00000
FY = 0xA40000
EP = 0xA50000
OPT = {}
SPIN = 1 << 17
LSPIN = 1 << 23


def mf16(d, a, b, c):
    return f"v_mfma_f32_16x16x32_bf16 {d}, {a}, {b}, {c}"


def k23(A):
    kernel_head(A, NAME)
    sDBG, sX, sG, sWS, sD, sU, sWO, sO = 12, 16, 20, 24, 28, 32, 72, 76
    sW, sWB = 20, 28
    S = [0, 32]
    O = [64, 80, 96, 112]
    QM, QE, KE = 128, 144, 148
    NB = 5
    KP = [164 + 10 * g for g in range(3)]
    VV = [194 + 8 * g for g in range(NB)]
    IDX, L16, VA, LANE = 236, 237, 238, 239
    KA, VA2, KEA, GUA, TAGV = 240, 241, 242, 234, 246
    CAND, PA, RET, ONE, CA = 250, 252, 253, 254, 255
    QEA = 251
    SW, PM, PE, RD = 243, 244, 245, 247
    DNA, DN5 = 245, 247
    M0, M3, M4, GQA = 152, 153, 154, 155
    TA = 235
    sT = [44 + t for t in range(8)] + [72 + t for t in range(8)]
    sTAG = 53
    WREG = 14336
    AS = 0
    DN = 4 * WREG
    STG = DN + 36864
    TB = STG + 4 * 3072
    BS = 129024
    HP = BS + 4 * 8192
    HS = HP + 1024
    CNT = HS + 512
    SLOT = 32768
    RGV = 4 * SLOT
    ws = f"s[{sWS}:{sWS+3}]"
    uid = [0]
    PQ, PJ = (37, 43) if OPT.get("map2") else (43, 37)
    FOM = OPT.get("fo", 1)
    FOX, FOS = (("0xff", 8), ("1", 2), ("1\ns_mov_b32 exec_lo, -1", 2))[FOM]

    def lab(p):
        uid[0] += 1
        return f"{p}_{uid[0]}"

    def cs(name):
        if not OPT.get("chain"): return
        A("s_memtime s[88:89]")
        A("s_waitcnt lgkmcnt(0)")
        A("s_sub_u32 s88, s88, s80")
        A("s_mov_b32 m0, s96")
        A(f"v_writelane_b32 v{IDX}, s88, m0")
        A("s_add_u32 s96, s96, 1")
        A.c("stamp " + name)

    def csflush(k, v):
        if not OPT.get("chain"): return
        A(f"""
        s_lshl_b32 s4, s2, 2
        s_add_u32 s4, s4, s38
        s_lshl_b32 s4, s4, 8
        s_add_u32 s4, s4, {0xD00000 + 0x40000*k}
        v_lshlrev_b32 v{v}, 2, v{LANE}
        buffer_store_dword v{IDX}, v{v}, {ws}, s4 offen
        s_nop 1
        """)

    def arrive(k):
        A(f"""
        s_mov_b64 exec, 1
        ds_add_u32 v{CA}, v{ONE}{off(4*k)}
        s_mov_b64 exec, -1
        """)

    def gwait(k, sl=1):
        l = lab("K2_gw")
        A(f"""
        s_mov_b32 s5, {LSPIN}
        {l}:
        ds_read_b32 v247, v{CA}{off(4*k)}
        s_waitcnt lgkmcnt(0)
        v_readfirstlane_b32 s4, v247
        s_cmp_ge_u32 s4, 4
        s_cbranch_scc1 {l}_d
        s_sleep {sl}
        s_sub_u32 s5, s5, 1
        s_cbranch_scc0 {l}
        {l}_d:
        """)

    tagload = f"buffer_load_dword v{TAGV}, off, s[{sDBG}:{sDBG+3}], 0 sc1"

    def gettag():
        l = lab("K2_tag")
        A(f"""
        s_mov_b32 s5, {SPIN}
        {l}:
        s_waitcnt vmcnt(0)
        v_readfirstlane_b32 s{sTAG}, v{TAGV}
        s_cmp_lg_u32 s{sTAG}, 0
        s_cbranch_scc1 {l}_d
        s_sleep 8
        {tagload}
        s_sub_u32 s5, s5, 1
        s_cbranch_scc0 {l}
        {l}_d:
        """)

    def lane_addrs(KA, VA, VA2, KEA):
        A(f"""
        s_lshr_b32 s4, s36, 1
        s_mul_i32 s4, s4, {9*256}
        s_and_b32 s5, s36, 1
        s_mul_i32 s5, s5, {5*256}
        s_add_u32 s5, s5, s4
        s_add_u32 s4, s4, 1024
        v_and_b32 v4, 31, v{LANE}
        v_lshrrev_b32 v6, 5, v{LANE}
        v_lshrrev_b32 v5, 4, v4
        v_mul_u32_u24 v5, {R-256}, v5
        v_lshl_add_u32 v5, v4, 4, v5
        v_add_u32 v{KEA}, s4, v5
        v_add_u32 v{KA}, s5, v5
        v_lshl_add_u32 v{KA}, v6, 9, v{KA}
        s_mul_i32 s4, s36, 288
        s_add_u32 s4, s4, 36864
        v_min_u32 v5, 17, v4
        v_lshl_add_u32 v{VA}, v5, 4, s4
        v_mul_u32_u24 v5, {VS}, v6
        v_add_u32 v{VA}, v{VA}, v5
        v_add_u32 v{VA2}, {2*VS}, v{VA}
        """)

    def att_setup(old):
        A(f"""
        s_lshl_b32 s4, s3, 1
        s_bfe_u32 s5, s2, 0x10003
        s_add_u32 s{PQ}, s4, s5
        s_lshr_b32 s{PJ}, s2, 4
        s_lshl_b32 s36, s43, 1
        s_add_u32 s36, s36, s39
        """)
        A.c("s36 head, s37 q block (128), s38 wave, s39 head half, s40 key quarter, s43 head within half")
        lane_addrs(KA, VA, VA2, KEA)
        A(f"""
        s_mul_i32 s10, s37, {4*R}
        s_xor_b32 s11, s40, 3
        """)
        A.c("a 32-row tile = the same 16-token half of two neighbouring records; local q tile t is tile t ^ 3 ^ kq")
        A(f"""
        s_mov_b32 s60, s10
        s_lshr_b32 s4, s11, 1
        s_mul_i32 s5, s4, {2*R}
        s_add_u32 s56, s10, s5
        s_xor_b32 s5, s4, 1
        s_mul_i32 s5, s5, {2*R}
        s_add_u32 s57, s10, s5
        v_xor_b32 v5, s4, v6
        s_mov_b32 s4, {2*R}
        v_mad_u32_u24 v{QEA}, v5, s4, v{KEA}
        s_lshl_b32 s9, s37, {OPT.get("rsh", 0)}
        s_and_b32 s9, s9, {OPT.get("rot", 0)}
        s_and_b32 s5, s9, 1
        v_xor_b32 v5, s5, v6
        v_subrev_u32 v5, s5, v5
        v_mad_i32_i24 v{KEA}, v5, s4, v{KEA}
        s_mul_i32 s10, s40, {16*R}
        s_add_u32 s10, s10, 36864
        """)
        assert not OPT.get("rot", 0) & 1
        for m in range(8):
            A(f"s_xor_b32 s4, s9, {m}")
            A(f"s_mul_i32 s4, s4, {2*R}")
            A(f"s_add_u32 s{sT[2*m]}, s10, s4")
            A(f"s_add_u32 s{sT[2*m+1]}, s{sT[2*m]}, {R}")
        A("s_mov_b32 s62, 0x0011ffff\ns_mov_b32 s63, 0x0011ffff")
        if not old: return
        A.c("projection flags of this head pair: lane = (k / v, first / last channel, token block), the two q flags and the two flags of the packed w_o block")
        A(f"""
        s_mul_i32 s4, s43, 36
        v_bfe_u32 v5, v{LANE}, 4, 1
        v_mad_u32_u24 v5, v5, 35, s4
        v_lshrrev_b32 v7, 7, v5
        s_lshr_b32 s7, s43, 1
        s_mul_i32 s4, s7, 9
        s_lshr_b32 s4, s4, 4
        s_lshl_b32 s5, s7, 1
        s_sub_u32 s4, s5, s4
        v_add_u32 v7, s4, v7
        v_lshl_add_u32 v7, v7, 4, s37
        s_and_b32 s4, s{PJ}, 14
        s_add_u32 s4, s4, {768 - 2}
        v_lshrrev_b32 v8, 4, v{LANE}
        v_cmp_lt_u32 vcc, 1, v8
        v_add_u32 v8, s4, v8
        s_mov_b32 s4, {F1}
        v_cndmask_b32 v7, v7, v8, vcc
        v_lshl_add_u32 v{PA+1}, v7, 5, s4
        v_mul_u32_u24 v7, 576, v6
        v_add_u32 v5, 576, v5
        v_add_u32 v5, v5, v7
        v_lshrrev_b32 v5, 7, v5
        s_add_u32 s5, s7, 8
        v_lshl_add_u32 v7, v6, 3, s5
        v_mul_u32_u24 v8, 9, v7
        v_lshrrev_b32 v8, 4, v8
        v_sub_u32 v5, v5, v8
        v_lshl_add_u32 v5, v7, 1, v5
        v_and_b32 v7, 15, v{LANE}
        v_lshl_add_u32 v5, v5, 4, v7
        v_lshl_add_u32 v{PA}, v5, 5, s4
        """)

    ACC, PK, AX, AW, SA, FLA = 64, 128, 220, 224, 250, 162
    FR = [0, 32]

    def acc(a, T):
        return ACC + 16 * a + 4 * T

    def epilogue(vmode, r, scale):
        out = []
        for T in range(4):
            p = PK + 16 * r + 4 * T
            for a in (2 * r, 2 * r + 1):
                d = acc(a, T)
                if scale:
                    out += [f"v_pk_mul_f32 {vr(d+2*i,2)}, {vr(d+2*i,2)}, s[98:99]" for i in range(2)]
                out += [f"v_cvt_pk_bf16_f32 v{p+2*(a%2)+i}, v{d+2*i}, v{d+2*i+1}" for i in range(2)]
            out.append(f"buffer_store_dwordx4 {vr(p,4)}, v{SA}, {ws}, s{65+r} offen{off((256 if vmode else 1024)*T)} sc1")
        return out

    def xread(n, a, vmode):
        c, s_ = divmod(n, 2)
        k, o = divmod(c % 4, 2)
        to = (a // 2) * 4096 + (a % 2) * 512 if vmode else a * 2048
        return f"ds_read_b128 {vr(FR[n%2]+4*a,4)}, v{AX+2*k+s_}{off(o*SLOT+to)}"

    def reads(n, vmode):
        c, s_ = divmod(n, 2)
        k, o = divmod(c % 4, 2)
        w = [[(f"w{T}", f"ds_read_b64_tr_b16 {vr(FR[n%2]+16+4*T+2*a,2)}, v{AW+4*k+T}{off(o*SLOT+(32*s_+4*a)*128)}") for a in range(2)] for T in range(4)]
        x = [(f"x{a}", xread(n, a, vmode)) for a in range(4)]
        return [(f"{n}{t}", l) for t, l in w[0] + x[:1] + w[1] + w[2] + w[3] + x[1:]]

    def gemm(vmode):
        q = []

        def put(r):
            if OPT.get("nord") and len(r[0]) + int(r[0][0] > "1") > 3: return
            q.append(r[0]); A(r[1])

        def need(*tags):
            idx = [i for i, t in enumerate(q) if t in tags]
            if idx:
                A(f"s_waitcnt lgkmcnt({len(q) - 1 - max(idx)})")
                del q[:max(idx) + 1]
        A("s_barrier")
        sp(1, "b0")
        cs("B0")
        for r in reads(0, vmode): put(r)

        def mm1(n, a, T):
            need(f"{n}x{a}", f"{n}w{T}")
            d = vr(acc(a, T), 4)
            x, w = vr(FR[n % 2] + 4 * a, 4), vr(FR[n % 2] + 16 + 4 * T, 4)
            c = "0" if n == 0 else d
            A(mf16(d, x, w, c) if vmode else mf16(d, w, x, c))
        for n in range(16):
            Rn = reads(n + 1, vmode)
            bp = OPT.get("bp", (0, 6))[n == 15] if n % 2 else 0
            for i in range(16):
                if i == 0 and n > 0: need(f"{n}x0", f"{n}w0", f"{n}w1", f"{n}w2", f"{n}w3")
                mm1(n, i // 4, i % 4)
                if i == bp and n % 2 == 1:
                    need(f"{n}x3")
                    A("s_barrier")
                if i == 0 and n == OPT.get("tagstep", 8): A(tagload)
                if i == 0 and n == OPT.get("tagstep", 8) + 5: gettag()
                if i >= bp:
                    k = 1 if bp <= 2 else 2
                    for r in Rn[k * (i - bp):k * (i - bp) + k]: put(r)
        Rn = reads(17, vmode)
        for i in range(8):
            mm1(16, i // 4, i % 4)
            for r in Rn[2 * i:2 * i + 2]: put(r)
        for i in range(8): mm1(17, i % 2, i // 2)
        q0 = list(q)
        if not vmode: A("s_cmp_lt_u32 s69, 9\ns_cbranch_scc1 K2_qtail")
        for scale in ((False,) if vmode else (False, True)):
            q[:] = q0
            if scale: A("K2_qtail:")
            E = epilogue(vmode, 0, scale)
            tail = [(16, 2 + i // 4, i % 4) for i in range(8)] + [(17, 2 + i % 2, i // 2) for i in range(8)]
            for i, t in enumerate(tail):
                mm1(*t)
                if not OPT.get("ilv", (1, 1))[not scale]:
                    if i == 15:
                        for l in E: A(l)
                elif i >= 2:
                    for l in E[(i - 2) * len(E) // 14:(i - 1) * len(E) // 14]: A(l)
            sp(1, "passa")
            cs("pass A")
            A("s_nop 1")
            for l in epilogue(vmode, 1, scale): A(l)
            sp(1, "astore")
            cs("a stores")
            A("s_branch K2_p1done")

    def pflag(sf):
        A(f"""
        s_cmp_lg_u32 s40, 0
        s_waitcnt vmcnt(0)
        s_barrier
        s_cbranch_scc1 K2_noflag
        s_mov_b64 exec, 0xffffff
        buffer_store_dword v{TAGV}, v{FLA}, {ws}, s{sf} offen sc1
        s_mov_b64 exec, -1
        K2_noflag:
        """)

    def presets():
        A.c("V registers are preset: rows 17 and 21 are the all-ones rows that produce the softmax denominator")
        A.c("(1 + 127*2^-16 has the bit pattern 0x3f803f80 = two bf16 ones; the matrix unit fills 32 registers per instruction)")
        A(f"""
        v_and_b32 v4, 31, v{LANE}
        v_or_b32 v5, 4, v4
        v_cmp_eq_u32 vcc, 21, v5
        v_mov_b32 v6, 0x3afe3f80
        v_mov_b32 v8, 0x3f803f80
        v_cndmask_b32 v6, 0, v6, vcc
        v_mov_b32 v7, 0
        v_mov_b32 v9, 0
        v_mov_b32 v10, 0
        v_mov_b32 v11, 0
        v_mfma_f32_32x32x4_2b_bf16 {vr(170,32)}, v[8:9], v[6:7], 0
        v_mfma_f32_32x32x4_2b_bf16 {vr(202,32)}, v[8:9], v[6:7], 0
        v_mfma_f32_32x32x4_2b_bf16 {vr(O[0],32)}, v[10:11], v[10:11], 0
        v_mfma_f32_32x32x4_2b_bf16 {vr(O[2],32)}, v[10:11], v[10:11], 0
        s_nop 3
        """)

    def p1_addrs():
        A.c("wave = 64 tokens (s40 & 1) x one 64-channel tile (s40 >> 1); v tiles map row 4g+j of tile a to token 8g+4a+j")
        A(f"""
        v_lshrrev_b32 v1, 4, v{LANE}
        v_and_b32 v2, 15, v{LANE}
        v_and_b32 v3, 12, v2
        v_add_u32 v3, v3, v2
        s_cmp_eq_u32 s100, 2
        s_cselect_b64 vcc, -1, 0
        v_cndmask_b32 v3, v2, v3, vcc
        v_mul_u32_u24 v4, {VS}, v1
        v_lshl_add_u32 v4, v2, 4, v4
        v_cndmask_b32 v{SA}, v{L16}, v4, vcc
        v_lshrrev_b32 v4, 1, v2
        v_xor_b32 v4, v4, v1
        s_and_b32 s4, s40, 1
        s_lshl_b32 s4, s4, 1
        s_cmp_eq_u32 s100, 3
        s_cselect_b32 s4, s40, s4
        s_lshl_b32 s5, s68, 2
        s_add_u32 s71, s5, s4
        s_lshl_b32 s4, s4, 12
        v_lshl_add_u32 v3, v3, 7, s4
        v_lshl_add_u32 v{AX}, v4, 4, v3
        v_xor_b32 v{AX+1}, 64, v{AX}
        v_add_u32 v{AX+2}, {2*SLOT}, v{AX}
        v_add_u32 v{AX+3}, {2*SLOT}, v{AX+1}
        v_bfe_u32 v3, v{LANE}, 2, 2
        v_lshl_add_u32 v4, v1, 3, v3
        v_lshlrev_b32 v4, 7, v4
        v_bfe_u32 v3, v{LANE}, 3, 2
        v_lshl_add_u32 v4, v3, 5, v4
        v_and_b32 v3, 3, v{LANE}
        v_lshl_add_u32 v4, v3, 3, v4
        s_lshr_b32 s7, s40, 1
        s_lshl_b32 s4, s7, 13
        s_add_u32 s4, s4, 16384
        v_add_u32 v{AW}, s4, v4
        """)
        for T in range(1, 4):
            A(f"v_xor_b32 v{AW+T}, {32*T}, v{AW}")
        for T in range(4):
            A(f"v_add_u32 v{AW+4+T}, {2*SLOT}, v{AW+T}")
        A.c("store base s65 and flag address s61 of this wave's tile")
        A(f"""
        s_add_u32 s69, s69, s7
        s_mul_i32 s4, s71, {R}
        s_lshl_b32 s5, s69, 12
        s_lshl_b32 s6, s69, 10
        s_add_u32 s6, s6, {73728 - 18*1024}
        s_cmp_eq_u32 s100, 2
        s_cselect_b32 s5, s6, s5
        s_add_u32 s65, s4, s5
        s_add_u32 s66, s65, {R}
        s_lshl_b32 s4, s68, 5
        s_add_u32 s61, s4, {F1}
        s_mul_i32 s4, s97, {16*7282}
        s_add_u32 s5, s4, {15*7282}
        s_lshr_b32 s4, s4, 16
        s_lshr_b32 s5, s5, 16
        s_min_u32 s5, s5, 23
        v_lshrrev_b32 v3, 3, v{LANE}
        v_add_u32 v3, s4, v3
        v_min_u32 v3, s5, v3
        v_mul_u32_u24 v4, 9, v3
        v_lshrrev_b32 v4, 4, v4
        v_sub_u32 v4, s97, v4
        v_lshl_add_u32 v3, v3, 1, v4
        v_and_b32 v4, 7, v{LANE}
        v_lshlrev_b32 v4, 2, v4
        v_lshl_add_u32 v{FLA}, v3, 9, v4
        s_mov_b32 s98, {QSCALE}
        s_mov_b32 s99, s98
        """)

    A("s_cmp_ge_u32 s2, 256")
    A("s_cbranch_scc1 K2_end")
    ST = Stamp(A, 0); ST.t(0)
    STS = OPT.get("st", ("astore,polled,loopend,fpolled", "loaded,polled,loopend,flag"))

    def sp(old, name):
        L = STS[0 if old else 1].split(",")
        if name in L: ST.t(1 + L.index(name))
    srd(A, sX, 0, XB)
    srd(A, sW, 8, 576 * 3456)
    srd(A, sWS, 88, WS_SIZE)
    srd(A, sDBG, 80, 256)
    A(f"""
    v_lshrrev_b32 v1, 6, v0
    v_and_b32 v{LANE}, 63, v0
    v_readfirstlane_b32 s38, v1
    v_lshlrev_b32 v{L16}, 4, v{LANE}
    s_and_b32 s3, s2, 7
    s_and_b32 s4, s2, 3
    s_bfe_u32 s5, s2, 0x20003
    s_lshl_b32 s68, s4, 2
    s_add_u32 s68, s68, s5
    s_lshr_b32 s6, s3, 2
    s_lshr_b32 s7, s2, 5
    {"s_mul_i32 s97, s6, 7" if not OPT.get("tmap", 1) else "s_mul_i32 s97, s6, 6"}
    s_add_u32 s97, s97, s7
    s_lshl_b32 s9, s6, 3
    s_add_u32 s9, s9, s7
    s_cmp_eq_u32 s9, {6 if OPT.get("tmap", 1) else 63}
    s_cselect_b32 s97, 13, s97
    s_lshl_b32 s69, s97, 1
    s_cmp_ge_u32 s97, 9
    s_cselect_b32 s100, 2, 0
    s_cmp_lt_u32 s97, 13
    s_cselect_b32 s101, 1, 0
    s_lshr_b32 s9, s5, 1
    s_xor_b32 s9, s9, s6
    s_add_u32 s9, s9, 3
    s_cmp_eq_u32 s7, 7
    s_cselect_b32 s100, s9, s100
    s_cselect_b32 s101, 0, s101
    s_lshr_b32 s39, s38, 2
    s_and_b32 s40, s38, 3
    s_cmp_eq_u32 s39, 0
    s_cbranch_scc1 K2_old
    """)
    CR = OPT.get("cr", (1, 4, 1, 4, 1, 2, 1))
    A.c("projection tile: s68 token block (128), s97 channel tile (128), s100 kind (0 q/k, 2 v, 3 router, 4 none), s69 first block, s101 has a second block")
    A.c("=========== waves 4-7 first stage x and w_qkv for the projection (k chunks start at s71, for L2 locality only)")
    A(f"""
    s_setprio 2
    s_cmp_eq_u32 s100, 4
    s_cbranch_scc1 K2_lastbar
    s_and_b32 s71, s7, {CR[0]}
    s_mul_i32 s71, s71, {CR[1]}
    s_and_b32 s9, s5, {CR[2]}
    s_mul_i32 s9, s9, {CR[3]}
    s_{"xor_b32" if len(CR) > 6 else "add_u32"} s71, s71, s9
    s_mul_i32 s9, s4, {CR[4]}
    s_add_u32 s71, s71, s9
    s_mul_i32 s9, s6, {CR[5]}
    s_add_u32 s71, s71, s9
    s_mul_i32 s9, s71, 57
    s_lshr_b32 s9, s9, 9
    s_mul_i32 s9, s9, 9
    s_sub_u32 s71, s71, s9
    s_cmp_eq_u32 s100, 3
    s_cselect_b32 s71, 0, s71
    v_lshrrev_b32 v2, 3, v{LANE}
    v_and_b32 v3, 7, v{LANE}
    v_lshrrev_b32 v4, 4, v{LANE}
    s_cmp_eq_u32 s100, 2
    s_cselect_b32 s9, 1, 2
    s_cselect_b32 s10, 1, 3
    s_lshl_b32 s9, s40, s9
    s_and_b32 s9, s9, 7
    v_and_b32 v5, s10, v4
    v_add_u32 v5, s9, v5
    v_xor_b32 v5, v3, v5
    s_lshl_b32 s9, s40, 3
    v_add_u32 v2, s9, v2
    s_lshl_b32 s10, s68, 7
    v_add_u32 v6, s10, v2
    v_mul_u32_u24 v6, 1152, v6
    v_lshl_add_u32 v10, v5, 4, v6
    v_and_b32 v4, 1, v4
    s_and_b32 s9, s40, 1
    s_lshl_b32 s9, s9, 2
    v_lshl_add_u32 v4, v4, 1, s9
    v_xor_b32 v3, v3, v4
    v_mul_u32_u24 v6, 3456, v2
    v_lshl_add_u32 v6, v3, 4, v6
    s_lshl_b32 s10, s69, 7
    v_add_u32 v11, s10, v6
    s_lshl_b32 s42, s40, 10
    s_cmp_eq_u32 s100, 3
    s_cselect_b32 s{sW+2}, 0, {576*3456}
    s_cmp_eq_u32 s101, 0
    s_cselect_b32 s{sWB+2}, 0, {576*3456}
    s_mov_b32 s{sWB+3}, 0x00020000
    s_waitcnt lgkmcnt(0)
    s_mov_b64 s[{sWB}:{sWB+1}], s[{sW}:{sW+1}]
    """)
    A.c("missing tiles stage zeros (empty descriptors)")

    def dma1(k):
        c, r = divmod(k, 8)
        u, isx = divmod(r, 2)
        slot = c % 4
        if r == 0: A(f"s_lshl_b32 s65, s71, 7\ns_mul_i32 s66, s71, {64*3456}")
        if not isx:
            t, hf = u % 2, u // 2
            A(f"s_add_u32 m0, s42, {slot*SLOT + 16384 + t*8192 + hf*4096}")
            A(f"s_add_u32 s67, s66, {hf*32*3456 + 128*t}")
            A(f"buffer_load_dwordx4 v11, s[{(sW, sWB)[t]}:{(sW, sWB)[t]+3}], s67 offen{OPT.get('wnt', '')} lds")
        else:
            A(f"s_add_u32 m0, s42, {slot*SLOT + u*4096}")
            A(f"s_add_u32 s67, s65, {u*36864}")
            A(f"buffer_load_dwordx4 v10, s[{sX}:{sX+3}], s67 offen{OPT.get('xnt', '')} lds")
        if r == 7: A("s_add_u32 s71, s71, 1\ns_cmp_eq_u32 s71, 9\ns_cselect_b32 s71, 0, s71")

    lead0, lead = OPT.get("lead", (8, 8))
    assert lead <= 16
    issued = 0
    for c in range(9):
        tgt = min(72, 8 * (c + 1) + (lead0 if c == 0 else lead))
        while issued < tgt:
            dma1(issued); issued += 1
        A(f"s_waitcnt vmcnt({issued - 8*(c+1)})")
        if c == 8: A("K2_lastbar:")
        A("s_barrier")
    A("K2_loaded:")
    A("s_waitcnt lgkmcnt(0)")
    sp(0, "loaded")
    A(tagload)
    att_setup(False)
    presets()
    gettag()
    A("s_branch K2_young2")

    OAT = 60

    def tables():
        A.c("output projection tile: 64 tokens x 72 channels per workgroup, dealt so that one die shares tokens (speed only)")
        A.c("s32 = 16-token tile of this wave, s33 = byte offset of the channel block, s34 row base, s35 packed w_o")
        A(f"""
        s_lshl_b32 s32, s{PQ}, 3
        s_and_b32 s4, s{PJ}, 1
        s_lshl_b32 s4, s4, 2
        s_add_u32 s32, s32, s4
        s_add_u32 s32, s32, s40
        s_lshr_b32 s33, s{PJ}, 1
        s_mul_i32 s33, s33, 144
        s_mul_i32 s34, s32, {16*1152}
        s_add_u32 s34, s34, s33
        s_mul_i32 s35, s33, 640
        s_add_u32 s35, s35, {WP}
        s_mul_i32 s4, s40, 3072
        s_add_u32 s97, s4, {STG}
        s_lshl_b32 s4, s32, 13
        s_add_u32 s98, s4, {OM}
        s_add_u32 s101, s98, 4096
        s_lshr_b32 s4, s32, 2
        s_lshl_b32 s4, s4, 1
        s_and_b32 s5, s40, 1
        s_add_u32 s4, s4, s5
        s_lshl_b32 s5, s4, 7
        s_add_u32 s100, s5, {FO}
        s_lshl_b32 s4, s4, 11
        s_lshr_b32 s5, s40, 1
        s_lshl_b32 s5, s5, 6
        s_add_u32 s4, s4, s5
        s_add_u32 s99, s4, {OE}
        s_mul_i32 s4, s40, 5120
        s_add_u32 s4, s4, {TB}
        v_add_u32 v{TA}, s4, v{L16}
        """)

    def tables_lane():
        A.c("per-lane addresses that wave s40 needs in the later phases are worked out here and parked in LDS")
        A(f"""
        s_mul_i32 s42, s40, {WREG}
        s_mul_i32 s4, s40, 3072
        s_add_u32 s97, s4, {STG}
        s_mul_i32 s4, s40, 5120
        s_add_u32 s4, s4, {TB}
        v_add_u32 v{TA}, s4, v{L16}
        v_and_b32 v3, 15, v{LANE}
        v_lshrrev_b32 v4, 4, v{LANE}
        v_bfe_u32 v5, v{LANE}, 2, 2
        v_lshl_add_u32 v7, v4, 3, v5
        v_and_b32 v5, 1, v5
        v_and_b32 v6, 1, v4
        v_lshlrev_b32 v18, 3, v{LANE}
        v_and_b32 v8, 24, v18
        v_lshl_add_u32 v16, v7, 7, s42
        v_add_u32 v16, v16, v8
        v_lshl_add_u32 v17, v4, 4, s42
        v_lshl_add_u32 v17, v5, 10, v17
        v_and_b32 v19, 64, v{PE}
        v_add_lshl_u32 v19, v19, v{PE}, 1
        v_lshlrev_b32 v9, 2, v{LANE}
        v_add_u32 v21, {HP}, v9
        s_lshl_b32 s4, s40, 8
        v_add_u32 v20, s4, v21
        s_mul_i32 s4, s40, 288
        s_and_b32 s4, s4, 0xffc0
        s_add_u32 s5, s4, {DN}
        v_mul_u32_u24 v22, 1152, v7
        v_add3_u32 v22, v22, v8, s5
        s_lshl_b32 s5, s40, 7
        s_add_u32 s5, s5, {HS}
        v_lshl_add_u32 v23, v4, 4, s5
        v_lshl_add_u32 v23, v5, 6, v23
        v_and_b32 v10, 32, v{LANE}
        v_lshl_add_u32 v24, v3, 1, s5
        v_lshl_add_u32 v24, v6, 6, v24
        v_add_u32 v24, v24, v10
        v_lshlrev_b32 v26, 2, v3
        v_mul_u32_u24 v25, 2304, v6
        v_lshl_add_u32 v25, v10, 1, v25
        s_lshl_b32 s4, s4, 1
        v_add3_u32 v25, v25, v26, s4
        v_lshlrev_b32 v27, 3, v3
        v_mul_u32_u24 v11, 7282, v{LANE}
        v_lshrrev_b32 v11, 16, v11
        v_mul_u32_u24 v11, {1152-144}, v11
        v_add_u32 v{OAT}, v11, v{L16}
        v_mul_u32_u24 v11, 144, v3
        v_add_u32 v11, s97, v11
        v_lshl_add_u32 v{OAT+1}, v4, 3, v11
        v_lshl_add_u32 v{OAT+2}, v6, 3, v11
        v_lshl_add_u32 v{OAT+3}, v4, 9, v26
        v_add_u32 v28, 46080, v{L16}
        v_add_u32 v29, s97, v{L16}
        """)

    def tables_store():
        A(f"""
        ds_write_b128 v{TA}, v[16:19]
        ds_write_b128 v{TA}, v[20:23] offset:1024
        ds_write_b128 v{TA}, v[24:27] offset:2048
        ds_write_b128 v{TA}, {vr(OAT,4)} offset:3072
        ds_write_b64 v{TA}, v[28:29] offset:4096
        """)

    def p1_compute():
        A("K2_old:")
        A("s_setprio 3")
        if OPT.get("chain"): A("s_mov_b32 s96, 0")
        A(f"""
        v_mov_b32 v{CA}, {CNT}
        v_mov_b32 v{ONE}, 1
        v_mov_b32 v10, 0
        v_mov_b32 v11, 0
        v_mov_b32 v12, 0
        v_mov_b32 v13, 0
        """)
        if OPT.get("cpf", 1):
            A.c("pull this kernel's code into the die's L2, three lines per wave (speed only)")
            A(f"""
            s_getpc_b64 s[8:9]
            K2_pc:
            s_sub_u32 s8, s8, K2_pc - {NAME}
            s_subb_u32 s9, s9, 0
            s_lshr_b32 s10, s2, 3
            s_lshl_b32 s10, s10, 2
            s_add_u32 s10, s10, s40
            v_min_u32 v2, 2, v{LANE}
            v_lshl_add_u32 v2, v2, 7, s10
            v_min_u32 v2, (K2_codeend - {NAME}) / 128, v2
            v_lshlrev_b32 v2, 7, v2
            v_mov_b32 v3, s9
            v_add_co_u32 v2, vcc, s8, v2
            s_nop 1
            v_addc_co_u32 v3, vcc, 0, v3, vcc
            global_load_dword v161, v[2:3], off
            """)
        if OPT.get("pre", 0):
            A.c("row-wise first touch of this die's share of x and w_qkv (speed only)")
            A(f"""
            s_lshr_b32 s8, s2, 3
            s_lshl_b32 s8, s8, 2
            s_add_u32 s8, s8, s40
            s_lshl_b32 s9, s4, 1
            s_add_u32 s9, s9, s6
            s_lshl_b32 s9, s9, 7
            s_add_u32 s9, s9, s8
            s_mul_i32 s9, s9, 2304
            v_min_u32 v2, 17, v{LANE}
            v_lshlrev_b32 v2, 7, v2
            s_mul_i32 s10, s4, 144
            s_add_u32 s10, s10, s8
            s_mul_i32 s10, s10, 3456
            s_mul_i32 s11, s6, 1792
            s_add_u32 s10, s10, s11
            s_cmp_lt_u32 s8, 16
            s_cselect_b32 s11, {128*3456}, 0
            v_and_b32 v3, 15, v{LANE}
            v_min_u32 v3, 13, v3
            v_lshlrev_b32 v3, 7, v3
            v_bfe_u32 v4, v{LANE}, 4, 1
            v_mad_u32_u24 v3, v4, s11, v3
            s_waitcnt lgkmcnt(0)
            buffer_load_dword v160, v2, s[{sX}:{sX+3}], s9 offen
            buffer_load_dword v160, v3, s[{sW}:{sW+3}], s10 offen
            """)
        A(f"""
        s_waitcnt lgkmcnt(0)
        s_or_b32 s4, s2, s40
        s_cmp_lg_u32 s4, 0
        s_cbranch_scc1 K2_notag
        """)
        A.c("hand-off tag of this launch: successor of the word the previous launch left, published through d_debug[0]")
        A(f"""
        s_mov_b32 s4, {EP}
        buffer_load_dword v14, off, {ws}, s4 sc1
        s_mov_b32 s5, 1664525
        s_waitcnt vmcnt(0)
        v_mul_lo_u32 v14, v14, s5
        v_add_u32 v14, 1013904223, v14
        v_max_u32 v14, 1, v14
        s_mov_b64 exec, 1
        buffer_store_dword v14, off, s[{sDBG}:{sDBG+3}], 0 sc1
        buffer_store_dword v14, off, {ws}, s4 sc1
        s_mov_b64 exec, -1
        K2_notag:
        ds_write_b128 v{CA}, v[10:13]
        ds_write_b128 v{CA}, v[10:13] offset:16
        ds_write_b128 v{CA}, v[10:13] offset:32
        s_load_dwordx2 s[4:5], s[0:1], 32
        s_load_dwordx2 s[6:7], s[0:1], 64
        """)
        srd(A, sG, 40, 576 * 9216)
        srd(A, sU, 48, 576 * 9216)
        srd(A, sD, 56, 4608 * 1152)
        A(f"""
        s_mov_b32 s10, 1152
        s_mov_b32 s11, 0x00020000
        s_waitcnt lgkmcnt(0)
        s_cmp_lt_u32 s40, 2
        s_cselect_b32 s8, s4, s6
        s_cselect_b32 s9, s5, s7
        s_cmp_lg_u32 s100, 3
        s_cbranch_scc1 K2_norgv
        s_lshl_b32 s4, s40, 10
        s_add_u32 m0, s4, {RGV}
        s_and_b32 s4, s4, 1024
        buffer_load_dwordx4 v{L16}, s[8:11], s4 offen lds
        K2_norgv:
        """)
        p1_addrs()
        att_setup(True)
        A.c("MoE stage 1: 96 rows x 64 columns of w_gate or w_up per wave; stage 2 (s64): 32 rows of w_down")
        A.c("staging slots a workgroup does not need get an empty descriptor")
        nm = OPT.get('nomoe2')
        A(f"""
        s_lshr_b32 s4, s2, 3
        s_mul_i32 s41, s3, 18
        s_add_u32 s41, s41, s4
        s_mul_i32 s42, s40, {WREG}
        s_mul_i32 s9, s40, 9216
        s_cmp_lt_u32 s4, 18
        s_cselect_b32 s{sD+2}, s{sD+2}, 0
        s_cselect_b32 s64, {0 if nm else 1}, 0
        s_mul_i32 s8, s41, 36864
        s_add_u32 s8, s8, s9
        s_add_u32 s9, s9, {DN}
        s_mul_i32 s5, s3, 27
        s_add_u32 s5, s5, s4
        s_sub_u32 s5, s5, 5
        s_max_i32 s5, s5, 0
        s_mul_i32 s58, s5, 3641
        s_lshr_b32 s58, s58, 16
        s_mul_i32 s10, s58, 18
        s_sub_u32 s5, s5, s10
        s_lshl_b32 s5, s5, 2
        s_add_u32 s5, s5, s40
        s_mul_i32 s59, s5, 24
        s_add_u32 s59, s59, s58
        s_lshl_b32 s59, s59, 9
        s_add_u32 s59, s59, {PG}
        s_sub_u32 s10, s58, 6
        s_cselect_b32 s58, s58, s10
        s_cselect_b64 s[{sG}:{sG+1}], s[{sG}:{sG+1}], s[{sU}:{sU+1}]
        s_mul_i32 s54, s58, {96*9216}
        s_lshl_b32 s5, s5, 7
        s_add_u32 s54, s54, s5
        s_mul_i32 s58, s58, 192
        v_lshrrev_b32 v8, 3, v{LANE}
        v_mul_u32_u24 v8, {9216-128}, v8
        v_add_u32 v{GUA}, v8, v{L16}
        s_cmp_lt_u32 s4, 5
        s_cselect_b32 s{sG+2}, 0, s{sG+2}
        s_cselect_b32 s59, {OOB}, s59
        """)
        cs("setup")
        A("""
        s_cmp_eq_u32 s100, 3
        s_cbranch_scc1 K2_rg
        s_cmp_eq_u32 s100, 4
        s_cbranch_scc1 K2_idle2
        s_cmp_ge_u32 s69, 27
        s_cbranch_scc1 K2_idle
        s_cmp_eq_u32 s100, 2
        s_cbranch_scc1 K2_pv
        """)
        for vmode in (False, True):
            if vmode: A("K2_pv:")
            A.c("v tiles: D = x W (lane = channel, registers = tokens)" if vmode else "q / k tiles: D = W^T x^T (lane = token, registers = channels)")
            gemm(vmode)
        A.c("---- no second tile in this workgroup")
        A("K2_idle:")
        for c in range(9): A("s_barrier")
        A(tagload)
        gettag()
        A(f"s_mov_b32 s61, {OOB}")
        A("s_branch K2_p1done")
        A.c("---- no projection tile at all: re-pack one head half (s5) of one 72-channel block (s3) of w_o as MFMA fragments")
        A("K2_idle2:")
        A(f"""
        s_load_dwordx2 s[68:69], s[0:1], 16
        s_mov_b32 s70, {576*1152}
        s_mov_b32 s71, 0x00020000
        s_bfe_u32 s5, s2, 0x10003
        v_mul_u32_u24 v0, 6554, v{LANE}
        v_lshrrev_b32 v0, 16, v0
        v_mul_u32_u24 v1, {1152-160}, v0
        s_mul_i32 s6, s40, 144
        s_mul_i32 s7, s5, 18
        s_add_u32 s6, s6, s7
        s_mul_i32 s4, s6, 1152
        s_mul_i32 s10, s3, 144
        s_add_u32 s4, s4, s10
        v_add3_u32 v2, v1, v{L16}, s4
        s_mul_i32 s6, s6, 160
        s_mul_i32 s7, s7, 160
        s_mov_b32 s10, 0xdff7fdff
        s_mov_b32 s11, 0x7fdff7f
        s_waitcnt lgkmcnt(0)
        s_mov_b64 exec, s[10:11]
        """)
        for u in range(12):
            row = 36 * (u // 3) + 6 * (u % 3)
            A(f"s_add_u32 m0, s6, {row*160}")
            A(f"s_mov_b32 s67, {row*1152}")
            A(f"buffer_load_dwordx4 v2, s[68:71], s67 offen lds")
        A(f"""
        s_mov_b64 exec, -1
        v_lshrrev_b32 v4, 4, v{LANE}
        v_and_b32 v6, 1, v4
        v_bfe_u32 v7, v{LANE}, 2, 2
        v_lshrrev_b32 v5, 1, v4
        v_mul_u32_u24 v5, 36, v5
        v_lshl_add_u32 v5, v6, 2, v5
        v_add_u32 v5, v5, v7
        v_mul_u32_u24 v5, 160, v5
        v_add_u32 v5, s6, v5
        v_and_b32 v8, 3, v{LANE}
        v_and_b32 v9, 1, v{LANE}
        v_lshl_add_u32 v10, v8, 3, v5
        v_lshl_add_u32 v11, v9, 3, v5
        v_lshrrev_b32 v5, 1, v7
        v_lshl_add_u32 v5, v4, 2, v5
        v_mul_u32_u24 v5, 36, v5
        v_and_b32 v7, 1, v7
        v_add3_u32 v5, v5, v7, 16
        v_mul_u32_u24 v5, 160, v5
        v_add_u32 v5, s7, v5
        v_lshl_add_u32 v12, v8, 3, v5
        s_lshl_b32 s4, s40, 5
        v_add_u32 v12, s4, v12
        v_lshl_add_u32 v13, v9, 3, v5
        s_lshl_b32 s4, s3, 1
        s_add_u32 s4, s4, s5
        s_lshl_b32 s61, s4, 5
        s_add_u32 s61, s61, {F1 + 768*32}
        v_and_b32 v{FLA}, 7, v{LANE}
        v_lshlrev_b32 v{FLA}, 2, v{FLA}
        s_mul_i32 s4, s4, 46080
        s_add_u32 s7, s4, {WP + 40960}
        s_mul_i32 s6, s40, 10240
        s_add_u32 s6, s6, s4
        s_add_u32 s6, s6, {WP}
        s_lshl_b32 s10, s40, 10
        s_add_u32 s10, s10, s7
        s_add_u32 s7, s7, 4096
        s_waitcnt vmcnt(0)
        s_barrier
        """)
        A(tagload)
        for f in range(12):
            for a in range(2):
                if f < 10:
                    ks, T = divmod(f, 5)
                    A(f"ds_read_b64_tr_b16 {vr(16+4*f+2*a,2)}, v{10 if T < 4 else 11}{off((72*ks+8*a)*160+32*T)}")
                else:
                    A(f"ds_read_b64_tr_b16 {vr(16+4*f+2*a,2)}, v{2+f}{off(72*a*160+128*(f-10))}")
        gettag()
        A("s_waitcnt lgkmcnt(0)")
        for f in range(10):
            if f in (4, 8): A("s_add_u32 s6, s6, 4096")
            A(f"buffer_store_dwordx4 {vr(16+4*f,4)}, v{L16}, {ws}, s6 offen{off(1024*(f%4))} sc1")
        A(f"buffer_store_dwordx4 v[56:59], v{L16}, {ws}, s10 offen sc1")
        A(f"buffer_store_dwordx4 v[60:63], v{L16}, {ws}, s7 offen sc1")
        A("s_branch K2_p1done")
        A.c("---- router score and mix gate of 32 tokens per wave")
        A("K2_rg:")
        A(f"""
        v_lshrrev_b32 v1, 4, v{LANE}
        v_and_b32 v2, 31, v{LANE}
        v_and_b32 v3, 1, v{LANE}
        v_lshlrev_b32 v3, 11, v3
        v_lshl_add_u32 v3, v1, 4, v3
        v_add_u32 v{AW}, {RGV}, v3
        s_lshl_b32 s4, s71, 5
        v_add_u32 v{AW+1}, s4, v2
        v_cmp_lt_u32 vcc, 15, v2
        s_waitcnt vmcnt(0)
        """)
        for c in range(9):
            A("s_barrier")
            if c == 0: cs("B0")
            if c == 5: A(tagload)
            for n in (2 * c, 2 * c + 1):
                A(f"ds_read_b128 {vr(FR[n%2]+16,4)}, v{AW}{off(64*n)}")
                for a in range(2): A(xread(n, a, False))
            for n in (2 * c, 2 * c + 1):
                A(f"s_waitcnt lgkmcnt({3*(1-n%2)})")
                for a in range(2):
                    A(mf16(vr(ACC + 4 * a, 4), vr(FR[n % 2] + 16, 4), vr(FR[n % 2] + 4 * a, 4), "0" if n == 0 else vr(ACC + 4 * a, 4)))
        gettag()
        A("s_nop 3")
        cs("pass A")
        A(f"v_cndmask_b32 v{ACC}, v{ACC}, v{ACC+4}, vcc")
        A(f"v_cndmask_b32 v{ACC+1}, v{ACC+1}, v{ACC+5}, vcc")
        A(f"""
        s_mov_b32 s5, 0xffff0000
        v_cvt_pk_bf16_f32 v6, v{ACC+1}, v{ACC}
        v_lshlrev_b32 v4, 16, v6
        v_mul_f32 v4, {0x80000000 | LOG2E}, v4
        v_exp_f32 v4, v4
        v_ashrrev_i32 v7, 31, v6
        v_add_f32 v4, 1.0, v4
        v_rcp_f32 v4, v4
        v_or_b32 v7, 0x80000000, v7
        v_xor_b32 v6, v6, v7
        v_and_b32 v6, s5, v6
        v_sub_u32 v7, 0xffff, v{AW+1}
        v_or_b32 v6, v6, v7
        v_cvt_pk_bf16_f32 v4, v4, v4
        v_and_b32 v4, s5, v4
        v_mov_b32 v5, s{sTAG}
        v_lshlrev_b32 v7, 3, v{AW+1}
        s_mov_b32 s4, {GB}
        buffer_store_dwordx2 v[4:5], v7, {ws}, s4 offen sc1
        """)
        wave_top2_u32(A, 6, 7, 6, 7)
        A(f"""
        s_lshl_b32 s4, s71, 4
        s_add_u32 s4, s4, {RC}
        v_mov_b32 v8, s6
        v_mov_b32 v9, s{sTAG}
        v_mov_b32 v10, s7
        v_mov_b32 v11, s{sTAG}
        s_mov_b64 exec, 1
        buffer_store_dwordx4 v[8:11], off, {ws}, s4 sc1
        s_mov_b64 exec, -1
        s_mov_b32 s61, {OOB}
        """)
        sp(1, "astore")
        cs("a stores")
        A("K2_p1done:")
        A("s_mov_b32 s55, s61")
        presets()
        scratch_addrs(AS, WREG)
        tables()
        pflag(55)
        sp(1, "aflag")
        cs("flag")

    def ldK(p):
        return [f"buffer_load_dwordx4 {vr(KP[p%3]+6*i,4)}, v{KA}, {ws}, s{sT[2*p]} offen{off(256*i)} sc1" for i in range(2)]

    def ldV(j):
        return ["s_mov_b64 exec, s[62:63]"] + \
            [f"buffer_load_dwordx4 {vr(VV[j%NB]+4*i,4)}, v{(VA, VA2)[j%2]}, {ws}, s{sT[(j & ~1)+i]} offen sc1" for i in range(2)] + \
            ["s_mov_b64 exec, -1"]

    def ldKE(g):
        return [f"buffer_load_dwordx4 {vr(KE+4*g,4)}, v{KEA}, {ws}, s{sT[4*g]} offen sc1"]

    QT = 32

    def ldQ(rp):
        return [f"buffer_load_dwordx4 {vr(QT+8*rp+4*i,4)}, v{KA}, {ws}, s{56+rp} offen{off(256*i)} sc1" for i in range(2)]

    def items(j):
        return ([ldKE(j // 4)] if j % 4 == 0 else []) + ([[l] for l in ldK(j // 2)] if j % 2 == 0 else []) + [ldV(j)]

    def kmov(kt):
        b = KP[(kt // 2) % 3]
        return f"v_mov_b64 {vr(b+4,2)}, {vr(b+8 if kt % 2 else b,2)}"

    def m2b(kt, c):
        u = kt % 4
        return (f"v_mfma_f32_32x32x4_2b_bf16 {vr(S[c],32)}, {vr(KE+4*(kt//4)+2*(u%2),2)}, {vr(QE+2*c,2)}, 0"
                f" cbsz:1 abid:{u//2}")

    def mm(kt, c, b):
        d = vr(S[c] + 16 * b, 16)
        return mfma(d, vr(KP[(kt // 2) % 3] + (2 if kt % 2 else 4), 4), vr(QM + 4 * (c + 2 * b), 4), d)

    def sm(kt, c, b, i):
        return (f"v_smfmac_f32_32x32x32_bf16 {vr(O[c+2*b],16)}, {vr(VV[kt%NB]+4*i,4)}, "
                f"{vr(S[c]+16*b+8*i,8)}, v{IDX}")

    def moe_dma(n):
        if n < 12:
            return [f"s_add_u32 m0, s42, {1024*n}", f"s_add_u32 s67, s54, {8*9216*n}",
                    f"buffer_load_dwordx4 v{GUA}, s[{sG}:{sG+3}], s67 offen{OPT.get('gunt', ' nt')} lds"]
        n -= 12
        pre = [f"s_add_u32 m0, s9, {4096*(n//4)}", f"s_add_u32 s67, s8, {4096*(n//4)}"]
        return pre + [f"buffer_load_dwordx4 v{L16}, s[{sD}:{sD+3}], s67 offen{off(1024*(n%4))}{OPT.get('dnnt', ' nt')} lds"]

    def xsel_dma(k):
        return [f"s_add_u32 m0, s42, {12288+1024*k}", "s_nop 0",
                f"buffer_load_dwordx4 v{L16}, s[{sX}:{sX+3}], s{10+k} offen lds"]

    GQ = 190
    gqload = [f"buffer_load_dwordx2 {vr(d,2)}, v{a}, {ws}, s52 offen sc1" for d, a in ((250, 234), (GQ, GQA))]

    def owrite(t):
        return [f"ds_write_b128 v{SW}, {vr(O[t],4)}{off(2048*t)}",
                f"ds_write_b128 v{SW}, {vr(O[t]+4,4)}{off(2048*t+1024)}",
                f"ds_write_b64 v{SW}, {vr(O[t]+8,2)}{off((6144, 6152, 7168)[t])}"]

    def scratch_addrs(base, stride):
        A(f"s_mul_i32 s4, s40, {stride}")
        A(f"s_add_u32 s4, s4, {base}")
        A(f"v_add_u32 v{SW}, s4, v{L16}")
        for t in range(3):
            A(f"s_xor_b32 s4, s40, {t ^ 3}")
            A(f"s_mul_i32 s4, s4, {stride}")
            A(f"s_add_u32 s4, s4, {base}")
            A(f"v_add_u32 v{RD+t}, s4, v{L16}")
        A(f"""
        v_bfe_u32 v{PM}, v{LANE}, 4, 1
        v_lshlrev_b32 v{PM}, 14, v{PM}
        v_lshrrev_b32 v{PE}, 5, v{LANE}
        v_lshl_add_u32 v{PM}, v{PE}, 8, v{PM}
        v_and_b32 v{PE}, 0xff, v{L16}
        v_add_u32 v{PM}, v{PM}, v{PE}
        v_and_b32 v{PE}, 31, v{LANE}
        v_lshlrev_b32 v{PE}, 2, v{PE}
        s_lshl_b32 s4, s39, 6
        s_lshl_b32 s5, s37, 2
        s_add_u32 s4, s4, s5
        s_add_u32 s4, s4, s40
        s_lshl_b32 s5, s4, 1
        s_and_b32 s6, s40, 1
        s_sub_u32 s5, s5, s6
        s_lshl_b32 s5, s5, 13
        s_lshl_b32 s6, s43, 9
        s_add_u32 s5, s5, s6
        s_add_u32 s65, s5, {OM}
        s_lshl_b32 s4, s4, 4
        s_add_u32 s4, s4, s43
        s_lshl_b32 s4, s4, 7
        s_add_u32 s66, s4, {OE}
        s_lshl_b32 s4, s37, 10
        s_lshr_b32 s5, s40, 1
        s_lshl_b32 s5, s5, 9
        s_add_u32 s4, s4, s5
        s_and_b32 s5, s40, 1
        s_lshl_b32 s5, s5, 7
        s_add_u32 s4, s4, s5
        s_add_u32 s52, s4, {GB}
        s_lshl_b32 s4, s39, 4
        s_add_u32 s4, s4, s37
        s_lshl_b32 s4, s4, 11
        s_lshl_b32 s5, s40, 6
        s_add_u32 s4, s4, s5
        s_lshl_b32 s5, s43, 2
        s_add_u32 s4, s4, s5
        s_add_u32 s61, s4, {FO}
        """)
        if FOM:
            A(f"""
            s_sub_u32 s4, s66, {OE}
            {"" if FOM == 2 else "s_lshr_b32 s4, s4, 11"}
            {"" if FOM == 2 else "s_lshl_b32 s4, s4, 7"}
            {"" if FOM == 2 else "s_add_u32 s4, s4, s5"}
            s_add_u32 s61, s4, {FO}
            """)
        A(f"""
        v_mov_b32 v{CA}, {CNT + (0 if base == AS else 12)}
        v_mov_b32 v{ONE}, 1
        """)

    def attention(old):
        pend = []

        def issue(lines, tag):
            for l in lines:
                if l.startswith("buffer_"):
                    pend.append(tag)
            return lines

        def wait_for(tag):
            last = max(i for i, t in enumerate(pend) if t == tag)
            n = len(pend) - 1 - last
            del pend[:last + 1]
            return f"s_waitcnt vmcnt({n})"

        if old:
            sl0, sl1 = OPT.get("psleep", (20, 0))
            A.c("wave 1 watches the flags; the barrier releases the others")
            A(f"""
            s_cmp_lg_u32 s40, 1
            s_cbranch_scc1 K2_p1seen
    s_mov_b32 s5, {SPIN}
    """)
            A.c("flags that nobody has cached yet are written faster: back off first; workgroups without a projection")
            A.c("tile are far ahead of the others and watch a single line until it is complete")
            A(f"""
            s_cmp_lt_u32 s2, 224
            s_cbranch_scc0 K2_p1gate0
            """)
            if OPT.get("peek"):
                A(f"""
                s_mov_b64 exec, {OPT["peek"]}
                buffer_load_dword v12, v{PA}, {ws}, 0 offen sc1
                s_waitcnt vmcnt(0)
                v_cmp_ne_u32 vcc, s{sTAG}, v12
                s_mov_b64 exec, -1
                s_cbranch_vccz K2_p1poll
                """)
            A(f"""
            s_sleep {sl0}
            s_branch K2_p1poll
            K2_p1gate0:
            s_mov_b64 exec, {OPT.get("gex", 15)}
            K2_p1gate:
            s_sleep {OPT.get("gsl", 3)}
            buffer_load_dword v12, v{PA}, {ws}, 0 offen sc1
            s_sub_u32 s5, s5, 1
            s_cbranch_scc1 K2_p1open
            s_waitcnt vmcnt(0)
            v_cmp_ne_u32 vcc, s{sTAG}, v12
            s_cbranch_vccnz K2_p1gate
            K2_p1open:
            s_mov_b64 exec, -1
            s_mov_b32 s5, {SPIN}
            {f"s_sleep {OPT['gs2']}" if OPT.get("gs2") else ""}
    K2_p1poll:
    buffer_load_dword v12, v{PA}, {ws}, 0 offen sc1
    buffer_load_dword v13, v{PA+1}, {ws}, 0 offen sc1
    s_sub_u32 s5, s5, 1
    s_cbranch_scc1 K2_p1seen
    s_waitcnt vmcnt(0)
    v_cmp_ne_u32 vcc, s{sTAG}, v12
    v_cmp_ne_u32 s[6:7], s{sTAG}, v13
    s_or_b64 vcc, vcc, s[6:7]
    s_cbranch_scc0 K2_p1seen
    {f"s_sleep {sl1}" if sl1 else ""}
    s_branch K2_p1poll
    K2_p1seen:
            s_barrier
            """)
        sp(old, "polled")
        if old: cs("polled")
        pro = issue([f"buffer_load_dwordx4 {vr(QT+16,4)}, v{QEA}, {ws}, s60 offen sc1"] + ldKE(0), "qe") + \
            issue(ldK(0) + ldQ(0), "q0") + issue(ldQ(1), "q1") + issue(ldV(0)[:-1], "g0") + issue(ldV(1)[1:], "g1")
        NP = OPT.get("np", (3, 2))[not old]
        LATE = OPT.get("late", 0)
        if not LATE:
            for j in range(2, NP): pro += issue(sum(items(j), []), f"g{j}")
        for i, l in enumerate(pro):
            if old and i == OPT.get("xb", -1): A("s_barrier")
            A(l)
            if not old and l.startswith("buffer_") and OPT.get("ypace", 0): A(f"s_sleep {OPT.get('ypace', 1)}")
        if not old:
            A("v_mov_b64 v[250:251], -1\nv_mov_b64 v[252:253], -1")
        if old:
            if not LATE: A("s_barrier")
            cs("issued")
            csflush(0, 12)
        A(f"""
        v_mov_b32 v{IDX}, 0xdddddddd
        s_bitcmp0_b32 s36, 0
        s_cselect_b32 s4, -1, 0
        s_cselect_b32 s5, 0, -1
        s_bitcmp1_b32 s40, 0
        """)
        l = lab("K2_qsel")
        w0 = wait_for("qe")
        more = []
        if LATE:
            for j in range(2, NP): more += issue(sum(items(j), []), f"g{j}")
            if old: more.append("s_barrier")
        w1, w2 = wait_for("q0"), wait_for("q1")
        A(f"s_cbranch_scc1 {l}")
        for b0 in (1, 0):
            if b0 == 0: A(f"{l}:")
            A(w0)
            for c in range(2):
                A(f"v_and_b32 v{QE+2*c}, s4, v{QT+16+2*(c^b0)}")
                A(f"v_and_b32 v{QE+2*c+1}, s5, v{QT+17+2*(c^b0)}")
            A(m2b(0, 0))
            for x in more: A(x)
            if len(more) < 12: A(f"s_nop {11 - len(more)}")
            for rp in range(2):
                A((w1, w2)[rp])
                if rp == 0: A(kmov(0))
                for t in (2 * rp, 2 * rp + 1):
                    for ab in range(2):
                        A(f"v_mov_b64 {vr(QM+4*t+2*ab,2)}, {vr(QT+8*(t>>1)+4*ab+2*((t&1)^b0),2)}")
                A(mm(0, 0, rp))
            if b0 == 1: A(f"s_branch {l}_d")
        A(f"{l}_d:")
        A("s_nop 4")
        A(f"s_setprio {1 if old else 0}")
        sp(old, "first")
        MK, MK2 = OPT.get("mk", (1, 5))
        XS = OPT.get("xsel", 9)
        TP = OPT.get("top2", 12)
        gsched = {}
        nx = NP
        for kt in range(NP - 2, 16):
            for _ in range(2 if kt in OPT.get("ramp" if old else "yramp", (1, 3)) else 1):
                if nx <= min(15, kt + NB - 1):
                    gsched.setdefault(kt, []).append(nx); nx += 1
        dsched = {}
        d0, d1 = OPT.get("dma", (3, 29))
        order = range(21)
        for i, x in enumerate(order): dsched.setdefault(d0 + i * (d1 - d0) // 21, []).append(x)
        assert max(dsched) < 30
        touch = {}
        for kt in range(16):
            for c in range(2):
                n = 2 * kt + c
                cur = S[c]
                nxt = (kt, 1) if c == 0 else (kt + 1, 0)
                prv = (kt - 1, 1) if c == 0 else (kt, 0)
                has_next = n < 31
                ins = {}
                def at(p, l): ins.setdefault(p, []).extend(l if isinstance(l, list) else [l])
                if n > 0:
                    at(1, sm(prv[0], prv[1], 1, 1))
                L2 = OPT.get("lchain") == 2
                if c == 0:
                    if L2: at(1, "s_memtime s[82:83]")
                    todo = [(it, f"g{j}") for j in gsched.get(kt, []) for it in items(j)]
                    if old and kt == XS: todo += [(xsel_dma(0), "st1"), (xsel_dma(1), "st1")]
                    slots = OPT.get("slots", [(0, 16), (0, 24), (1, 16), (1, 24), (1, 25), (1, 31)]) if old else \
                        OPT.get("yslots", [(0, 2), (0, 14), (0, 26), (1, 8), (1, 22), (1, 30)])
                    place = {sl: td for sl, td in zip(slots, todo)}
                    assert len(todo) <= len(slots)
                if c == 0 and L2: at(1, "s_memtime s[84:85]")
                if c == 1 and L2: at(4, "s_memtime s[86:87]")
                if c == 1 and L2:
                    at(4, "s_memtime s[88:89]")
                    at(30, ["s_waitcnt lgkmcnt(0)"] + sum([[f"s_sub_u32 s{82+2*q}, s{82+2*q}, s80", f"v_writelane_b32 v{PA}, s{82+2*q}, {4*kt+q}"] for q in range(4)], []))
                ev = [(p, td) for (cc, p), td in place.items() if cc == c]
                if old and n in touch: ev.append((19, (touch[n], "moe")))
                if old and not OPT.get("nomoe"):
                    for i, x in enumerate(dsched.get(n, [])): ev.append((OPT.get("dpos", (0, 0))[c] + 10 * i, (moe_dma(x), "st1" if x < 12 else "moe")))
                if old and n == TP - 8:
                    ev.append((OPT.get("epos", 11), ([f"s_mov_b32 s4, {RC}", f"buffer_load_dwordx4 {vr(CAND,4)}, v{L16}, {ws}, s4 offen sc1"], "cand")))
                XP = OPT.get("xp", 24)
                if old and n == XP - 1:
                    at(8, f"ds_read_b32 v250, v{TA} offset:3072")
                if old and XP <= n < XP + 3:
                    k = n - XP
                    ev.append((OPT.get("epos", 11), ((["s_waitcnt lgkmcnt(0)"] if k == 0 else []) +
                                    [f"s_add_u32 m0, s97, {1008*k}", f"s_add_u32 s4, s34, {7*1152*k}",
                                     f"buffer_load_dwordx4 v250, s[{sX}:{sX+3}], s4 offen lds"], "moe")))
                if not old and n == MK:
                    ev.append((18, ([f"buffer_store_dwordx4 v[250:253], v{PM}, {ws}, s65 offen sc1"], "mark")))
                    ev.append((20, ([f"buffer_store_dword v250, v{PE}, {ws}, s66 offen sc1"], "mark")))
                if not old and n == MK2: ev.append((18, ([gqload[0]], "gq")))
                if n == 0: ev.append((12, "g0"))
                if c == 1 and has_next: ev.append((OPT.get("wpos", 1), f"g{kt+1}"))
                for p, td in sorted(ev, key=lambda e: e[0]):
                    at(p, wait_for(td) if isinstance(td, str) else issue(*td))
                if c == 1 and has_next: at(10, kmov(kt + 1))
                if has_next:
                    at(4, m2b(*nxt))
                    at(20, mm(nxt[0], nxt[1], 0))
                    at(28, mm(nxt[0], nxt[1], 1))
                at(12, sm(kt, c, 0, 0))
                at(17, sm(kt, c, 0, 1))
                at(25, sm(kt, c, 1, 0))
                if OPT.get("lchain") == 1:
                    if c == 0: at(0, "s_memtime s[88:89]")
                    else: at(0, ["s_waitcnt lgkmcnt(0)", "s_sub_u32 s88, s88, s80", f"v_writelane_b32 v{PA}, s88, {kt}"])
                if not old and n == MK2:
                    assert "mark" not in pend
                    at(6, ["s_mov_b64 exec, 1", f"ds_add_u32 v{CA}, v{ONE} offset:12", "s_mov_b64 exec, -1"])
                if n == 24:
                    if old:
                        at(2, f"ds_read_b128 {vr(M0,4)}, v{TA}")
                        at(26, "s_waitcnt lgkmcnt(0)")
                        at(27, issue([gqload[old]], "gq"))
                    else:
                        assert "gq" not in pend
                        at(6, [f"v_cmp_ne_u32 vcc, s{sTAG}, v251", f"s_cbranch_vccnz K2_gqspin0", f"K2_gqok0:"])
                        at(9, f"v_mov_b32 v{GQ}, v250")
                if n == 30 and old:
                    at(0, [wait_for("gq"), f"v_cmp_ne_u32 vcc, s{sTAG}, v{GQ+1}", f"s_cbranch_vccnz K2_gqspin1", f"K2_gqok1:"])
                if old and n >= 27:
                    G, XF, WFs = 202, 148, [218, 222, 164, 168]
                    if n == 27:
                        at(8, f"v_mov_b32 v251, v{TAGV}")
                        at(14, f"v_mov_b32 v253, v{TAGV}")
                    elif n < 31:
                        assert "st1" not in pend
                        u = n - 28
                        rp, mp, wn = OPT.get("s1", ((2,) * 9, (11, 16, 24, 31), (6, 0)))
                        at(rp[0], f"ds_read_b128 {vr(XF,4)}, v{M3} offset:{12288+64*u}")
                        for t in range(4):
                            for a in range(2):
                                at(rp[1 + 2 * t + a], f"ds_read_b64_tr_b16 {vr(WFs[t]+2*a,2)}, v{M0}{off(4096*u+512*a+32*t)}")
                        for t in range(4):
                            at(mp[t], ([f"s_waitcnt lgkmcnt({wn[t]})"] if t < len(wn) else []) +
                               [mf16(vr(G + 4 * t, 4), vr(XF, 4), vr(WFs[t], 4), "0" if u == 0 else vr(G + 4 * t, 4))])
                    else:
                        at(7, ["s_mov_b32 s10, 0", "s_mov_b32 s11, -1", "s_add_u32 s4, s59, 6144",
                               f"v_cndmask_b32 v250, v{G}, v{G+4}, s[10:11]",
                               f"buffer_store_dwordx2 v[250:251], v{M4}, {ws}, s59 offen sc1"])
                        at(9, [f"v_cndmask_b32 v252, v{G+8}, v{G+12}, s[10:11]",
                               f"buffer_store_dwordx2 v[252:253], v{M4}, {ws}, s4 offen sc1"])
                if n == 31:
                    for t, pp in zip((0, 2, 1), OPT.get("oow" if old else "ow", ((0, 4, 8), (13, 18, 23), (28, 30, 31)))):
                        for p, l in zip(pp, owrite(t)): at(p, l)
                if n == TP and old:
                    assert "cand" not in pend
                    B = Asm()
                    at(0, [f"v_cmp_ne_u32 vcc, s{sTAG}, v{CAND+1}", f"v_cmp_ne_u32 s[4:5], s{sTAG}, v{CAND+3}",
                           "s_or_b64 vcc, vcc, s[4:5]", "s_cbranch_scc1 K2_candspin", "K2_candok:"])
                    wave_max_u32(B, CAND, CAND + 1, 68)
                    B(f"s_nop 1\nv_cmp_ne_u32 vcc, s68, v{CAND}\ns_nop 1\nv_cndmask_b32 v{CAND}, v{CAND+2}, v{CAND}, vcc")
                    wave_max_u32(B, CAND, CAND + 1, 69)
                    B(f"""
                    s_nop 0
                    s_not_b32 s70, s68
                    s_not_b32 s71, s69
                    s_and_b32 s70, s70, 0x7ff
                    s_and_b32 s71, s71, 0x7ff
                    s_mul_i32 s10, s70, 1152
                    s_mul_i32 s11, s71, 1152
                    s_add_u32 s10, s10, s58
                    s_add_u32 s11, s11, s58
                    """)
                    p = -1
                    tail = []
                    for l in B.lines:
                        l = l.strip()
                        if l == "s_nop 1" and p + 2 <= 31:
                            p += 2
                        elif p + 2 > 31 or tail:
                            tail.append(l)
                        else:
                            at(p, l)
                    at(31, tail)
                sp(old, f"p{n}")
                for i in range(32):
                    A(f"v_exp_f32 v{cur+i}, v{cur+i}")
                    for l in ins.get(i, []):
                        if OPT.get("noload") and kt >= 2 and not l.startswith(("v_smfmac", "v_mfma_f32_32", "v_mov_b64", "K2_")): continue
    p1_compute()
    attention(True)
    if OPT.get("quit"):
        ST.flush(v=20)
        A("s_endpgm")
    if OPT.get("chain"): A("s_mov_b32 s96, 0")
    cs("loop end")
    A.c("---- MoE stage 2: fetch three partials per wave")
    PL = 184

    def pload():
        for q in range(3):
            A(f"buffer_load_dwordx2 {vr(PL+2*q,2)}, v{M4}, {ws}, s67 offen{off(512*q)} sc1")
    A(f"""
    s_and_b32 s4, s40, 1
    s_lshl_b32 s4, s4, 1
    s_lshr_b32 s5, s40, 1
    s_add_u32 s4, s4, s5
    s_lshl_b32 s5, s41, 2
    s_add_u32 s4, s4, s5
    s_mul_i32 s4, s4, 1536
    s_add_u32 s67, s4, {PG}
    s_cmp_eq_u32 s64, 0
    s_cbranch_scc1 K2_fin0
    """)
    pload()
    A("s_branch K2_fin0")

    A("K2_young2:")
    scratch_addrs(BS, 8192)
    A("s_barrier")
    tables_lane()
    tables_store()
    A(f"v_mov_b32 v234, v19\ns_waitcnt lgkmcnt(0)\ns_barrier\ns_barrier")
    if OPT.get("xb", -1) >= 0: A("s_barrier")
    attention(False)
    A("K2_fin0:")
    o = O[3]
    A.c("LDS executes a wave's operations in order: the count is bumped after this wave's writes, and reads issued")
    A.c("behind a count of 4 see every partial")
    A(f"""
    s_setprio 2
    s_mov_b32 s5, {LSPIN}
    s_mov_b64 exec, 1
    ds_add_u32 v{CA}, v{ONE}
    s_mov_b64 exec, -1
    K2_fin1:
    ds_read_b32 v0, v{CA}
    """)
    for t in range(3):
        A(f"ds_read_b128 {vr(O[t],4)}, v{RD+t}{off(2048*t)}")
        A(f"ds_read_b128 {vr(O[t]+4,4)}, v{RD+t}{off(2048*t+1024)}")
        A(f"ds_read_b64 {vr(O[t]+8,2)}, v{RD+t}{off((6144, 6152, 7168)[t])}")
    A("""
    s_waitcnt lgkmcnt(9)
    v_readfirstlane_b32 s4, v0
    s_cmp_lt_u32 s4, 4
    s_cbranch_scc1 K2_finwait
    K2_fin2:
    """)
    A(f"s_mov_b32 s4, {f32bits(2.0**-30)}")
    A(f"v_mov_b32 v9, {f32bits(2.0**60)}")
    for t in range(3):
        A(f"s_waitcnt lgkmcnt({3*(2-t)})")
        for i in ((4, 0, 1, 2, 3) if t == 2 else range(5)):
            A(f"v_pk_add_f32 {vr(o+2*i,2)}, {vr(o+2*i,2)}, {vr(O[t]+2*i,2)}")
            if t == 2 and i == 0: A(f"v_rcp_f32 v0, v{o+9}")
    A.c("safety check of the unshifted softmax: denominator in [2^-30, 2^60], numerators finite; else redo with the true max")
    A(f"""
    v_med3_f32 v8, v{o+9}, s4, v9
    v_maximum3_f32 v10, abs(v{o}), abs(v{o+1}), abs(v{o+2})
    v_maximum3_f32 v11, abs(v{o+3}), abs(v{o+4}), abs(v{o+8})
    v_maximum3_f32 v12, abs(v{o+5}), abs(v{o+6}), abs(v{o+7})
    v_cmp_eq_f32 s[6:7], v8, v{o+9}
    v_maximum3_f32 v10, v10, v11, v12
    v_mul_f32 v0, v0, v{GQ}
    v_cmp_gt_f32 vcc, {f32bits(2.0**120)}, v10
    s_and_b64 vcc, vcc, s[6:7]
    s_cmp_eq_u64 vcc, exec
    {"s_nop 0" if OPT.get("noload") else "s_cbranch_scc0 K2_slow"}
    K2_fin:
    s_cmp_eq_u32 s39, 0
    v_mul_f32 v2, v{o+8}, v0
    v_mul_f32 v3, v{o+8}, v0
    """)
    for i in range(4):
        A(f"v_pk_mul_f32 {vr(o+2*i,2)}, {vr(o+2*i,2)}, v[0:1] op_sel_hi:[1,0]")
    A("v_permlane32_swap_b32 v2, v3")
    for i in range(4):
        A(f"v_cvt_pk_bf16_f32 v{4+i}, v{o+2*i}, v{o+2*i+1}")
    for i in range(4):
        A(f"v_min_u32 v{4+i}, -2, v{4+i}")
    A(f"""
    buffer_store_dwordx4 v[4:7], v{PM}, {ws}, s65 offen{"" if OPT.get("xplain") else " sc1"}
    v_cvt_pk_bf16_f32 v2, v2, v3
    v_min_u32 v2, -2, v2
    buffer_store_dword v2, v{PE}, {ws}, s66 offen{"" if OPT.get("xplain") else " sc1"}
    s_cbranch_scc1 K2_old2
    s_mov_b64 exec, 1
    ds_add_u32 v{CA}, v{ONE} offset:4
    """)
    if gen1.DIAG:
        sp(0, "flag"); A("s_waitcnt vmcnt(0)")
    ST.flush(v=20)
    A("K2_end:")
    A("s_endpgm")

    A("K2_old2:")
    cs("fin")
    HPW, HPR, DNA, HA, HW, YA, FA, GA = range(208, 216)
    OUT, SG1, SG2, OEA, B1, SR, TV, SV = 240, 241, 242, 243, 248, 249, 252, 250
    ACC, OF, WF = 0, 20, 56
    XR, GV, T0 = 72, 244, 112
    srd(A, sO, 72, XB)
    gload = f"buffer_load_dwordx2 {vr(GV,2)}, v{GA}, {ws}, s52 offen sc1"
    A(f"""
    ds_read_b128 {vr(HPW,4)}, v{TA} offset:1024
    ds_read_b128 {vr(HW,4)}, v{TA} offset:2048
    ds_read_b128 {vr(OUT,4)}, v{TA} offset:3072
    ds_read_b64 {vr(B1,2)}, v{TA} offset:4096
    s_lshl_b32 s4, s32, 7
    s_add_u32 s52, s4, {GB}
    s_lshl_b32 s42, s40, 11
    s_add_u32 s66, s35, s42
    s_waitcnt vmcnt(2) lgkmcnt(0)
    s_cmp_eq_u32 s64, 0
    s_cbranch_scc1 K2_nop
    s_mov_b32 s5, {SPIN}
    K2_pchk:
    v_cmp_ne_u32 vcc, s{sTAG}, v{PL+1}
    v_cmp_ne_u32 s[8:9], s{sTAG}, v{PL+3}
    v_cmp_ne_u32 s[10:11], s{sTAG}, v{PL+5}
    s_or_b64 s[8:9], s[8:9], vcc
    s_or_b64 s[8:9], s[8:9], s[10:11]
    s_cbranch_scc0 K2_pok
    s_sleep 4
    """)
    pload()
    A(f"""
    s_sub_u32 s5, s5, 1
    s_waitcnt vmcnt(0)
    s_cbranch_scc0 K2_pchk
    K2_pok:
    v_add_f32 v10, v{PL}, v{PL+2}
    v_add_f32 v10, v10, v{PL+4}
    ds_write_b32 v{HPW}, v10
    K2_nop:
    """)
    arrive(1)
    A(gload)
    cs("partials")
    gwait(1)
    cs("gwait1")
    wpos = [0]

    def wodma(cnt, paced=True):
        for u in range(wpos[0], wpos[0] + cnt):
            if u == 11:
                A(f"s_sub_u32 s66, s66, s42\ns_mov_b32 s42, 0")
            A(f"s_add_u32 m0, s42, {8192*u}")
            A(f"s_add_u32 s67, s66, {8192*u}")
            for h in range(2):
                A(f"buffer_load_dwordx4 v{L16}, {ws}, s67 offen{off(1024*h)} sc1 lds")
            if paced: A(f"s_waitcnt vmcnt({OPT.get('wopace', 4)})")
        wpos[0] += cnt

    A.c("the half-A flag also tells that waves 4-7 have marked their slots")
    gwait(6)
    A(f"""
    s_mov_b64 exec, 1
    s_waitcnt vmcnt(1)
    buffer_store_dword v{TAGV}, off, {ws}, s61 sc1
    s_mov_b64 exec, -1
    s_cmp_eq_u32 s64, 0
    s_cbranch_scc0 K2_st2
    """)
    arrive(7)
    SPR = OPT.get("spr", 2)
    wodma(SPR + 2)
    wpos[0] = 0
    A("s_branch K2_nost2")
    A("K2_st2:")
    n0 = len(A.lines)
    A.c("---- MoE: h = silu(gate) * up, then this wave's w_down column tiles")
    A(f"""
    ds_read2st64_b32 v[10:11], v{HPR} offset0:0 offset1:1
    ds_read2st64_b32 v[12:13], v{HPR} offset0:2 offset1:3
    """)
    for t in range(5):
        for a in range(2):
            A(f"ds_read_b64_tr_b16 {vr(24+4*t+2*a,2)}, v{DNA}{off(4608*a+32*t)}")
    A(f"""
    s_waitcnt lgkmcnt(10)
    v_pk_add_f32 v[10:11], v[10:11], v[12:13]
    v_cvt_pk_bf16_f32 v11, v10, v11
    v_lshlrev_b32 v10, 16, v11
    v_mul_f32 v12, {0x80000000 | LOG2E}, v10
    v_exp_f32 v12, v12
    v_and_b32 v11, 0xffff0000, v11
    v_add_f32 v12, 1.0, v12
    v_rcp_f32 v12, v12
    s_mul_i32 s4, s41, 4608
    v_mul_f32 v10, v10, v12
    v_cvt_pk_bf16_f32 v10, 0, v10
    v_mul_f32 v10, v10, v11
    v_cvt_pk_bf16_f32 v10, v10, v10
    ds_write_b16 v{HW}, v10
    ds_read_b128 v[12:15], v{HA}
    """)
    for t in range(5, 10):
        for a in range(2):
            A(f"ds_read_b64_tr_b16 {vr(24+4*t+2*a,2)}, v{DNA}{off(4608*a+32*t)}")
    A(f"""
    s_add_u32 s5, s4, {YP}
    s_mov_b32 s10, 0
    s_mov_b32 s11, -1
    s_waitcnt lgkmcnt(10)
    """)
    Y = [128 + 4 * t for t in range(10)]
    for t in range(10):
        if t == 5: A("s_waitcnt lgkmcnt(0)")
        A(mf16(vr(Y[t], 4), "v[12:15]", vr(24 + 4 * t, 4), "0"))
    A("s_nop 1")
    for t in range(0, 10, 2):
        A(f"v_cndmask_b32 v{Y[t]}, v{Y[t]}, v{Y[t+1]}, s[10:11]")
        A(f"buffer_store_dword v{Y[t]}, v{YA}, {ws}, s5 offen{off(64*t)} sc1")
    body = A.lines[n0:]; del A.lines[n0:]
    marks = [i * len(body) // (SPR + 1) for i in range(SPR)]
    for i, l in enumerate(body):
        if i in marks: wodma(1, False)
        A.lines.append(l)
    arrive(7)
    wodma(2, False)
    A(f"""
    s_lshl_b32 s4, s41, 7
    s_lshl_b32 s5, s40, 2
    s_add_u32 s4, s4, s5
    s_add_u32 s4, s4, {FY}
    s_mov_b64 exec, 1
    s_waitcnt vmcnt(4)
    buffer_store_dword v{TAGV}, off, {ws}, s4 sc1
    s_mov_b64 exec, -1
    K2_nost2:
    """)
    wodma(5 - SPR)
    cs("down")
    Y0 = WF
    nosel = OPT.get("nomoe2") or OPT.get("nosel")

    def yflag_load():
        A(f"buffer_load_dwordx4 {vr(Y0+48,4)}, v{T0+2}, {ws}, s65 offen sc1")

    def y_first():
        A(f"""
        s_lshr_b32 s6, s32, 2
        s_lshr_b32 s4, s70, 6
        s_cmp_eq_u32 s4, {"-1" if nosel else "s6"}
        s_cselect_b32 s64, 1, 0
        s_lshr_b32 s4, s71, 6
        s_cmp_eq_u32 s4, {"-1" if nosel else "s6"}
        s_cselect_b32 s4, 2, 0
        s_or_b32 s64, s64, s4
        s_cbranch_scc0 K2_noy0
        v_min_u32 v{T0+2}, 35, v{LANE}
        v_lshlrev_b32 v{T0+2}, 7, v{T0+2}
        s_mul_i32 s65, s40, {36*128}
        s_add_u32 s65, s65, {FY}
        """)
        yflag_load()
        A("K2_noy0:")

    def y_sum():
        A(f"""
        s_cmp_eq_u32 s64, 0
        s_cbranch_scc1 K2_noy1
        s_mov_b32 s5, {SPIN}
        K2_ypoll:
        v_cmp_ne_u32 vcc, s{sTAG}, v{Y0+48}
        v_cmp_ne_u32 s[8:9], s{sTAG}, v{Y0+49}
        v_cmp_ne_u32 s[10:11], s{sTAG}, v{Y0+50}
        s_or_b64 s[8:9], s[8:9], vcc
        v_cmp_ne_u32 vcc, s{sTAG}, v{Y0+51}
        s_or_b64 s[8:9], s[8:9], s[10:11]
        s_or_b64 s[8:9], s[8:9], vcc
        s_cbranch_scc0 K2_ypolled
        """)
        yflag_load()
        A(f"""
        s_sub_u32 s5, s5, 1
        s_waitcnt vmcnt(0)
        s_cbranch_scc0 K2_ypoll
        K2_ypolled:
        v_min_u32 v{T0}, 53, v{LANE}
        v_mul_u32_u24 v{T0+1}, 3641, v{T0}
        v_lshrrev_b32 v{T0+1}, 16, v{T0+1}
        v_mul_u32_u24 v{T0+1}, {4608-288}, v{T0+1}
        v_lshl_add_u32 v{T0}, v{T0}, 4, v{T0+1}
        """)
        A(f"""
        s_lshl_b32 s6, s33, 1
        s_mul_i32 s7, s40, {36*4608}
        s_add_u32 s6, s6, s7
        s_add_u32 s65, s6, {YP}
        s_bitcmp1_b32 s64, 0
        s_cselect_b32 s6, 0, 2304
        s_cselect_b32 s7, 0, 1024
        s_add_u32 s6, s6, s65
        v_add_u32 v{T0+1}, s7, v{TA}
        """)
        yloads()
        A("K2_noy1:")

    def yloads():
        for u in range(12):
            A(f"buffer_load_dwordx4 {vr(Y0+4*u,4)}, v{T0}, {ws}, s6 offen sc1")
            A(f"s_add_u32 s6, s6, {3*4608}")
            if OPT.get("space") and u % 2: A(f"s_waitcnt vmcnt({OPT['space']})")

    def y_sum2(later):
        A(f"""
        s_cmp_eq_u32 s64, 0
        s_cbranch_scc1 K2_noy2
        s_waitcnt vmcnt({later})
        K2_ysum:
        """)
        for u in range(1, 12):
            for hf in range(2):
                A(f"v_pk_add_f32 {vr(Y0+2*hf,2)}, {vr(Y0+2*hf,2)}, {vr(Y0+4*u+2*hf,2)}")
        A(f"""
        ds_write_b128 v{T0+1}, {vr(Y0,4)}
        s_cmp_lg_u32 s64, 3
        s_cbranch_scc1 K2_ydone
        s_mov_b32 s64, 2
        s_add_u32 s6, s65, 2304
        s_waitcnt lgkmcnt(0)
        v_add_u32 v{T0+1}, 1024, v{TA}
        """)
        yloads()
        A("s_waitcnt vmcnt(0)\ns_branch K2_ysum\nK2_ydone:")
        arrive(5)
        A("K2_noy2:")

    def poll():
        l = lab("K2_poll")
        A(f"""
        s_mov_b32 s5, {SPIN}
        {l}:
        buffer_load_dword v{T0}, v{FA}, {ws}, s100 offen sc1
        s_sub_u32 s5, s5, 1
        s_cbranch_scc1 {l}_d
        s_waitcnt vmcnt(0)
        v_cmp_ne_u32 vcc, s{sTAG}, v{T0}
        s_cbranch_vccnz {l}
        {l}_d:
        """)

    def oload(ks):
        if ks < 8:
            return [f"buffer_load_dwordx4 {vr(OF+4*ks,4)}, v{L16}, {ws}, s{98 if ks < 4 else 101} offen{off(1024*(ks%4))} sc1"]
        return [f"buffer_load_dword v{OF+32+c}, v{OEA}, {ws}, s99 offen{off(128*c)} sc1" for c in range(4)]

    gwait(7)
    wodma(3)
    assert OPT.get('wopace', 4) <= 6 and FOM == 1
    A(f"""
    s_mov_b32 s5, {SPIN}
    K2_gchk:
    v_cmp_ne_u32 vcc, s{sTAG}, v{GV+1}
    s_cbranch_vccz K2_gok
    {gload}
    s_sub_u32 s5, s5, 1
    s_waitcnt vmcnt(0)
    s_cbranch_scc0 K2_gchk
    K2_gok:
    v_sub_f32 v{GV}, 1.0, v{GV}
    v_cvt_pk_bf16_f32 v{GV+1}, v{GV}, 0
    v_lshlrev_b32 v{GV}, 16, v{GV+1}
    """)
    cs("flags")
    wodma(2, False)
    cs("wo dma")
    y_first()
    poll()
    A("s_waitcnt vmcnt(0)")
    cs("polled")
    arrive(2)
    y_sum()
    for ks in range(9):
        for l in oload(ks): A(l)
        if OPT.get("space") and ks % 2: A(f"s_waitcnt vmcnt({OPT['space']})")

    def wreads(ks, X):
        return [f"ds_read_b128 {vr(WF+20*ks+4*T,4)}, v{B1 if X else L16}{off(1024*(5*ks+T))}" for T in range(5)]

    def p3mm(ks, first=False):
        return [mf16(vr(ACC + 4 * T, 4), vr(WF + 20 * ks + 4 * T, 4), vr(OF + 4 * ks, 4), "0" if first else vr(ACC + 4 * T, 4)) for T in range(5)]

    A(f"""
    s_add_u32 s98, s98, {128*8192}
    s_add_u32 s101, s101, {128*8192}
    s_add_u32 s99, s99, {64*2048}
    s_add_u32 s6, s34, {7*1152}
    s_add_u32 s7, s34, {14*1152}
    s_mov_b64 s[62:63], s[6:7]
    """)
    gwait(2)
    for ks in range(3, 8):
        for l in wreads(ks, 0): A(l)
    y_sum2(12)
    A.c("---- a routed token of this wave's tile: its staged row of x becomes x + sigmoid(r) * y")
    YT = Y0
    for sel in range(2):
        A(f"""
        s_lshr_b32 s4, s{70+sel}, 4
        s_cmp_lg_u32 s4, {"-1" if nosel else "s32"}
        s_cbranch_scc1 K2_nosel{sel}
        """)
        gwait(5)
        A(f"""
        s_mov_b32 s4, {TB + 1024*sel}
        v_lshl_add_u32 v{T0+1}, v{LANE}, 3, s4
        s_and_b32 s4, s{70+sel}, 15
        s_mul_i32 s4, s4, 144
        s_add_u32 s4, s4, s97
        v_lshl_add_u32 v{T0}, v{LANE}, 2, s4
        """)
        for k in range(12):
            A(f"ds_read_b64 {vr(YT+2*k,2)}, v{T0+1}{off(5120*(k//3)+288*(k%3))}")
        A(f"""
        ds_read_b32 v{YT+25}, v{T0}
        s_ashr_i32 s6, s{68+sel}, 31
        s_not_b32 s6, s6
        s_or_b32 s6, s6, 0x80000000
        s_xor_b32 s6, s6, s{68+sel}
        s_and_b32 s6, s6, 0xffff0000
        v_mov_b32 v{T0+2}, {0x80000000 | LOG2E}
        v_mul_f32 v{T0+2}, s6, v{T0+2}
        v_exp_f32 v{T0+2}, v{T0+2}
        s_mov_b32 s6, -1
        v_add_f32 v{T0+2}, 1.0, v{T0+2}
        v_rcp_f32 v{T0+2}, v{T0+2}
        s_mov_b32 s7, 15
        s_waitcnt lgkmcnt(0)
        """)
        for st in (6, 3):
            for k in range(st):
                A(f"v_pk_add_f32 {vr(YT+2*k,2)}, {vr(YT+2*k,2)}, {vr(YT+2*(k+st),2)}")
        A(f"""
        v_lshlrev_b32 v{YT+24}, 16, v{YT+25}
        v_pk_add_f32 {vr(YT,2)}, {vr(YT,2)}, {vr(YT+2,2)}
        v_and_b32 v{YT+25}, 0xffff0000, v{YT+25}
        v_pk_add_f32 {vr(YT,2)}, {vr(YT,2)}, {vr(YT+4,2)}
        v_cvt_pk_bf16_f32 v{T0+2}, 0, v{T0+2}
        v_cvt_pk_bf16_f32 v{YT}, 0, v{YT}
        v_cvt_pk_bf16_f32 v{YT+1}, 0, v{YT+1}
        v_pk_mul_f32 {vr(YT,2)}, {vr(YT,2)}, {vr(T0+2,2)} op_sel_hi:[1,0]
        v_cvt_pk_bf16_f32 v{YT}, 0, v{YT}
        v_cvt_pk_bf16_f32 v{YT+1}, 0, v{YT+1}
        v_pk_add_f32 {vr(YT,2)}, {vr(YT,2)}, {vr(YT+24,2)}
        v_cvt_pk_bf16_f32 v{YT}, v{YT}, v{YT+1}
        s_mov_b64 exec, s[6:7]
        ds_write_b32 v{T0}, v{YT}
        s_mov_b64 exec, -1
        K2_nosel{sel}:
        """)
    cs("yred")
    for ks in (0, 1, 2, 8):
        for l in wreads(ks, 0): A(l)
    cs("preload")
    sp(1, "ready")
    gwait(OPT.get("win", 4), OPT.get("wsl", 2))
    A("s_setprio 0")
    A("s_waitcnt vmcnt(0)")
    sp(1, "window")
    cs("window")
    GATE = OPT.get("egate", 1)
    epoll = f"buffer_load_dword v{TV+1}, v{TV-1}, {ws}, s99 offen sc1"
    A.c("---- half A; its registers are refilled for half B as they come free")
    order = [8, 0, 1, 2, 3, 4, 5, 6, 7]
    for k in range(10):
        fill = wreads(order[k - 1], 1) if k else []
        if k == OPT.get("p0", 9): fill = oload(8) + fill
        if k == 8: fill = [f"ds_read_b64 {vr(OF+2*T,2)}, v{SG1 if T < 4 else SG2}{off(32*T)}" for T in range(5)] + fill
        mm5 = p3mm(order[k], k == 0) if k < 9 else [None] * 5
        for T in range(5):
            if mm5[T]: A(mm5[T])
            for l in fill[T * len(fill) // 5:(T + 1) * len(fill) // 5]: A(l)
    cs("mfma")
    sp(1, "pre1")

    A.c("---- add (1 - g) * b, with 1 - g in bf16 as one half of a dot product")
    A("s_waitcnt lgkmcnt(10)")
    for i in range(20):
        A(f"v_dot2c_f32_bf16 v{ACC+i}, v{OF+i//2}, v{GV + (1 - i % 2)}")
    A("s_nop 2")
    A.c("---- half B: the two-dimension words of every producer are watched first; the bulk is then fetched, used, and checked for empty words")
    if OPT.get("p0", 9) > 9:
        if OPT["p0"] > 10: A(f"s_sleep {OPT['p0'] - 10}")
        for l in oload(8): A(l)
    A(f"""
    s_mov_b32 s5, {SPIN}
    K2_epoll:
    s_waitcnt vmcnt(0)
    v_max3_u32 v{TV}, v{OF+32}, v{OF+33}, v{OF+34}
    v_max_u32 v{TV}, v{TV}, v{OF+35}
    v_cmp_eq_u32 vcc, -1, v{TV}
    s_cbranch_vccz K2_eseen
    {f"s_sleep {OPT['esleep']}" if OPT.get("esleep") else ""}
    """)
    for l in oload(8): A(l)
    A(f"""
    s_sub_u32 s5, s5, 1
    s_cbranch_scc0 K2_epoll
    s_mov_b32 s5, 0
    s_waitcnt vmcnt(0)
    K2_eseen:
    """)
    sp(1, "eseen")
    for ks in range(8):
        for l in oload(ks): A(l)
    A("s_waitcnt lgkmcnt(0)")
    for l in p3mm(8): A(l)
    A.c("the sums continue in the registers that step freed, so this pass can simply be repeated")
    AC2 = WF + 160
    A(f"K2_main:\nv_mov_b32 v{TV}, 0")
    for ks in range(8):
        A(f"s_waitcnt vmcnt({7-ks})")
        f = OF + 4 * ks
        for T in range(5):
            A(mf16(vr(AC2 + 4 * T, 4), vr(WF + 20 * ks + 4 * T, 4), vr(f, 4), vr((AC2 if ks else ACC) + 4 * T, 4)))
            if T < 2: A(f"v_max3_u32 v{TV}, v{TV}, v{f+2*T}, v{f+2*T+1}")
            if T == 2 and ks == 7: A(f"v_cmp_eq_u32 vcc, -1, v{TV}")
    A("s_cbranch_vccnz K2_redo")
    A("K2_out:")
    if not OPT.get("chain"): sp(1, "fpolled")
    cs("halfB")
    A("s_nop 0")
    for i in range(10):
        A(f"v_cvt_pk_bf16_f32 v{XR+i}, v{AC2+2*i}, v{AC2+2*i+1}")
        if i % 2: A(f"ds_write_b64 v{SG1 if i < 8 else SG2}, {vr(XR+i-1,2)}{off(16*(i-1))}")
    for n in range(3):
        A(f"ds_read_b128 {vr(WF+4*n,4)}, v{SR}{off(1008*n)}")
    for n in range(3):
        if n == 2: A("s_mov_b64 exec, 0x3ffff")
        A(f"s_waitcnt lgkmcnt({2-n})")
        A(f"buffer_store_dwordx4 {vr(WF+4*n,4)}, v{OUT}, s[{sO}:{sO+3}], s{(34, 62, 63)[n]} offen{OPT.get('ost', '')}")
    A.c("the owner of the first routed token saw all 144 stage-2 flags, so every workgroup has taken its tag: hand d_debug back as zero")
    A(f"""
    s_lshr_b32 s4, s70, 4
    s_cmp_lg_u32 s4, s32
    s_cbranch_scc1 K2_fini
    v_mov_b32 v{TV}, 0
    buffer_store_dword v{TV}, off, s[{sDBG}:{sDBG+3}], 0 sc1
    K2_fini:
    """)
    if gen1.DIAG: A("s_mov_b64 exec, -1")
    cs("epilogue")
    if gen1.DIAG: A("s_waitcnt vmcnt(0)")
    cs("drain")
    csflush(1, 100)
    ST.flush(v=100)
    A("s_endpgm")
    A("K2_redo:\ns_sub_u32 s5, s5, 1\ns_cbranch_scc1 K2_out")
    for ks in range(8):
        for l in oload(ks): A(l)
    A("s_branch K2_main")

    A.c("---- slow path: two passes over all keys with the true row maximum (own q tile)")
    A("K2_slow:")
    M, KA, VA, VA2, KEA = 40, 42, 43, 44, 45
    lane_addrs(KA, VA, VA2, KEA)
    A(f"""
    s_and_b32 s4, s40, 1
    s_lshl_b32 s4, s4, 3
    s_add_u32 s59, s57, s4
    buffer_load_dwordx2 {vr(QE,2)}, v{KEA}, {ws}, s59 offen sc1
    buffer_load_dwordx2 {vr(QM,2)}, v{KA}, {ws}, s59 offen sc1
    buffer_load_dwordx2 {vr(QM+2,2)}, v{KA}, {ws}, s59 offen offset:256 sc1
    v_and_b32 v4, 31, v{LANE}
    v_or_b32 v5, 4, v4
    v_cmp_eq_u32 vcc, 21, v5
    v_mov_b32 v6, 0x3f803f80
    s_bitcmp0_b32 s36, 0
    v_cndmask_b32 v{VV[0]}, 0, v6, vcc
    s_cselect_b32 s4, -1, 0
    s_cselect_b32 s5, 0, -1
    """)
    for i in range(1, 8):
        A(f"v_mov_b32 v{VV[0]+i}, v{VV[0]}")
    for i in range(16):
        A(f"v_mov_b32 v{o+i}, 0")
    A(f"""
    v_mov_b32 v{M}, 0xff800000
    s_waitcnt vmcnt(0)
    v_and_b32 v{QE}, s4, v{QE}
    v_and_b32 v{QE+1}, s5, v{QE+1}
    """)
    for pas in range(2):
        A("s_mov_b32 s10, 0")
        A(f"K2_slow{pas}:")
        A(f"""
        s_lshr_b32 s8, s10, 1
        s_mul_i32 s8, s8, {2*R}
        s_add_u32 s8, s8, 36864
        s_and_b32 s9, s10, 1
        s_lshl_b32 s11, s9, 3
        s_add_u32 s11, s11, s8
        s_mul_i32 s9, s9, {2*VS}
        s_add_u32 s8, s8, s9
        s_add_u32 s9, s8, {R}
        buffer_load_dwordx2 {vr(KP[0],2)}, v{KA}, {ws}, s11 offen sc1
        buffer_load_dwordx2 {vr(KP[0]+2,2)}, v{KA}, {ws}, s11 offen offset:256 sc1
        buffer_load_dwordx2 {vr(KE,2)}, v{KEA}, {ws}, s11 offen sc1
        """)
        if pas:
            A(f"""
            s_mov_b64 exec, s[62:63]
            buffer_load_dwordx4 {vr(VV[0],4)}, v{VA}, {ws}, s8 offen sc1
            buffer_load_dwordx4 {vr(VV[0]+4,4)}, v{VA}, {ws}, s9 offen sc1
            s_mov_b64 exec, -1
            """)
        A(f"""
        s_waitcnt vmcnt(0)
        v_mfma_f32_32x32x4_2b_bf16 v[0:31], {vr(KE,2)}, {vr(QE,2)}, 0
        s_nop 15
        s_nop 3
        {mfma("v[0:15]", vr(KP[0],4), vr(QM,4), "v[0:15]")}
        s_nop 15
        """)
        if not pas:
            for i in range(8):
                A(f"v_max3_f32 v{M}, v{M}, v{2*i}, v{2*i+1}")
        else:
            for i in range(16):
                A(f"v_sub_f32 v{i}, v{i}, v{M}")
            for i in range(16):
                A(f"v_exp_f32 v{i}, v{i}")
            A("s_nop 1")
            A(f"v_smfmac_f32_32x32x32_bf16 {vr(o,16)}, {vr(VV[0],4)}, v[0:7], v{IDX}")
            A(f"v_smfmac_f32_32x32x32_bf16 {vr(o,16)}, {vr(VV[0]+4,4)}, v[8:15], v{IDX}")
            A("s_nop 15")
        A(f"""
        s_add_u32 s10, s10, 1
        s_cmp_lt_u32 s10, 64
        s_cbranch_scc1 K2_slow{pas}
        """)
        if not pas:
            A(f"""
            v_mov_b32 v{M+1}, v{M}
            s_nop 1
            v_permlane32_swap_b32 v{M}, v{M+1}
            s_nop 1
            v_max_f32 v{M}, v{M}, v{M+1}
            """)
    A(f"v_rcp_f32 v0, v{o+9}\ns_nop 0\nv_mul_f32 v0, v0, v{GQ}")
    A("s_branch K2_fin")
    for r in range(2):
        A(f"""
        K2_gqspin{r}:
        s_mov_b32 s6, {SPIN}
        K2_gqspin{r}1:
        {gqload[r]}
        s_sub_u32 s6, s6, 1
        s_waitcnt vmcnt(0)
        s_cbranch_scc1 K2_gqok{r}
        v_cmp_ne_u32 vcc, s{sTAG}, v{(251, GQ+1)[r]}
        s_cbranch_vccnz K2_gqspin{r}1
        s_branch K2_gqok{r}
        """)
    A.c("---- partials still missing: watch the count alone, then read again")
    A(f"""
    K2_finwait:
    s_sub_u32 s5, s5, 1
    s_cbranch_scc1 K2_fin2
    ds_read_b32 v0, v{CA}
    s_waitcnt lgkmcnt(0)
    v_readfirstlane_b32 s4, v0
    s_cmp_lt_u32 s4, {OPT.get("fw", 3)}
    s_cbranch_scc0 K2_fin1
    {"s_sleep 1" if OPT.get("fsl") else ""}
    s_branch K2_finwait
    """)
    A.c("---- router candidates not published yet (rare): wait for them")
    A(f"""
    K2_candspin:
    s_mov_b32 s6, {SPIN}
    s_mov_b32 s7, {RC}
    K2_candspin1:
    buffer_load_dwordx4 {vr(CAND,4)}, v{L16}, {ws}, s7 offen sc1
    s_sub_u32 s6, s6, 1
    s_waitcnt vmcnt(0)
    s_cbranch_scc1 K2_candok
    v_cmp_ne_u32 vcc, s{sTAG}, v{CAND+1}
    v_cmp_ne_u32 s[4:5], s{sTAG}, v{CAND+3}
    s_or_b64 vcc, vcc, s[4:5]
    s_cbranch_scc1 K2_candspin1
    s_branch K2_candok
    """)
    A("K2_codeend:")
    A("s_endpgm")
    return CNT + 48


def build():
    global R, VS
    VS, R = OPT.get('pitch', (9216, 110592))
    assert 64 * R <= GB and R >= 73728 + 4 * VS
    A = Asm()
    A('.amdgcn_target "amdgcn-amd-amdhsa--gfx950"')
    A(".text")
    lds = k23(A)
    A('.section .rodata,"a"')
    A(".p2align 6")
    A.raw(descriptor(NAME, 256, 256))
    head = ("; gated mix of a 32-head attention block and a top-2 routed SwiGLU FFN (S=2048, D=576), one launch\n"
            f"; @launch grid=(256,1,1) block=(512,1,1) lds={lds}\n")
    return head + A.text()


if __name__ == "__main__":
    out = sys.argv[1]
    gen1.DIAG = len(sys.argv) > 2 and sys.argv[2] == "diag"
    if len(sys.argv) > 3:
        OPT = eval(sys.argv[3]); gen1.OPT = OPT
    open(out, "w").write(build())
```

```python
import sys
sys.path.insert(0, "gen")
from asmlib import *
import gen1
from gen1 import YP, WS_SIZE, XB, f32bits, QSCALE, LOG2E, mfma, Stamp
NAME = "gated_mix__mha_block__moe_arch_mod__prompt_kernel"
R = 110592
VS = 9216
GB = 0x6F8000
RC = 0x6FC000
F1 = 0xA60000
PG = 0xB00000
WP = 0xE00000
OOB = 0x7FFFFF00

OM = 0x700000
OE = 0x900000
FO = 0xA00000
FY = 0xA40000
EP = 0xA50000
OPT = {}
SPIN = 1 << 17
LSPIN = 1 << 23


def mf16(d, a, b, c):
    return f"v_mfma_f32_16x16x32_bf16 {d}, {a}, {b}, {c}"


def k23(A):
    kernel_head(A, NAME)
    sDBG, sX, sG, sWS, sD, sU, sWO, sO = 12, 16, 20, 24, 28, 32, 72, 76
    sW, sWB = 20, 28
    S = [0, 32]
    O = [64, 80, 96, 112]
    QM, QE, KE = 128, 144, 148
    NB = 5
    KP = [164 + 10 * g for g in range(3)]
    VV = [194 + 8 * g for g in range(NB)]
    IDX, L16, VA, LANE = 236, 237, 238, 239
    KA, VA2, KEA, GUA, TAGV = 240, 241, 242, 234, 246
    CAND, PA, RET, ONE, CA = 250, 252, 253, 254, 255
    QEA = 251
    SW, PM, PE, RD = 243, 244, 245, 247
    DNA, DN5 = 245, 247
    M0, M3, M4, GQA = 152, 153, 154, 155
    TA = 235
    sT = [44 + t for t in range(8)] + [72 + t for t in range(8)]
    sTAG = 53
    WREG = 14336
    AS = 0
    DN = 4 * WREG
    STG = DN + 36864
    TB = STG + 4 * 3072
    BS = 129024
    HP = BS + 4 * 8192
    HS = HP + 1024
    CNT = HS + 512
    SLOT = 32768
    RGV = 4 * SLOT
    ws = f"s[{sWS}:{sWS+3}]"
    uid = [0]
    PQ, PJ = (37, 43) if OPT.get("map2") else (43, 37)
    FOM = OPT.get("fo", 1)
    FOX, FOS = (("0xff", 8), ("1", 2), ("1\ns_mov_b32 exec_lo, -1", 2))[FOM]

    def lab(p):
        uid[0] += 1
        return f"{p}_{uid[0]}"

    def cs(name):
        if not OPT.get("chain"): return
        A("s_memtime s[88:89]")
        A("s_waitcnt lgkmcnt(0)")
        A("s_sub_u32 s88, s88, s80")
        A("s_mov_b32 m0, s96")
        A(f"v_writelane_b32 v{IDX}, s88, m0")
        A("s_add_u32 s96, s96, 1")
        A.c("stamp " + name)

    def csflush(k, v):
        if not OPT.get("chain"): return
        A(f"""
        s_lshl_b32 s4, s2, 2
        s_add_u32 s4, s4, s38
        s_lshl_b32 s4, s4, 8
        s_add_u32 s4, s4, {0xD00000 + 0x40000*k}
        v_lshlrev_b32 v{v}, 2, v{LANE}
        buffer_store_dword v{IDX}, v{v}, {ws}, s4 offen
        s_nop 1
        """)

    def arrive(k):
        A(f"""
        s_mov_b64 exec, 1
        ds_add_u32 v{CA}, v{ONE}{off(4*k)}
        s_mov_b64 exec, -1
        """)

    def gwait(k, sl=1):
        l = lab("K2_gw")
        A(f"""
        s_mov_b32 s5, {LSPIN}
        {l}:
        ds_read_b32 v247, v{CA}{off(4*k)}
        s_waitcnt lgkmcnt(0)
        v_readfirstlane_b32 s4, v247
        s_cmp_ge_u32 s4, 4
        s_cbranch_scc1 {l}_d
        s_sleep {sl}
        s_sub_u32 s5, s5, 1
        s_cbranch_scc0 {l}
        {l}_d:
        """)

    tagload = f"buffer_load_dword v{TAGV}, off, s[{sDBG}:{sDBG+3}], 0 sc1"

    def gettag():
        l = lab("K2_tag")
        A(f"""
        s_mov_b32 s5, {SPIN}
        {l}:
        s_waitcnt vmcnt(0)
        v_readfirstlane_b32 s{sTAG}, v{TAGV}
        s_cmp_lg_u32 s{sTAG}, 0
        s_cbranch_scc1 {l}_d
        s_sleep 8
        {tagload}
        s_sub_u32 s5, s5, 1
        s_cbranch_scc0 {l}
        {l}_d:
        """)

    def lane_addrs(KA, VA, VA2, KEA):
        A(f"""
        s_lshr_b32 s4, s36, 1
        s_mul_i32 s4, s4, {9*256}
        s_and_b32 s5, s36, 1
        s_mul_i32 s5, s5, {5*256}
        s_add_u32 s5, s5, s4
        s_add_u32 s4, s4, 1024
        v_and_b32 v4, 31, v{LANE}
        v_lshrrev_b32 v6, 5, v{LANE}
        v_lshrrev_b32 v5, 4, v4
        v_mul_u32_u24 v5, {R-256}, v5
        v_lshl_add_u32 v5, v4, 4, v5
        v_add_u32 v{KEA}, s4, v5
        v_add_u32 v{KA}, s5, v5
        v_lshl_add_u32 v{KA}, v6, 9, v{KA}
        s_mul_i32 s4, s36, 288
        s_add_u32 s4, s4, 36864
        v_min_u32 v5, 17, v4
        v_lshl_add_u32 v{VA}, v5, 4, s4
        v_mul_u32_u24 v5, {VS}, v6
        v_add_u32 v{VA}, v{VA}, v5
        v_add_u32 v{VA2}, {2*VS}, v{VA}
        """)

    def att_setup(old):
        A(f"""
        s_lshl_b32 s4, s3, 1
        s_bfe_u32 s5, s2, 0x10003
        s_add_u32 s{PQ}, s4, s5
        s_lshr_b32 s{PJ}, s2, 4
        s_lshl_b32 s36, s43, 1
        s_add_u32 s36, s36, s39
        """)
        A.c("s36 head, s37 q block (128), s38 wave, s39 head half, s40 key quarter, s43 head within half")
        lane_addrs(KA, VA, VA2, KEA)
        A(f"""
        s_mul_i32 s10, s37, {4*R}
        s_xor_b32 s11, s40, 3
        """)
        A.c("a 32-row tile = the same 16-token half of two neighbouring records; local q tile t is tile t ^ 3 ^ kq")
        A(f"""
        s_mov_b32 s60, s10
        s_lshr_b32 s4, s11, 1
        s_mul_i32 s5, s4, {2*R}
        s_add_u32 s56, s10, s5
        s_xor_b32 s5, s4, 1
        s_mul_i32 s5, s5, {2*R}
        s_add_u32 s57, s10, s5
        v_xor_b32 v5, s4, v6
        s_mov_b32 s4, {2*R}
        v_mad_u32_u24 v{QEA}, v5, s4, v{KEA}
        v_mad_u32_u24 v{KEA}, v6, s4, v{KEA}
        s_mul_i32 s10, s40, {16*R}
        """)
        for m in range(16):
            A(f"s_add_u32 s{sT[m]}, s10, {36864 + m*R}")
        A("s_mov_b32 s62, 0x0011ffff\ns_mov_b32 s63, 0x0011ffff")
        if not old: return
        A.c("projection flags of this head pair: lane = (k / v, first / last channel, token block), the two q flags and the two flags of the packed w_o block")
        A(f"""
        s_mul_i32 s4, s43, 36
        v_bfe_u32 v5, v{LANE}, 4, 1
        v_mad_u32_u24 v5, v5, 35, s4
        v_lshrrev_b32 v7, 7, v5
        s_lshr_b32 s7, s43, 1
        s_mul_i32 s4, s7, 9
        s_lshr_b32 s4, s4, 4
        s_lshl_b32 s5, s7, 1
        s_sub_u32 s4, s5, s4
        v_add_u32 v7, s4, v7
        v_lshl_add_u32 v7, v7, 4, s37
        s_and_b32 s4, s{PJ}, 14
        s_add_u32 s4, s4, {768 - 2}
        v_lshrrev_b32 v8, 4, v{LANE}
        v_cmp_lt_u32 vcc, 1, v8
        v_add_u32 v8, s4, v8
        s_mov_b32 s4, {F1}
        v_cndmask_b32 v7, v7, v8, vcc
        v_lshl_add_u32 v{PA+1}, v7, 5, s4
        v_mul_u32_u24 v7, 576, v6
        v_add_u32 v5, 576, v5
        v_add_u32 v5, v5, v7
        v_lshrrev_b32 v5, 7, v5
        s_add_u32 s5, s7, 8
        v_lshl_add_u32 v7, v6, 3, s5
        v_mul_u32_u24 v8, 9, v7
        v_lshrrev_b32 v8, 4, v8
        v_sub_u32 v5, v5, v8
        v_lshl_add_u32 v5, v7, 1, v5
        v_and_b32 v7, 15, v{LANE}
        v_lshl_add_u32 v5, v5, 4, v7
        v_lshl_add_u32 v{PA}, v5, 5, s4
        """)

    ACC, PK, AX, AW, SA, FLA = 64, 128, 220, 224, 250, 162
    FR = [0, 32]

    def acc(a, T):
        return ACC + 16 * a + 4 * T

    def epilogue(vmode, r, scale):
        out = []
        for T in range(4):
            p = PK + 16 * r + 4 * T
            for a in (2 * r, 2 * r + 1):
                d = acc(a, T)
                if scale:
                    out += [f"v_pk_mul_f32 {vr(d+2*i,2)}, {vr(d+2*i,2)}, s[98:99]" for i in range(2)]
                out += [f"v_cvt_pk_bf16_f32 v{p+2*(a%2)+i}, v{d+2*i}, v{d+2*i+1}" for i in range(2)]
            out.append(f"buffer_store_dwordx4 {vr(p,4)}, v{SA}, {ws}, s{65+r} offen{off((256 if vmode else 1024)*T)} sc1")
        return out

    def xread(n, a, vmode):
        c, s_ = divmod(n, 2)
        k, o = divmod(c % 4, 2)
        to = (a // 2) * 4096 + (a % 2) * 512 if vmode else a * 2048
        return f"ds_read_b128 {vr(FR[n%2]+4*a,4)}, v{AX+2*k+s_}{off(o*SLOT+to)}"

    def reads(n, vmode):
        c, s_ = divmod(n, 2)
        k, o = divmod(c % 4, 2)
        w = [[(f"w{T}", f"ds_read_b64_tr_b16 {vr(FR[n%2]+16+4*T+2*a,2)}, v{AW+4*k+T}{off(o*SLOT+(32*s_+4*a)*128)}") for a in range(2)] for T in range(4)]
        x = [(f"x{a}", xread(n, a, vmode)) for a in range(4)]
        return [(f"{n}{t}", l) for t, l in w[0] + x[:1] + w[1] + w[2] + w[3] + x[1:]]

    def gemm(vmode):
        q = []

        def put(r):
            if OPT.get("nord") and len(r[0]) + int(r[0][0] > "1") > 3: return
            q.append(r[0]); A(r[1])

        def need(*tags):
            idx = [i for i, t in enumerate(q) if t in tags]
            if idx:
                A(f"s_waitcnt lgkmcnt({len(q) - 1 - max(idx)})")
                del q[:max(idx) + 1]
        sp(1, "atb0")
        A("s_barrier")
        sp(1, "b0")
        cs("B0")
        for r in reads(0, vmode): put(r)

        def mm1(n, a, T):
            if OPT.get("half") and a >= 2: return
            need(f"{n}x{a}", f"{n}w{T}")
            d = vr(acc(a, T), 4)
            x, w = vr(FR[n % 2] + 4 * a, 4), vr(FR[n % 2] + 16 + 4 * T, 4)
            c = "0" if n == 0 else d
            A(mf16(d, x, w, c) if vmode else mf16(d, w, x, c))
        for n in range(16):
            Rn = reads(n + 1, vmode)
            bp = OPT.get("bp", (0, 6))[n == 15] if n % 2 else 0
            for i in range(16):
                if i == 0 and n > 0: need(f"{n}x0", f"{n}w0", f"{n}w1", f"{n}w2", f"{n}w3")
                mm1(n, i // 4, i % 4)
                if i == bp and n % 2 == 1:
                    need(f"{n}x3")
                    A("s_barrier")
                if i == 0 and n == OPT.get("tagstep", 8): A(tagload)
                if i == 0 and n == OPT.get("tagstep", 8) + 5: gettag()
                if i >= bp:
                    k = 1 if bp <= 2 else 2
                    for r in Rn[k * (i - bp):k * (i - bp) + k]: put(r)
        Rn = reads(17, vmode)
        for i in range(8):
            mm1(16, i // 4, i % 4)
            for r in Rn[2 * i:2 * i + 2]: put(r)
        for i in range(8): mm1(17, i % 2, i // 2)
        q0 = list(q)
        if not vmode: A("s_cmp_lt_u32 s69, 9\ns_cbranch_scc1 K2_qtail")
        for scale in ((False,) if vmode else (False, True)):
            q[:] = q0
            if scale: A("K2_qtail:")
            E = epilogue(vmode, 0, scale)
            tail = [(16, 2 + i // 4, i % 4) for i in range(8)] + [(17, 2 + i % 2, i // 2) for i in range(8)]
            for i, t in enumerate(tail):
                mm1(*t)
                if not OPT.get("ilv", (1, 1))[not scale]:
                    if i == 15:
                        for l in E: A(l)
                elif i >= 2:
                    for l in E[(i - 2) * len(E) // 14:(i - 1) * len(E) // 14]: A(l)
            sp(1, "passa")
            cs("pass A")
            A("s_nop 1")
            for l in epilogue(vmode, 1, scale) if not OPT.get("half") else []: A(l)
            sp(1, "astore")
            cs("a stores")
            A("s_branch K2_p1done")

    def pflag(sf):
        A(f"""
        s_cmp_lg_u32 s40, 0
        s_waitcnt vmcnt(0)
        s_barrier
        s_cbranch_scc1 K2_noflag
        s_mov_b64 exec, 0xffffff
        buffer_store_dword v{TAGV}, v{FLA}, {ws}, s{sf} offen sc1
        s_mov_b64 exec, -1
        K2_noflag:
        """)

    def presets():
        A.c("V registers are preset: rows 17 and 21 are the all-ones rows that produce the softmax denominator")
        A.c("(1 + 127*2^-16 has the bit pattern 0x3f803f80 = two bf16 ones; the matrix unit fills 32 registers per instruction)")
        A(f"""
        v_and_b32 v4, 31, v{LANE}
        v_or_b32 v5, 4, v4
        v_cmp_eq_u32 vcc, 21, v5
        v_mov_b32 v6, 0x3afe3f80
        v_mov_b32 v8, 0x3f803f80
        v_cndmask_b32 v6, 0, v6, vcc
        v_mov_b32 v7, 0
        v_mov_b32 v9, 0
        v_mov_b32 v10, 0
        v_mov_b32 v11, 0
        v_mfma_f32_32x32x4_2b_bf16 {vr(170,32)}, v[8:9], v[6:7], 0
        v_mfma_f32_32x32x4_2b_bf16 {vr(202,32)}, v[8:9], v[6:7], 0
        v_mfma_f32_32x32x4_2b_bf16 {vr(O[0],32)}, v[10:11], v[10:11], 0
        v_mfma_f32_32x32x4_2b_bf16 {vr(O[2],32)}, v[10:11], v[10:11], 0
        s_nop 3
        """)

    def p1_addrs():
        A.c("wave = 64 tokens (s40 & 1) x one 64-channel tile (s40 >> 1); v tiles map row 4g+j of tile a to token 8g+4a+j")
        A(f"""
        v_lshrrev_b32 v1, 4, v{LANE}
        v_and_b32 v2, 15, v{LANE}
        v_and_b32 v3, 12, v2
        v_add_u32 v3, v3, v2
        s_cmp_eq_u32 s100, 2
        s_cselect_b64 vcc, -1, 0
        v_cndmask_b32 v3, v2, v3, vcc
        v_mul_u32_u24 v4, {VS}, v1
        v_lshl_add_u32 v4, v2, 4, v4
        v_cndmask_b32 v{SA}, v{L16}, v4, vcc
        v_lshrrev_b32 v4, 1, v2
        v_xor_b32 v4, v4, v1
        s_and_b32 s4, s40, 1
        s_lshl_b32 s4, s4, 1
        s_cmp_eq_u32 s100, 3
        s_cselect_b32 s4, s40, s4
        s_lshl_b32 s5, s68, 2
        s_add_u32 s71, s5, s4
        s_lshl_b32 s4, s4, 12
        v_lshl_add_u32 v3, v3, 7, s4
        v_lshl_add_u32 v{AX}, v4, 4, v3
        v_xor_b32 v{AX+1}, 64, v{AX}
        v_add_u32 v{AX+2}, {2*SLOT}, v{AX}
        v_add_u32 v{AX+3}, {2*SLOT}, v{AX+1}
        v_bfe_u32 v3, v{LANE}, 2, 2
        v_lshl_add_u32 v4, v1, 3, v3
        v_lshlrev_b32 v4, 7, v4
        v_bfe_u32 v3, v{LANE}, 3, 2
        v_lshl_add_u32 v4, v3, 5, v4
        v_and_b32 v3, 3, v{LANE}
        v_lshl_add_u32 v4, v3, 3, v4
        s_lshr_b32 s7, s40, 1
        s_lshl_b32 s4, s7, 13
        s_add_u32 s4, s4, 16384
        v_add_u32 v{AW}, s4, v4
        """)
        for T in range(1, 4):
            A(f"v_xor_b32 v{AW+T}, {32*T}, v{AW}")
        for T in range(4):
            A(f"v_add_u32 v{AW+4+T}, {2*SLOT}, v{AW+T}")
        A.c("store base s65 and flag address s61 of this wave's tile")
        A(f"""
        s_add_u32 s69, s69, s7
        s_mul_i32 s4, s71, {R}
        s_lshl_b32 s5, s69, 12
        s_lshl_b32 s6, s69, 10
        s_add_u32 s6, s6, {73728 - 18*1024}
        s_cmp_eq_u32 s100, 2
        s_cselect_b32 s5, s6, s5
        s_add_u32 s65, s4, s5
        s_add_u32 s66, s65, {R}
        s_lshl_b32 s4, s68, 5
        s_add_u32 s61, s4, {F1}
        s_mul_i32 s4, s97, {16*7282}
        s_add_u32 s5, s4, {15*7282}
        s_lshr_b32 s4, s4, 16
        s_lshr_b32 s5, s5, 16
        s_min_u32 s5, s5, 23
        v_lshrrev_b32 v3, 3, v{LANE}
        v_add_u32 v3, s4, v3
        v_min_u32 v3, s5, v3
        v_mul_u32_u24 v4, 9, v3
        v_lshrrev_b32 v4, 4, v4
        v_sub_u32 v4, s97, v4
        v_lshl_add_u32 v3, v3, 1, v4
        v_and_b32 v4, 7, v{LANE}
        v_lshlrev_b32 v4, 2, v4
        v_lshl_add_u32 v{FLA}, v3, 9, v4
        s_mov_b32 s98, {QSCALE}
        s_mov_b32 s99, s98
        """)

    A("s_cmp_ge_u32 s2, 256")
    A("s_cbranch_scc1 K2_end")
    ST = Stamp(A, 0); ST.t(0)
    STS = OPT.get("st", ("astore,polled,loopend,fpolled", "loaded,polled,loopend,flag"))

    def sp(old, name):
        L = STS[0 if old else 1].split(",")
        if name in L: ST.t(1 + L.index(name))
    A(f"""
    s_load_dwordx2 s[{sX}:{sX+1}], s[0:1], 0
    s_load_dwordx2 s[{sW}:{sW+1}], s[0:1], 8
    s_load_dwordx2 s[{sWB}:{sWB+1}], s[0:1], 8
    s_load_dwordx2 s[{sWS}:{sWS+1}], s[0:1], 88
    s_load_dwordx2 s[{sDBG}:{sDBG+1}], s[0:1], 80
    v_readfirstlane_b32 s38, v0
    v_and_b32 v{LANE}, 63, v0
    s_and_b32 s4, s2, 3
    s_bfe_u32 s5, s2, 0x20003
    s_bfe_u32 s6, s2, 0x10002
    s_lshr_b32 s7, s2, 5
    s_lshl2_add_u32 s68, s4, s5
    s_mul_i32 s97, s6, 6
    s_add_u32 s97, s97, s7
    s_lshl3_add_u32 s9, s6, s7
    s_cmp_eq_u32 s9, 6
    s_cselect_b32 s97, 13, s97
    s_cmp_ge_u32 s97, 9
    s_cselect_b32 s100, 2, 0
    s_lshr_b32 s9, s5, 1
    s_xor_b32 s9, s9, s6
    s_add_u32 s9, s9, 3
    s_cmp_eq_u32 s7, 7
    s_cselect_b32 s100, s9, s100
    s_mov_b32 s{sX+2}, {XB}
    s_mov_b32 s{sX+3}, 0x00020000
    s_bfe_u32 s40, s38, 0x20006
    s_lshr_b32 s39, s38, 8
    s_cbranch_scc0 K2_old
    """)

    def common2():
        A(f"""
        s_lshr_b32 s38, s38, 6
        s_and_b32 s3, s2, 7
        s_lshl_b32 s69, s97, 1
        s_mov_b32 s{sWS+2}, {WS_SIZE}
        s_mov_b32 s{sWS+3}, 0x00020000
        s_mov_b32 s{sDBG+2}, 256
        s_mov_b32 s{sDBG+3}, 0x00020000
        v_lshlrev_b32 v{L16}, 4, v{LANE}
        """)
    A.c("projection tile: s68 token block (128), s97 channel tile (128), s100 kind (0 q/k, 2 v, 3 router, 4 none)")
    A.c("=========== waves 4-7 first stage x and w_qkv for the projection (k chunks start at s71, for L2 locality only)")
    A(f"""
    s_setprio 2
    s_cmp_eq_u32 s100, 4
    s_cbranch_scc1 K2_noload
    v_lshrrev_b32 v2, 3, v{LANE}
    v_and_b32 v3, 7, v{LANE}
    v_lshrrev_b32 v4, 4, v{LANE}
    v_lshl_add_u32 v2, s40, 3, v2
    s_cmp_eq_u32 s100, 2
    s_cselect_b32 s9, 1, 2
    s_cselect_b32 s10, 1, 3
    s_lshl_b32 s9, s40, s9
    s_and_b32 s9, s9, 7
    v_and_b32 v5, s10, v4
    v_xor_b32 v5, v3, v5
    v_xor_b32 v5, s9, v5
    v_lshl_add_u32 v6, s68, 7, v2
    v_mul_u32_u24 v6, 1152, v6
    v_lshl_add_u32 v10, v5, 4, v6
    """)
    RM = OPT.get("rm")
    if RM is None:
        A("""
        s_xor_b32 s71, s7, s5
        s_and_b32 s71, s71, 1
        s_lshl2_add_u32 s71, s71, s4
        s_lshl1_add_u32 s71, s6, s71
        s_cmp_eq_u32 s71, 9
        s_cselect_b32 s71, 0, s71
        """)
    else:
        A(f"""
        s_xor_b32 s71, s7, s5
        s_and_b32 s71, s71, 1
        s_mul_i32 s71, s71, {RM[0]}
        s_mul_i32 s9, s4, {RM[1]}
        s_add_u32 s71, s71, s9
        s_mul_i32 s9, s6, {RM[2]}
        s_add_u32 s71, s71, s9
        s_sub_u32 s9, s71, 9
        s_cselect_b32 s71, s71, s9
        """)
    A(f"""
    s_cmp_eq_u32 s100, 3
    s_cselect_b32 s71, 0, s71
    s_cselect_b32 s{sW+2}, 0, {576*3456}
    s_lshl_b32 s42, s40, 10
    s_waitcnt lgkmcnt(0)
    """)
    sp(0, "ld0")

    def waddr():
        A.c("missing tiles stage zeros (empty descriptors)")
        A(f"""
        s_cmp_eq_u32 s97, 13
        s_cselect_b32 s{sWB+2}, 0, s{sW+2}
        s_mov_b32 s{sW+3}, 0x00020000
        s_mov_b32 s{sWB+3}, 0x00020000
        v_and_b32 v4, 1, v4
        s_and_b32 s9, s40, 1
        s_lshl_b32 s9, s9, 2
        v_lshl_add_u32 v4, v4, 1, s9
        v_xor_b32 v3, v3, v4
        v_mul_u32_u24 v6, 3456, v2
        v_lshl_add_u32 v6, v3, 4, v6
        v_lshl_add_u32 v11, s97, 8, v6
        """)

    def dma1(k):
        c, r = divmod(k, 8)
        u, isx = divmod(r, 2)
        if c == 0:
            u, isx = r % 4, r < 4
            if r == 4: waddr()
        slot = c % 4
        if r == 0: A(f"s_lshl_b32 s65, s71, 7\ns_mul_i32 s66, s71, {64*3456}")
        if not isx:
            t, hf = u % 2, u // 2
            A(f"s_add_u32 m0, s42, {slot*SLOT + 16384 + t*8192 + hf*4096}")
            A(f"s_add_u32 s67, s66, {hf*32*3456 + 128*t}")
            A(f"buffer_load_dwordx4 v11, s[{(sW, sWB)[t]}:{(sW, sWB)[t]+3}], s67 offen{OPT.get('wnt', '')} lds")
        else:
            A(f"s_add_u32 m0, s42, {slot*SLOT + u*4096}")
            A(f"s_add_u32 s67, s65, {u*36864}")
            A(f"buffer_load_dwordx4 v10, s[{sX}:{sX+3}], s67 offen{OPT.get('xnt', '')} lds")
        if r == 7: A("s_add_u32 s71, s71, 1\ns_cmp_eq_u32 s71, 9\ns_cselect_b32 s71, 0, s71")

    lead0, lead = OPT.get("lead", (8, 8))
    assert lead <= 16
    issued = 0
    for c in range(9):
        tgt = min(72, 8 * (c + 1) + (lead0 if c == 0 else lead))
        while issued < tgt:
            dma1(issued); issued += 1
        A(f"s_waitcnt vmcnt({issued - 8*(c+1)})")
        sp(0, f"c{c}")
        if c == 8: A("K2_lastbar:")
        A("s_barrier")
    A("K2_loaded:")
    common2()
    A("s_waitcnt lgkmcnt(0)")
    sp(0, "loaded")
    A(tagload)
    att_setup(False)
    presets()
    gettag()
    A("s_branch K2_young2")

    OAT = 60

    def tables():
        A.c("output projection tile: 64 tokens x 72 channels per workgroup, dealt so that one die shares tokens (speed only)")
        A.c("s32 = 16-token tile of this wave, s33 = byte offset of the channel block, s34 row base, s35 packed w_o")
        A(f"""
        s_lshl_b32 s32, s{PQ}, 3
        s_and_b32 s4, s{PJ}, 1
        s_lshl_b32 s4, s4, 2
        s_add_u32 s32, s32, s4
        s_add_u32 s32, s32, s40
        s_lshr_b32 s33, s{PJ}, 1
        s_mul_i32 s33, s33, 144
        s_mul_i32 s34, s32, {16*1152}
        s_add_u32 s34, s34, s33
        s_mul_i32 s35, s33, 640
        s_add_u32 s35, s35, {WP}
        s_mul_i32 s4, s40, 3072
        s_add_u32 s97, s4, {STG}
        s_lshl_b32 s4, s32, 13
        s_add_u32 s98, s4, {OM}
        s_add_u32 s101, s98, 4096
        s_lshr_b32 s4, s32, 2
        s_lshl_b32 s4, s4, 1
        s_and_b32 s5, s40, 1
        s_add_u32 s4, s4, s5
        s_lshl_b32 s5, s4, 7
        s_add_u32 s100, s5, {FO}
        s_lshl_b32 s4, s4, 11
        s_lshr_b32 s5, s40, 1
        s_lshl_b32 s5, s5, 6
        s_add_u32 s4, s4, s5
        s_add_u32 s99, s4, {OE}
        s_mul_i32 s4, s40, 5120
        s_add_u32 s4, s4, {TB}
        v_add_u32 v{TA}, s4, v{L16}
        """)

    def tables_lane():
        A.c("per-lane addresses that wave s40 needs in the later phases are worked out here and parked in LDS")
        A(f"""
        s_mul_i32 s42, s40, {WREG}
        s_mul_i32 s4, s40, 3072
        s_add_u32 s97, s4, {STG}
        s_mul_i32 s4, s40, 5120
        s_add_u32 s4, s4, {TB}
        v_add_u32 v{TA}, s4, v{L16}
        v_and_b32 v3, 15, v{LANE}
        v_lshrrev_b32 v4, 4, v{LANE}
        v_bfe_u32 v5, v{LANE}, 2, 2
        v_lshl_add_u32 v7, v4, 3, v5
        v_and_b32 v5, 1, v5
        v_and_b32 v6, 1, v4
        v_lshlrev_b32 v18, 3, v{LANE}
        v_and_b32 v8, 24, v18
        v_lshl_add_u32 v16, v7, 7, s42
        v_add_u32 v16, v16, v8
        v_lshl_add_u32 v17, v4, 4, s42
        v_lshl_add_u32 v17, v5, 10, v17
        v_and_b32 v19, 64, v{PE}
        v_add_lshl_u32 v19, v19, v{PE}, 1
        v_lshlrev_b32 v9, 2, v{LANE}
        v_add_u32 v21, {HP}, v9
        s_lshl_b32 s4, s40, 8
        v_add_u32 v20, s4, v21
        s_mul_i32 s4, s40, 288
        s_and_b32 s4, s4, 0xffc0
        s_add_u32 s5, s4, {DN}
        v_mul_u32_u24 v22, 1152, v7
        v_add3_u32 v22, v22, v8, s5
        s_lshl_b32 s5, s40, 7
        s_add_u32 s5, s5, {HS}
        v_lshl_add_u32 v23, v4, 4, s5
        v_lshl_add_u32 v23, v5, 6, v23
        v_and_b32 v10, 32, v{LANE}
        v_lshl_add_u32 v24, v3, 1, s5
        v_lshl_add_u32 v24, v6, 6, v24
        v_add_u32 v24, v24, v10
        v_lshlrev_b32 v26, 2, v3
        v_mul_u32_u24 v25, 2304, v6
        v_lshl_add_u32 v25, v10, 1, v25
        s_lshl_b32 s4, s4, 1
        v_add3_u32 v25, v25, v26, s4
        v_lshlrev_b32 v27, 3, v3
        v_mul_u32_u24 v11, 7282, v{LANE}
        v_lshrrev_b32 v11, 16, v11
        v_mul_u32_u24 v11, {1152-144}, v11
        v_add_u32 v{OAT}, v11, v{L16}
        v_mul_u32_u24 v11, 144, v3
        v_add_u32 v11, s97, v11
        v_lshl_add_u32 v{OAT+1}, v4, 3, v11
        v_lshl_add_u32 v{OAT+2}, v6, 3, v11
        v_lshl_add_u32 v{OAT+3}, v4, 9, v26
        v_add_u32 v28, 46080, v{L16}
        v_add_u32 v29, s97, v{L16}
        """)

    def tables_store():
        A(f"""
        ds_write_b128 v{TA}, v[16:19]
        ds_write_b128 v{TA}, v[20:23] offset:1024
        ds_write_b128 v{TA}, v[24:27] offset:2048
        ds_write_b128 v{TA}, {vr(OAT,4)} offset:3072
        ds_write_b64 v{TA}, v[28:29] offset:4096
        """)

    def p1_compute():
        A.c("staging waves of a workgroup without projection tile; one of them has a job")
        A(f"""
        K2_noload:
        s_lshl_b32 s4, s40, 8
        s_or_b32 s4, s4, s2
        s_cmp_lg_u32 s4, 228
        s_cbranch_scc1 K2_lastbar
        s_mov_b32 s{sWS+2}, {WS_SIZE}
        s_mov_b32 s{sWS+3}, 0x00020000
        s_mov_b32 s{sDBG+2}, 256
        s_mov_b32 s{sDBG+3}, 0x00020000
        s_waitcnt lgkmcnt(0)
        """)
        A.c("hand-off tag of this launch: successor of the word the previous launch left, published through d_debug[0]")
        A(f"""
        s_mov_b32 s4, {EP}
        buffer_load_dword v14, off, {ws}, s4 sc1
        s_mov_b32 s5, 1664525
        s_waitcnt vmcnt(0)
        v_mul_lo_u32 v14, v14, s5
        v_add_u32 v14, 1013904223, v14
        v_max_u32 v14, 1, v14
        s_mov_b64 exec, 1
        buffer_store_dword v14, off, s[{sDBG}:{sDBG+3}], 0 sc1
        buffer_store_dword v14, off, {ws}, s4 sc1
        s_mov_b64 exec, -1
        s_branch K2_lastbar
        """)
        A("K2_old:")
        common2()
        if OPT.get("chain"): A("s_mov_b32 s96, 0")
        A(f"""
        v_mov_b32 v{CA}, {CNT}
        v_mov_b32 v{ONE}, 1
        v_mov_b32 v10, 0
        v_mov_b32 v11, 0
        v_mov_b32 v12, 0
        v_mov_b32 v13, 0
        """)
        if OPT.get("cpf", 1):
            A.c("pull this kernel's code into the die's L2, three lines per wave (speed only)")
            A(f"""
            s_getpc_b64 s[8:9]
            K2_pc:
            s_sub_u32 s8, s8, K2_pc - {NAME}
            s_subb_u32 s9, s9, 0
            s_lshr_b32 s10, s2, 3
            s_lshl_b32 s10, s10, 2
            s_add_u32 s10, s10, s40
            v_min_u32 v2, 2, v{LANE}
            v_lshl_add_u32 v2, v2, 7, s10
            v_min_u32 v2, (K2_codeend - {NAME}) / 128, v2
            v_lshlrev_b32 v2, 7, v2
            v_mov_b32 v3, s9
            v_add_co_u32 v2, vcc, s8, v2
            s_nop 1
            v_addc_co_u32 v3, vcc, 0, v3, vcc
            global_load_dword v161, v[2:3], off
            """)
        if OPT.get("pre", 0):
            A.c("row-wise first touch of this die's share of x and w_qkv (speed only)")
            A(f"""
            s_lshr_b32 s8, s2, 3
            s_lshl_b32 s8, s8, 2
            s_add_u32 s8, s8, s40
            s_lshl_b32 s9, s4, 1
            s_add_u32 s9, s9, s6
            s_lshl_b32 s9, s9, 7
            s_add_u32 s9, s9, s8
            s_mul_i32 s9, s9, 2304
            v_min_u32 v2, 17, v{LANE}
            v_lshlrev_b32 v2, 7, v2
            s_mul_i32 s10, s4, 144
            s_add_u32 s10, s10, s8
            s_mul_i32 s10, s10, 3456
            s_mov_b32 s{sW+2}, {576*3456}
            s_mov_b32 s{sW+3}, 0x00020000
            s_mul_i32 s11, s6, 1536
            s_add_u32 s10, s10, s11
            s_cmp_lt_u32 s8, 16
            s_cselect_b32 s11, {128*3456}, 0
            v_and_b32 v3, 15, v{LANE}
            v_min_u32 v3, 13, v3
            v_lshlrev_b32 v3, 7, v3
            v_bfe_u32 v4, v{LANE}, 4, 1
            v_mad_u32_u24 v3, v4, s11, v3
            s_waitcnt lgkmcnt(0)
            buffer_load_dword v160, v2, s[{sX}:{sX+3}], s9 offen
            buffer_load_dword v160, v3, s[{sW}:{sW+3}], s10 offen
            """)
        A(f"""
        s_waitcnt lgkmcnt(0)
        ds_write_b128 v{CA}, v[10:13]
        ds_write_b128 v{CA}, v[10:13] offset:16
        ds_write_b128 v{CA}, v[10:13] offset:32
        s_load_dwordx2 s[4:5], s[0:1], 32
        s_load_dwordx2 s[6:7], s[0:1], 64
        """)
        srd(A, sG, 40, 576 * 9216)
        srd(A, sU, 48, 576 * 9216)
        srd(A, sD, 56, 4608 * 1152)
        A(f"""
        s_mov_b32 s10, 1152
        s_mov_b32 s11, 0x00020000
        s_waitcnt lgkmcnt(0)
        s_cmp_lt_u32 s40, 2
        s_cselect_b32 s8, s4, s6
        s_cselect_b32 s9, s5, s7
        s_cmp_lg_u32 s100, 3
        s_cbranch_scc1 K2_norgv
        s_lshl_b32 s4, s40, 10
        s_add_u32 m0, s4, {RGV}
        s_and_b32 s4, s4, 1024
        buffer_load_dwordx4 v{L16}, s[8:11], s4 offen lds
        K2_norgv:
        """)
        p1_addrs()
        att_setup(True)
        A.c("MoE stage 1: 96 rows x 64 columns of w_gate or w_up per wave; stage 2 (s64): 32 rows of w_down")
        A.c("staging slots a workgroup does not need get an empty descriptor")
        nm = OPT.get('nomoe2')
        A(f"""
        s_lshr_b32 s4, s2, 3
        s_mul_i32 s41, s3, 18
        s_add_u32 s41, s41, s4
        s_mul_i32 s42, s40, {WREG}
        s_mul_i32 s9, s40, 9216
        s_cmp_lt_u32 s4, 18
        s_cselect_b32 s{sD+2}, s{sD+2}, 0
        s_cselect_b32 s64, {0 if nm else 1}, 0
        s_mul_i32 s8, s41, 36864
        s_add_u32 s8, s8, s9
        s_add_u32 s9, s9, {DN}
        s_mul_i32 s5, s3, 27
        s_add_u32 s5, s5, s4
        s_sub_u32 s5, s5, 5
        s_max_i32 s5, s5, 0
        s_mul_i32 s58, s5, 3641
        s_lshr_b32 s58, s58, 16
        s_mul_i32 s10, s58, 18
        s_sub_u32 s5, s5, s10
        s_lshl_b32 s5, s5, 2
        s_add_u32 s5, s5, s40
        s_mul_i32 s59, s5, 24
        s_add_u32 s59, s59, s58
        s_lshl_b32 s59, s59, 9
        s_add_u32 s59, s59, {PG}
        s_sub_u32 s10, s58, 6
        s_cselect_b32 s58, s58, s10
        s_cselect_b64 s[{sG}:{sG+1}], s[{sG}:{sG+1}], s[{sU}:{sU+1}]
        s_mul_i32 s54, s58, {96*9216}
        s_lshl_b32 s5, s5, 7
        s_add_u32 s54, s54, s5
        s_mul_i32 s58, s58, 192
        v_lshrrev_b32 v8, 3, v{LANE}
        v_mul_u32_u24 v8, {9216-128}, v8
        v_add_u32 v{GUA}, v8, v{L16}
        s_cmp_lt_u32 s4, 5
        s_cselect_b32 s{sG+2}, 0, s{sG+2}
        s_cselect_b32 s59, {OOB}, s59
        """)
        A("s_setprio 3")
        sp(1, "setup")
        cs("setup")
        A("""
        s_cmp_eq_u32 s100, 3
        s_cbranch_scc1 K2_rg
        s_cmp_eq_u32 s100, 4
        s_cbranch_scc1 K2_idle2
        s_cmp_ge_u32 s69, 27
        s_cbranch_scc1 K2_idle
        s_cmp_eq_u32 s100, 2
        s_cbranch_scc1 K2_pv
        """)
        for vmode in (False, True):
            if vmode: A("K2_pv:")
            A.c("v tiles: D = x W (lane = channel, registers = tokens)" if vmode else "q / k tiles: D = W^T x^T (lane = token, registers = channels)")
            gemm(vmode)
        A.c("---- no second tile in this workgroup")
        A("K2_idle:")
        for c in range(9): A("s_barrier")
        A(tagload)
        gettag()
        A(f"s_mov_b32 s61, {OOB}")
        A("s_branch K2_p1done")
        A.c("---- no projection tile at all: re-pack one head half (s5) of one 72-channel block (s3) of w_o as MFMA fragments")
        A("K2_idle2:")
        A(f"""
        s_load_dwordx2 s[68:69], s[0:1], 16
        s_mov_b32 s70, {576*1152}
        s_mov_b32 s71, 0x00020000
        s_bfe_u32 s5, s2, 0x10003
        v_mul_u32_u24 v0, 6554, v{LANE}
        v_lshrrev_b32 v0, 16, v0
        v_mul_u32_u24 v1, {1152-160}, v0
        s_mul_i32 s6, s40, 144
        s_mul_i32 s7, s5, 18
        s_add_u32 s6, s6, s7
        s_mul_i32 s4, s6, 1152
        s_mul_i32 s10, s3, 144
        s_add_u32 s4, s4, s10
        v_add3_u32 v2, v1, v{L16}, s4
        s_mul_i32 s6, s6, 160
        s_mul_i32 s7, s7, 160
        s_mov_b32 s10, 0xdff7fdff
        s_mov_b32 s11, 0x7fdff7f
        s_waitcnt lgkmcnt(0)
        s_mov_b64 exec, s[10:11]
        """)
        for u in range(12):
            row = 36 * (u // 3) + 6 * (u % 3)
            A(f"s_add_u32 m0, s6, {row*160}")
            A(f"s_mov_b32 s67, {row*1152}")
            A(f"buffer_load_dwordx4 v2, s[68:71], s67 offen lds")
        A(f"""
        s_mov_b64 exec, -1
        v_lshrrev_b32 v4, 4, v{LANE}
        v_and_b32 v6, 1, v4
        v_bfe_u32 v7, v{LANE}, 2, 2
        v_lshrrev_b32 v5, 1, v4
        v_mul_u32_u24 v5, 36, v5
        v_lshl_add_u32 v5, v6, 2, v5
        v_add_u32 v5, v5, v7
        v_mul_u32_u24 v5, 160, v5
        v_add_u32 v5, s6, v5
        v_and_b32 v8, 3, v{LANE}
        v_and_b32 v9, 1, v{LANE}
        v_lshl_add_u32 v10, v8, 3, v5
        v_lshl_add_u32 v11, v9, 3, v5
        v_lshrrev_b32 v5, 1, v7
        v_lshl_add_u32 v5, v4, 2, v5
        v_mul_u32_u24 v5, 36, v5
        v_and_b32 v7, 1, v7
        v_add3_u32 v5, v5, v7, 16
        v_mul_u32_u24 v5, 160, v5
        v_add_u32 v5, s7, v5
        v_lshl_add_u32 v12, v8, 3, v5
        s_lshl_b32 s4, s40, 5
        v_add_u32 v12, s4, v12
        v_lshl_add_u32 v13, v9, 3, v5
        s_lshl_b32 s4, s3, 1
        s_add_u32 s4, s4, s5
        s_lshl_b32 s61, s4, 5
        s_add_u32 s61, s61, {F1 + 768*32}
        v_and_b32 v{FLA}, 7, v{LANE}
        v_lshlrev_b32 v{FLA}, 2, v{FLA}
        s_mul_i32 s4, s4, 46080
        s_add_u32 s7, s4, {WP + 40960}
        s_mul_i32 s6, s40, 10240
        s_add_u32 s6, s6, s4
        s_add_u32 s6, s6, {WP}
        s_lshl_b32 s10, s40, 10
        s_add_u32 s10, s10, s7
        s_add_u32 s7, s7, 4096
        s_waitcnt vmcnt(0)
        s_barrier
        """)
        A(tagload)
        for f in range(12):
            for a in range(2):
                if f < 10:
                    ks, T = divmod(f, 5)
                    A(f"ds_read_b64_tr_b16 {vr(16+4*f+2*a,2)}, v{10 if T < 4 else 11}{off((72*ks+8*a)*160+32*T)}")
                else:
                    A(f"ds_read_b64_tr_b16 {vr(16+4*f+2*a,2)}, v{2+f}{off(72*a*160+128*(f-10))}")
        gettag()
        A("s_waitcnt lgkmcnt(0)")
        for f in range(10):
            if f in (4, 8): A("s_add_u32 s6, s6, 4096")
            A(f"buffer_store_dwordx4 {vr(16+4*f,4)}, v{L16}, {ws}, s6 offen{off(1024*(f%4))} sc1")
        A(f"buffer_store_dwordx4 v[56:59], v{L16}, {ws}, s10 offen sc1")
        A(f"buffer_store_dwordx4 v[60:63], v{L16}, {ws}, s7 offen sc1")
        A("s_branch K2_p1done")
        A.c("---- router score and mix gate of 32 tokens per wave")
        A("K2_rg:")
        A(f"""
        v_lshrrev_b32 v1, 4, v{LANE}
        v_and_b32 v2, 31, v{LANE}
        v_and_b32 v3, 1, v{LANE}
        v_lshlrev_b32 v3, 11, v3
        v_lshl_add_u32 v3, v1, 4, v3
        v_add_u32 v{AW}, {RGV}, v3
        s_lshl_b32 s4, s71, 5
        v_add_u32 v{AW+1}, s4, v2
        v_cmp_lt_u32 vcc, 15, v2
        s_waitcnt vmcnt(0)
        """)
        for c in range(9):
            A("s_barrier")
            if c == 0: cs("B0")
            if c == 5: A(tagload)
            for n in (2 * c, 2 * c + 1):
                A(f"ds_read_b128 {vr(FR[n%2]+16,4)}, v{AW}{off(64*n)}")
                for a in range(2): A(xread(n, a, False))
            for n in (2 * c, 2 * c + 1):
                A(f"s_waitcnt lgkmcnt({3*(1-n%2)})")
                for a in range(2):
                    A(mf16(vr(ACC + 4 * a, 4), vr(FR[n % 2] + 16, 4), vr(FR[n % 2] + 4 * a, 4), "0" if n == 0 else vr(ACC + 4 * a, 4)))
        gettag()
        A("s_nop 3")
        cs("pass A")
        A(f"v_cndmask_b32 v{ACC}, v{ACC}, v{ACC+4}, vcc")
        A(f"v_cndmask_b32 v{ACC+1}, v{ACC+1}, v{ACC+5}, vcc")
        A(f"""
        s_mov_b32 s5, 0xffff0000
        v_cvt_pk_bf16_f32 v6, v{ACC+1}, v{ACC}
        v_lshlrev_b32 v4, 16, v6
        v_mul_f32 v4, {0x80000000 | LOG2E}, v4
        v_exp_f32 v4, v4
        v_ashrrev_i32 v7, 31, v6
        v_add_f32 v4, 1.0, v4
        v_rcp_f32 v4, v4
        v_or_b32 v7, 0x80000000, v7
        v_xor_b32 v6, v6, v7
        v_and_b32 v6, s5, v6
        v_sub_u32 v7, 0xffff, v{AW+1}
        v_or_b32 v6, v6, v7
        v_cvt_pk_bf16_f32 v4, v4, v4
        v_and_b32 v4, s5, v4
        v_mov_b32 v5, s{sTAG}
        v_lshlrev_b32 v7, 3, v{AW+1}
        s_mov_b32 s4, {GB}
        buffer_store_dwordx2 v[4:5], v7, {ws}, s4 offen sc1
        """)
        wave_top2_u32(A, 6, 7, 6, 7)
        A(f"""
        s_lshl_b32 s4, s71, 4
        s_add_u32 s4, s4, {RC}
        v_mov_b32 v8, s6
        v_mov_b32 v9, s{sTAG}
        v_mov_b32 v10, s7
        v_mov_b32 v11, s{sTAG}
        s_mov_b64 exec, 1
        buffer_store_dwordx4 v[8:11], off, {ws}, s4 sc1
        s_mov_b64 exec, -1
        s_mov_b32 s61, {OOB}
        """)
        sp(1, "astore")
        cs("a stores")
        A("K2_p1done:")
        A("s_mov_b32 s55, s61")
        presets()
        scratch_addrs(AS, WREG)
        tables()
        pflag(55)
        sp(1, "aflag")
        cs("flag")

    def ldK(p):
        return [f"buffer_load_dwordx4 {vr(KP[p%3]+6*i,4)}, v{KA}, {ws}, s{sT[2*p]} offen{off(256*i)} sc1" for i in range(2)]

    def ldV(j):
        return ["s_mov_b64 exec, s[62:63]"] + \
            [f"buffer_load_dwordx4 {vr(VV[j%NB]+4*i,4)}, v{(VA, VA2)[j%2]}, {ws}, s{sT[(j & ~1)+i]} offen sc1" for i in range(2)] + \
            ["s_mov_b64 exec, -1"]

    def ldKE(g):
        return [f"buffer_load_dwordx4 {vr(KE+4*g,4)}, v{KEA}, {ws}, s{sT[4*g]} offen sc1"]

    QT = 32

    def ldQ(rp):
        return [f"buffer_load_dwordx4 {vr(QT+8*rp+4*i,4)}, v{KA}, {ws}, s{56+rp} offen{off(256*i)} sc1" for i in range(2)]

    def items(j):
        return ([ldKE(j // 4)] if j % 4 == 0 else []) + ([[l] for l in ldK(j // 2)] if j % 2 == 0 else []) + [ldV(j)]

    def kmov(kt):
        b = KP[(kt // 2) % 3]
        return f"v_mov_b64 {vr(b+4,2)}, {vr(b+8 if kt % 2 else b,2)}"

    def m2b(kt, c):
        u = kt % 4
        return (f"v_mfma_f32_32x32x4_2b_bf16 {vr(S[c],32)}, {vr(KE+4*(kt//4)+2*(u%2),2)}, {vr(QE+2*c,2)}, 0"
                f" cbsz:1 abid:{u//2}")

    def mm(kt, c, b):
        d = vr(S[c] + 16 * b, 16)
        return mfma(d, vr(KP[(kt // 2) % 3] + (2 if kt % 2 else 4), 4), vr(QM + 4 * (c + 2 * b), 4), d)

    def sm(kt, c, b, i):
        return (f"v_smfmac_f32_32x32x32_bf16 {vr(O[c+2*b],16)}, {vr(VV[kt%NB]+4*i,4)}, "
                f"{vr(S[c]+16*b+8*i,8)}, v{IDX}")

    def moe_dma(n):
        if n < 12:
            return [f"s_add_u32 m0, s42, {1024*n}", f"s_add_u32 s67, s54, {8*9216*n}",
                    f"buffer_load_dwordx4 v{GUA}, s[{sG}:{sG+3}], s67 offen{OPT.get('gunt', ' nt')} lds"]
        n -= 12
        pre = [f"s_add_u32 m0, s9, {4096*(n//4)}", f"s_add_u32 s67, s8, {4096*(n//4)}"]
        return pre + [f"buffer_load_dwordx4 v{L16}, s[{sD}:{sD+3}], s67 offen{off(1024*(n%4))}{OPT.get('dnnt', ' nt')} lds"]

    def xsel_dma(k):
        return [f"s_add_u32 m0, s42, {12288+1024*k}", "s_nop 0",
                f"buffer_load_dwordx4 v{L16}, s[{sX}:{sX+3}], s{10+k} offen lds"]

    GQ = 190
    gqload = [f"buffer_load_dwordx2 {vr(d,2)}, v{a}, {ws}, s52 offen sc1" for d, a in ((250, 234), (GQ, GQA))]

    def owrite(t):
        return [f"ds_write_b128 v{SW}, {vr(O[t],4)}{off(2048*t)}",
                f"ds_write_b128 v{SW}, {vr(O[t]+4,4)}{off(2048*t+1024)}",
                f"ds_write_b64 v{SW}, {vr(O[t]+8,2)}{off((6144, 6152, 7168)[t])}"]

    def scratch_addrs(base, stride):
        A(f"s_mul_i32 s4, s40, {stride}")
        A(f"s_add_u32 s4, s4, {base}")
        A(f"v_add_u32 v{SW}, s4, v{L16}")
        for t in range(3):
            A(f"s_xor_b32 s4, s40, {t ^ 3}")
            A(f"s_mul_i32 s4, s4, {stride}")
            A(f"s_add_u32 s4, s4, {base}")
            A(f"v_add_u32 v{RD+t}, s4, v{L16}")
        A(f"""
        v_bfe_u32 v{PM}, v{LANE}, 4, 1
        v_lshlrev_b32 v{PM}, 14, v{PM}
        v_lshrrev_b32 v{PE}, 5, v{LANE}
        v_lshl_add_u32 v{PM}, v{PE}, 8, v{PM}
        v_and_b32 v{PE}, 0xff, v{L16}
        v_add_u32 v{PM}, v{PM}, v{PE}
        v_and_b32 v{PE}, 31, v{LANE}
        v_lshlrev_b32 v{PE}, 2, v{PE}
        s_lshl_b32 s4, s39, 6
        s_lshl_b32 s5, s37, 2
        s_add_u32 s4, s4, s5
        s_add_u32 s4, s4, s40
        s_lshl_b32 s5, s4, 1
        s_and_b32 s6, s40, 1
        s_sub_u32 s5, s5, s6
        s_lshl_b32 s5, s5, 13
        s_lshl_b32 s6, s43, 9
        s_add_u32 s5, s5, s6
        s_add_u32 s65, s5, {OM}
        s_lshl_b32 s4, s4, 4
        s_add_u32 s4, s4, s43
        s_lshl_b32 s4, s4, 7
        s_add_u32 s66, s4, {OE}
        s_lshl_b32 s4, s37, 10
        s_lshr_b32 s5, s40, 1
        s_lshl_b32 s5, s5, 9
        s_add_u32 s4, s4, s5
        s_and_b32 s5, s40, 1
        s_lshl_b32 s5, s5, 7
        s_add_u32 s4, s4, s5
        s_add_u32 s52, s4, {GB}
        s_lshl2_add_u32 s4, s37, s40
        s_lshl_b32 s4, s4, 7
        s_lshl2_add_u32 s4, s43, s4
        s_add_u32 s61, s4, {FO}
        v_mov_b32 v{CA}, {CNT + (0 if base == AS else 12)}
        v_mov_b32 v{ONE}, 1
        """)

    def attention(old):
        pend = []

        def issue(lines, tag):
            for l in lines:
                if l.startswith("buffer_"):
                    pend.append(tag)
            return lines

        def wait_for(tag):
            last = max(i for i, t in enumerate(pend) if t == tag)
            n = len(pend) - 1 - last
            del pend[:last + 1]
            return f"s_waitcnt vmcnt({n})"

        if old:
            sl0, sl1 = OPT.get("psleep", (20, 0))
            A.c("wave 1 watches the flags; the barrier releases the others")
            A(f"""
            s_cmp_lg_u32 s40, 1
            s_cbranch_scc1 K2_p1seen
    s_mov_b32 s5, {SPIN}
    """)
            A.c("flags that nobody has cached yet are written faster: back off first; workgroups without a projection")
            A.c("tile are far ahead of the others and watch a single line until it is complete")
            A(f"""
            s_cmp_lt_u32 s2, 224
            s_cbranch_scc0 K2_p1gate0
            """)
            if OPT.get("peek"):
                A(f"""
                s_mov_b64 exec, {OPT["peek"]}
                buffer_load_dword v12, v{PA}, {ws}, 0 offen sc1
                s_waitcnt vmcnt(0)
                v_cmp_ne_u32 vcc, s{sTAG}, v12
                s_mov_b64 exec, -1
                s_cbranch_vccz K2_p1poll
                """)
            A(f"""
            s_sleep {sl0}
            s_branch K2_p1poll
            K2_p1gate0:
            s_mov_b64 exec, {OPT.get("gex", 15)}
            K2_p1gate:
            s_sleep {OPT.get("gsl", 3)}
            buffer_load_dword v12, v{PA}, {ws}, 0 offen sc1
            s_sub_u32 s5, s5, 1
            s_cbranch_scc1 K2_p1open
            s_waitcnt vmcnt(0)
            v_cmp_ne_u32 vcc, s{sTAG}, v12
            s_cbranch_vccnz K2_p1gate
            K2_p1open:
            s_mov_b64 exec, -1
            s_mov_b32 s5, {SPIN}
            {f"s_sleep {OPT['gs2']}" if OPT.get("gs2") else ""}
    K2_p1poll:
    buffer_load_dword v12, v{PA}, {ws}, 0 offen sc1
    buffer_load_dword v13, v{PA+1}, {ws}, 0 offen sc1
    s_sub_u32 s5, s5, 1
    s_cbranch_scc1 K2_p1seen
    s_waitcnt vmcnt(0)
    v_cmp_ne_u32 vcc, s{sTAG}, v12
    v_cmp_ne_u32 s[6:7], s{sTAG}, v13
    s_or_b64 vcc, vcc, s[6:7]
    s_cbranch_scc0 K2_p1seen
    {f"s_sleep {sl1}" if sl1 else ""}
    s_branch K2_p1poll
    K2_p1seen:
            s_barrier
            """)
        sp(old, "polled")
        if old: cs("polled")
        pro = issue([f"buffer_load_dwordx4 {vr(QT+16,4)}, v{QEA}, {ws}, s60 offen sc1"] + ldKE(0), "qe") + \
            issue(ldK(0) + ldQ(0), "q0") + issue(ldQ(1), "q1") + issue(ldV(0)[:-1], "g0") + issue(ldV(1)[1:], "g1")
        NP = OPT.get("np", (3, 2))[not old]
        LATE = OPT.get("late", 0)
        if not LATE:
            for j in range(2, NP): pro += issue(sum(items(j), []), f"g{j}")
        for i, l in enumerate(pro):
            if old and i == OPT.get("xb", -1): A("s_barrier")
            A(l)
            if not old and l.startswith("buffer_") and OPT.get("ypace", 0): A(f"s_sleep {OPT.get('ypace', 1)}")
        if not old:
            A("v_mov_b64 v[250:251], -1\nv_mov_b64 v[252:253], -1")
        if old:
            if not LATE: A("s_barrier")
            cs("issued")
            csflush(0, 12)
        A(f"""
        v_mov_b32 v{IDX}, 0xdddddddd
        s_bitcmp0_b32 s36, 0
        s_cselect_b32 s4, -1, 0
        s_cselect_b32 s5, 0, -1
        s_bitcmp1_b32 s40, 0
        """)
        l = lab("K2_qsel")
        w0 = wait_for("qe")
        more = []
        if LATE:
            for j in range(2, NP): more += issue(sum(items(j), []), f"g{j}")
            if old: more.append("s_barrier")
        w1, w2 = wait_for("q0"), wait_for("q1")
        A(f"s_cbranch_scc1 {l}")
        for b0 in (1, 0):
            if b0 == 0: A(f"{l}:")
            A(w0)
            for c in range(2):
                A(f"v_and_b32 v{QE+2*c}, s4, v{QT+16+2*(c^b0)}")
                A(f"v_and_b32 v{QE+2*c+1}, s5, v{QT+17+2*(c^b0)}")
            A(m2b(0, 0))
            for x in more: A(x)
            if len(more) < 12: A(f"s_nop {11 - len(more)}")
            for rp in range(2):
                A((w1, w2)[rp])
                if rp == 0: A(kmov(0))
                for t in (2 * rp, 2 * rp + 1):
                    for ab in range(2):
                        A(f"v_mov_b64 {vr(QM+4*t+2*ab,2)}, {vr(QT+8*(t>>1)+4*ab+2*((t&1)^b0),2)}")
                A(mm(0, 0, rp))
            if b0 == 1: A(f"s_branch {l}_d")
        A(f"{l}_d:")
        A("s_nop 4")
        A(f"s_setprio {1 if old else 0}")
        sp(old, "first")
        MK, MK2 = OPT.get("mk", (1, 5))
        XS = OPT.get("xsel", 9)
        TP = OPT.get("top2", 12)
        gsched = {}
        nx = NP
        for kt in range(NP - 2, 16):
            for _ in range(2 if kt in OPT.get("ramp" if old else "yramp", (1, 3)) else 1):
                if nx <= min(15, kt + NB - 1):
                    gsched.setdefault(kt, []).append(nx); nx += 1
        dsched = {}
        d0, d1 = OPT.get("dma", (3, 29))
        order = range(21)
        for i, x in enumerate(order): dsched.setdefault(d0 + i * (d1 - d0) // 21, []).append(x)
        assert max(dsched) < 30
        touch = {}
        for kt in range(16):
            for c in range(2):
                n = 2 * kt + c
                cur = S[c]
                nxt = (kt, 1) if c == 0 else (kt + 1, 0)
                prv = (kt - 1, 1) if c == 0 else (kt, 0)
                has_next = n < 31
                ins = {}
                def at(p, l): ins.setdefault(p, []).extend(l if isinstance(l, list) else [l])
                if n > 0:
                    at(1, sm(prv[0], prv[1], 1, 1))
                L2 = OPT.get("lchain") == 2
                if c == 0:
                    if L2: at(1, "s_memtime s[82:83]")
                    todo = [(it, f"g{j}") for j in gsched.get(kt, []) for it in items(j)]
                    if old and kt == XS: todo += [(xsel_dma(0), "st1"), (xsel_dma(1), "st1")]
                    slots = OPT.get("slots", [(0, 16), (0, 24), (1, 16), (1, 24), (1, 25), (1, 31)]) if old else \
                        OPT.get("yslots", [(0, 2), (0, 14), (0, 26), (1, 8), (1, 22), (1, 30)])
                    place = {sl: td for sl, td in zip(slots, todo)}
                    assert len(todo) <= len(slots)
                if c == 0 and L2: at(1, "s_memtime s[84:85]")
                if c == 1 and L2: at(4, "s_memtime s[86:87]")
                if c == 1 and L2:
                    at(4, "s_memtime s[88:89]")
                    at(30, ["s_waitcnt lgkmcnt(0)"] + sum([[f"s_sub_u32 s{82+2*q}, s{82+2*q}, s80", f"v_writelane_b32 v{PA}, s{82+2*q}, {4*kt+q}"] for q in range(4)], []))
                ev = [(p, td) for (cc, p), td in place.items() if cc == c]
                if old and n in touch: ev.append((19, (touch[n], "moe")))
                if old and not OPT.get("nomoe"):
                    for i, x in enumerate(dsched.get(n, [])): ev.append((OPT.get("dpos", (0, 0))[c] + 10 * i, (moe_dma(x), "st1" if x < 12 else "moe")))
                if old and n == TP - 8:
                    ev.append((OPT.get("epos", 11), ([f"s_mov_b32 s4, {RC}", f"buffer_load_dwordx4 {vr(CAND,4)}, v{L16}, {ws}, s4 offen sc1"], "cand")))
                XP = OPT.get("xp", 24)
                if old and n == XP - 1:
                    at(8, f"ds_read_b32 v250, v{TA} offset:3072")
                if old and XP <= n < XP + 3:
                    k = n - XP
                    ev.append((OPT.get("epos", 11), ((["s_waitcnt lgkmcnt(0)"] if k == 0 else []) +
                                    [f"s_add_u32 m0, s97, {1008*k}", f"s_add_u32 s4, s34, {7*1152*k}",
                                     f"buffer_load_dwordx4 v250, s[{sX}:{sX+3}], s4 offen lds"], "moe")))
                if not old and n == MK:
                    ev.append((18, ([f"buffer_store_dwordx4 v[250:253], v{PM}, {ws}, s65 offen sc1"], "mark")))
                    ev.append((20, ([f"buffer_store_dword v250, v{PE}, {ws}, s66 offen sc1"], "mark")))
                if not old and n == MK2: ev.append((18, ([gqload[0]], "gq")))
                if n == 0: ev.append((12, "g0"))
                if c == 1 and has_next: ev.append((OPT.get("wpos", 1), f"g{kt+1}"))
                for p, td in sorted(ev, key=lambda e: e[0]):
                    at(p, wait_for(td) if isinstance(td, str) else issue(*td))
                if c == 1 and has_next: at(10, kmov(kt + 1))
                if has_next:
                    at(4, m2b(*nxt))
                    at(20, mm(nxt[0], nxt[1], 0))
                    at(28, mm(nxt[0], nxt[1], 1))
                at(12, sm(kt, c, 0, 0))
                at(17, sm(kt, c, 0, 1))
                at(25, sm(kt, c, 1, 0))
                if OPT.get("lchain") == 1:
                    if c == 0: at(0, "s_memtime s[88:89]")
                    else: at(0, ["s_waitcnt lgkmcnt(0)", "s_sub_u32 s88, s88, s80", f"v_writelane_b32 v{PA}, s88, {kt}"])
                if not old and n == MK2:
                    assert "mark" not in pend
                    at(6, ["s_mov_b64 exec, 1", f"ds_add_u32 v{CA}, v{ONE} offset:12", "s_mov_b64 exec, -1"])
                if n == 24:
                    if old:
                        at(2, f"ds_read_b128 {vr(M0,4)}, v{TA}")
                        at(26, "s_waitcnt lgkmcnt(0)")
                        at(27, issue([gqload[old]], "gq"))
                    else:
                        assert "gq" not in pend
                        at(6, [f"v_cmp_ne_u32 vcc, s{sTAG}, v251", f"s_cbranch_vccnz K2_gqspin0", f"K2_gqok0:"])
                        at(9, f"v_mov_b32 v{GQ}, v250")
                if n == 30 and old:
                    at(0, [wait_for("gq"), f"v_cmp_ne_u32 vcc, s{sTAG}, v{GQ+1}", f"s_cbranch_vccnz K2_gqspin1", f"K2_gqok1:"])
                if old and n >= 27:
                    G, XF, WFs = 202, 148, [218, 222, 164, 168]
                    if n == 27:
                        at(8, f"v_mov_b32 v251, v{TAGV}")
                        at(14, f"v_mov_b32 v253, v{TAGV}")
                    elif n < 31:
                        assert "st1" not in pend
                        u = n - 28
                        rp, mp, wn = OPT.get("s1", ((2,) * 9, (11, 16, 24, 31), (6, 0)))
                        at(rp[0], f"ds_read_b128 {vr(XF,4)}, v{M3} offset:{12288+64*u}")
                        for t in range(4):
                            for a in range(2):
                                at(rp[1 + 2 * t + a], f"ds_read_b64_tr_b16 {vr(WFs[t]+2*a,2)}, v{M0}{off(4096*u+512*a+32*t)}")
                        for t in range(4):
                            at(mp[t], ([f"s_waitcnt lgkmcnt({wn[t]})"] if t < len(wn) else []) +
                               [mf16(vr(G + 4 * t, 4), vr(XF, 4), vr(WFs[t], 4), "0" if u == 0 else vr(G + 4 * t, 4))])
                    else:
                        at(7, ["s_mov_b32 s10, 0", "s_mov_b32 s11, -1", "s_add_u32 s4, s59, 6144",
                               f"v_cndmask_b32 v250, v{G}, v{G+4}, s[10:11]",
                               f"buffer_store_dwordx2 v[250:251], v{M4}, {ws}, s59 offen sc1"])
                        at(9, [f"v_cndmask_b32 v252, v{G+8}, v{G+12}, s[10:11]",
                               f"buffer_store_dwordx2 v[252:253], v{M4}, {ws}, s4 offen sc1"])
                if n == 31:
                    for t, pp in zip((0, 2, 1), OPT.get("oow" if old else "ow", ((0, 4, 8), (13, 18, 23), (28, 30, 31)))):
                        for p, l in zip(pp, owrite(t)): at(p, l)
                if n == TP and old:
                    assert "cand" not in pend
                    B = Asm()
                    at(0, [f"v_cmp_ne_u32 vcc, s{sTAG}, v{CAND+1}", f"v_cmp_ne_u32 s[4:5], s{sTAG}, v{CAND+3}",
                           "s_or_b64 vcc, vcc, s[4:5]", "s_cbranch_scc1 K2_candspin", "K2_candok:"])
                    wave_max_u32(B, CAND, CAND + 1, 68)
                    B(f"s_nop 1\nv_cmp_ne_u32 vcc, s68, v{CAND}\ns_nop 1\nv_cndmask_b32 v{CAND}, v{CAND+2}, v{CAND}, vcc")
                    wave_max_u32(B, CAND, CAND + 1, 69)
                    B(f"""
                    s_nop 0
                    s_not_b32 s70, s68
                    s_not_b32 s71, s69
                    s_and_b32 s70, s70, 0x7ff
                    s_and_b32 s71, s71, 0x7ff
                    s_mul_i32 s10, s70, 1152
                    s_mul_i32 s11, s71, 1152
                    s_add_u32 s10, s10, s58
                    s_add_u32 s11, s11, s58
                    """)
                    p = -1
                    tail = []
                    for l in B.lines:
                        l = l.strip()
                        if l == "s_nop 1" and p + 2 <= 31:
                            p += 2
                        elif p + 2 > 31 or tail:
                            tail.append(l)
                        else:
                            at(p, l)
                    at(31, tail)
                sp(old, f"p{n}")
                for i in range(32):
                    A(f"v_exp_f32 v{cur+i}, v{cur+i}")
                    for l in ins.get(i, []):
                        if OPT.get("noload") and kt >= 2 and not l.startswith(("v_smfmac", "v_mfma_f32_32", "v_mov_b64", "K2_")): continue
    p1_compute()
    attention(True)
    if OPT.get("quit"):
        ST.flush(v=20)
        A("s_endpgm")
    if OPT.get("chain"): A("s_mov_b32 s96, 0")
    cs("loop end")
    A.c("---- MoE stage 2: fetch three partials per wave")
    PL = 184

    def pload():
        for q in range(3):
            A(f"buffer_load_dwordx2 {vr(PL+2*q,2)}, v{M4}, {ws}, s67 offen{off(512*q)} sc1")
    A(f"""
    s_and_b32 s4, s40, 1
    s_lshl_b32 s4, s4, 1
    s_lshr_b32 s5, s40, 1
    s_add_u32 s4, s4, s5
    s_lshl_b32 s5, s41, 2
    s_add_u32 s4, s4, s5
    s_mul_i32 s4, s4, 1536
    s_add_u32 s67, s4, {PG}
    s_cmp_eq_u32 s64, 0
    s_cbranch_scc1 K2_fin0
    """)
    pload()
    A("s_branch K2_fin0")

    A("K2_young2:")
    scratch_addrs(BS, 8192)
    A("s_barrier")
    tables_lane()
    tables_store()
    A(f"v_mov_b32 v234, v19\ns_waitcnt lgkmcnt(0)\ns_barrier\ns_barrier")
    if OPT.get("xb", -1) >= 0: A("s_barrier")
    if OPT.get("ydelay"): A(f"s_sleep {OPT['ydelay']}")
    attention(False)
    A("K2_fin0:")
    o = O[3]
    A.c("LDS executes a wave's operations in order: the count is bumped after this wave's writes, and reads issued")
    A.c("behind a count of 4 see every partial")
    A(f"""
    s_setprio 2
    s_mov_b32 s5, {LSPIN}
    s_mov_b64 exec, 1
    ds_add_u32 v{CA}, v{ONE}
    s_mov_b64 exec, -1
    K2_fin1:
    ds_read_b32 v0, v{CA}
    """)
    for t in range(3):
        A(f"ds_read_b128 {vr(O[t],4)}, v{RD+t}{off(2048*t)}")
        A(f"ds_read_b128 {vr(O[t]+4,4)}, v{RD+t}{off(2048*t+1024)}")
        A(f"ds_read_b64 {vr(O[t]+8,2)}, v{RD+t}{off((6144, 6152, 7168)[t])}")
    A("""
    s_waitcnt lgkmcnt(9)
    v_readfirstlane_b32 s4, v0
    s_cmp_lt_u32 s4, 4
    s_cbranch_scc1 K2_finwait
    K2_fin2:
    """)
    A(f"s_mov_b32 s4, {f32bits(2.0**-30)}")
    A(f"v_mov_b32 v9, {f32bits(2.0**60)}")
    for t in range(3):
        A(f"s_waitcnt lgkmcnt({3*(2-t)})")
        for i in ((4, 0, 1, 2, 3) if t == 2 else range(5)):
            A(f"v_pk_add_f32 {vr(o+2*i,2)}, {vr(o+2*i,2)}, {vr(O[t]+2*i,2)}")
            if t == 2 and i == 0: A(f"v_rcp_f32 v0, v{o+9}")
    A.c("safety check of the unshifted softmax: denominator in [2^-30, 2^60], numerators finite; else redo with the true max")
    A(f"""
    v_med3_f32 v8, v{o+9}, s4, v9
    v_maximum3_f32 v10, abs(v{o}), abs(v{o+1}), abs(v{o+2})
    v_maximum3_f32 v11, abs(v{o+3}), abs(v{o+4}), abs(v{o+8})
    v_maximum3_f32 v12, abs(v{o+5}), abs(v{o+6}), abs(v{o+7})
    v_cmp_eq_f32 s[6:7], v8, v{o+9}
    v_maximum3_f32 v10, v10, v11, v12
    v_mul_f32 v0, v0, v{GQ}
    v_cmp_gt_f32 vcc, {f32bits(2.0**120)}, v10
    s_and_b64 vcc, vcc, s[6:7]
    s_cmp_eq_u64 vcc, exec
    {"s_nop 0" if OPT.get("noload") else "s_cbranch_scc0 K2_slow"}
    K2_fin:
    s_cmp_eq_u32 s39, 0
    v_mul_f32 v2, v{o+8}, v0
    v_mul_f32 v3, v{o+8}, v0
    """)
    for i in range(4):
        A(f"v_pk_mul_f32 {vr(o+2*i,2)}, {vr(o+2*i,2)}, v[0:1] op_sel_hi:[1,0]")
    A("v_permlane32_swap_b32 v2, v3")
    for i in range(4):
        A(f"v_cvt_pk_bf16_f32 v{4+i}, v{o+2*i}, v{o+2*i+1}")
    for i in range(4):
        A(f"v_min_u32 v{4+i}, -2, v{4+i}")
    A(f"""
    buffer_store_dwordx4 v[4:7], v{PM}, {ws}, s65 offen{"" if OPT.get("xplain") else " sc1"}
    v_cvt_pk_bf16_f32 v2, v2, v3
    v_min_u32 v2, -2, v2
    buffer_store_dword v2, v{PE}, {ws}, s66 offen{"" if OPT.get("xplain") else " sc1"}
    s_cbranch_scc1 K2_old2
    s_mov_b64 exec, 1
    ds_add_u32 v{CA}, v{ONE} offset:4
    """)
    if gen1.DIAG:
        sp(0, "flag"); A("s_waitcnt vmcnt(0)")
    ST.flush(v=20)
    A("K2_end:")
    A("s_endpgm")

    A("K2_old2:")
    cs("fin")
    HPW, HPR, DNA, HA, HW, YA, FA, GA = range(208, 216)
    OUT, SG1, SG2, OEA, B1, SR, TV, SV = 240, 241, 242, 243, 248, 249, 252, 250
    ACC, OF, WF = 0, 20, 56
    XR, GV, T0 = 72, 244, 112
    srd(A, sO, 72, XB)
    gload = f"buffer_load_dwordx2 {vr(GV,2)}, v{GA}, {ws}, s52 offen sc1"
    A(f"""
    ds_read_b128 {vr(HPW,4)}, v{TA} offset:1024
    ds_read_b128 {vr(HW,4)}, v{TA} offset:2048
    ds_read_b128 {vr(OUT,4)}, v{TA} offset:3072
    ds_read_b64 {vr(B1,2)}, v{TA} offset:4096
    s_lshl_b32 s4, s32, 7
    s_add_u32 s52, s4, {GB}
    s_lshl_b32 s42, s40, 11
    s_add_u32 s66, s35, s42
    s_waitcnt vmcnt(2) lgkmcnt(0)
    s_cmp_eq_u32 s64, 0
    s_cbranch_scc1 K2_nop
    s_mov_b32 s5, {SPIN}
    K2_pchk:
    v_cmp_ne_u32 vcc, s{sTAG}, v{PL+1}
    v_cmp_ne_u32 s[8:9], s{sTAG}, v{PL+3}
    v_cmp_ne_u32 s[10:11], s{sTAG}, v{PL+5}
    s_or_b64 s[8:9], s[8:9], vcc
    s_or_b64 s[8:9], s[8:9], s[10:11]
    s_cbranch_scc0 K2_pok
    s_sleep 4
    """)
    pload()
    A(f"""
    s_sub_u32 s5, s5, 1
    s_waitcnt vmcnt(0)
    s_cbranch_scc0 K2_pchk
    K2_pok:
    v_add_f32 v10, v{PL}, v{PL+2}
    v_add_f32 v10, v10, v{PL+4}
    ds_write_b32 v{HPW}, v10
    K2_nop:
    """)
    arrive(1)
    A(gload)
    cs("partials")
    gwait(1)
    cs("gwait1")
    wpos = [0]

    def wodma(cnt, paced=True):
        for u in range(wpos[0], wpos[0] + cnt):
            if u == 11:
                A(f"s_sub_u32 s66, s66, s42\ns_mov_b32 s42, 0")
            A(f"s_add_u32 m0, s42, {8192*u}")
            A(f"s_add_u32 s67, s66, {8192*u}")
            for h in range(2):
                A(f"buffer_load_dwordx4 v{L16}, {ws}, s67 offen{off(1024*h)} sc1 lds")
            if paced: A(f"s_waitcnt vmcnt({OPT.get('wopace', 4)})")
        wpos[0] += cnt

    A.c("the half-A flag also tells that waves 4-7 have marked their slots")
    gwait(6)
    A(f"""
    s_mov_b64 exec, 1
    s_waitcnt vmcnt(1)
    buffer_store_dword v{TAGV}, off, {ws}, s61 sc1
    s_mov_b64 exec, -1
    s_cmp_eq_u32 s64, 0
    s_cbranch_scc0 K2_st2
    """)
    arrive(7)
    SPR = OPT.get("spr", 2)
    wodma(SPR + 2)
    wpos[0] = 0
    A("s_branch K2_nost2")
    A("K2_st2:")
    n0 = len(A.lines)
    A.c("---- MoE: h = silu(gate) * up, then this wave's w_down column tiles")
    A(f"""
    ds_read2st64_b32 v[10:11], v{HPR} offset0:0 offset1:1
    ds_read2st64_b32 v[12:13], v{HPR} offset0:2 offset1:3
    """)
    for t in range(5):
        for a in range(2):
            A(f"ds_read_b64_tr_b16 {vr(24+4*t+2*a,2)}, v{DNA}{off(4608*a+32*t)}")
    A(f"""
    s_waitcnt lgkmcnt(10)
    v_pk_add_f32 v[10:11], v[10:11], v[12:13]
    v_cvt_pk_bf16_f32 v11, v10, v11
    v_lshlrev_b32 v10, 16, v11
    v_mul_f32 v12, {0x80000000 | LOG2E}, v10
    v_exp_f32 v12, v12
    v_and_b32 v11, 0xffff0000, v11
    v_add_f32 v12, 1.0, v12
    v_rcp_f32 v12, v12
    s_mul_i32 s4, s41, 4608
    v_mul_f32 v10, v10, v12
    v_cvt_pk_bf16_f32 v10, 0, v10
    v_mul_f32 v10, v10, v11
    v_cvt_pk_bf16_f32 v10, v10, v10
    ds_write_b16 v{HW}, v10
    ds_read_b128 v[12:15], v{HA}
    """)
    for t in range(5, 10):
        for a in range(2):
            A(f"ds_read_b64_tr_b16 {vr(24+4*t+2*a,2)}, v{DNA}{off(4608*a+32*t)}")
    A(f"""
    s_add_u32 s5, s4, {YP}
    s_mov_b32 s10, 0
    s_mov_b32 s11, -1
    s_waitcnt lgkmcnt(10)
    """)
    Y = [128 + 4 * t for t in range(10)]
    for t in range(10):
        if t == 5: A("s_waitcnt lgkmcnt(0)")
        A(mf16(vr(Y[t], 4), "v[12:15]", vr(24 + 4 * t, 4), "0"))
    A("s_nop 1")
    for t in range(0, 10, 2):
        A(f"v_cndmask_b32 v{Y[t]}, v{Y[t]}, v{Y[t+1]}, s[10:11]")
        A(f"buffer_store_dword v{Y[t]}, v{YA}, {ws}, s5 offen{off(64*t)} sc1")
    body = A.lines[n0:]; del A.lines[n0:]
    marks = [i * len(body) // (SPR + 1) for i in range(SPR)]
    for i, l in enumerate(body):
        if i in marks: wodma(1, False)
        A.lines.append(l)
    arrive(7)
    wodma(2, False)
    A(f"""
    s_lshl_b32 s4, s41, 7
    s_lshl_b32 s5, s40, 2
    s_add_u32 s4, s4, s5
    s_add_u32 s4, s4, {FY}
    s_mov_b64 exec, 1
    s_waitcnt vmcnt(4)
    buffer_store_dword v{TAGV}, off, {ws}, s4 sc1
    s_mov_b64 exec, -1
    K2_nost2:
    """)
    wodma(5 - SPR)
    cs("down")
    Y0 = WF
    nosel = OPT.get("nomoe2") or OPT.get("nosel")

    def yflag_load():
        A(f"buffer_load_dwordx4 {vr(Y0+48,4)}, v{T0+2}, {ws}, s65 offen sc1")

    def y_first():
        A(f"""
        s_lshr_b32 s6, s32, 2
        s_lshr_b32 s4, s70, 6
        s_cmp_eq_u32 s4, {"-1" if nosel else "s6"}
        s_cselect_b32 s64, 1, 0
        s_lshr_b32 s4, s71, 6
        s_cmp_eq_u32 s4, {"-1" if nosel else "s6"}
        s_cselect_b32 s4, 2, 0
        s_or_b32 s64, s64, s4
        s_cbranch_scc0 K2_noy0
        v_min_u32 v{T0+2}, 35, v{LANE}
        v_lshlrev_b32 v{T0+2}, 7, v{T0+2}
        s_mul_i32 s65, s40, {36*128}
        s_add_u32 s65, s65, {FY}
        """)
        yflag_load()
        A("K2_noy0:")

    def y_sum():
        A(f"""
        s_cmp_eq_u32 s64, 0
        s_cbranch_scc1 K2_noy1
        s_mov_b32 s5, {SPIN}
        K2_ypoll:
        v_cmp_ne_u32 vcc, s{sTAG}, v{Y0+48}
        v_cmp_ne_u32 s[8:9], s{sTAG}, v{Y0+49}
        v_cmp_ne_u32 s[10:11], s{sTAG}, v{Y0+50}
        s_or_b64 s[8:9], s[8:9], vcc
        v_cmp_ne_u32 vcc, s{sTAG}, v{Y0+51}
        s_or_b64 s[8:9], s[8:9], s[10:11]
        s_or_b64 s[8:9], s[8:9], vcc
        s_cbranch_scc0 K2_ypolled
        """)
        yflag_load()
        A(f"""
        s_sub_u32 s5, s5, 1
        s_waitcnt vmcnt(0)
        s_cbranch_scc0 K2_ypoll
        K2_ypolled:
        v_min_u32 v{T0}, 53, v{LANE}
        v_mul_u32_u24 v{T0+1}, 3641, v{T0}
        v_lshrrev_b32 v{T0+1}, 16, v{T0+1}
        v_mul_u32_u24 v{T0+1}, {4608-288}, v{T0+1}
        v_lshl_add_u32 v{T0}, v{T0}, 4, v{T0+1}
        """)
        A(f"""
        s_lshl_b32 s6, s33, 1
        s_mul_i32 s7, s40, {36*4608}
        s_add_u32 s6, s6, s7
        s_add_u32 s65, s6, {YP}
        s_bitcmp1_b32 s64, 0
        s_cselect_b32 s6, 0, 2304
        s_cselect_b32 s7, 0, 1024
        s_add_u32 s6, s6, s65
        v_add_u32 v{T0+1}, s7, v{TA}
        """)
        yloads()
        A("K2_noy1:")

    def yloads():
        for u in range(12):
            A(f"buffer_load_dwordx4 {vr(Y0+4*u,4)}, v{T0}, {ws}, s6 offen sc1")
            A(f"s_add_u32 s6, s6, {3*4608}")
            if OPT.get("space") and u % 2: A(f"s_waitcnt vmcnt({OPT['space']})")

    def y_sum2(later):
        A(f"""
        s_cmp_eq_u32 s64, 0
        s_cbranch_scc1 K2_noy2
        s_waitcnt vmcnt({later})
        K2_ysum:
        """)
        for u in range(1, 12):
            for hf in range(2):
                A(f"v_pk_add_f32 {vr(Y0+2*hf,2)}, {vr(Y0+2*hf,2)}, {vr(Y0+4*u+2*hf,2)}")
        A(f"""
        ds_write_b128 v{T0+1}, {vr(Y0,4)}
        s_cmp_lg_u32 s64, 3
        s_cbranch_scc1 K2_ydone
        s_mov_b32 s64, 2
        s_add_u32 s6, s65, 2304
        s_waitcnt lgkmcnt(0)
        v_add_u32 v{T0+1}, 1024, v{TA}
        """)
        yloads()
        A("s_waitcnt vmcnt(0)\ns_branch K2_ysum\nK2_ydone:")
        arrive(5)
        A("K2_noy2:")

    def poll():
        l = lab("K2_poll")
        A(f"""
        s_mov_b32 s5, {SPIN}
        {l}:
        buffer_load_dword v{T0}, v{FA}, {ws}, s100 offen sc1
        s_sub_u32 s5, s5, 1
        s_cbranch_scc1 {l}_d
        s_waitcnt vmcnt(0)
        v_cmp_ne_u32 vcc, s{sTAG}, v{T0}
        s_cbranch_vccnz {l}
        {l}_d:
        """)

    def oload(ks):
        if ks < 8:
            return [f"buffer_load_dwordx4 {vr(OF+4*ks,4)}, v{L16}, {ws}, s{98 if ks < 4 else 101} offen{off(1024*(ks%4))} sc1"]
        return [f"buffer_load_dword v{OF+32+c}, v{OEA}, {ws}, s99 offen{off(128*c)} sc1" for c in range(4)]

    gwait(7)
    wodma(3)
    assert OPT.get('wopace', 4) <= 6 and FOM == 1
    A(f"""
    s_mov_b32 s5, {SPIN}
    K2_gchk:
    v_cmp_ne_u32 vcc, s{sTAG}, v{GV+1}
    s_cbranch_vccz K2_gok
    {gload}
    s_sub_u32 s5, s5, 1
    s_waitcnt vmcnt(0)
    s_cbranch_scc0 K2_gchk
    K2_gok:
    v_sub_f32 v{GV}, 1.0, v{GV}
    v_cvt_pk_bf16_f32 v{GV+1}, v{GV}, 0
    v_lshlrev_b32 v{GV}, 16, v{GV+1}
    """)
    cs("flags")
    wodma(2, False)
    cs("wo dma")
    y_first()
    poll()
    A("s_waitcnt vmcnt(0)")
    cs("polled")
    arrive(2)
    y_sum()
    for ks in range(9):
        for l in oload(ks): A(l)
        if OPT.get("space") and ks % 2: A(f"s_waitcnt vmcnt({OPT['space']})")

    def wreads(ks, X):
        return [f"ds_read_b128 {vr(WF+20*ks+4*T,4)}, v{B1 if X else L16}{off(1024*(5*ks+T))}" for T in range(5)]

    def p3mm(ks, first=False):
        return [mf16(vr(ACC + 4 * T, 4), vr(WF + 20 * ks + 4 * T, 4), vr(OF + 4 * ks, 4), "0" if first else vr(ACC + 4 * T, 4)) for T in range(5)]

    A(f"""
    s_add_u32 s98, s98, {128*8192}
    s_add_u32 s101, s101, {128*8192}
    s_add_u32 s99, s99, {64*2048}
    s_add_u32 s6, s34, {7*1152}
    s_add_u32 s7, s34, {14*1152}
    s_mov_b64 s[62:63], s[6:7]
    """)
    gwait(2)
    for ks in range(3, 8):
        for l in wreads(ks, 0): A(l)
    y_sum2(12)
    A.c("---- a routed token of this wave's tile: its staged row of x becomes x + sigmoid(r) * y")
    YT = Y0
    for sel in range(2):
        A(f"""
        s_lshr_b32 s4, s{70+sel}, 4
        s_cmp_lg_u32 s4, {"-1" if nosel else "s32"}
        s_cbranch_scc1 K2_nosel{sel}
        """)
        gwait(5)
        A(f"""
        s_mov_b32 s4, {TB + 1024*sel}
        v_lshl_add_u32 v{T0+1}, v{LANE}, 3, s4
        s_and_b32 s4, s{70+sel}, 15
        s_mul_i32 s4, s4, 144
        s_add_u32 s4, s4, s97
        v_lshl_add_u32 v{T0}, v{LANE}, 2, s4
        """)
        for k in range(12):
            A(f"ds_read_b64 {vr(YT+2*k,2)}, v{T0+1}{off(5120*(k//3)+288*(k%3))}")
        A(f"""
        ds_read_b32 v{YT+25}, v{T0}
        s_ashr_i32 s6, s{68+sel}, 31
        s_not_b32 s6, s6
        s_or_b32 s6, s6, 0x80000000
        s_xor_b32 s6, s6, s{68+sel}
        s_and_b32 s6, s6, 0xffff0000
        v_mov_b32 v{T0+2}, {0x80000000 | LOG2E}
        v_mul_f32 v{T0+2}, s6, v{T0+2}
        v_exp_f32 v{T0+2}, v{T0+2}
        s_mov_b32 s6, -1
        v_add_f32 v{T0+2}, 1.0, v{T0+2}
        v_rcp_f32 v{T0+2}, v{T0+2}
        s_mov_b32 s7, 15
        s_waitcnt lgkmcnt(0)
        """)
        for st in (6, 3):
            for k in range(st):
                A(f"v_pk_add_f32 {vr(YT+2*k,2)}, {vr(YT+2*k,2)}, {vr(YT+2*(k+st),2)}")
        A(f"""
        v_lshlrev_b32 v{YT+24}, 16, v{YT+25}
        v_pk_add_f32 {vr(YT,2)}, {vr(YT,2)}, {vr(YT+2,2)}
        v_and_b32 v{YT+25}, 0xffff0000, v{YT+25}
        v_pk_add_f32 {vr(YT,2)}, {vr(YT,2)}, {vr(YT+4,2)}
        v_cvt_pk_bf16_f32 v{T0+2}, 0, v{T0+2}
        v_cvt_pk_bf16_f32 v{YT}, 0, v{YT}
        v_cvt_pk_bf16_f32 v{YT+1}, 0, v{YT+1}
        v_pk_mul_f32 {vr(YT,2)}, {vr(YT,2)}, {vr(T0+2,2)} op_sel_hi:[1,0]
        v_cvt_pk_bf16_f32 v{YT}, 0, v{YT}
        v_cvt_pk_bf16_f32 v{YT+1}, 0, v{YT+1}
        v_pk_add_f32 {vr(YT,2)}, {vr(YT,2)}, {vr(YT+24,2)}
        v_cvt_pk_bf16_f32 v{YT}, v{YT}, v{YT+1}
        s_mov_b64 exec, s[6:7]
        ds_write_b32 v{T0}, v{YT}
        s_mov_b64 exec, -1
        K2_nosel{sel}:
        """)
    cs("yred")
    for ks in (0, 1, 2, 8):
        for l in wreads(ks, 0): A(l)
    cs("preload")
    sp(1, "ready")
    gwait(OPT.get("win", 4), OPT.get("wsl", 2))
    A("s_setprio 0")
    A("s_waitcnt vmcnt(0)")
    sp(1, "window")
    cs("window")
    GATE = OPT.get("egate", 1)
    epoll = f"buffer_load_dword v{TV+1}, v{TV-1}, {ws}, s99 offen sc1"
    A.c("---- half A; its registers are refilled for half B as they come free")
    order = [8, 0, 1, 2, 3, 4, 5, 6, 7]
    for k in range(10):
        fill = wreads(order[k - 1], 1) if k else []
        if k == OPT.get("p0", 9): fill = oload(8) + fill
        if k == 8: fill = [f"ds_read_b64 {vr(OF+2*T,2)}, v{SG1 if T < 4 else SG2}{off(32*T)}" for T in range(5)] + fill
        mm5 = p3mm(order[k], k == 0) if k < 9 else [None] * 5
        for T in range(5):
            if mm5[T]: A(mm5[T])
            for l in fill[T * len(fill) // 5:(T + 1) * len(fill) // 5]: A(l)
    cs("mfma")
    sp(1, "pre1")

    A.c("---- add (1 - g) * b, with 1 - g in bf16 as one half of a dot product")
    A("s_waitcnt lgkmcnt(10)")
    for i in range(20):
        A(f"v_dot2c_f32_bf16 v{ACC+i}, v{OF+i//2}, v{GV + (1 - i % 2)}")
    A("s_nop 2")
    A.c("---- half B: the two-dimension words of every producer are watched first; the bulk is then fetched, used, and checked for empty words")
    if OPT.get("p0", 9) > 9:
        if OPT["p0"] > 10: A(f"s_sleep {OPT['p0'] - 10}")
        for l in oload(8): A(l)
    A(f"""
    s_mov_b32 s5, {SPIN}
    K2_epoll:
    s_waitcnt vmcnt(0)
    v_max3_u32 v{TV}, v{OF+32}, v{OF+33}, v{OF+34}
    v_max_u32 v{TV}, v{TV}, v{OF+35}
    v_cmp_eq_u32 vcc, -1, v{TV}
    s_cbranch_vccz K2_eseen
    {f"s_sleep {OPT['esleep']}" if OPT.get("esleep") else ""}
    """)
    for l in oload(8): A(l)
    A(f"""
    s_sub_u32 s5, s5, 1
    s_cbranch_scc0 K2_epoll
    s_mov_b32 s5, 0
    s_waitcnt vmcnt(0)
    K2_eseen:
    """)
    sp(1, "eseen")
    for ks in range(8):
        for l in oload(ks): A(l)
    A("s_waitcnt lgkmcnt(0)")
    for l in p3mm(8): A(l)
    A.c("the sums continue in the registers that step freed, so this pass can simply be repeated")
    AC2 = WF + 160
    A(f"K2_main:\nv_mov_b32 v{TV}, 0")
    for ks in range(8):
        A(f"s_waitcnt vmcnt({7-ks})")
        f = OF + 4 * ks
        for T in range(5):
            A(mf16(vr(AC2 + 4 * T, 4), vr(WF + 20 * ks + 4 * T, 4), vr(f, 4), vr((AC2 if ks else ACC) + 4 * T, 4)))
            if T < 2: A(f"v_max3_u32 v{TV}, v{TV}, v{f+2*T}, v{f+2*T+1}")
            if T == 2 and ks == 7: A(f"v_cmp_eq_u32 vcc, -1, v{TV}")
    A("s_cbranch_vccnz K2_redo")
    A("K2_out:")
    if not OPT.get("chain"): sp(1, "fpolled")
    cs("halfB")
    A("s_nop 0")
    for i in range(10):
        A(f"v_cvt_pk_bf16_f32 v{XR+i}, v{AC2+2*i}, v{AC2+2*i+1}")
        if i % 2: A(f"ds_write_b64 v{SG1 if i < 8 else SG2}, {vr(XR+i-1,2)}{off(16*(i-1))}")
    for n in range(3):
        A(f"ds_read_b128 {vr(WF+4*n,4)}, v{SR}{off(1008*n)}")
    for n in range(3):
        if n == 2: A("s_mov_b64 exec, 0x3ffff")
        A(f"s_waitcnt lgkmcnt({2-n})")
        A(f"buffer_store_dwordx4 {vr(WF+4*n,4)}, v{OUT}, s[{sO}:{sO+3}], s{(34, 62, 63)[n]} offen{OPT.get('ost', '')}")
    A.c("the owner of the first routed token saw all 144 stage-2 flags, so every workgroup has taken its tag: hand d_debug back as zero")
    A(f"""
    s_lshr_b32 s4, s70, 4
    s_cmp_lg_u32 s4, s32
    s_cbranch_scc1 K2_fini
    v_mov_b32 v{TV}, 0
    buffer_store_dword v{TV}, off, s[{sDBG}:{sDBG+3}], 0 sc1
    K2_fini:
    """)
    if gen1.DIAG: A("s_mov_b64 exec, -1")
    cs("epilogue")
    if gen1.DIAG: A("s_waitcnt vmcnt(0)")
    cs("drain")
    csflush(1, 100)
    ST.flush(v=100)
    A("s_endpgm")
    A("K2_redo:\ns_sub_u32 s5, s5, 1\ns_cbranch_scc1 K2_out")
    for ks in range(8):
        for l in oload(ks): A(l)
    A("s_branch K2_main")

    A.c("---- slow path: two passes over all keys with the true row maximum (own q tile)")
    A("K2_slow:")
    M, KA, VA, VA2, KEA = 40, 42, 43, 44, 45
    lane_addrs(KA, VA, VA2, KEA)
    A(f"""
    s_and_b32 s4, s40, 1
    s_lshl_b32 s4, s4, 3
    s_add_u32 s59, s57, s4
    buffer_load_dwordx2 {vr(QE,2)}, v{KEA}, {ws}, s59 offen sc1
    buffer_load_dwordx2 {vr(QM,2)}, v{KA}, {ws}, s59 offen sc1
    buffer_load_dwordx2 {vr(QM+2,2)}, v{KA}, {ws}, s59 offen offset:256 sc1
    v_and_b32 v4, 31, v{LANE}
    v_or_b32 v5, 4, v4
    v_cmp_eq_u32 vcc, 21, v5
    v_mov_b32 v6, 0x3f803f80
    s_bitcmp0_b32 s36, 0
    v_cndmask_b32 v{VV[0]}, 0, v6, vcc
    s_cselect_b32 s4, -1, 0
    s_cselect_b32 s5, 0, -1
    """)
    for i in range(1, 8):
        A(f"v_mov_b32 v{VV[0]+i}, v{VV[0]}")
    for i in range(16):
        A(f"v_mov_b32 v{o+i}, 0")
    A(f"""
    v_mov_b32 v{M}, 0xff800000
    s_waitcnt vmcnt(0)
    v_and_b32 v{QE}, s4, v{QE}
    v_and_b32 v{QE+1}, s5, v{QE+1}
    """)
    for pas in range(2):
        A("s_mov_b32 s10, 0")
        A(f"K2_slow{pas}:")
        A(f"""
        s_lshr_b32 s8, s10, 1
        s_mul_i32 s8, s8, {2*R}
        s_add_u32 s8, s8, 36864
        s_and_b32 s9, s10, 1
        s_lshl_b32 s11, s9, 3
        s_add_u32 s11, s11, s8
        s_mul_i32 s9, s9, {2*VS}
        s_add_u32 s8, s8, s9
        s_add_u32 s9, s8, {R}
        buffer_load_dwordx2 {vr(KP[0],2)}, v{KA}, {ws}, s11 offen sc1
        buffer_load_dwordx2 {vr(KP[0]+2,2)}, v{KA}, {ws}, s11 offen offset:256 sc1
        buffer_load_dwordx2 {vr(KE,2)}, v{KEA}, {ws}, s11 offen sc1
        """)
        if pas:
            A(f"""
            s_mov_b64 exec, s[62:63]
            buffer_load_dwordx4 {vr(VV[0],4)}, v{VA}, {ws}, s8 offen sc1
            buffer_load_dwordx4 {vr(VV[0]+4,4)}, v{VA}, {ws}, s9 offen sc1
            s_mov_b64 exec, -1
            """)
        A(f"""
        s_waitcnt vmcnt(0)
        v_mfma_f32_32x32x4_2b_bf16 v[0:31], {vr(KE,2)}, {vr(QE,2)}, 0
        s_nop 15
        s_nop 3
        {mfma("v[0:15]", vr(KP[0],4), vr(QM,4), "v[0:15]")}
        s_nop 15
        """)
        if not pas:
            for i in range(8):
                A(f"v_max3_f32 v{M}, v{M}, v{2*i}, v{2*i+1}")
        else:
            for i in range(16):
                A(f"v_sub_f32 v{i}, v{i}, v{M}")
            for i in range(16):
                A(f"v_exp_f32 v{i}, v{i}")
            A("s_nop 1")
            A(f"v_smfmac_f32_32x32x32_bf16 {vr(o,16)}, {vr(VV[0],4)}, v[0:7], v{IDX}")
            A(f"v_smfmac_f32_32x32x32_bf16 {vr(o,16)}, {vr(VV[0]+4,4)}, v[8:15], v{IDX}")
            A("s_nop 15")
        A(f"""
        s_add_u32 s10, s10, 1
        s_cmp_lt_u32 s10, 64
        s_cbranch_scc1 K2_slow{pas}
        """)
        if not pas:
            A(f"""
            v_mov_b32 v{M+1}, v{M}
            s_nop 1
            v_permlane32_swap_b32 v{M}, v{M+1}
            s_nop 1
            v_max_f32 v{M}, v{M}, v{M+1}
            """)
    A(f"v_rcp_f32 v0, v{o+9}\ns_nop 0\nv_mul_f32 v0, v0, v{GQ}")
    A("s_branch K2_fin")
    for r in range(2):
        A(f"""
        K2_gqspin{r}:
        s_mov_b32 s6, {SPIN}
        K2_gqspin{r}1:
        {gqload[r]}
        s_sub_u32 s6, s6, 1
        s_waitcnt vmcnt(0)
        s_cbranch_scc1 K2_gqok{r}
        v_cmp_ne_u32 vcc, s{sTAG}, v{(251, GQ+1)[r]}
        s_cbranch_vccnz K2_gqspin{r}1
        s_branch K2_gqok{r}
        """)
    A.c("---- partials still missing: watch the count alone, then read again")
    A(f"""
    K2_finwait:
    s_sub_u32 s5, s5, 1
    s_cbranch_scc1 K2_fin2
    ds_read_b32 v0, v{CA}
    s_waitcnt lgkmcnt(0)
    v_readfirstlane_b32 s4, v0
    s_cmp_lt_u32 s4, {OPT.get("fw", 3)}
    s_cbranch_scc0 K2_fin1
    {"s_sleep 1" if OPT.get("fsl") else ""}
    s_branch K2_finwait
    """)
    A.c("---- router candidates not published yet (rare): wait for them")
    A(f"""
    K2_candspin:
    s_mov_b32 s6, {SPIN}
    s_mov_b32 s7, {RC}
    K2_candspin1:
    buffer_load_dwordx4 {vr(CAND,4)}, v{L16}, {ws}, s7 offen sc1
    s_sub_u32 s6, s6, 1
    s_waitcnt vmcnt(0)
    s_cbranch_scc1 K2_candok
    v_cmp_ne_u32 vcc, s{sTAG}, v{CAND+1}
    v_cmp_ne_u32 s[4:5], s{sTAG}, v{CAND+3}
    s_or_b64 vcc, vcc, s[4:5]
    s_cbranch_scc1 K2_candspin1
    s_branch K2_candok
    """)
    A("K2_codeend:")
    A("s_endpgm")
    return CNT + 48


HEADER = """; out = g * MHA(x) + (1 - g) * (x + top-2 routed SwiGLU FFN(x)),  g = sigmoid(x . gate_w);  S = 2048, D = 576, H = 32, F = 4608
;
;     wave whose check fails recomputes its rows in two passes with the true row maximum (K2_slow).
; {value, tag} pairs, or slots marked empty earlier in the launch. The tag is new in every launch (successor of a word
"""


def build():
    global R, VS
    VS, R = OPT.get('pitch', (9216, 110592))
    assert 64 * R <= GB and R >= 73728 + 4 * VS
    A = Asm()
    A('.amdgcn_target "amdgcn-amd-amdhsa--gfx950"')
    A(".text")
    lds = k23(A)
    A('.section .rodata,"a"')
    A(".p2align 6")
    A.raw(descriptor(NAME, 256, 256))
    head = (HEADER +
            f"; @launch grid=(256,1,1) block=(512,1,1) lds={lds}\n")
    return head + A.text()


if __name__ == "__main__":
    out = sys.argv[1]
    gen1.DIAG = len(sys.argv) > 2 and sys.argv[2] == "diag"
    if len(sys.argv) > 3:
        OPT = eval(sys.argv[3]); gen1.OPT = OPT
    open(out, "w").write(build())
```

```python
import sys
sys.path.insert(0, "gen")
from asmlib import *
import gen1
from gen1 import YP, WS_SIZE, XB, f32bits, QSCALE, LOG2E, mfma, Stamp
NAME = "gated_mix__mha_block__moe_arch_mod__prompt_kernel"
R = 110592
VS = 9216
GB = 0x6F8000
RC = 0x6FC000
F1 = 0xA60000
PG = 0xB00000
WP = 0xE00000
OOB = 0x7FFFFF00

OM = 0x700000
OE = 0x900000
FO = 0xA00000
FY = 0xA40000
EP = 0xA50000
OPT = {}
SPIN = 1 << 17
LSPIN = 1 << 23


def mf16(d, a, b, c):
    return f"v_mfma_f32_16x16x32_bf16 {d}, {a}, {b}, {c}"


def k23(A):
    kernel_head(A, NAME)
    sDBG, sX, sG, sWS, sD, sU, sWO, sO = 12, 16, 20, 24, 28, 32, 72, 76
    sW, sWB = 20, 28
    S = [0, 32]
    O = [64, 80, 96, 112]
    QM, QE, KE = 128, 144, 148
    NB = 5
    KP = [164 + 10 * g for g in range(3)]
    VV = [194 + 8 * g for g in range(NB)]
    IDX, L16, VA, LANE = 236, 237, 238, 239
    KA, VA2, KEA, GUA, TAGV = 240, 241, 242, 234, 246
    CAND, PA, RET, ONE, CA = 250, 252, 253, 254, 255
    QEA = 251
    SW, PM, PE, RD = 243, 244, 245, 247
    DNA, DN5 = 245, 247
    M0, M3, M4, GQA = 152, 153, 154, 155
    TA = 235
    sT = [44 + t for t in range(8)] + [72 + t for t in range(8)]
    sTAG = 53
    WREG = 14336
    AS = 0
    DN = 4 * WREG
    STG = DN + 36864
    TB = STG + 4 * 3072
    BS = 129024
    HP = BS + 4 * 8192
    HS = HP + 1024
    CNT = HS + 512
    SLOT = 32768
    RGV = 4 * SLOT
    ws = f"s[{sWS}:{sWS+3}]"
    uid = [0]
    PQ, PJ = (37, 43) if OPT.get("map2") else (43, 37)
    FOM = OPT.get("fo", 1)
    FOX, FOS = (("0xff", 8), ("1", 2), ("1\ns_mov_b32 exec_lo, -1", 2))[FOM]

    def lab(p):
        uid[0] += 1
        return f"{p}_{uid[0]}"

    def cs(name):
        if not OPT.get("chain"): return
        A("s_memtime s[88:89]")
        A("s_waitcnt lgkmcnt(0)")
        A("s_sub_u32 s88, s88, s80")
        A("s_mov_b32 m0, s96")
        A(f"v_writelane_b32 v{IDX}, s88, m0")
        A("s_add_u32 s96, s96, 1")
        A.c("stamp " + name)

    def csflush(k, v):
        if not OPT.get("chain"): return
        A(f"""
        s_lshl_b32 s4, s2, 2
        s_add_u32 s4, s4, s38
        s_lshl_b32 s4, s4, 8
        s_add_u32 s4, s4, {0xD00000 + 0x40000*k}
        v_lshlrev_b32 v{v}, 2, v{LANE}
        buffer_store_dword v{IDX}, v{v}, {ws}, s4 offen
        s_nop 1
        """)

    def arrive(k):
        A(f"""
        s_mov_b64 exec, 1
        ds_add_u32 v{CA}, v{ONE}{off(4*k)}
        s_mov_b64 exec, -1
        """)

    def gwait(k, sl=1):
        l = lab("K2_gw")
        A(f"""
        s_mov_b32 s5, {LSPIN}
        {l}:
        ds_read_b32 v247, v{CA}{off(4*k)}
        s_waitcnt lgkmcnt(0)
        v_readfirstlane_b32 s4, v247
        s_cmp_ge_u32 s4, 4
        s_cbranch_scc1 {l}_d
        s_sleep {sl}
        s_sub_u32 s5, s5, 1
        s_cbranch_scc0 {l}
        {l}_d:
        """)

    tagload = f"buffer_load_dword v{TAGV}, off, s[{sDBG}:{sDBG+3}], 0 sc1"

    def gettag():
        l = lab("K2_tag")
        A(f"""
        s_mov_b32 s5, {SPIN}
        {l}:
        s_waitcnt vmcnt(0)
        v_readfirstlane_b32 s{sTAG}, v{TAGV}
        s_cmp_lg_u32 s{sTAG}, 0
        s_cbranch_scc1 {l}_d
        s_sleep 8
        {tagload}
        s_sub_u32 s5, s5, 1
        s_cbranch_scc0 {l}
        {l}_d:
        """)

    def lane_addrs(KA, VA, VA2, KEA):
        A(f"""
        s_lshr_b32 s4, s36, 1
        s_mul_i32 s4, s4, {9*256}
        s_and_b32 s5, s36, 1
        s_mul_i32 s5, s5, {5*256}
        s_add_u32 s5, s5, s4
        s_add_u32 s4, s4, 1024
        v_and_b32 v4, 31, v{LANE}
        v_lshrrev_b32 v6, 5, v{LANE}
        v_lshrrev_b32 v5, 4, v4
        v_mul_u32_u24 v5, {R-256}, v5
        v_lshl_add_u32 v5, v4, 4, v5
        v_add_u32 v{KEA}, s4, v5
        v_add_u32 v{KA}, s5, v5
        v_lshl_add_u32 v{KA}, v6, 9, v{KA}
        s_mul_i32 s4, s36, 288
        s_add_u32 s4, s4, 36864
        v_min_u32 v5, 17, v4
        v_lshl_add_u32 v{VA}, v5, 4, s4
        v_mul_u32_u24 v5, {VS}, v6
        v_add_u32 v{VA}, v{VA}, v5
        v_add_u32 v{VA2}, {2*VS}, v{VA}
        """)

    def att_setup(old):
        A(f"""
        s_lshl_b32 s4, s3, 1
        s_bfe_u32 s5, s2, 0x10003
        s_add_u32 s{PQ}, s4, s5
        s_lshr_b32 s{PJ}, s2, 4
        s_lshl_b32 s36, s43, 1
        s_add_u32 s36, s36, s39
        """)
        A.c("s36 head, s37 q block (128), s38 wave, s39 head half, s40 key quarter, s43 head within half")
        lane_addrs(KA, VA, VA2, KEA)
        A(f"""
        s_mul_i32 s10, s37, {4*R}
        s_xor_b32 s11, s40, 3
        """)
        A.c("a 32-row tile = the same 16-token half of two neighbouring records; local q tile t is tile t ^ 3 ^ kq")
        A(f"""
        s_mov_b32 s60, s10
        s_lshr_b32 s4, s11, 1
        s_mul_i32 s5, s4, {2*R}
        s_add_u32 s56, s10, s5
        s_xor_b32 s5, s4, 1
        s_mul_i32 s5, s5, {2*R}
        s_add_u32 s57, s10, s5
        v_xor_b32 v5, s4, v6
        s_mov_b32 s4, {2*R}
        v_mad_u32_u24 v{QEA}, v5, s4, v{KEA}
        v_mad_u32_u24 v{KEA}, v6, s4, v{KEA}
        s_mul_i32 s10, s40, {16*R}
        """)
        for m in range(16):
            A(f"s_add_u32 s{sT[m]}, s10, {36864 + m*R}")
        A("s_mov_b32 s62, 0x0011ffff\ns_mov_b32 s63, 0x0011ffff")
        if not old: return
        A.c("projection flags of this head pair: lane = (k / v, first / last channel, token block), the two q flags and the two flags of the packed w_o block")
        A(f"""
        s_mul_i32 s4, s43, 36
        v_bfe_u32 v5, v{LANE}, 4, 1
        v_mad_u32_u24 v5, v5, 35, s4
        v_lshrrev_b32 v7, 7, v5
        s_lshr_b32 s7, s43, 1
        s_mul_i32 s4, s7, 9
        s_lshr_b32 s4, s4, 4
        s_lshl_b32 s5, s7, 1
        s_sub_u32 s4, s5, s4
        v_add_u32 v7, s4, v7
        v_lshl_add_u32 v7, v7, 4, s37
        s_and_b32 s4, s{PJ}, 14
        s_add_u32 s4, s4, {768 - 2}
        v_lshrrev_b32 v8, 4, v{LANE}
        v_cmp_lt_u32 vcc, 1, v8
        v_add_u32 v8, s4, v8
        s_mov_b32 s4, {F1}
        v_cndmask_b32 v7, v7, v8, vcc
        v_lshl_add_u32 v{PA+1}, v7, 5, s4
        v_mul_u32_u24 v7, 576, v6
        v_add_u32 v5, 576, v5
        v_add_u32 v5, v5, v7
        v_lshrrev_b32 v5, 7, v5
        s_add_u32 s5, s7, 8
        v_lshl_add_u32 v7, v6, 3, s5
        v_mul_u32_u24 v8, 9, v7
        v_lshrrev_b32 v8, 4, v8
        v_sub_u32 v5, v5, v8
        v_lshl_add_u32 v5, v7, 1, v5
        v_and_b32 v7, 15, v{LANE}
        v_lshl_add_u32 v5, v5, 4, v7
        v_lshl_add_u32 v{PA}, v5, 5, s4
        """)

    ACC, PK, AX, AW, SA, FLA = 64, 128, 220, 224, 250, 162
    FR = [0, 32]

    def acc(a, T):
        return ACC + 16 * a + 4 * T

    def epilogue(vmode, r, scale):
        out = []
        for T in range(4):
            p = PK + 16 * r + 4 * T
            for a in (2 * r, 2 * r + 1):
                d = acc(a, T)
                if scale:
                    out += [f"v_pk_mul_f32 {vr(d+2*i,2)}, {vr(d+2*i,2)}, s[98:99]" for i in range(2)]
                out += [f"v_cvt_pk_bf16_f32 v{p+2*(a%2)+i}, v{d+2*i}, v{d+2*i+1}" for i in range(2)]
            out.append(f"buffer_store_dwordx4 {vr(p,4)}, v{SA}, {ws}, s{65+r} offen{off((256 if vmode else 1024)*T)} sc1")
        return out

    def xread(n, a, vmode):
        c, s_ = divmod(n, 2)
        k, o = divmod(c % 4, 2)
        to = (a // 2) * 4096 + (a % 2) * 512 if vmode else a * 2048
        return f"ds_read_b128 {vr(FR[n%2]+4*a,4)}, v{AX+2*k+s_}{off(o*SLOT+to)}"

    def reads(n, vmode):
        c, s_ = divmod(n, 2)
        k, o = divmod(c % 4, 2)
        w = [[(f"w{T}", f"ds_read_b64_tr_b16 {vr(FR[n%2]+16+4*T+2*a,2)}, v{AW+4*k+T}{off(o*SLOT+(32*s_+4*a)*128)}") for a in range(2)] for T in range(4)]
        x = [(f"x{a}", xread(n, a, vmode)) for a in range(4)]
        return [(f"{n}{t}", l) for t, l in w[0] + x[:1] + w[1] + w[2] + w[3] + x[1:]]

    def gemm(vmode):
        q = []

        def put(r):
            if OPT.get("nord") and len(r[0]) + int(r[0][0] > "1") > 3: return
            q.append(r[0]); A(r[1])

        def need(*tags):
            idx = [i for i, t in enumerate(q) if t in tags]
            if idx:
                A(f"s_waitcnt lgkmcnt({len(q) - 1 - max(idx)})")
                del q[:max(idx) + 1]
        sp(1, "atb0")
        A("s_barrier")
        sp(1, "b0")
        cs("B0")
        for r in reads(0, vmode): put(r)

        def mm1(n, a, T):
            if OPT.get("half") and a >= 2: return
            need(f"{n}x{a}", f"{n}w{T}")
            d = vr(acc(a, T), 4)
            x, w = vr(FR[n % 2] + 4 * a, 4), vr(FR[n % 2] + 16 + 4 * T, 4)
            c = "0" if n == 0 else d
            A(mf16(d, x, w, c) if vmode else mf16(d, w, x, c))
        for n in range(16):
            Rn = reads(n + 1, vmode)
            bp = OPT.get("bp", (0, 6))[n == 15] if n % 2 else 0
            for i in range(16):
                if i == 0 and n > 0: need(f"{n}x0", f"{n}w0", f"{n}w1", f"{n}w2", f"{n}w3")
                mm1(n, i // 4, i % 4)
                if i == bp and n % 2 == 1:
                    need(f"{n}x3")
                    A("s_barrier")
                if i == 0 and n == OPT.get("tagstep", 8): A(tagload)
                if i == 0 and n == OPT.get("tagstep", 8) + 5: gettag()
                if i >= bp:
                    k = 1 if bp <= 2 else 2
                    for r in Rn[k * (i - bp):k * (i - bp) + k]: put(r)
        Rn = reads(17, vmode)
        for i in range(8):
            mm1(16, i // 4, i % 4)
            for r in Rn[2 * i:2 * i + 2]: put(r)
        for i in range(8): mm1(17, i % 2, i // 2)
        q0 = list(q)
        if not vmode: A("s_cmp_lt_u32 s69, 9\ns_cbranch_scc1 K2_qtail")
        for scale in ((False,) if vmode else (False, True)):
            q[:] = q0
            if scale: A("K2_qtail:")
            E = epilogue(vmode, 0, scale)
            tail = [(16, 2 + i // 4, i % 4) for i in range(8)] + [(17, 2 + i % 2, i // 2) for i in range(8)]
            for i, t in enumerate(tail):
                mm1(*t)
                if not OPT.get("ilv", (1, 1))[not scale]:
                    if i == 15:
                        for l in E: A(l)
                elif i >= 2:
                    for l in E[(i - 2) * len(E) // 14:(i - 1) * len(E) // 14]: A(l)
            sp(1, "passa")
            cs("pass A")
            A("s_nop 1")
            for l in epilogue(vmode, 1, scale) if not OPT.get("half") else []: A(l)
            sp(1, "astore")
            cs("a stores")
            A("s_branch K2_p1done")

    def pflag(sf):
        A(f"""
        s_cmp_lg_u32 s40, 0
        s_waitcnt vmcnt(0)
        s_barrier
        s_cbranch_scc1 K2_noflag
        s_mov_b64 exec, 0xffffff
        buffer_store_dword v{TAGV}, v{FLA}, {ws}, s{sf} offen sc1
        s_mov_b64 exec, -1
        K2_noflag:
        """)

    def presets():
        A.c("V registers are preset: rows 17 and 21 are the all-ones rows that produce the softmax denominator")
        A.c("(1 + 127*2^-16 has the bit pattern 0x3f803f80 = two bf16 ones; the matrix unit fills 32 registers per instruction)")
        A(f"""
        v_and_b32 v4, 31, v{LANE}
        v_or_b32 v5, 4, v4
        v_cmp_eq_u32 vcc, 21, v5
        v_mov_b32 v6, 0x3afe3f80
        v_mov_b32 v8, 0x3f803f80
        v_cndmask_b32 v6, 0, v6, vcc
        v_mov_b32 v7, 0
        v_mov_b32 v9, 0
        v_mov_b32 v10, 0
        v_mov_b32 v11, 0
        v_mfma_f32_32x32x4_2b_bf16 {vr(170,32)}, v[8:9], v[6:7], 0
        v_mfma_f32_32x32x4_2b_bf16 {vr(202,32)}, v[8:9], v[6:7], 0
        v_mfma_f32_32x32x4_2b_bf16 {vr(O[0],32)}, v[10:11], v[10:11], 0
        v_mfma_f32_32x32x4_2b_bf16 {vr(O[2],32)}, v[10:11], v[10:11], 0
        s_nop 3
        """)

    def p1_addrs():
        A.c("wave = 64 tokens (s40 & 1) x one 64-channel tile (s40 >> 1); v tiles map row 4g+j of tile a to token 8g+4a+j")
        A(f"""
        v_lshrrev_b32 v1, 4, v{LANE}
        v_and_b32 v2, 15, v{LANE}
        v_and_b32 v3, 12, v2
        v_add_u32 v3, v3, v2
        s_cmp_eq_u32 s100, 2
        s_cselect_b64 vcc, -1, 0
        v_cndmask_b32 v3, v2, v3, vcc
        v_mul_u32_u24 v4, {VS}, v1
        v_lshl_add_u32 v4, v2, 4, v4
        v_cndmask_b32 v{SA}, v{L16}, v4, vcc
        v_lshrrev_b32 v4, 1, v2
        v_xor_b32 v4, v4, v1
        s_and_b32 s4, s40, 1
        s_lshl_b32 s4, s4, 1
        s_cmp_eq_u32 s100, 3
        s_cselect_b32 s4, s40, s4
        s_lshl_b32 s5, s68, 2
        s_add_u32 s71, s5, s4
        s_lshl_b32 s4, s4, 12
        v_lshl_add_u32 v3, v3, 7, s4
        v_lshl_add_u32 v{AX}, v4, 4, v3
        v_xor_b32 v{AX+1}, 64, v{AX}
        v_add_u32 v{AX+2}, {2*SLOT}, v{AX}
        v_add_u32 v{AX+3}, {2*SLOT}, v{AX+1}
        v_bfe_u32 v3, v{LANE}, 2, 2
        v_lshl_add_u32 v4, v1, 3, v3
        v_lshlrev_b32 v4, 7, v4
        v_bfe_u32 v3, v{LANE}, 3, 2
        v_lshl_add_u32 v4, v3, 5, v4
        v_and_b32 v3, 3, v{LANE}
        v_lshl_add_u32 v4, v3, 3, v4
        s_lshr_b32 s7, s40, 1
        s_lshl_b32 s4, s7, 13
        s_add_u32 s4, s4, 16384
        v_add_u32 v{AW}, s4, v4
        """)
        for T in range(1, 4):
            A(f"v_xor_b32 v{AW+T}, {32*T}, v{AW}")
        for T in range(4):
            A(f"v_add_u32 v{AW+4+T}, {2*SLOT}, v{AW+T}")
        A.c("store base s65 and flag address s61 of this wave's tile")
        A(f"""
        s_add_u32 s69, s69, s7
        s_mul_i32 s4, s71, {R}
        s_lshl_b32 s5, s69, 12
        s_lshl_b32 s6, s69, 10
        s_add_u32 s6, s6, {73728 - 18*1024}
        s_cmp_eq_u32 s100, 2
        s_cselect_b32 s5, s6, s5
        s_add_u32 s65, s4, s5
        s_add_u32 s66, s65, {R}
        s_lshl_b32 s4, s68, 5
        s_add_u32 s61, s4, {F1}
        s_mul_i32 s4, s97, {16*7282}
        s_add_u32 s5, s4, {15*7282}
        s_lshr_b32 s4, s4, 16
        s_lshr_b32 s5, s5, 16
        s_min_u32 s5, s5, 23
        v_lshrrev_b32 v3, 3, v{LANE}
        v_add_u32 v3, s4, v3
        v_min_u32 v3, s5, v3
        v_mul_u32_u24 v4, 9, v3
        v_lshrrev_b32 v4, 4, v4
        v_sub_u32 v4, s97, v4
        v_lshl_add_u32 v3, v3, 1, v4
        v_and_b32 v4, 7, v{LANE}
        v_lshlrev_b32 v4, 2, v4
        v_lshl_add_u32 v{FLA}, v3, 9, v4
        s_mov_b32 s98, {QSCALE}
        s_mov_b32 s99, s98
        """)

    A("s_cmp_ge_u32 s2, 256")
    A("s_cbranch_scc1 K2_end")
    ST = Stamp(A, 0); ST.t(0)
    STS = OPT.get("st", ("astore,polled,loopend,fpolled", "loaded,polled,loopend,flag"))

    def sp(old, name):
        L = STS[0 if old else 1].split(",")
        if name in L: ST.t(1 + L.index(name))
    A(f"""
    s_load_dwordx2 s[{sX}:{sX+1}], s[0:1], 0
    s_load_dwordx2 s[{sW}:{sW+1}], s[0:1], 8
    s_load_dwordx2 s[{sWB}:{sWB+1}], s[0:1], 8
    s_load_dwordx2 s[{sWS}:{sWS+1}], s[0:1], 88
    s_load_dwordx2 s[{sDBG}:{sDBG+1}], s[0:1], 80
    v_readfirstlane_b32 s38, v0
    v_and_b32 v{LANE}, 63, v0
    s_and_b32 s4, s2, 3
    s_bfe_u32 s5, s2, 0x20003
    s_bfe_u32 s6, s2, 0x10002
    s_lshr_b32 s7, s2, 5
    s_lshl2_add_u32 s68, s4, s5
    s_mul_i32 s97, s6, 6
    s_add_u32 s97, s97, s7
    s_lshl3_add_u32 s9, s6, s7
    s_cmp_eq_u32 s9, 6
    s_cselect_b32 s97, 13, s97
    s_cmp_ge_u32 s97, 9
    s_cselect_b32 s100, 2, 0
    s_lshr_b32 s9, s5, 1
    s_xor_b32 s9, s9, s6
    s_add_u32 s9, s9, 3
    s_cmp_eq_u32 s7, 7
    s_cselect_b32 s100, s9, s100
    s_mov_b32 s{sX+2}, {XB}
    s_mov_b32 s{sX+3}, 0x00020000
    s_bfe_u32 s40, s38, 0x20006
    s_lshr_b32 s39, s38, 8
    s_cbranch_scc0 K2_old
    """)

    def common2():
        A(f"""
        s_lshr_b32 s38, s38, 6
        s_and_b32 s3, s2, 7
        s_lshl_b32 s69, s97, 1
        s_mov_b32 s{sWS+2}, {WS_SIZE}
        s_mov_b32 s{sWS+3}, 0x00020000
        s_mov_b32 s{sDBG+2}, 256
        s_mov_b32 s{sDBG+3}, 0x00020000
        v_lshlrev_b32 v{L16}, 4, v{LANE}
        """)
    A.c("projection tile: s68 token block (128), s97 channel tile (128), s100 kind (0 q/k, 2 v, 3 router, 4 none)")
    A.c("=========== waves 4-7 first stage x and w_qkv for the projection (k chunks start at s71, for L2 locality only)")
    A(f"""
    s_setprio 2
    s_cmp_eq_u32 s100, 4
    s_cbranch_scc1 K2_noload
    v_lshrrev_b32 v2, 3, v{LANE}
    v_and_b32 v3, 7, v{LANE}
    v_lshrrev_b32 v4, 4, v{LANE}
    v_lshl_add_u32 v2, s40, 3, v2
    s_cmp_eq_u32 s100, 2
    s_cselect_b32 s9, 1, 2
    s_cselect_b32 s10, 1, 3
    s_lshl_b32 s9, s40, s9
    s_and_b32 s9, s9, 7
    v_and_b32 v5, s10, v4
    v_xor_b32 v5, v3, v5
    v_xor_b32 v5, s9, v5
    v_lshl_add_u32 v6, s68, 7, v2
    v_mul_u32_u24 v6, 1152, v6
    v_lshl_add_u32 v10, v5, 4, v6
    """)
    RM = OPT.get("rm")
    if RM is None:
        A("""
        s_xor_b32 s71, s7, s5
        s_and_b32 s71, s71, 1
        s_lshl2_add_u32 s71, s71, s4
        s_lshl1_add_u32 s71, s6, s71
        s_cmp_eq_u32 s71, 9
        s_cselect_b32 s71, 0, s71
        """)
    else:
        A(f"""
        s_xor_b32 s71, s7, s5
        s_and_b32 s71, s71, 1
        s_mul_i32 s71, s71, {RM[0]}
        s_mul_i32 s9, s4, {RM[1]}
        s_add_u32 s71, s71, s9
        s_mul_i32 s9, s6, {RM[2]}
        s_add_u32 s71, s71, s9
        s_sub_u32 s9, s71, 9
        s_cselect_b32 s71, s71, s9
        """)
    A(f"""
    s_cmp_eq_u32 s100, 3
    s_cselect_b32 s71, 0, s71
    s_cselect_b32 s{sW+2}, 0, {576*3456}
    s_lshl_b32 s42, s40, 10
    s_waitcnt lgkmcnt(0)
    """)
    sp(0, "ld0")

    def waddr():
        A.c("missing tiles stage zeros (empty descriptors)")
        A(f"""
        s_cmp_eq_u32 s97, 13
        s_cselect_b32 s{sWB+2}, 0, s{sW+2}
        s_mov_b32 s{sW+3}, 0x00020000
        s_mov_b32 s{sWB+3}, 0x00020000
        v_and_b32 v4, 1, v4
        s_and_b32 s9, s40, 1
        s_lshl_b32 s9, s9, 2
        v_lshl_add_u32 v4, v4, 1, s9
        v_xor_b32 v3, v3, v4
        v_mul_u32_u24 v6, 3456, v2
        v_lshl_add_u32 v6, v3, 4, v6
        v_lshl_add_u32 v11, s97, 8, v6
        """)

    def dma1(k):
        c, r = divmod(k, 8)
        u, isx = divmod(r, 2)
        if c == 0:
            u, isx = r % 4, r < 4
            if r == 4: waddr()
        slot = c % 4
        if r == 0: A(f"s_lshl_b32 s65, s71, 7\ns_mul_i32 s66, s71, {64*3456}")
        if not isx:
            t, hf = u % 2, u // 2
            A(f"s_add_u32 m0, s42, {slot*SLOT + 16384 + t*8192 + hf*4096}")
            A(f"s_add_u32 s67, s66, {hf*32*3456 + 128*t}")
            A(f"buffer_load_dwordx4 v11, s[{(sW, sWB)[t]}:{(sW, sWB)[t]+3}], s67 offen{OPT.get('wnt', '')} lds")
        else:
            A(f"s_add_u32 m0, s42, {slot*SLOT + u*4096}")
            A(f"s_add_u32 s67, s65, {u*36864}")
            A(f"buffer_load_dwordx4 v10, s[{sX}:{sX+3}], s67 offen{OPT.get('xnt', '')} lds")
        if r == 7: A("s_add_u32 s71, s71, 1\ns_cmp_eq_u32 s71, 9\ns_cselect_b32 s71, 0, s71")

    lead0, lead = OPT.get("lead", (8, 8))
    assert lead <= 16
    issued = 0
    for c in range(9):
        tgt = min(72, 8 * (c + 1) + (lead0 if c == 0 else lead))
        while issued < tgt:
            dma1(issued); issued += 1
        A(f"s_waitcnt vmcnt({issued - 8*(c+1)})")
        sp(0, f"c{c}")
        if c == 8: A("K2_lastbar:")
        A("s_barrier")
    A("K2_loaded:")
    common2()
    A("s_waitcnt lgkmcnt(0)")
    sp(0, "loaded")
    A(tagload)
    att_setup(False)
    presets()
    gettag()
    A("s_branch K2_young2")

    OAT = 60

    def tables():
        A.c("output projection tile: 64 tokens x 72 channels per workgroup, dealt so that one die shares tokens (speed only)")
        A.c("s32 = 16-token tile of this wave, s33 = byte offset of the channel block, s34 row base, s35 packed w_o")
        A(f"""
        s_lshl_b32 s32, s{PQ}, 3
        s_and_b32 s4, s{PJ}, 1
        s_lshl_b32 s4, s4, 2
        s_add_u32 s32, s32, s4
        s_add_u32 s32, s32, s40
        s_lshr_b32 s33, s{PJ}, 1
        s_mul_i32 s33, s33, 144
        s_mul_i32 s34, s32, {16*1152}
        s_add_u32 s34, s34, s33
        s_mul_i32 s35, s33, 640
        s_add_u32 s35, s35, {WP}
        s_mul_i32 s4, s40, 3072
        s_add_u32 s97, s4, {STG}
        s_lshl_b32 s4, s32, 13
        s_add_u32 s98, s4, {OM}
        s_add_u32 s101, s98, 4096
        s_lshr_b32 s4, s32, 2
        s_lshl_b32 s4, s4, 1
        s_and_b32 s5, s40, 1
        s_add_u32 s4, s4, s5
        s_lshl_b32 s5, s4, 7
        s_add_u32 s100, s5, {FO}
        s_lshl_b32 s4, s4, 11
        s_lshr_b32 s5, s40, 1
        s_lshl_b32 s5, s5, 6
        s_add_u32 s4, s4, s5
        s_add_u32 s99, s4, {OE}
        s_mul_i32 s4, s40, 5120
        s_add_u32 s4, s4, {TB}
        v_add_u32 v{TA}, s4, v{L16}
        """)

    def tables_lane():
        A.c("per-lane addresses that wave s40 needs in the later phases are worked out here and parked in LDS")
        A(f"""
        s_mul_i32 s42, s40, {WREG}
        s_mul_i32 s4, s40, 3072
        s_add_u32 s97, s4, {STG}
        s_mul_i32 s4, s40, 5120
        s_add_u32 s4, s4, {TB}
        v_add_u32 v{TA}, s4, v{L16}
        v_and_b32 v3, 15, v{LANE}
        v_lshrrev_b32 v4, 4, v{LANE}
        v_bfe_u32 v5, v{LANE}, 2, 2
        v_lshl_add_u32 v7, v4, 3, v5
        v_and_b32 v5, 1, v5
        v_and_b32 v6, 1, v4
        v_lshlrev_b32 v18, 3, v{LANE}
        v_and_b32 v8, 24, v18
        v_lshl_add_u32 v16, v7, 7, s42
        v_add_u32 v16, v16, v8
        v_lshl_add_u32 v17, v4, 4, s42
        v_lshl_add_u32 v17, v5, 10, v17
        v_and_b32 v19, 64, v{PE}
        v_add_lshl_u32 v19, v19, v{PE}, 1
        v_lshlrev_b32 v9, 2, v{LANE}
        v_add_u32 v21, {HP}, v9
        s_lshl_b32 s4, s40, 8
        v_add_u32 v20, s4, v21
        s_mul_i32 s4, s40, 288
        s_and_b32 s4, s4, 0xffc0
        s_add_u32 s5, s4, {DN}
        v_mul_u32_u24 v22, 1152, v7
        v_add3_u32 v22, v22, v8, s5
        s_lshl_b32 s5, s40, 7
        s_add_u32 s5, s5, {HS}
        v_lshl_add_u32 v23, v4, 4, s5
        v_lshl_add_u32 v23, v5, 6, v23
        v_and_b32 v10, 32, v{LANE}
        v_lshl_add_u32 v24, v3, 1, s5
        v_lshl_add_u32 v24, v6, 6, v24
        v_add_u32 v24, v24, v10
        v_lshlrev_b32 v26, 2, v3
        v_mul_u32_u24 v25, 2304, v6
        v_lshl_add_u32 v25, v10, 1, v25
        s_lshl_b32 s4, s4, 1
        v_add3_u32 v25, v25, v26, s4
        v_lshlrev_b32 v27, 3, v3
        v_mul_u32_u24 v11, 7282, v{LANE}
        v_lshrrev_b32 v11, 16, v11
        v_mul_u32_u24 v11, {1152-144}, v11
        v_add_u32 v{OAT}, v11, v{L16}
        v_mul_u32_u24 v11, 144, v3
        v_add_u32 v11, s97, v11
        v_lshl_add_u32 v{OAT+1}, v4, 3, v11
        v_lshl_add_u32 v{OAT+2}, v6, 3, v11
        v_lshl_add_u32 v{OAT+3}, v4, 9, v26
        v_add_u32 v28, 46080, v{L16}
        v_add_u32 v29, s97, v{L16}
        """)

    def tables_store():
        A(f"""
        ds_write_b128 v{TA}, v[16:19]
        ds_write_b128 v{TA}, v[20:23] offset:1024
        ds_write_b128 v{TA}, v[24:27] offset:2048
        ds_write_b128 v{TA}, {vr(OAT,4)} offset:3072
        ds_write_b64 v{TA}, v[28:29] offset:4096
        """)

    def p1_compute():
        A.c("staging waves of a workgroup without projection tile; one of them has a job")
        A(f"""
        K2_noload:
        s_lshl_b32 s4, s40, 8
        s_or_b32 s4, s4, s2
        s_cmp_lg_u32 s4, 228
        s_cbranch_scc1 K2_lastbar
        s_mov_b32 s{sWS+2}, {WS_SIZE}
        s_mov_b32 s{sWS+3}, 0x00020000
        s_mov_b32 s{sDBG+2}, 256
        s_mov_b32 s{sDBG+3}, 0x00020000
        s_waitcnt lgkmcnt(0)
        """)
        A.c("hand-off tag of this launch: successor of the word the previous launch left, published through d_debug[0]")
        A(f"""
        s_mov_b32 s4, {EP}
        buffer_load_dword v14, off, {ws}, s4 sc1
        s_mov_b32 s5, 1664525
        s_waitcnt vmcnt(0)
        v_mul_lo_u32 v14, v14, s5
        v_add_u32 v14, 1013904223, v14
        v_max_u32 v14, 1, v14
        s_mov_b64 exec, 1
        buffer_store_dword v14, off, s[{sDBG}:{sDBG+3}], 0 sc1
        buffer_store_dword v14, off, {ws}, s4 sc1
        s_mov_b64 exec, -1
        s_branch K2_lastbar
        """)
        A("K2_old:")
        common2()
        if OPT.get("chain"): A("s_mov_b32 s96, 0")
        A(f"""
        v_mov_b32 v{CA}, {CNT}
        v_mov_b32 v{ONE}, 1
        v_mov_b32 v10, 0
        v_mov_b32 v11, 0
        v_mov_b32 v12, 0
        v_mov_b32 v13, 0
        """)
        if OPT.get("cpf", 1):
            A.c("pull this kernel's code into the die's L2, three lines per wave (speed only)")
            A(f"""
            s_getpc_b64 s[8:9]
            K2_pc:
            s_sub_u32 s8, s8, K2_pc - {NAME}
            s_subb_u32 s9, s9, 0
            s_lshr_b32 s10, s2, 3
            s_lshl_b32 s10, s10, 2
            s_add_u32 s10, s10, s40
            v_min_u32 v2, 2, v{LANE}
            v_lshl_add_u32 v2, v2, 7, s10
            v_min_u32 v2, (K2_codeend - {NAME}) / 128, v2
            v_lshlrev_b32 v2, 7, v2
            v_mov_b32 v3, s9
            v_add_co_u32 v2, vcc, s8, v2
            s_nop 1
            v_addc_co_u32 v3, vcc, 0, v3, vcc
            global_load_dword v161, v[2:3], off
            """)
        if OPT.get("pre", 0):
            A.c("row-wise first touch of this die's share of x and w_qkv (speed only)")
            A(f"""
            s_lshr_b32 s8, s2, 3
            s_lshl_b32 s8, s8, 2
            s_add_u32 s8, s8, s40
            s_lshl_b32 s9, s4, 1
            s_add_u32 s9, s9, s6
            s_lshl_b32 s9, s9, 7
            s_add_u32 s9, s9, s8
            s_mul_i32 s9, s9, 2304
            v_min_u32 v2, 17, v{LANE}
            v_lshlrev_b32 v2, 7, v2
            s_mul_i32 s10, s4, 144
            s_add_u32 s10, s10, s8
            s_mul_i32 s10, s10, 3456
            s_mov_b32 s{sW+2}, {576*3456}
            s_mov_b32 s{sW+3}, 0x00020000
            s_mul_i32 s11, s6, 1536
            s_add_u32 s10, s10, s11
            s_cmp_lt_u32 s8, 16
            s_cselect_b32 s11, {128*3456}, 0
            v_and_b32 v3, 15, v{LANE}
            v_min_u32 v3, 13, v3
            v_lshlrev_b32 v3, 7, v3
            v_bfe_u32 v4, v{LANE}, 4, 1
            v_mad_u32_u24 v3, v4, s11, v3
            s_waitcnt lgkmcnt(0)
            buffer_load_dword v160, v2, s[{sX}:{sX+3}], s9 offen
            buffer_load_dword v160, v3, s[{sW}:{sW+3}], s10 offen
            """)
        A(f"""
        s_waitcnt lgkmcnt(0)
        ds_write_b128 v{CA}, v[10:13]
        ds_write_b128 v{CA}, v[10:13] offset:16
        ds_write_b128 v{CA}, v[10:13] offset:32
        s_load_dwordx2 s[4:5], s[0:1], 32
        s_load_dwordx2 s[6:7], s[0:1], 64
        """)
        srd(A, sG, 40, 576 * 9216)
        srd(A, sU, 48, 576 * 9216)
        srd(A, sD, 56, 4608 * 1152)
        A(f"""
        s_mov_b32 s10, 1152
        s_mov_b32 s11, 0x00020000
        s_waitcnt lgkmcnt(0)
        s_cmp_lt_u32 s40, 2
        s_cselect_b32 s8, s4, s6
        s_cselect_b32 s9, s5, s7
        s_cmp_lg_u32 s100, 3
        s_cbranch_scc1 K2_norgv
        s_lshl_b32 s4, s40, 10
        s_add_u32 m0, s4, {RGV}
        s_and_b32 s4, s4, 1024
        buffer_load_dwordx4 v{L16}, s[8:11], s4 offen lds
        K2_norgv:
        """)
        p1_addrs()
        att_setup(True)
        A.c("MoE stage 1: 96 rows x 64 columns of w_gate or w_up per wave; stage 2 (s64): 32 rows of w_down")
        A.c("staging slots a workgroup does not need get an empty descriptor")
        nm = OPT.get('nomoe2')
        A(f"""
        s_lshr_b32 s4, s2, 3
        s_mul_i32 s41, s3, 18
        s_add_u32 s41, s41, s4
        s_mul_i32 s42, s40, {WREG}
        s_mul_i32 s9, s40, 9216
        s_cmp_lt_u32 s4, 18
        s_cselect_b32 s{sD+2}, s{sD+2}, 0
        s_cselect_b32 s64, {0 if nm else 1}, 0
        s_mul_i32 s8, s41, 36864
        s_add_u32 s8, s8, s9
        s_add_u32 s9, s9, {DN}
        s_mul_i32 s5, s3, 27
        s_add_u32 s5, s5, s4
        s_sub_u32 s5, s5, 5
        s_max_i32 s5, s5, 0
        s_mul_i32 s58, s5, 3641
        s_lshr_b32 s58, s58, 16
        s_mul_i32 s10, s58, 18
        s_sub_u32 s5, s5, s10
        s_lshl_b32 s5, s5, 2
        s_add_u32 s5, s5, s40
        s_mul_i32 s59, s5, 24
        s_add_u32 s59, s59, s58
        s_lshl_b32 s59, s59, 9
        s_add_u32 s59, s59, {PG}
        s_sub_u32 s10, s58, 6
        s_cselect_b32 s58, s58, s10
        s_cselect_b64 s[{sG}:{sG+1}], s[{sG}:{sG+1}], s[{sU}:{sU+1}]
        s_mul_i32 s54, s58, {96*9216}
        s_lshl_b32 s5, s5, 7
        s_add_u32 s54, s54, s5
        s_mul_i32 s58, s58, 192
        v_lshrrev_b32 v8, 3, v{LANE}
        v_mul_u32_u24 v8, {9216-128}, v8
        v_add_u32 v{GUA}, v8, v{L16}
        s_cmp_lt_u32 s4, 5
        s_cselect_b32 s{sG+2}, 0, s{sG+2}
        s_cselect_b32 s59, {OOB}, s59
        """)
        A("s_setprio 3")
        sp(1, "setup")
        cs("setup")
        A("""
        s_cmp_eq_u32 s100, 3
        s_cbranch_scc1 K2_rg
        s_cmp_eq_u32 s100, 4
        s_cbranch_scc1 K2_idle2
        s_cmp_ge_u32 s69, 27
        s_cbranch_scc1 K2_idle
        s_cmp_eq_u32 s100, 2
        s_cbranch_scc1 K2_pv
        """)
        for vmode in (False, True):
            if vmode: A("K2_pv:")
            A.c("v tiles: D = x W (lane = channel, registers = tokens)" if vmode else "q / k tiles: D = W^T x^T (lane = token, registers = channels)")
            gemm(vmode)
        A.c("---- no second tile in this workgroup")
        A("K2_idle:")
        for c in range(9): A("s_barrier")
        A(tagload)
        gettag()
        A(f"s_mov_b32 s61, {OOB}")
        A("s_branch K2_p1done")
        A.c("---- no projection tile at all: re-pack one head half (s5) of one 72-channel block (s3) of w_o as MFMA fragments")
        A("K2_idle2:")
        A(f"""
        s_load_dwordx2 s[68:69], s[0:1], 16
        s_mov_b32 s70, {576*1152}
        s_mov_b32 s71, 0x00020000
        s_bfe_u32 s5, s2, 0x10003
        v_mul_u32_u24 v0, 6554, v{LANE}
        v_lshrrev_b32 v0, 16, v0
        v_mul_u32_u24 v1, {1152-160}, v0
        s_mul_i32 s6, s40, 144
        s_mul_i32 s7, s5, 18
        s_add_u32 s6, s6, s7
        s_mul_i32 s4, s6, 1152
        s_mul_i32 s10, s3, 144
        s_add_u32 s4, s4, s10
        v_add3_u32 v2, v1, v{L16}, s4
        s_mul_i32 s6, s6, 160
        s_mul_i32 s7, s7, 160
        s_mov_b32 s10, 0xdff7fdff
        s_mov_b32 s11, 0x7fdff7f
        s_waitcnt lgkmcnt(0)
        s_mov_b64 exec, s[10:11]
        """)
        for u in range(12):
            row = 36 * (u // 3) + 6 * (u % 3)
            A(f"s_add_u32 m0, s6, {row*160}")
            A(f"s_mov_b32 s67, {row*1152}")
            A(f"buffer_load_dwordx4 v2, s[68:71], s67 offen lds")
        A(f"""
        s_mov_b64 exec, -1
        v_lshrrev_b32 v4, 4, v{LANE}
        v_and_b32 v6, 1, v4
        v_bfe_u32 v7, v{LANE}, 2, 2
        v_lshrrev_b32 v5, 1, v4
        v_mul_u32_u24 v5, 36, v5
        v_lshl_add_u32 v5, v6, 2, v5
        v_add_u32 v5, v5, v7
        v_mul_u32_u24 v5, 160, v5
        v_add_u32 v5, s6, v5
        v_and_b32 v8, 3, v{LANE}
        v_and_b32 v9, 1, v{LANE}
        v_lshl_add_u32 v10, v8, 3, v5
        v_lshl_add_u32 v11, v9, 3, v5
        v_lshrrev_b32 v5, 1, v7
        v_lshl_add_u32 v5, v4, 2, v5
        v_mul_u32_u24 v5, 36, v5
        v_and_b32 v7, 1, v7
        v_add3_u32 v5, v5, v7, 16
        v_mul_u32_u24 v5, 160, v5
        v_add_u32 v5, s7, v5
        v_lshl_add_u32 v12, v8, 3, v5
        s_lshl_b32 s4, s40, 5
        v_add_u32 v12, s4, v12
        v_lshl_add_u32 v13, v9, 3, v5
        s_lshl_b32 s4, s3, 1
        s_add_u32 s4, s4, s5
        s_lshl_b32 s61, s4, 5
        s_add_u32 s61, s61, {F1 + 768*32}
        v_and_b32 v{FLA}, 7, v{LANE}
        v_lshlrev_b32 v{FLA}, 2, v{FLA}
        s_mul_i32 s4, s4, 46080
        s_add_u32 s7, s4, {WP + 40960}
        s_mul_i32 s6, s40, 10240
        s_add_u32 s6, s6, s4
        s_add_u32 s6, s6, {WP}
        s_lshl_b32 s10, s40, 10
        s_add_u32 s10, s10, s7
        s_add_u32 s7, s7, 4096
        s_waitcnt vmcnt(0)
        s_barrier
        """)
        A(tagload)
        for f in range(12):
            for a in range(2):
                if f < 10:
                    ks, T = divmod(f, 5)
                    A(f"ds_read_b64_tr_b16 {vr(16+4*f+2*a,2)}, v{10 if T < 4 else 11}{off((72*ks+8*a)*160+32*T)}")
                else:
                    A(f"ds_read_b64_tr_b16 {vr(16+4*f+2*a,2)}, v{2+f}{off(72*a*160+128*(f-10))}")
        gettag()
        A("s_waitcnt lgkmcnt(0)")
        for f in range(10):
            if f in (4, 8): A("s_add_u32 s6, s6, 4096")
            A(f"buffer_store_dwordx4 {vr(16+4*f,4)}, v{L16}, {ws}, s6 offen{off(1024*(f%4))} sc1")
        A(f"buffer_store_dwordx4 v[56:59], v{L16}, {ws}, s10 offen sc1")
        A(f"buffer_store_dwordx4 v[60:63], v{L16}, {ws}, s7 offen sc1")
        A("s_branch K2_p1done")
        A.c("---- router score and mix gate of 32 tokens per wave")
        A("K2_rg:")
        A(f"""
        v_lshrrev_b32 v1, 4, v{LANE}
        v_and_b32 v2, 31, v{LANE}
        v_and_b32 v3, 1, v{LANE}
        v_lshlrev_b32 v3, 11, v3
        v_lshl_add_u32 v3, v1, 4, v3
        v_add_u32 v{AW}, {RGV}, v3
        s_lshl_b32 s4, s71, 5
        v_add_u32 v{AW+1}, s4, v2
        v_cmp_lt_u32 vcc, 15, v2
        s_waitcnt vmcnt(0)
        """)
        for c in range(9):
            A("s_barrier")
            if c == 0: cs("B0")
            if c == 5: A(tagload)
            for n in (2 * c, 2 * c + 1):
                A(f"ds_read_b128 {vr(FR[n%2]+16,4)}, v{AW}{off(64*n)}")
                for a in range(2): A(xread(n, a, False))
            for n in (2 * c, 2 * c + 1):
                A(f"s_waitcnt lgkmcnt({3*(1-n%2)})")
                for a in range(2):
                    A(mf16(vr(ACC + 4 * a, 4), vr(FR[n % 2] + 16, 4), vr(FR[n % 2] + 4 * a, 4), "0" if n == 0 else vr(ACC + 4 * a, 4)))
        gettag()
        A("s_nop 3")
        cs("pass A")
        A(f"v_cndmask_b32 v{ACC}, v{ACC}, v{ACC+4}, vcc")
        A(f"v_cndmask_b32 v{ACC+1}, v{ACC+1}, v{ACC+5}, vcc")
        A(f"""
        s_mov_b32 s5, 0xffff0000
        v_cvt_pk_bf16_f32 v6, v{ACC+1}, v{ACC}
        v_lshlrev_b32 v4, 16, v6
        v_mul_f32 v4, {0x80000000 | LOG2E}, v4
        v_exp_f32 v4, v4
        v_ashrrev_i32 v7, 31, v6
        v_add_f32 v4, 1.0, v4
        v_rcp_f32 v4, v4
        v_or_b32 v7, 0x80000000, v7
        v_xor_b32 v6, v6, v7
        v_and_b32 v6, s5, v6
        v_sub_u32 v7, 0xffff, v{AW+1}
        v_or_b32 v6, v6, v7
        v_cvt_pk_bf16_f32 v4, v4, v4
        v_and_b32 v4, s5, v4
        v_mov_b32 v5, s{sTAG}
        v_lshlrev_b32 v7, 3, v{AW+1}
        s_mov_b32 s4, {GB}
        buffer_store_dwordx2 v[4:5], v7, {ws}, s4 offen sc1
        """)
        wave_top2_u32(A, 6, 7, 6, 7)
        A(f"""
        s_lshl_b32 s4, s71, 4
        s_add_u32 s4, s4, {RC}
        v_mov_b32 v8, s6
        v_mov_b32 v9, s{sTAG}
        v_mov_b32 v10, s7
        v_mov_b32 v11, s{sTAG}
        s_mov_b64 exec, 1
        buffer_store_dwordx4 v[8:11], off, {ws}, s4 sc1
        s_mov_b64 exec, -1
        s_mov_b32 s61, {OOB}
        """)
        sp(1, "astore")
        cs("a stores")
        A("K2_p1done:")
        A("s_mov_b32 s55, s61")
        presets()
        scratch_addrs(AS, WREG)
        tables()
        pflag(55)
        sp(1, "aflag")
        cs("flag")

    def ldK(p):
        return [f"buffer_load_dwordx4 {vr(KP[p%3]+6*i,4)}, v{KA}, {ws}, s{sT[2*p]} offen{off(256*i)} sc1" for i in range(2)]

    def ldV(j):
        return ["s_mov_b64 exec, s[62:63]"] + \
            [f"buffer_load_dwordx4 {vr(VV[j%NB]+4*i,4)}, v{(VA, VA2)[j%2]}, {ws}, s{sT[(j & ~1)+i]} offen sc1" for i in range(2)] + \
            ["s_mov_b64 exec, -1"]

    def ldKE(g):
        return [f"buffer_load_dwordx4 {vr(KE+4*g,4)}, v{KEA}, {ws}, s{sT[4*g]} offen sc1"]

    QT = 32

    def ldQ(rp):
        return [f"buffer_load_dwordx4 {vr(QT+8*rp+4*i,4)}, v{KA}, {ws}, s{56+rp} offen{off(256*i)} sc1" for i in range(2)]

    def items(j):
        return ([ldKE(j // 4)] if j % 4 == 0 else []) + ([[l] for l in ldK(j // 2)] if j % 2 == 0 else []) + [ldV(j)]

    def kmov(kt):
        b = KP[(kt // 2) % 3]
        return f"v_mov_b64 {vr(b+4,2)}, {vr(b+8 if kt % 2 else b,2)}"

    def m2b(kt, c):
        u = kt % 4
        return (f"v_mfma_f32_32x32x4_2b_bf16 {vr(S[c],32)}, {vr(KE+4*(kt//4)+2*(u%2),2)}, {vr(QE+2*c,2)}, 0"
                f" cbsz:1 abid:{u//2}")

    def mm(kt, c, b):
        d = vr(S[c] + 16 * b, 16)
        return mfma(d, vr(KP[(kt // 2) % 3] + (2 if kt % 2 else 4), 4), vr(QM + 4 * (c + 2 * b), 4), d)

    def sm(kt, c, b, i):
        return (f"v_smfmac_f32_32x32x32_bf16 {vr(O[c+2*b],16)}, {vr(VV[kt%NB]+4*i,4)}, "
                f"{vr(S[c]+16*b+8*i,8)}, v{IDX}")

    def moe_dma(n):
        if n < 12:
            return [f"s_add_u32 m0, s42, {1024*n}", f"s_add_u32 s67, s54, {8*9216*n}",
                    f"buffer_load_dwordx4 v{GUA}, s[{sG}:{sG+3}], s67 offen{OPT.get('gunt', ' nt')} lds"]
        n -= 12
        pre = [f"s_add_u32 m0, s9, {4096*(n//4)}", f"s_add_u32 s67, s8, {4096*(n//4)}"]
        return pre + [f"buffer_load_dwordx4 v{L16}, s[{sD}:{sD+3}], s67 offen{off(1024*(n%4))}{OPT.get('dnnt', ' nt')} lds"]

    def xsel_dma(k):
        return [f"s_add_u32 m0, s42, {12288+1024*k}", "s_nop 0",
                f"buffer_load_dwordx4 v{L16}, s[{sX}:{sX+3}], s{10+k} offen lds"]

    GQ = 190
    gqload = [f"buffer_load_dwordx2 {vr(d,2)}, v{a}, {ws}, s52 offen sc1" for d, a in ((250, 234), (GQ, GQA))]

    def owrite(t):
        return [f"ds_write_b128 v{SW}, {vr(O[t],4)}{off(2048*t)}",
                f"ds_write_b128 v{SW}, {vr(O[t]+4,4)}{off(2048*t+1024)}",
                f"ds_write_b64 v{SW}, {vr(O[t]+8,2)}{off((6144, 6152, 7168)[t])}"]

    def scratch_addrs(base, stride):
        A(f"s_mul_i32 s4, s40, {stride}")
        A(f"s_add_u32 s4, s4, {base}")
        A(f"v_add_u32 v{SW}, s4, v{L16}")
        for t in range(3):
            A(f"s_xor_b32 s4, s40, {t ^ 3}")
            A(f"s_mul_i32 s4, s4, {stride}")
            A(f"s_add_u32 s4, s4, {base}")
            A(f"v_add_u32 v{RD+t}, s4, v{L16}")
        A(f"""
        v_bfe_u32 v{PM}, v{LANE}, 4, 1
        v_lshlrev_b32 v{PM}, 14, v{PM}
        v_lshrrev_b32 v{PE}, 5, v{LANE}
        v_lshl_add_u32 v{PM}, v{PE}, 8, v{PM}
        v_and_b32 v{PE}, 0xff, v{L16}
        v_add_u32 v{PM}, v{PM}, v{PE}
        v_and_b32 v{PE}, 31, v{LANE}
        v_lshlrev_b32 v{PE}, 2, v{PE}
        s_lshl_b32 s4, s39, 6
        s_lshl_b32 s5, s37, 2
        s_add_u32 s4, s4, s5
        s_add_u32 s4, s4, s40
        s_lshl_b32 s5, s4, 1
        s_and_b32 s6, s40, 1
        s_sub_u32 s5, s5, s6
        s_lshl_b32 s5, s5, 13
        s_lshl_b32 s6, s43, 9
        s_add_u32 s5, s5, s6
        s_add_u32 s65, s5, {OM}
        s_lshl_b32 s4, s4, 4
        s_add_u32 s4, s4, s43
        s_lshl_b32 s4, s4, 7
        s_add_u32 s66, s4, {OE}
        s_lshl_b32 s4, s37, 10
        s_lshr_b32 s5, s40, 1
        s_lshl_b32 s5, s5, 9
        s_add_u32 s4, s4, s5
        s_and_b32 s5, s40, 1
        s_lshl_b32 s5, s5, 7
        s_add_u32 s4, s4, s5
        s_add_u32 s52, s4, {GB}
        s_lshl2_add_u32 s4, s37, s40
        s_lshl_b32 s4, s4, 7
        s_lshl2_add_u32 s4, s43, s4
        s_add_u32 s61, s4, {FO}
        v_mov_b32 v{CA}, {CNT + (0 if base == AS else 12)}
        v_mov_b32 v{ONE}, 1
        """)

    def attention(old):
        pend = []

        def issue(lines, tag):
            for l in lines:
                if l.startswith("buffer_"):
                    pend.append(tag)
            return lines

        def wait_for(tag):
            last = max(i for i, t in enumerate(pend) if t == tag)
            n = len(pend) - 1 - last
            del pend[:last + 1]
            return f"s_waitcnt vmcnt({n})"

        if old:
            sl0, sl1 = OPT.get("psleep", (20, 0))
            A.c("wave 1 watches the flags; the barrier releases the others")
            A(f"""
            s_cmp_lg_u32 s40, 1
            s_cbranch_scc1 K2_p1seen
    s_mov_b32 s5, {SPIN}
    """)
            A.c("flags that nobody has cached yet are written faster: back off first; workgroups without a projection")
            A.c("tile are far ahead of the others and watch a single line until it is complete")
            A(f"""
            s_cmp_lt_u32 s2, 224
            s_cbranch_scc0 K2_p1gate0
            """)
            if OPT.get("peek"):
                A(f"""
                s_mov_b64 exec, {OPT["peek"]}
                buffer_load_dword v12, v{PA}, {ws}, 0 offen sc1
                s_waitcnt vmcnt(0)
                v_cmp_ne_u32 vcc, s{sTAG}, v12
                s_mov_b64 exec, -1
                s_cbranch_vccz K2_p1poll
                """)
            A(f"""
            s_sleep {sl0}
            s_branch K2_p1poll
            K2_p1gate0:
            s_mov_b64 exec, {OPT.get("gex", 15)}
            K2_p1gate:
            s_sleep {OPT.get("gsl", 3)}
            buffer_load_dword v12, v{PA}, {ws}, 0 offen sc1
            s_sub_u32 s5, s5, 1
            s_cbranch_scc1 K2_p1open
            s_waitcnt vmcnt(0)
            v_cmp_ne_u32 vcc, s{sTAG}, v12
            s_cbranch_vccnz K2_p1gate
            K2_p1open:
            s_mov_b64 exec, -1
            s_mov_b32 s5, {SPIN}
            {f"s_sleep {OPT['gs2']}" if OPT.get("gs2") else ""}
    K2_p1poll:
    buffer_load_dword v12, v{PA}, {ws}, 0 offen sc1
    buffer_load_dword v13, v{PA+1}, {ws}, 0 offen sc1
    s_sub_u32 s5, s5, 1
    s_cbranch_scc1 K2_p1seen
    s_waitcnt vmcnt(0)
    v_cmp_ne_u32 vcc, s{sTAG}, v12
    v_cmp_ne_u32 s[6:7], s{sTAG}, v13
    s_or_b64 vcc, vcc, s[6:7]
    s_cbranch_scc0 K2_p1seen
    {f"s_sleep {sl1}" if sl1 else ""}
    s_branch K2_p1poll
    K2_p1seen:
            s_barrier
            """)
        sp(old, "polled")
        if old: cs("polled")
        pro = issue([f"buffer_load_dwordx4 {vr(QT+16,4)}, v{QEA}, {ws}, s60 offen sc1"] + ldKE(0), "qe") + \
            issue(ldK(0) + ldQ(0), "q0") + issue(ldQ(1), "q1") + issue(ldV(0)[:-1], "g0") + issue(ldV(1)[1:], "g1")
        NP = OPT.get("np", (3, 2))[not old]
        LATE = OPT.get("late", 0)
        if not LATE:
            for j in range(2, NP): pro += issue(sum(items(j), []), f"g{j}")
        for i, l in enumerate(pro):
            if old and i == OPT.get("xb", -1): A("s_barrier")
            A(l)
            if not old and l.startswith("buffer_") and OPT.get("ypace", 0): A(f"s_sleep {OPT.get('ypace', 1)}")
        if not old:
            A("v_mov_b64 v[250:251], -1\nv_mov_b64 v[252:253], -1")
        if old:
            if not LATE: A("s_barrier")
            cs("issued")
            csflush(0, 12)
        A(f"""
        v_mov_b32 v{IDX}, 0xdddddddd
        s_bitcmp0_b32 s36, 0
        s_cselect_b32 s4, -1, 0
        s_cselect_b32 s5, 0, -1
        s_bitcmp1_b32 s40, 0
        """)
        l = lab("K2_qsel")
        w0 = wait_for("qe")
        more = []
        if LATE:
            for j in range(2, NP): more += issue(sum(items(j), []), f"g{j}")
            if old: more.append("s_barrier")
        w1, w2 = wait_for("q0"), wait_for("q1")
        A(f"s_cbranch_scc1 {l}")
        for b0 in (1, 0):
            if b0 == 0: A(f"{l}:")
            A(w0)
            for c in range(2):
                A(f"v_and_b32 v{QE+2*c}, s4, v{QT+16+2*(c^b0)}")
                A(f"v_and_b32 v{QE+2*c+1}, s5, v{QT+17+2*(c^b0)}")
            A(m2b(0, 0))
            for x in more: A(x)
            if len(more) < 12: A(f"s_nop {11 - len(more)}")
            for rp in range(2):
                A((w1, w2)[rp])
                if rp == 0: A(kmov(0))
                for t in (2 * rp, 2 * rp + 1):
                    for ab in range(2):
                        A(f"v_mov_b64 {vr(QM+4*t+2*ab,2)}, {vr(QT+8*(t>>1)+4*ab+2*((t&1)^b0),2)}")
                A(mm(0, 0, rp))
            if b0 == 1: A(f"s_branch {l}_d")
        A(f"{l}_d:")
        A("s_nop 4")
        A(f"s_setprio {1 if old else 0}")
        sp(old, "first")
        MK, MK2 = OPT.get("mk", (1, 5))
        XS = OPT.get("xsel", 9)
        TP = OPT.get("top2", 12)
        gsched = {}
        nx = NP
        for kt in range(NP - 2, 16):
            for _ in range(2 if kt in OPT.get("ramp" if old else "yramp", (1, 3)) else 1):
                if nx <= min(15, kt + NB - 1):
                    gsched.setdefault(kt, []).append(nx); nx += 1
        dsched = {}
        d0, d1 = OPT.get("dma", (3, 29))
        order = range(21)
        for i, x in enumerate(order): dsched.setdefault(d0 + i * (d1 - d0) // 21, []).append(x)
        assert max(dsched) < 30
        touch = {}
        for kt in range(16):
            for c in range(2):
                n = 2 * kt + c
                cur = S[c]
                nxt = (kt, 1) if c == 0 else (kt + 1, 0)
                prv = (kt - 1, 1) if c == 0 else (kt, 0)
                has_next = n < 31
                ins = {}
                def at(p, l): ins.setdefault(p, []).extend(l if isinstance(l, list) else [l])
                if n > 0:
                    at(1, sm(prv[0], prv[1], 1, 1))
                L2 = OPT.get("lchain") == 2
                if c == 0:
                    if L2: at(1, "s_memtime s[82:83]")
                    todo = [(it, f"g{j}") for j in gsched.get(kt, []) for it in items(j)]
                    if not old and OPT.get("vpair", 1) and kt >= 4 and todo:
                        j = gsched[kt][0]
                        assert len(gsched[kt]) == 1
                        todo = todo[:-1] if j % 2 == 0 else [(ldV(j - 1)[:-1] + ldV(j)[1:], f"g{j-1}")]
                    if old and kt == XS: todo += [(xsel_dma(0), "st1"), (xsel_dma(1), "st1")]
                    slots = OPT.get("slots", [(0, 16), (0, 24), (1, 16), (1, 24), (1, 25), (1, 31)]) if old else \
                        OPT.get("yslots", [(0, 2), (0, 14), (0, 26), (1, 8), (1, 22), (1, 30)])
                    place = {sl: td for sl, td in zip(slots, todo)}
                    assert len(todo) <= len(slots)
                if c == 0 and L2: at(1, "s_memtime s[84:85]")
                if c == 1 and L2: at(4, "s_memtime s[86:87]")
                if c == 1 and L2:
                    at(4, "s_memtime s[88:89]")
                    at(30, ["s_waitcnt lgkmcnt(0)"] + sum([[f"s_sub_u32 s{82+2*q}, s{82+2*q}, s80", f"v_writelane_b32 v{PA}, s{82+2*q}, {4*kt+q}"] for q in range(4)], []))
                ev = [(p, td) for (cc, p), td in place.items() if cc == c]
                if old and n in touch: ev.append((19, (touch[n], "moe")))
                if old and not OPT.get("nomoe"):
                    for i, x in enumerate(dsched.get(n, [])): ev.append((OPT.get("dpos", (0, 0))[c] + 10 * i, (moe_dma(x), "st1" if x < 12 else "moe")))
                if old and n == TP - 8:
                    ev.append((OPT.get("epos", 11), ([f"s_mov_b32 s4, {RC}", f"buffer_load_dwordx4 {vr(CAND,4)}, v{L16}, {ws}, s4 offen sc1"], "cand")))
                XP = OPT.get("xp", 24)
                if old and n == XP - 1:
                    at(8, f"ds_read_b32 v250, v{TA} offset:3072")
                if old and XP <= n < XP + 3:
                    k = n - XP
                    ev.append((OPT.get("epos", 11), ((["s_waitcnt lgkmcnt(0)"] if k == 0 else []) +
                                    [f"s_add_u32 m0, s97, {1008*k}", f"s_add_u32 s4, s34, {7*1152*k}",
                                     f"buffer_load_dwordx4 v250, s[{sX}:{sX+3}], s4 offen lds"], "moe")))
                if not old and n == MK:
                    ev.append((18, ([f"buffer_store_dwordx4 v[250:253], v{PM}, {ws}, s65 offen sc1"], "mark")))
                    ev.append((20, ([f"buffer_store_dword v250, v{PE}, {ws}, s66 offen sc1"], "mark")))
                if not old and n == MK2: ev.append((18, ([gqload[0]], "gq")))
                if n == 0: ev.append((12, "g0"))
                if c == 1 and has_next and not (not old and OPT.get("vpair", 1) and kt >= 8 and kt % 2 == 0):
                    ev.append((OPT.get("wpos", 1), f"g{kt+1}"))
                for p, td in sorted(ev, key=lambda e: e[0]):
                    at(p, wait_for(td) if isinstance(td, str) else issue(*td))
                if c == 1 and has_next: at(10, kmov(kt + 1))
                if has_next:
                    at(4, m2b(*nxt))
                    at(20, mm(nxt[0], nxt[1], 0))
                    at(28, mm(nxt[0], nxt[1], 1))
                at(12, sm(kt, c, 0, 0))
                at(17, sm(kt, c, 0, 1))
                at(25, sm(kt, c, 1, 0))
                if OPT.get("lchain") == 1:
                    if c == 0: at(0, "s_memtime s[88:89]")
                    else: at(0, ["s_waitcnt lgkmcnt(0)", "s_sub_u32 s88, s88, s80", f"v_writelane_b32 v{PA}, s88, {kt}"])
                if not old and n == MK2:
                    assert "mark" not in pend
                    at(6, ["s_mov_b64 exec, 1", f"ds_add_u32 v{CA}, v{ONE} offset:12", "s_mov_b64 exec, -1"])
                if n == 24:
                    if old:
                        at(2, f"ds_read_b128 {vr(M0,4)}, v{TA}")
                        at(26, "s_waitcnt lgkmcnt(0)")
                        at(27, issue([gqload[old]], "gq"))
                    else:
                        assert "gq" not in pend
                        at(6, [f"v_cmp_ne_u32 vcc, s{sTAG}, v251", f"s_cbranch_vccnz K2_gqspin0", f"K2_gqok0:"])
                        at(9, f"v_mov_b32 v{GQ}, v250")
                if n == 30 and old:
                    at(0, [wait_for("gq"), f"v_cmp_ne_u32 vcc, s{sTAG}, v{GQ+1}", f"s_cbranch_vccnz K2_gqspin1", f"K2_gqok1:"])
                if old and n >= 27:
                    G, XF, WFs = 202, 148, [218, 222, 164, 168]
                    if n == 27:
                        at(8, f"v_mov_b32 v251, v{TAGV}")
                        at(14, f"v_mov_b32 v253, v{TAGV}")
                    elif n < 31:
                        assert "st1" not in pend
                        u = n - 28
                        rp, mp, wn = OPT.get("s1", ((2,) * 9, (11, 16, 24, 31), (6, 0)))
                        at(rp[0], f"ds_read_b128 {vr(XF,4)}, v{M3} offset:{12288+64*u}")
                        for t in range(4):
                            for a in range(2):
                                at(rp[1 + 2 * t + a], f"ds_read_b64_tr_b16 {vr(WFs[t]+2*a,2)}, v{M0}{off(4096*u+512*a+32*t)}")
                        for t in range(4):
                            at(mp[t], ([f"s_waitcnt lgkmcnt({wn[t]})"] if t < len(wn) else []) +
                               [mf16(vr(G + 4 * t, 4), vr(XF, 4), vr(WFs[t], 4), "0" if u == 0 else vr(G + 4 * t, 4))])
                    else:
                        at(7, ["s_mov_b32 s10, 0", "s_mov_b32 s11, -1", "s_add_u32 s4, s59, 6144",
                               f"v_cndmask_b32 v250, v{G}, v{G+4}, s[10:11]",
                               f"buffer_store_dwordx2 v[250:251], v{M4}, {ws}, s59 offen sc1"])
                        at(9, [f"v_cndmask_b32 v252, v{G+8}, v{G+12}, s[10:11]",
                               f"buffer_store_dwordx2 v[252:253], v{M4}, {ws}, s4 offen sc1"])
                if n == 31:
                    for t, pp in zip((0, 2, 1), OPT.get("oow" if old else "ow", ((0, 4, 8), (13, 18, 23), (28, 30, 31)))):
                        for p, l in zip(pp, owrite(t)): at(p, l)
                if n == TP and old:
                    assert "cand" not in pend
                    B = Asm()
                    at(0, [f"v_cmp_ne_u32 vcc, s{sTAG}, v{CAND+1}", f"v_cmp_ne_u32 s[4:5], s{sTAG}, v{CAND+3}",
                           "s_or_b64 vcc, vcc, s[4:5]", "s_cbranch_scc1 K2_candspin", "K2_candok:"])
                    wave_max_u32(B, CAND, CAND + 1, 68)
                    B(f"s_nop 1\nv_cmp_ne_u32 vcc, s68, v{CAND}\ns_nop 1\nv_cndmask_b32 v{CAND}, v{CAND+2}, v{CAND}, vcc")
                    wave_max_u32(B, CAND, CAND + 1, 69)
                    B(f"""
                    s_nop 0
                    s_not_b32 s70, s68
                    s_not_b32 s71, s69
                    s_and_b32 s70, s70, 0x7ff
                    s_and_b32 s71, s71, 0x7ff
                    s_mul_i32 s10, s70, 1152
                    s_mul_i32 s11, s71, 1152
                    s_add_u32 s10, s10, s58
                    s_add_u32 s11, s11, s58
                    """)
                    p = -1
                    tail = []
                    for l in B.lines:
                        l = l.strip()
                        if l == "s_nop 1" and p + 2 <= 31:
                            p += 2
                        elif p + 2 > 31 or tail:
                            tail.append(l)
                        else:
                            at(p, l)
                    at(31, tail)
                sp(old, f"p{n}")
                for i in range(32):
                    A(f"v_exp_f32 v{cur+i}, v{cur+i}")
                    for l in ins.get(i, []):
                        if OPT.get("noload") and kt >= 2 and not l.startswith(("v_smfmac", "v_mfma_f32_32", "v_mov_b64", "K2_")): continue
    p1_compute()
    attention(True)
    if OPT.get("quit"):
        ST.flush(v=20)
        A("s_endpgm")
    if OPT.get("chain"): A("s_mov_b32 s96, 0")
    cs("loop end")
    A.c("---- MoE stage 2: fetch three partials per wave")
    PL = 184

    def pload():
        for q in range(3):
            A(f"buffer_load_dwordx2 {vr(PL+2*q,2)}, v{M4}, {ws}, s67 offen{off(512*q)} sc1")
    A(f"""
    s_and_b32 s4, s40, 1
    s_lshl_b32 s4, s4, 1
    s_lshr_b32 s5, s40, 1
    s_add_u32 s4, s4, s5
    s_lshl_b32 s5, s41, 2
    s_add_u32 s4, s4, s5
    s_mul_i32 s4, s4, 1536
    s_add_u32 s67, s4, {PG}
    s_cmp_eq_u32 s64, 0
    s_cbranch_scc1 K2_fin0
    """)
    pload()
    A("s_branch K2_fin0")

    A("K2_young2:")
    scratch_addrs(BS, 8192)
    A("s_barrier")
    tables_lane()
    tables_store()
    A(f"v_mov_b32 v234, v19\ns_waitcnt lgkmcnt(0)\ns_barrier\ns_barrier")
    if OPT.get("xb", -1) >= 0: A("s_barrier")
    if OPT.get("ydelay"): A(f"s_sleep {OPT['ydelay']}")
    attention(False)
    A("K2_fin0:")
    o = O[3]
    A.c("LDS executes a wave's operations in order: the count is bumped after this wave's writes, and reads issued")
    A.c("behind a count of 4 see every partial")
    A(f"""
    s_setprio 2
    s_mov_b32 s5, {LSPIN}
    s_mov_b64 exec, 1
    ds_add_u32 v{CA}, v{ONE}
    s_mov_b64 exec, -1
    K2_fin1:
    ds_read_b32 v0, v{CA}
    """)
    for t in range(3):
        A(f"ds_read_b128 {vr(O[t],4)}, v{RD+t}{off(2048*t)}")
        A(f"ds_read_b128 {vr(O[t]+4,4)}, v{RD+t}{off(2048*t+1024)}")
        A(f"ds_read_b64 {vr(O[t]+8,2)}, v{RD+t}{off((6144, 6152, 7168)[t])}")
    A("""
    s_waitcnt lgkmcnt(9)
    v_readfirstlane_b32 s4, v0
    s_cmp_lt_u32 s4, 4
    s_cbranch_scc1 K2_finwait
    K2_fin2:
    """)
    A(f"s_mov_b32 s4, {f32bits(2.0**-30)}")
    A(f"v_mov_b32 v9, {f32bits(2.0**60)}")
    for t in range(3):
        A(f"s_waitcnt lgkmcnt({3*(2-t)})")
        for i in ((4, 0, 1, 2, 3) if t == 2 else range(5)):
            A(f"v_pk_add_f32 {vr(o+2*i,2)}, {vr(o+2*i,2)}, {vr(O[t]+2*i,2)}")
            if t == 2 and i == 0: A(f"v_rcp_f32 v0, v{o+9}")
    A.c("safety check of the unshifted softmax: denominator in [2^-30, 2^60], numerators finite; else redo with the true max")

    def norm():
        return [f"v_mul_f32 v2, v{o+8}, v0", f"v_mul_f32 v3, v{o+8}, v0"] + \
            [f"v_pk_mul_f32 {vr(o+2*i,2)}, {vr(o+2*i,2)}, v[0:1] op_sel_hi:[1,0]" for i in range(4)] + \
            ["v_permlane32_swap_b32 v2, v3"] + [f"v_cvt_pk_bf16_f32 v{4+i}, v{o+2*i}, v{o+2*i+1}" for i in range(4)] + \
            ["v_cvt_pk_bf16_f32 v2, v2, v3"]
    A(f"""
    v_mul_f32 v0, v0, v{GQ}
    v_maximum3_f32 v10, abs(v{o}), abs(v{o+1}), abs(v{o+2})
    v_maximum3_f32 v11, abs(v{o+3}), abs(v{o+4}), abs(v{o+8})
    v_maximum3_f32 v12, abs(v{o+5}), abs(v{o+6}), abs(v{o+7})
    v_med3_f32 v8, v{o+9}, s4, v9
    v_maximum3_f32 v10, v10, v11, abs(v0)
    v_cmp_eq_f32 s[6:7], v8, v{o+9}
    v_maximum3_f32 v10, v10, v10, v12
    """)
    nm = norm()
    A(nm[0])
    A(f"v_cmp_gt_f32 vcc, {f32bits(2.0**90)}, v10")
    for l in nm[1:7]: A(l)
    A("s_and_b64 vcc, vcc, s[6:7]")
    for l in nm[7:9]: A(l)
    A("s_cmp_eq_u64 vcc, exec")
    for l in nm[9:]: A(l)
    A(f"""
    {"s_nop 0" if OPT.get("noload") else "s_cbranch_scc0 K2_slow"}
    K2_fin:
    buffer_store_dwordx4 v[4:7], v{PM}, {ws}, s65 offen sc1
    buffer_store_dword v2, v{PE}, {ws}, s66 offen sc1
    s_cmp_eq_u32 s39, 0
    s_cbranch_scc1 K2_old2
    s_mov_b64 exec, 1
    ds_add_u32 v{CA}, v{ONE} offset:4
    """)
    if gen1.DIAG:
        sp(0, "flag"); A("s_waitcnt vmcnt(0)")
    ST.flush(v=20)
    A("K2_end:")
    A("s_endpgm")

    A("K2_old2:")
    cs("fin")
    HPW, HPR, DNA, HA, HW, YA, FA, GA = range(208, 216)
    OUT, SG1, SG2, OEA, B1, SR, TV, SV = 240, 241, 242, 243, 248, 249, 252, 250
    ACC, OF, WF = 0, 20, 56
    XR, GV, T0 = 72, 244, 112
    srd(A, sO, 72, XB)
    gload = f"buffer_load_dwordx2 {vr(GV,2)}, v{GA}, {ws}, s52 offen sc1"
    A(f"""
    ds_read_b128 {vr(HPW,4)}, v{TA} offset:1024
    ds_read_b128 {vr(HW,4)}, v{TA} offset:2048
    ds_read_b128 {vr(OUT,4)}, v{TA} offset:3072
    ds_read_b64 {vr(B1,2)}, v{TA} offset:4096
    s_lshl_b32 s4, s32, 7
    s_add_u32 s52, s4, {GB}
    s_lshl_b32 s42, s40, 11
    s_add_u32 s66, s35, s42
    s_waitcnt vmcnt(2) lgkmcnt(0)
    s_cmp_eq_u32 s64, 0
    s_cbranch_scc1 K2_nop
    s_mov_b32 s5, {SPIN}
    K2_pchk:
    v_cmp_ne_u32 vcc, s{sTAG}, v{PL+1}
    v_cmp_ne_u32 s[8:9], s{sTAG}, v{PL+3}
    v_cmp_ne_u32 s[10:11], s{sTAG}, v{PL+5}
    s_or_b64 s[8:9], s[8:9], vcc
    s_or_b64 s[8:9], s[8:9], s[10:11]
    s_cbranch_scc0 K2_pok
    s_sleep 4
    """)
    pload()
    A(f"""
    s_sub_u32 s5, s5, 1
    s_waitcnt vmcnt(0)
    s_cbranch_scc0 K2_pchk
    K2_pok:
    v_add_f32 v10, v{PL}, v{PL+2}
    v_add_f32 v10, v10, v{PL+4}
    ds_write_b32 v{HPW}, v10
    K2_nop:
    """)
    arrive(1)
    A(gload)
    cs("partials")
    gwait(1)
    cs("gwait1")
    wpos = [0]

    def wodma(cnt, paced=True):
        for u in range(wpos[0], wpos[0] + cnt):
            if u == 11:
                A(f"s_sub_u32 s66, s66, s42\ns_mov_b32 s42, 0")
            A(f"s_add_u32 m0, s42, {8192*u}")
            A(f"s_add_u32 s67, s66, {8192*u}")
            for h in range(2):
                A(f"buffer_load_dwordx4 v{L16}, {ws}, s67 offen{off(1024*h)} sc1 lds")
            if paced: A(f"s_waitcnt vmcnt({OPT.get('wopace', 4)})")
        wpos[0] += cnt

    A.c("the half-A flag also tells that waves 4-7 have marked their slots")
    gwait(6)
    A(f"""
    s_mov_b64 exec, 1
    s_waitcnt vmcnt(1)
    buffer_store_dword v{TAGV}, off, {ws}, s61 sc1
    s_mov_b64 exec, -1
    s_cmp_eq_u32 s64, 0
    s_cbranch_scc0 K2_st2
    """)
    arrive(7)
    SPR = OPT.get("spr", 2)
    wodma(SPR + 2)
    wpos[0] = 0
    A("s_branch K2_nost2")
    A("K2_st2:")
    n0 = len(A.lines)
    A.c("---- MoE: h = silu(gate) * up, then this wave's w_down column tiles")
    A(f"""
    ds_read2st64_b32 v[10:11], v{HPR} offset0:0 offset1:1
    ds_read2st64_b32 v[12:13], v{HPR} offset0:2 offset1:3
    """)
    for t in range(5):
        for a in range(2):
            A(f"ds_read_b64_tr_b16 {vr(24+4*t+2*a,2)}, v{DNA}{off(4608*a+32*t)}")
    A(f"""
    s_waitcnt lgkmcnt(10)
    v_pk_add_f32 v[10:11], v[10:11], v[12:13]
    v_cvt_pk_bf16_f32 v11, v10, v11
    v_lshlrev_b32 v10, 16, v11
    v_mul_f32 v12, {0x80000000 | LOG2E}, v10
    v_exp_f32 v12, v12
    v_and_b32 v11, 0xffff0000, v11
    v_add_f32 v12, 1.0, v12
    v_rcp_f32 v12, v12
    s_mul_i32 s4, s41, 4608
    v_mul_f32 v10, v10, v12
    v_cvt_pk_bf16_f32 v10, 0, v10
    v_mul_f32 v10, v10, v11
    v_cvt_pk_bf16_f32 v10, v10, v10
    ds_write_b16 v{HW}, v10
    ds_read_b128 v[12:15], v{HA}
    """)
    for t in range(5, 10):
        for a in range(2):
            A(f"ds_read_b64_tr_b16 {vr(24+4*t+2*a,2)}, v{DNA}{off(4608*a+32*t)}")
    A(f"""
    s_add_u32 s5, s4, {YP}
    s_mov_b32 s10, 0
    s_mov_b32 s11, -1
    s_waitcnt lgkmcnt(10)
    """)
    Y = [128 + 4 * t for t in range(10)]
    for t in range(10):
        if t == 5: A("s_waitcnt lgkmcnt(0)")
        A(mf16(vr(Y[t], 4), "v[12:15]", vr(24 + 4 * t, 4), "0"))
        if OPT.get("gap") and t < 9: A(f"s_nop {OPT['gap']}")
    A("s_nop 1")
    for t in range(0, 10, 2):
        A(f"v_cndmask_b32 v{Y[t]}, v{Y[t]}, v{Y[t+1]}, s[10:11]")
        A(f"buffer_store_dword v{Y[t]}, v{YA}, {ws}, s5 offen{off(64*t)} sc1")
    body = A.lines[n0:]; del A.lines[n0:]
    marks = [i * len(body) // (SPR + 1) for i in range(SPR)]
    for i, l in enumerate(body):
        if i in marks: wodma(1, False)
        A.lines.append(l)
    arrive(7)
    wodma(2, False)
    A(f"""
    s_lshl_b32 s4, s41, 7
    s_lshl_b32 s5, s40, 2
    s_add_u32 s4, s4, s5
    s_add_u32 s4, s4, {FY}
    s_mov_b64 exec, 1
    s_waitcnt vmcnt(4)
    buffer_store_dword v{TAGV}, off, {ws}, s4 sc1
    s_mov_b64 exec, -1
    K2_nost2:
    """)
    wodma(5 - SPR)
    cs("down")
    Y0 = WF
    nosel = OPT.get("nomoe2") or OPT.get("nosel")

    def yflag_load():
        A(f"buffer_load_dwordx4 {vr(Y0+48,4)}, v{T0+2}, {ws}, s65 offen sc1")

    def y_first():
        A(f"""
        s_lshr_b32 s6, s32, 2
        s_lshr_b32 s4, s70, 6
        s_cmp_eq_u32 s4, {"-1" if nosel else "s6"}
        s_cselect_b32 s64, 1, 0
        s_lshr_b32 s4, s71, 6
        s_cmp_eq_u32 s4, {"-1" if nosel else "s6"}
        s_cselect_b32 s4, 2, 0
        s_or_b32 s64, s64, s4
        s_cbranch_scc0 K2_noy0
        v_min_u32 v{T0+2}, 35, v{LANE}
        v_lshlrev_b32 v{T0+2}, 7, v{T0+2}
        s_mul_i32 s65, s40, {36*128}
        s_add_u32 s65, s65, {FY}
        """)
        yflag_load()
        A("K2_noy0:")

    def y_sum():
        A(f"""
        s_cmp_eq_u32 s64, 0
        s_cbranch_scc1 K2_noy1
        s_mov_b32 s5, {SPIN}
        K2_ypoll:
        v_cmp_ne_u32 vcc, s{sTAG}, v{Y0+48}
        v_cmp_ne_u32 s[8:9], s{sTAG}, v{Y0+49}
        v_cmp_ne_u32 s[10:11], s{sTAG}, v{Y0+50}
        s_or_b64 s[8:9], s[8:9], vcc
        v_cmp_ne_u32 vcc, s{sTAG}, v{Y0+51}
        s_or_b64 s[8:9], s[8:9], s[10:11]
        s_or_b64 s[8:9], s[8:9], vcc
        s_cbranch_scc0 K2_ypolled
        """)
        yflag_load()
        A(f"""
        s_sub_u32 s5, s5, 1
        s_waitcnt vmcnt(0)
        s_cbranch_scc0 K2_ypoll
        K2_ypolled:
        v_min_u32 v{T0}, 53, v{LANE}
        v_mul_u32_u24 v{T0+1}, 3641, v{T0}
        v_lshrrev_b32 v{T0+1}, 16, v{T0+1}
        v_mul_u32_u24 v{T0+1}, {4608-288}, v{T0+1}
        v_lshl_add_u32 v{T0}, v{T0}, 4, v{T0+1}
        """)
        A(f"""
        s_lshl_b32 s6, s33, 1
        s_mul_i32 s7, s40, {36*4608}
        s_add_u32 s6, s6, s7
        s_add_u32 s65, s6, {YP}
        s_bitcmp1_b32 s64, 0
        s_cselect_b32 s6, 0, 2304
        s_cselect_b32 s7, 0, 1024
        s_add_u32 s6, s6, s65
        v_add_u32 v{T0+1}, s7, v{TA}
        """)
        yloads()
        A("K2_noy1:")

    def yloads():
        for u in range(12):
            A(f"buffer_load_dwordx4 {vr(Y0+4*u,4)}, v{T0}, {ws}, s6 offen sc1")
            A(f"s_add_u32 s6, s6, {3*4608}")
            if OPT.get("space") and u % 2: A(f"s_waitcnt vmcnt({OPT['space']})")

    def y_sum2(later):
        A(f"""
        s_cmp_eq_u32 s64, 0
        s_cbranch_scc1 K2_noy2
        s_waitcnt vmcnt({later})
        K2_ysum:
        """)
        for u in range(1, 12):
            for hf in range(2):
                A(f"v_pk_add_f32 {vr(Y0+2*hf,2)}, {vr(Y0+2*hf,2)}, {vr(Y0+4*u+2*hf,2)}")
        A(f"""
        ds_write_b128 v{T0+1}, {vr(Y0,4)}
        s_cmp_lg_u32 s64, 3
        s_cbranch_scc1 K2_ydone
        s_mov_b32 s64, 2
        s_add_u32 s6, s65, 2304
        s_waitcnt lgkmcnt(0)
        v_add_u32 v{T0+1}, 1024, v{TA}
        """)
        yloads()
        A("s_waitcnt vmcnt(0)\ns_branch K2_ysum\nK2_ydone:")
        arrive(5)
        A("K2_noy2:")

    def poll():
        l = lab("K2_poll")
        A(f"""
        s_mov_b32 s5, {SPIN}
        {l}:
        buffer_load_dword v{T0}, v{FA}, {ws}, s100 offen sc1
        s_sub_u32 s5, s5, 1
        s_cbranch_scc1 {l}_d
        s_waitcnt vmcnt(0)
        v_cmp_ne_u32 vcc, s{sTAG}, v{T0}
        s_cbranch_vccnz {l}
        {l}_d:
        """)

    def oload(ks):
        if ks < 8:
            return [f"buffer_load_dwordx4 {vr(OF+4*ks,4)}, v{L16}, {ws}, s{98 if ks < 4 else 101} offen{off(1024*(ks%4))} sc1"]
        return [f"buffer_load_dword v{OF+32+c}, v{OEA}, {ws}, s99 offen{off(128*c)} sc1" for c in range(4)]

    gwait(7)
    wodma(3)
    assert OPT.get('wopace', 4) <= 6 and FOM == 1
    A(f"""
    s_mov_b32 s5, {SPIN}
    K2_gchk:
    v_cmp_ne_u32 vcc, s{sTAG}, v{GV+1}
    s_cbranch_vccz K2_gok
    {gload}
    s_sub_u32 s5, s5, 1
    s_waitcnt vmcnt(0)
    s_cbranch_scc0 K2_gchk
    K2_gok:
    v_sub_f32 v{GV}, 1.0, v{GV}
    v_cvt_pk_bf16_f32 v{GV+1}, v{GV}, 0
    v_lshlrev_b32 v{GV}, 16, v{GV+1}
    """)
    cs("flags")
    wodma(2, False)
    cs("wo dma")
    y_first()
    poll()
    A("s_waitcnt vmcnt(0)")
    cs("polled")
    arrive(2)
    y_sum()
    for ks in range(9):
        for l in oload(ks): A(l)
        if OPT.get("space") and ks % 2: A(f"s_waitcnt vmcnt({OPT['space']})")

    def wreads(ks, X):
        return [f"ds_read_b128 {vr(WF+20*ks+4*T,4)}, v{B1 if X else L16}{off(1024*(5*ks+T))}" for T in range(5)]

    def p3mm(ks, first=False):
        return [mf16(vr(ACC + 4 * T, 4), vr(WF + 20 * ks + 4 * T, 4), vr(OF + 4 * ks, 4), "0" if first else vr(ACC + 4 * T, 4)) for T in range(5)]

    A(f"""
    s_add_u32 s98, s98, {128*8192}
    s_add_u32 s101, s101, {128*8192}
    s_add_u32 s99, s99, {64*2048}
    s_add_u32 s6, s34, {7*1152}
    s_add_u32 s7, s34, {14*1152}
    s_mov_b64 s[62:63], s[6:7]
    """)
    gwait(2)
    for ks in range(3, 8):
        for l in wreads(ks, 0): A(l)
    y_sum2(12)
    A.c("---- a routed token of this wave's tile: its staged row of x becomes x + sigmoid(r) * y")
    YT = Y0
    for sel in range(2):
        A(f"""
        s_lshr_b32 s4, s{70+sel}, 4
        s_cmp_lg_u32 s4, {"-1" if nosel else "s32"}
        s_cbranch_scc1 K2_nosel{sel}
        """)
        gwait(5)
        A(f"""
        s_mov_b32 s4, {TB + 1024*sel}
        v_lshl_add_u32 v{T0+1}, v{LANE}, 3, s4
        s_and_b32 s4, s{70+sel}, 15
        s_mul_i32 s4, s4, 144
        s_add_u32 s4, s4, s97
        v_lshl_add_u32 v{T0}, v{LANE}, 2, s4
        """)
        for k in range(12):
            A(f"ds_read_b64 {vr(YT+2*k,2)}, v{T0+1}{off(5120*(k//3)+288*(k%3))}")
        A(f"""
        ds_read_b32 v{YT+25}, v{T0}
        s_ashr_i32 s6, s{68+sel}, 31
        s_not_b32 s6, s6
        s_or_b32 s6, s6, 0x80000000
        s_xor_b32 s6, s6, s{68+sel}
        s_and_b32 s6, s6, 0xffff0000
        v_mov_b32 v{T0+2}, {0x80000000 | LOG2E}
        v_mul_f32 v{T0+2}, s6, v{T0+2}
        v_exp_f32 v{T0+2}, v{T0+2}
        s_mov_b32 s6, -1
        v_add_f32 v{T0+2}, 1.0, v{T0+2}
        v_rcp_f32 v{T0+2}, v{T0+2}
        s_mov_b32 s7, 15
        s_waitcnt lgkmcnt(0)
        """)
        for st in (6, 3):
            for k in range(st):
                A(f"v_pk_add_f32 {vr(YT+2*k,2)}, {vr(YT+2*k,2)}, {vr(YT+2*(k+st),2)}")
        A(f"""
        v_lshlrev_b32 v{YT+24}, 16, v{YT+25}
        v_pk_add_f32 {vr(YT,2)}, {vr(YT,2)}, {vr(YT+2,2)}
        v_and_b32 v{YT+25}, 0xffff0000, v{YT+25}
        v_pk_add_f32 {vr(YT,2)}, {vr(YT,2)}, {vr(YT+4,2)}
        v_cvt_pk_bf16_f32 v{T0+2}, 0, v{T0+2}
        v_cvt_pk_bf16_f32 v{YT}, 0, v{YT}
        v_cvt_pk_bf16_f32 v{YT+1}, 0, v{YT+1}
        v_pk_mul_f32 {vr(YT,2)}, {vr(YT,2)}, {vr(T0+2,2)} op_sel_hi:[1,0]
        v_cvt_pk_bf16_f32 v{YT}, 0, v{YT}
        v_cvt_pk_bf16_f32 v{YT+1}, 0, v{YT+1}
        v_pk_add_f32 {vr(YT,2)}, {vr(YT,2)}, {vr(YT+24,2)}
        v_cvt_pk_bf16_f32 v{YT}, v{YT}, v{YT+1}
        s_mov_b64 exec, s[6:7]
        ds_write_b32 v{T0}, v{YT}
        s_mov_b64 exec, -1
        K2_nosel{sel}:
        """)
    cs("yred")
    for ks in (0, 1, 2, 8):
        for l in wreads(ks, 0): A(l)
    cs("preload")
    sp(1, "ready")
    gwait(OPT.get("win", 4), OPT.get("wsl", 2))
    A("s_setprio 0")
    A("s_waitcnt vmcnt(0)")
    sp(1, "window")
    cs("window")
    GATE = OPT.get("egate", 1)
    epoll = f"buffer_load_dword v{TV+1}, v{TV-1}, {ws}, s99 offen sc1"
    A.c("---- half A; its registers are refilled for half B as they come free")
    order = [8, 0, 1, 2, 3, 4, 5, 6, 7]
    for k in range(10):
        fill = wreads(order[k - 1], 1) if k else []
        if k == OPT.get("p0", 9): fill = oload(8) + fill
        if k == 8: fill = [f"ds_read_b64 {vr(OF+2*T,2)}, v{SG1 if T < 4 else SG2}{off(32*T)}" for T in range(5)] + fill
        mm5 = p3mm(order[k], k == 0) if k < 9 else [None] * 5
        for T in range(5):
            if mm5[T]: A(mm5[T])
            for l in fill[T * len(fill) // 5:(T + 1) * len(fill) // 5]: A(l)
    cs("mfma")
    sp(1, "pre1")

    A.c("---- add (1 - g) * b, with 1 - g in bf16 as one half of a dot product")
    A("s_waitcnt lgkmcnt(10)")
    for i in range(20):
        A(f"v_dot2c_f32_bf16 v{ACC+i}, v{OF+i//2}, v{GV + (1 - i % 2)}")
    A("s_nop 2")
    A.c("---- half B: the two-dimension words of every producer are watched first; the bulk is then fetched, used, and checked for empty words")
    if OPT.get("p0", 9) > 9:
        if OPT["p0"] > 10: A(f"s_sleep {OPT['p0'] - 10}")
        for l in oload(8): A(l)
    A(f"""
    s_mov_b32 s5, {SPIN}
    K2_epoll:
    s_waitcnt vmcnt(0)
    v_max3_u32 v{TV}, v{OF+32}, v{OF+33}, v{OF+34}
    v_max_u32 v{TV}, v{TV}, v{OF+35}
    v_cmp_eq_u32 vcc, -1, v{TV}
    s_cbranch_vccz K2_eseen
    {f"s_sleep {OPT['esleep']}" if OPT.get("esleep") else ""}
    """)
    for l in oload(8): A(l)
    A(f"""
    s_sub_u32 s5, s5, 1
    s_cbranch_scc0 K2_epoll
    s_mov_b32 s5, 0
    s_waitcnt vmcnt(0)
    K2_eseen:
    """)
    sp(1, "eseen")
    for ks in range(8):
        for l in oload(ks): A(l)
    A("s_waitcnt lgkmcnt(0)")
    for l in p3mm(8): A(l)
    A.c("the sums continue in the registers that step freed, so this pass can simply be repeated")
    AC2 = WF + 160
    A(f"K2_main:\nv_mov_b32 v{TV}, 0")
    for ks in range(8):
        A(f"s_waitcnt vmcnt({7-ks})")
        f = OF + 4 * ks
        for T in range(5):
            A(mf16(vr(AC2 + 4 * T, 4), vr(WF + 20 * ks + 4 * T, 4), vr(f, 4), vr((AC2 if ks else ACC) + 4 * T, 4)))
            if T < 2: A(f"v_max3_u32 v{TV}, v{TV}, v{f+2*T}, v{f+2*T+1}")
            if T == 2 and ks == 7: A(f"v_cmp_eq_u32 vcc, -1, v{TV}")
    A("s_cbranch_vccnz K2_redo")
    A("K2_out:")
    if not OPT.get("chain"): sp(1, "fpolled")
    cs("halfB")
    A("s_nop 0")
    for i in range(10):
        A(f"v_cvt_pk_bf16_f32 v{XR+i}, v{AC2+2*i}, v{AC2+2*i+1}")
        if i % 2: A(f"ds_write_b64 v{SG1 if i < 8 else SG2}, {vr(XR+i-1,2)}{off(16*(i-1))}")
    for n in range(3):
        A(f"ds_read_b128 {vr(WF+4*n,4)}, v{SR}{off(1008*n)}")
    for n in range(3):
        if n == 2: A("s_mov_b64 exec, 0x3ffff")
        A(f"s_waitcnt lgkmcnt({2-n})")
        A(f"buffer_store_dwordx4 {vr(WF+4*n,4)}, v{OUT}, s[{sO}:{sO+3}], s{(34, 62, 63)[n]} offen{OPT.get('ost', '')}")
    A.c("the owner of the first routed token saw all 144 stage-2 flags, so every workgroup has taken its tag: hand d_debug back as zero")
    A(f"""
    s_lshr_b32 s4, s70, 4
    s_cmp_lg_u32 s4, s32
    s_cbranch_scc1 K2_fini
    v_mov_b32 v{TV}, 0
    buffer_store_dword v{TV}, off, s[{sDBG}:{sDBG+3}], 0 sc1
    K2_fini:
    """)
    if gen1.DIAG: A("s_mov_b64 exec, -1")
    cs("epilogue")
    if gen1.DIAG: A("s_waitcnt vmcnt(0)")
    cs("drain")
    csflush(1, 100)
    ST.flush(v=100)
    A("s_endpgm")
    A("K2_redo:\ns_sub_u32 s5, s5, 1\ns_cbranch_scc1 K2_out")
    for ks in range(8):
        for l in oload(ks): A(l)
    A("s_branch K2_main")

    A.c("---- slow path: two passes over all keys with the true row maximum (own q tile)")
    A("K2_slow:")
    M, KA, VA, VA2, KEA = 40, 42, 43, 44, 45
    lane_addrs(KA, VA, VA2, KEA)
    A(f"""
    s_and_b32 s4, s40, 1
    s_lshl_b32 s4, s4, 3
    s_add_u32 s59, s57, s4
    buffer_load_dwordx2 {vr(QE,2)}, v{KEA}, {ws}, s59 offen sc1
    buffer_load_dwordx2 {vr(QM,2)}, v{KA}, {ws}, s59 offen sc1
    buffer_load_dwordx2 {vr(QM+2,2)}, v{KA}, {ws}, s59 offen offset:256 sc1
    v_and_b32 v4, 31, v{LANE}
    v_or_b32 v5, 4, v4
    v_cmp_eq_u32 vcc, 21, v5
    v_mov_b32 v6, 0x3f803f80
    s_bitcmp0_b32 s36, 0
    v_cndmask_b32 v{VV[0]}, 0, v6, vcc
    s_cselect_b32 s4, -1, 0
    s_cselect_b32 s5, 0, -1
    """)
    for i in range(1, 8):
        A(f"v_mov_b32 v{VV[0]+i}, v{VV[0]}")
    for i in range(16):
        A(f"v_mov_b32 v{o+i}, 0")
    A(f"""
    v_mov_b32 v{M}, 0xff800000
    s_waitcnt vmcnt(0)
    v_and_b32 v{QE}, s4, v{QE}
    v_and_b32 v{QE+1}, s5, v{QE+1}
    """)
    for pas in range(2):
        A("s_mov_b32 s10, 0")
        A(f"K2_slow{pas}:")
        A(f"""
        s_lshr_b32 s8, s10, 1
        s_mul_i32 s8, s8, {2*R}
        s_add_u32 s8, s8, 36864
        s_and_b32 s9, s10, 1
        s_lshl_b32 s11, s9, 3
        s_add_u32 s11, s11, s8
        s_mul_i32 s9, s9, {2*VS}
        s_add_u32 s8, s8, s9
        s_add_u32 s9, s8, {R}
        buffer_load_dwordx2 {vr(KP[0],2)}, v{KA}, {ws}, s11 offen sc1
        buffer_load_dwordx2 {vr(KP[0]+2,2)}, v{KA}, {ws}, s11 offen offset:256 sc1
        buffer_load_dwordx2 {vr(KE,2)}, v{KEA}, {ws}, s11 offen sc1
        """)
        if pas:
            A(f"""
            s_mov_b64 exec, s[62:63]
            buffer_load_dwordx4 {vr(VV[0],4)}, v{VA}, {ws}, s8 offen sc1
            buffer_load_dwordx4 {vr(VV[0]+4,4)}, v{VA}, {ws}, s9 offen sc1
            s_mov_b64 exec, -1
            """)
        A(f"""
        s_waitcnt vmcnt(0)
        v_mfma_f32_32x32x4_2b_bf16 v[0:31], {vr(KE,2)}, {vr(QE,2)}, 0
        s_nop 15
        s_nop 3
        {mfma("v[0:15]", vr(KP[0],4), vr(QM,4), "v[0:15]")}
        s_nop 15
        """)
        if not pas:
            for i in range(8):
                A(f"v_max3_f32 v{M}, v{M}, v{2*i}, v{2*i+1}")
        else:
            for i in range(16):
                A(f"v_sub_f32 v{i}, v{i}, v{M}")
            for i in range(16):
                A(f"v_exp_f32 v{i}, v{i}")
            A("s_nop 1")
            A(f"v_smfmac_f32_32x32x32_bf16 {vr(o,16)}, {vr(VV[0],4)}, v[0:7], v{IDX}")
            A(f"v_smfmac_f32_32x32x32_bf16 {vr(o,16)}, {vr(VV[0]+4,4)}, v[8:15], v{IDX}")
            A("s_nop 15")
        A(f"""
        s_add_u32 s10, s10, 1
        s_cmp_lt_u32 s10, 64
        s_cbranch_scc1 K2_slow{pas}
        """)
        if not pas:
            A(f"""
            v_mov_b32 v{M+1}, v{M}
            s_nop 1
            v_permlane32_swap_b32 v{M}, v{M+1}
            s_nop 1
            v_max_f32 v{M}, v{M}, v{M+1}
            """)
    A(f"v_rcp_f32 v0, v{o+9}\ns_nop 0\nv_mul_f32 v0, v0, v{GQ}")
    for l in norm(): A(l)
    for r in (2, 4, 5, 6, 7): A(f"v_min_u32 v{r}, -2, v{r}")
    A("s_branch K2_fin")
    for r in range(2):
        A(f"""
        K2_gqspin{r}:
        s_mov_b32 s6, {SPIN}
        K2_gqspin{r}1:
        {gqload[r]}
        s_sub_u32 s6, s6, 1
        s_waitcnt vmcnt(0)
        s_cbranch_scc1 K2_gqok{r}
        v_cmp_ne_u32 vcc, s{sTAG}, v{(251, GQ+1)[r]}
        s_cbranch_vccnz K2_gqspin{r}1
        s_branch K2_gqok{r}
        """)
    A.c("---- partials still missing: watch the count alone, then read again")
    A(f"""
    K2_finwait:
    s_sub_u32 s5, s5, 1
    s_cbranch_scc1 K2_fin2
    ds_read_b32 v0, v{CA}
    s_waitcnt lgkmcnt(0)
    v_readfirstlane_b32 s4, v0
    s_cmp_lt_u32 s4, {OPT.get("fw", 3)}
    s_cbranch_scc0 K2_fin1
    {"s_sleep 1" if OPT.get("fsl") else ""}
    s_branch K2_finwait
    """)
    A.c("---- router candidates not published yet (rare): wait for them")
    A(f"""
    K2_candspin:
    s_mov_b32 s6, {SPIN}
    s_mov_b32 s7, {RC}
    K2_candspin1:
    buffer_load_dwordx4 {vr(CAND,4)}, v{L16}, {ws}, s7 offen sc1
    s_sub_u32 s6, s6, 1
    s_waitcnt vmcnt(0)
    s_cbranch_scc1 K2_candok
    v_cmp_ne_u32 vcc, s{sTAG}, v{CAND+1}
    v_cmp_ne_u32 s[4:5], s{sTAG}, v{CAND+3}
    s_or_b64 vcc, vcc, s[4:5]
    s_cbranch_scc1 K2_candspin1
    s_branch K2_candok
    """)
    A("K2_codeend:")
    A("s_endpgm")
    return CNT + 48


HEADER = """; out = g * MHA(x) + (1 - g) * (x + top-2 routed SwiGLU FFN(x)),  g = sigmoid(x . gate_w);  S = 2048, D = 576, H = 32, F = 4608
;
;     wave whose check fails recomputes its rows in two passes with the true row maximum (K2_slow).
; {value, tag} pairs, or slots marked empty earlier in the launch. The tag is new in every launch (successor of a word
"""


def build():
    global R, VS
    VS, R = OPT.get('pitch', (9216, 110592))
    assert 64 * R <= GB and R >= 73728 + 4 * VS
    A = Asm()
    A('.amdgcn_target "amdgcn-amd-amdhsa--gfx950"')
    A(".text")
    lds = k23(A)
    A('.section .rodata,"a"')
    A(".p2align 6")
    A.raw(descriptor(NAME, 256, 256))
    head = (HEADER +
            f"; @launch grid=(256,1,1) block=(512,1,1) lds={lds}\n")
    return head + A.text()


if __name__ == "__main__":
    out = sys.argv[1]
    gen1.DIAG = len(sys.argv) > 2 and sys.argv[2] == "diag"
    if len(sys.argv) > 3:
        OPT = eval(sys.argv[3]); gen1.OPT = OPT
    open(out, "w").write(build())
```

```python
import sys
sys.path.insert(0, "gen")
from asmlib import *
import gen1
from gen1 import YP, WS_SIZE, XB, f32bits, QSCALE, LOG2E, mfma, Stamp
NAME = "gated_mix__mha_block__moe_arch_mod__prompt_kernel"
R = 110592
VS = 9216
GB = 0x6F8000
RC = 0x6FC000
F1 = 0xA60000
PG = 0xB00000
WP = 0xE00000
OOB = 0x7FFFFF00

OM = 0x700000
OE = 0x900000
FO = 0xA00000
FY = 0xA40000
EP = 0xA50000
OPT = {}
SPIN = 1 << 17
LSPIN = 1 << 23


def mf16(d, a, b, c):
    return f"v_mfma_f32_16x16x32_bf16 {d}, {a}, {b}, {c}"


def k23(A):
    kernel_head(A, NAME)
    sDBG, sX, sG, sWS, sD, sU, sWO, sO = 12, 16, 20, 24, 28, 32, 72, 76
    sW, sWB = 20, 28
    S = [0, 32]
    O = [64, 80, 96, 112]
    QM, QE, KE = 128, 144, 148
    NB = 5
    KP = [164 + 10 * g for g in range(3)]
    VV = [194 + 8 * g for g in range(NB)]
    IDX, L16, VA, LANE = 236, 237, 238, 239
    KA, VA2, KEA, GUA, TAGV = 240, 241, 242, 234, 246
    CAND, PA, RET, ONE, CA = 250, 252, 253, 254, 255
    QEA = 251
    SW, PM, PE, RD = 243, 244, 245, 247
    DNA, DN5 = 245, 247
    M0, M3, M4, GQA = 152, 153, 154, 155
    TA = 235
    sT = [44 + t for t in range(8)] + [72 + t for t in range(8)]
    sTAG = 53
    WREG = 14336
    AS = 0
    DN = 4 * WREG
    STG = DN + 36864
    TB = STG + 4 * 3072
    BS = 129024
    HP = BS + 4 * 8192
    HS = HP + 1024
    CNT = HS + 512
    SLOT = 32768
    RGV = 4 * SLOT
    ws = f"s[{sWS}:{sWS+3}]"
    uid = [0]
    PQ, PJ = (37, 43) if OPT.get("map2") else (43, 37)
    FOM = OPT.get("fo", 1)
    FOX, FOS = (("0xff", 8), ("1", 2), ("1\ns_mov_b32 exec_lo, -1", 2))[FOM]

    def lab(p):
        uid[0] += 1
        return f"{p}_{uid[0]}"

    def cs(name):
        if not OPT.get("chain"): return
        A("s_memtime s[88:89]")
        A("s_waitcnt lgkmcnt(0)")
        A("s_sub_u32 s88, s88, s80")
        A("s_mov_b32 m0, s96")
        A(f"v_writelane_b32 v{IDX}, s88, m0")
        A("s_add_u32 s96, s96, 1")
        A.c("stamp " + name)

    def csflush(k, v):
        if not OPT.get("chain"): return
        A(f"""
        s_lshl_b32 s4, s2, 2
        s_add_u32 s4, s4, s38
        s_lshl_b32 s4, s4, 8
        s_add_u32 s4, s4, {0xD00000 + 0x40000*k}
        v_lshlrev_b32 v{v}, 2, v{LANE}
        buffer_store_dword v{IDX}, v{v}, {ws}, s4 offen
        s_nop 1
        """)

    def arrive(k):
        A(f"""
        s_mov_b64 exec, 1
        ds_add_u32 v{CA}, v{ONE}{off(4*k)}
        s_mov_b64 exec, -1
        """)

    def gwait(k, sl=1):
        l = lab("K2_gw")
        A(f"""
        s_mov_b32 s5, {LSPIN}
        {l}:
        ds_read_b32 v247, v{CA}{off(4*k)}
        s_waitcnt lgkmcnt(0)
        v_readfirstlane_b32 s4, v247
        s_cmp_ge_u32 s4, 4
        s_cbranch_scc1 {l}_d
        s_sleep {sl}
        s_sub_u32 s5, s5, 1
        s_cbranch_scc0 {l}
        {l}_d:
        """)

    tagload = f"buffer_load_dword v{TAGV}, off, s[{sDBG}:{sDBG+3}], 0 sc1"

    def gettag():
        l = lab("K2_tag")
        A(f"""
        s_mov_b32 s5, {SPIN}
        {l}:
        s_waitcnt vmcnt(0)
        v_readfirstlane_b32 s{sTAG}, v{TAGV}
        s_cmp_lg_u32 s{sTAG}, 0
        s_cbranch_scc1 {l}_d
        s_sleep 8
        {tagload}
        s_sub_u32 s5, s5, 1
        s_cbranch_scc0 {l}
        {l}_d:
        """)

    def lane_addrs(KA, VA, VA2, KEA):
        A(f"""
        s_lshr_b32 s4, s36, 1
        s_mul_i32 s4, s4, {9*256}
        s_and_b32 s5, s36, 1
        s_mul_i32 s5, s5, {5*256}
        s_add_u32 s5, s5, s4
        s_add_u32 s4, s4, 1024
        v_and_b32 v4, 31, v{LANE}
        v_lshrrev_b32 v6, 5, v{LANE}
        v_lshrrev_b32 v5, 4, v4
        v_mul_u32_u24 v5, {R-256}, v5
        v_lshl_add_u32 v5, v4, 4, v5
        v_add_u32 v{KEA}, s4, v5
        v_add_u32 v{KA}, s5, v5
        v_lshl_add_u32 v{KA}, v6, 9, v{KA}
        s_mul_i32 s4, s36, 288
        s_add_u32 s4, s4, 36864
        v_min_u32 v5, 17, v4
        v_lshl_add_u32 v{VA}, v5, 4, s4
        v_mul_u32_u24 v5, {VS}, v6
        v_add_u32 v{VA}, v{VA}, v5
        v_add_u32 v{VA2}, {2*VS}, v{VA}
        """)

    def att_setup(old):
        A(f"""
        s_lshl_b32 s4, s3, 1
        s_bfe_u32 s5, s2, 0x10003
        s_add_u32 s{PQ}, s4, s5
        s_lshr_b32 s{PJ}, s2, 4
        s_lshl_b32 s36, s43, 1
        s_add_u32 s36, s36, s39
        """)
        A.c("s36 head, s37 q block (128), s38 wave, s39 head half, s40 key quarter, s43 head within half")
        lane_addrs(KA, VA, VA2, KEA)
        A(f"""
        s_mul_i32 s10, s37, {4*R}
        s_xor_b32 s11, s40, 3
        """)
        A.c("a 32-row tile = the same 16-token half of two neighbouring records; local q tile t is tile t ^ 3 ^ kq")
        A(f"""
        s_mov_b32 s60, s10
        s_lshr_b32 s4, s11, 1
        s_mul_i32 s5, s4, {2*R}
        s_add_u32 s56, s10, s5
        s_xor_b32 s5, s4, 1
        s_mul_i32 s5, s5, {2*R}
        s_add_u32 s57, s10, s5
        v_xor_b32 v5, s4, v6
        s_mov_b32 s4, {2*R}
        v_mad_u32_u24 v{QEA}, v5, s4, v{KEA}
        v_mad_u32_u24 v{KEA}, v6, s4, v{KEA}
        s_mul_i32 s10, s40, {16*R}
        """)
        for m in range(16):
            A(f"s_add_u32 s{sT[m]}, s10, {36864 + m*R}")
        A("s_mov_b32 s62, 0x0011ffff\ns_mov_b32 s63, 0x0011ffff")
        if not old: return
        A.c("projection flags of this head pair: lane = (k / v, first / last channel, token block), the two q flags and the two flags of the packed w_o block")
        A(f"""
        s_mul_i32 s4, s43, 36
        v_bfe_u32 v5, v{LANE}, 4, 1
        v_mad_u32_u24 v5, v5, 35, s4
        v_lshrrev_b32 v7, 7, v5
        s_lshr_b32 s7, s43, 1
        s_mul_i32 s4, s7, 9
        s_lshr_b32 s4, s4, 4
        s_lshl_b32 s5, s7, 1
        s_sub_u32 s4, s5, s4
        v_add_u32 v7, s4, v7
        v_lshl_add_u32 v7, v7, 4, s37
        s_and_b32 s4, s{PJ}, 14
        s_add_u32 s4, s4, {768 - 2}
        v_lshrrev_b32 v8, 4, v{LANE}
        v_cmp_lt_u32 vcc, 1, v8
        v_add_u32 v8, s4, v8
        s_mov_b32 s4, {F1}
        v_cndmask_b32 v7, v7, v8, vcc
        v_lshl_add_u32 v{PA+1}, v7, 5, s4
        v_mul_u32_u24 v7, 576, v6
        v_add_u32 v5, 576, v5
        v_add_u32 v5, v5, v7
        v_lshrrev_b32 v5, 7, v5
        s_add_u32 s5, s7, 8
        v_lshl_add_u32 v7, v6, 3, s5
        v_mul_u32_u24 v8, 9, v7
        v_lshrrev_b32 v8, 4, v8
        v_sub_u32 v5, v5, v8
        v_lshl_add_u32 v5, v7, 1, v5
        v_and_b32 v7, 15, v{LANE}
        v_lshl_add_u32 v5, v5, 4, v7
        v_lshl_add_u32 v{PA}, v5, 5, s4
        """)

    ACC, PK, AX, AW, SA, FLA = 64, 128, 220, 224, 250, 162
    FR = [0, 32]

    def acc(a, T):
        return ACC + 16 * a + 4 * T

    def epilogue(vmode, r, scale):
        out = []
        for T in range(4):
            p = PK + 16 * r + 4 * T
            for a in (2 * r, 2 * r + 1):
                d = acc(a, T)
                if scale:
                    out += [f"v_pk_mul_f32 {vr(d+2*i,2)}, {vr(d+2*i,2)}, s[98:99]" for i in range(2)]
                out += [f"v_cvt_pk_bf16_f32 v{p+2*(a%2)+i}, v{d+2*i}, v{d+2*i+1}" for i in range(2)]
            out.append(f"buffer_store_dwordx4 {vr(p,4)}, v{SA}, {ws}, s{65+r} offen{off((256 if vmode else 1024)*T)} sc1")
        return out

    def xread(n, a, vmode):
        c, s_ = divmod(n, 2)
        k, o = divmod(c % 4, 2)
        to = (a // 2) * 4096 + (a % 2) * 512 if vmode else a * 2048
        return f"ds_read_b128 {vr(FR[n%2]+4*a,4)}, v{AX+2*k+s_}{off(o*SLOT+to)}"

    def reads(n, vmode):
        c, s_ = divmod(n, 2)
        k, o = divmod(c % 4, 2)
        w = [[(f"w{T}", f"ds_read_b64_tr_b16 {vr(FR[n%2]+16+4*T+2*a,2)}, v{AW+4*k+T}{off(o*SLOT+(32*s_+4*a)*128)}") for a in range(2)] for T in range(4)]
        x = [(f"x{a}", xread(n, a, vmode)) for a in range(4)]
        return [(f"{n}{t}", l) for t, l in w[0] + x[:1] + w[1] + w[2] + w[3] + x[1:]]

    def gemm(vmode):
        q = []

        def put(r):
            if OPT.get("nord") and len(r[0]) + int(r[0][0] > "1") > 3: return
            q.append(r[0]); A(r[1])

        def need(*tags):
            idx = [i for i, t in enumerate(q) if t in tags]
            if idx:
                A(f"s_waitcnt lgkmcnt({len(q) - 1 - max(idx)})")
                del q[:max(idx) + 1]
        sp(1, "atb0")
        A("s_barrier")
        sp(1, "b0")
        cs("B0")
        for r in reads(0, vmode): put(r)

        def mm1(n, a, T):
            if OPT.get("half") and a >= 2: return
            need(f"{n}x{a}", f"{n}w{T}")
            d = vr(acc(a, T), 4)
            x, w = vr(FR[n % 2] + 4 * a, 4), vr(FR[n % 2] + 16 + 4 * T, 4)
            c = "0" if n == 0 else d
            A(mf16(d, x, w, c) if vmode else mf16(d, w, x, c))
        for n in range(16):
            Rn = reads(n + 1, vmode)
            bp = OPT.get("bp", (0, 6))[n == 15] if n % 2 else 0
            for i in range(16):
                if i == 0 and n > 0: need(f"{n}x0", f"{n}w0", f"{n}w1", f"{n}w2", f"{n}w3")
                mm1(n, i // 4, i % 4)
                if i == bp and n % 2 == 1:
                    need(f"{n}x3")
                    A("s_barrier")
                if i == 0 and n == OPT.get("tagstep", 8): A(tagload)
                if i == 0 and n == OPT.get("tagstep", 8) + 5: gettag()
                if i >= bp:
                    k = 1 if bp <= 2 else 2
                    for r in Rn[k * (i - bp):k * (i - bp) + k]: put(r)
        Rn = reads(17, vmode)
        for i in range(8):
            mm1(16, i // 4, i % 4)
            for r in Rn[2 * i:2 * i + 2]: put(r)
        for i in range(8): mm1(17, i % 2, i // 2)
        q0 = list(q)
        if not vmode: A("s_cmp_lt_u32 s69, 9\ns_cbranch_scc1 K2_qtail")
        for scale in ((False,) if vmode else (False, True)):
            q[:] = q0
            if scale: A("K2_qtail:")
            E = epilogue(vmode, 0, scale)
            tail = [(16, 2 + i // 4, i % 4) for i in range(8)] + [(17, 2 + i % 2, i // 2) for i in range(8)]
            for i, t in enumerate(tail):
                mm1(*t)
                if not OPT.get("ilv", (1, 1))[not scale]:
                    if i == 15:
                        for l in E: A(l)
                elif i >= 2:
                    for l in E[(i - 2) * len(E) // 14:(i - 1) * len(E) // 14]: A(l)
            sp(1, "passa")
            cs("pass A")
            A("s_nop 1")
            for l in epilogue(vmode, 1, scale) if not OPT.get("half") else []: A(l)
            sp(1, "astore")
            cs("a stores")
            A("s_branch K2_p1done")

    def pflag(sf):
        A(f"""
        s_cmp_lg_u32 s40, 0
        s_waitcnt vmcnt(0)
        s_barrier
        s_cbranch_scc1 K2_noflag
        s_mov_b64 exec, 0xffffff
        buffer_store_dword v{TAGV}, v{FLA}, {ws}, s{sf} offen sc1
        s_mov_b64 exec, -1
        K2_noflag:
        """)

    def presets():
        A.c("V registers are preset: rows 17 and 21 are the all-ones rows that produce the softmax denominator")
        A.c("(1 + 127*2^-16 has the bit pattern 0x3f803f80 = two bf16 ones; the matrix unit fills 32 registers per instruction)")
        A(f"""
        v_and_b32 v4, 31, v{LANE}
        v_or_b32 v5, 4, v4
        v_cmp_eq_u32 vcc, 21, v5
        v_mov_b32 v6, 0x3afe3f80
        v_mov_b32 v8, 0x3f803f80
        v_cndmask_b32 v6, 0, v6, vcc
        v_mov_b32 v7, 0
        v_mov_b32 v9, 0
        v_mov_b32 v10, 0
        v_mov_b32 v11, 0
        v_mfma_f32_32x32x4_2b_bf16 {vr(170,32)}, v[8:9], v[6:7], 0
        v_mfma_f32_32x32x4_2b_bf16 {vr(202,32)}, v[8:9], v[6:7], 0
        v_mfma_f32_32x32x4_2b_bf16 {vr(O[0],32)}, v[10:11], v[10:11], 0
        v_mfma_f32_32x32x4_2b_bf16 {vr(O[2],32)}, v[10:11], v[10:11], 0
        s_nop 3
        """)

    def p1_addrs():
        A.c("wave = 64 tokens (s40 & 1) x one 64-channel tile (s40 >> 1); v tiles map row 4g+j of tile a to token 8g+4a+j")
        A(f"""
        v_lshrrev_b32 v1, 4, v{LANE}
        v_and_b32 v2, 15, v{LANE}
        v_and_b32 v3, 12, v2
        v_add_u32 v3, v3, v2
        s_cmp_eq_u32 s100, 2
        s_cselect_b64 vcc, -1, 0
        v_cndmask_b32 v3, v2, v3, vcc
        v_mul_u32_u24 v4, {VS}, v1
        v_lshl_add_u32 v4, v2, 4, v4
        v_cndmask_b32 v{SA}, v{L16}, v4, vcc
        v_lshrrev_b32 v4, 1, v2
        v_xor_b32 v4, v4, v1
        s_and_b32 s4, s40, 1
        s_lshl_b32 s4, s4, 1
        s_cmp_eq_u32 s100, 3
        s_cselect_b32 s4, s40, s4
        s_lshl_b32 s5, s68, 2
        s_add_u32 s71, s5, s4
        s_lshl_b32 s4, s4, 12
        v_lshl_add_u32 v3, v3, 7, s4
        v_lshl_add_u32 v{AX}, v4, 4, v3
        v_xor_b32 v{AX+1}, 64, v{AX}
        v_add_u32 v{AX+2}, {2*SLOT}, v{AX}
        v_add_u32 v{AX+3}, {2*SLOT}, v{AX+1}
        v_bfe_u32 v3, v{LANE}, 2, 2
        v_lshl_add_u32 v4, v1, 3, v3
        v_lshlrev_b32 v4, 7, v4
        v_bfe_u32 v3, v{LANE}, 3, 2
        v_lshl_add_u32 v4, v3, 5, v4
        v_and_b32 v3, 3, v{LANE}
        v_lshl_add_u32 v4, v3, 3, v4
        s_lshr_b32 s7, s40, 1
        s_lshl_b32 s4, s7, 13
        s_add_u32 s4, s4, 16384
        v_add_u32 v{AW}, s4, v4
        """)
        for T in range(1, 4):
            A(f"v_xor_b32 v{AW+T}, {32*T}, v{AW}")
        for T in range(4):
            A(f"v_add_u32 v{AW+4+T}, {2*SLOT}, v{AW+T}")
        A.c("store base s65 and flag address s61 of this wave's tile")
        A(f"""
        s_add_u32 s69, s69, s7
        s_mul_i32 s4, s71, {R}
        s_lshl_b32 s5, s69, 12
        s_lshl_b32 s6, s69, 10
        s_add_u32 s6, s6, {73728 - 18*1024}
        s_cmp_eq_u32 s100, 2
        s_cselect_b32 s5, s6, s5
        s_add_u32 s65, s4, s5
        s_add_u32 s66, s65, {R}
        s_lshl_b32 s4, s68, 5
        s_add_u32 s61, s4, {F1}
        s_mul_i32 s4, s97, {16*7282}
        s_add_u32 s5, s4, {15*7282}
        s_lshr_b32 s4, s4, 16
        s_lshr_b32 s5, s5, 16
        s_min_u32 s5, s5, 23
        v_lshrrev_b32 v3, 3, v{LANE}
        v_add_u32 v3, s4, v3
        v_min_u32 v3, s5, v3
        v_mul_u32_u24 v4, 9, v3
        v_lshrrev_b32 v4, 4, v4
        v_sub_u32 v4, s97, v4
        v_lshl_add_u32 v3, v3, 1, v4
        v_and_b32 v4, 7, v{LANE}
        v_lshlrev_b32 v4, 2, v4
        v_lshl_add_u32 v{FLA}, v3, 9, v4
        s_mov_b32 s98, {QSCALE}
        s_mov_b32 s99, s98
        """)

    A("s_cmp_ge_u32 s2, 256")
    A("s_cbranch_scc1 K2_end")
    ST = Stamp(A, 0); ST.t(0)
    STS = OPT.get("st", ("astore,polled,loopend,fpolled", "loaded,polled,loopend,flag"))

    def sp(old, name):
        L = STS[0 if old else 1].split(",")
        if name in L: ST.t(1 + L.index(name))
    A(f"""
    s_load_dwordx2 s[{sX}:{sX+1}], s[0:1], 0
    s_load_dwordx2 s[{sW}:{sW+1}], s[0:1], 8
    s_load_dwordx2 s[{sWB}:{sWB+1}], s[0:1], 8
    s_load_dwordx2 s[{sWS}:{sWS+1}], s[0:1], 88
    s_load_dwordx2 s[{sDBG}:{sDBG+1}], s[0:1], 80
    v_readfirstlane_b32 s38, v0
    v_and_b32 v{LANE}, 63, v0
    s_and_b32 s4, s2, 3
    s_bfe_u32 s5, s2, 0x20003
    s_bfe_u32 s6, s2, 0x10002
    s_lshr_b32 s7, s2, 5
    s_lshl2_add_u32 s68, s4, s5
    s_mul_i32 s97, s6, 6
    s_add_u32 s97, s97, s7
    s_lshl3_add_u32 s9, s6, s7
    s_cmp_eq_u32 s9, 6
    s_cselect_b32 s97, 13, s97
    s_cmp_ge_u32 s97, 9
    s_cselect_b32 s100, 2, 0
    s_lshr_b32 s9, s5, 1
    s_xor_b32 s9, s9, s6
    s_add_u32 s9, s9, 3
    s_cmp_eq_u32 s7, 7
    s_cselect_b32 s100, s9, s100
    s_mov_b32 s{sX+2}, {XB}
    s_mov_b32 s{sX+3}, 0x00020000
    s_bfe_u32 s40, s38, 0x20006
    s_lshr_b32 s39, s38, 8
    s_cbranch_scc0 K2_old
    """)

    def common2():
        A(f"""
        s_lshr_b32 s38, s38, 6
        s_and_b32 s3, s2, 7
        s_lshl_b32 s69, s97, 1
        s_mov_b32 s{sWS+2}, {WS_SIZE}
        s_mov_b32 s{sWS+3}, 0x00020000
        s_mov_b32 s{sDBG+2}, 256
        s_mov_b32 s{sDBG+3}, 0x00020000
        v_lshlrev_b32 v{L16}, 4, v{LANE}
        """)
    A.c("projection tile: s68 token block (128), s97 channel tile (128), s100 kind (0 q/k, 2 v, 3 router, 4 none)")
    A.c("=========== waves 4-7 first stage x and w_qkv for the projection (k chunks start at s71, for L2 locality only)")
    A(f"""
    s_setprio 2
    s_cmp_eq_u32 s100, 4
    s_cbranch_scc1 K2_noload
    v_lshrrev_b32 v2, 3, v{LANE}
    v_and_b32 v3, 7, v{LANE}
    v_lshrrev_b32 v4, 4, v{LANE}
    v_lshl_add_u32 v2, s40, 3, v2
    s_cmp_eq_u32 s100, 2
    s_cselect_b32 s9, 1, 2
    s_cselect_b32 s10, 1, 3
    s_lshl_b32 s9, s40, s9
    s_and_b32 s9, s9, 7
    v_and_b32 v5, s10, v4
    v_xor_b32 v5, v3, v5
    v_xor_b32 v5, s9, v5
    v_lshl_add_u32 v6, s68, 7, v2
    v_mul_u32_u24 v6, 1152, v6
    v_lshl_add_u32 v10, v5, 4, v6
    """)
    RM = OPT.get("rm")
    if RM is None:
        A("""
        s_xor_b32 s71, s7, s5
        s_and_b32 s71, s71, 1
        s_lshl2_add_u32 s71, s71, s4
        s_lshl1_add_u32 s71, s6, s71
        s_cmp_eq_u32 s71, 9
        s_cselect_b32 s71, 0, s71
        """)
    else:
        A(f"""
        s_xor_b32 s71, s7, s5
        s_and_b32 s71, s71, 1
        s_mul_i32 s71, s71, {RM[0]}
        s_mul_i32 s9, s4, {RM[1]}
        s_add_u32 s71, s71, s9
        s_mul_i32 s9, s6, {RM[2]}
        s_add_u32 s71, s71, s9
        s_sub_u32 s9, s71, 9
        s_cselect_b32 s71, s71, s9
        """)
    A(f"""
    s_cmp_eq_u32 s100, 3
    s_cselect_b32 s71, 0, s71
    s_cselect_b32 s{sW+2}, 0, {576*3456}
    s_lshl_b32 s42, s40, 10
    s_waitcnt lgkmcnt(0)
    """)
    sp(0, "ld0")

    def waddr():
        A.c("missing tiles stage zeros (empty descriptors)")
        A(f"""
        s_cmp_eq_u32 s97, 13
        s_cselect_b32 s{sWB+2}, 0, s{sW+2}
        s_mov_b32 s{sW+3}, 0x00020000
        s_mov_b32 s{sWB+3}, 0x00020000
        v_and_b32 v4, 1, v4
        s_and_b32 s9, s40, 1
        s_lshl_b32 s9, s9, 2
        v_lshl_add_u32 v4, v4, 1, s9
        v_xor_b32 v3, v3, v4
        v_mul_u32_u24 v6, 3456, v2
        v_lshl_add_u32 v6, v3, 4, v6
        v_lshl_add_u32 v11, s97, 8, v6
        """)

    def dma1(k):
        c, r = divmod(k, 8)
        u, isx = divmod(r, 2)
        if c == 0:
            u, isx = r % 4, r < 4
            if r == 4: waddr()
        slot = c % 4
        if r == 0: A(f"s_lshl_b32 s65, s71, 7\ns_mul_i32 s66, s71, {64*3456}")
        if not isx:
            t, hf = u % 2, u // 2
            A(f"s_add_u32 m0, s42, {slot*SLOT + 16384 + t*8192 + hf*4096}")
            A(f"s_add_u32 s67, s66, {hf*32*3456 + 128*t}")
            A(f"buffer_load_dwordx4 v11, s[{(sW, sWB)[t]}:{(sW, sWB)[t]+3}], s67 offen{OPT.get('wnt', '')} lds")
        else:
            A(f"s_add_u32 m0, s42, {slot*SLOT + u*4096}")
            A(f"s_add_u32 s67, s65, {u*36864}")
            A(f"buffer_load_dwordx4 v10, s[{sX}:{sX+3}], s67 offen{OPT.get('xnt', '')} lds")
        if r == 7: A("s_add_u32 s71, s71, 1\ns_cmp_eq_u32 s71, 9\ns_cselect_b32 s71, 0, s71")

    lead0, lead = OPT.get("lead", (8, 8))
    assert lead <= 16
    issued = 0
    for c in range(9):
        tgt = min(72, 8 * (c + 1) + (lead0 if c == 0 else lead))
        while issued < tgt:
            dma1(issued); issued += 1
        A(f"s_waitcnt vmcnt({issued - 8*(c+1)})")
        sp(0, f"c{c}")
        if c == 8: A("K2_lastbar:")
        A("s_barrier")
    A("K2_loaded:")
    common2()
    A("s_waitcnt lgkmcnt(0)")
    sp(0, "loaded")
    A(tagload)
    att_setup(False)
    presets()
    gettag()
    A("s_branch K2_young2")

    OAT = 60

    def tables():
        A.c("output projection tile: 64 tokens x 72 channels per workgroup, dealt so that one die shares tokens (speed only)")
        A.c("s32 = 16-token tile of this wave, s33 = byte offset of the channel block, s34 row base, s35 packed w_o")
        A(f"""
        s_lshl_b32 s32, s{PQ}, 3
        s_and_b32 s4, s{PJ}, 1
        s_lshl_b32 s4, s4, 2
        s_add_u32 s32, s32, s4
        s_add_u32 s32, s32, s40
        s_lshr_b32 s33, s{PJ}, 1
        s_mul_i32 s33, s33, 144
        s_mul_i32 s34, s32, {16*1152}
        s_add_u32 s34, s34, s33
        s_mul_i32 s35, s33, 640
        s_add_u32 s35, s35, {WP}
        s_mul_i32 s4, s40, 3072
        s_add_u32 s97, s4, {STG}
        s_lshl_b32 s4, s32, 13
        s_add_u32 s98, s4, {OM}
        s_add_u32 s101, s98, 4096
        s_lshr_b32 s4, s32, 2
        s_lshl_b32 s4, s4, 1
        s_and_b32 s5, s40, 1
        s_add_u32 s4, s4, s5
        s_lshl_b32 s5, s4, 7
        s_add_u32 s100, s5, {FO}
        s_lshl_b32 s4, s4, 11
        s_lshr_b32 s5, s40, 1
        s_lshl_b32 s5, s5, 6
        s_add_u32 s4, s4, s5
        s_add_u32 s99, s4, {OE}
        s_mul_i32 s4, s40, 5120
        s_add_u32 s4, s4, {TB}
        v_add_u32 v{TA}, s4, v{L16}
        """)

    def tables_lane():
        A.c("per-lane addresses that wave s40 needs in the later phases are worked out here and parked in LDS")
        A(f"""
        s_mul_i32 s42, s40, {WREG}
        s_mul_i32 s4, s40, 3072
        s_add_u32 s97, s4, {STG}
        s_mul_i32 s4, s40, 5120
        s_add_u32 s4, s4, {TB}
        v_add_u32 v{TA}, s4, v{L16}
        v_and_b32 v3, 15, v{LANE}
        v_lshrrev_b32 v4, 4, v{LANE}
        v_bfe_u32 v5, v{LANE}, 2, 2
        v_lshl_add_u32 v7, v4, 3, v5
        v_and_b32 v5, 1, v5
        v_and_b32 v6, 1, v4
        v_lshlrev_b32 v18, 3, v{LANE}
        v_and_b32 v8, 24, v18
        v_lshl_add_u32 v16, v7, 7, s42
        v_add_u32 v16, v16, v8
        v_lshl_add_u32 v17, v4, 4, s42
        v_lshl_add_u32 v17, v5, 10, v17
        v_and_b32 v19, 64, v{PE}
        v_add_lshl_u32 v19, v19, v{PE}, 1
        v_lshlrev_b32 v9, 2, v{LANE}
        v_add_u32 v21, {HP}, v9
        s_lshl_b32 s4, s40, 8
        v_add_u32 v20, s4, v21
        s_mul_i32 s4, s40, 288
        s_and_b32 s4, s4, 0xffc0
        s_add_u32 s5, s4, {DN}
        v_mul_u32_u24 v22, 1152, v7
        v_add3_u32 v22, v22, v8, s5
        s_lshl_b32 s5, s40, 7
        s_add_u32 s5, s5, {HS}
        v_lshl_add_u32 v23, v4, 4, s5
        v_lshl_add_u32 v23, v5, 6, v23
        v_and_b32 v10, 32, v{LANE}
        v_lshl_add_u32 v24, v3, 1, s5
        v_lshl_add_u32 v24, v6, 6, v24
        v_add_u32 v24, v24, v10
        v_lshlrev_b32 v26, 2, v3
        v_mul_u32_u24 v25, 2304, v6
        v_lshl_add_u32 v25, v10, 1, v25
        s_lshl_b32 s4, s4, 1
        v_add3_u32 v25, v25, v26, s4
        v_lshlrev_b32 v27, 3, v3
        v_mul_u32_u24 v11, 7282, v{LANE}
        v_lshrrev_b32 v11, 16, v11
        v_mul_u32_u24 v11, {1152-144}, v11
        v_add_u32 v{OAT}, v11, v{L16}
        v_mul_u32_u24 v11, 144, v3
        v_add_u32 v11, s97, v11
        v_lshl_add_u32 v{OAT+1}, v4, 3, v11
        v_lshl_add_u32 v{OAT+2}, v6, 3, v11
        v_lshl_add_u32 v{OAT+3}, v4, 9, v26
        v_add_u32 v28, 46080, v{L16}
        v_add_u32 v29, s97, v{L16}
        """)

    def tables_store():
        A(f"""
        ds_write_b128 v{TA}, v[16:19]
        ds_write_b128 v{TA}, v[20:23] offset:1024
        ds_write_b128 v{TA}, v[24:27] offset:2048
        ds_write_b128 v{TA}, {vr(OAT,4)} offset:3072
        ds_write_b64 v{TA}, v[28:29] offset:4096
        """)

    def p1_compute():
        A.c("staging waves of a workgroup without projection tile; one of them has a job")
        A(f"""
        K2_noload:
        s_lshl_b32 s4, s40, 8
        s_or_b32 s4, s4, s2
        s_cmp_lg_u32 s4, 228
        s_cbranch_scc1 K2_lastbar
        s_mov_b32 s{sWS+2}, {WS_SIZE}
        s_mov_b32 s{sWS+3}, 0x00020000
        s_mov_b32 s{sDBG+2}, 256
        s_mov_b32 s{sDBG+3}, 0x00020000
        s_waitcnt lgkmcnt(0)
        """)
        A.c("hand-off tag of this launch: successor of the word the previous launch left, published through d_debug[0]")
        A(f"""
        s_mov_b32 s4, {EP}
        buffer_load_dword v14, off, {ws}, s4 sc1
        s_mov_b32 s5, 1664525
        s_waitcnt vmcnt(0)
        v_mul_lo_u32 v14, v14, s5
        v_add_u32 v14, 1013904223, v14
        v_max_u32 v14, 1, v14
        s_mov_b64 exec, 1
        buffer_store_dword v14, off, s[{sDBG}:{sDBG+3}], 0 sc1
        buffer_store_dword v14, off, {ws}, s4 sc1
        s_mov_b64 exec, -1
        s_branch K2_lastbar
        """)
        A("K2_old:")
        common2()
        if OPT.get("chain"): A("s_mov_b32 s96, 0")
        A(f"""
        v_mov_b32 v{CA}, {CNT}
        v_mov_b32 v{ONE}, 1
        v_mov_b32 v10, 0
        v_mov_b32 v11, 0
        v_mov_b32 v12, 0
        v_mov_b32 v13, 0
        """)
        if OPT.get("cpf", 1):
            A.c("pull this kernel's code into the die's L2, three lines per wave (speed only)")
            A(f"""
            s_getpc_b64 s[8:9]
            K2_pc:
            s_sub_u32 s8, s8, K2_pc - {NAME}
            s_subb_u32 s9, s9, 0
            s_lshr_b32 s10, s2, 3
            s_lshl_b32 s10, s10, 2
            s_add_u32 s10, s10, s40
            v_min_u32 v2, 2, v{LANE}
            v_lshl_add_u32 v2, v2, 7, s10
            v_min_u32 v2, (K2_codeend - {NAME}) / 128, v2
            v_lshlrev_b32 v2, 7, v2
            v_mov_b32 v3, s9
            v_add_co_u32 v2, vcc, s8, v2
            s_nop 1
            v_addc_co_u32 v3, vcc, 0, v3, vcc
            global_load_dword v161, v[2:3], off
            """)
        if OPT.get("pre", 0):
            A.c("row-wise first touch of this die's share of x and w_qkv (speed only)")
            A(f"""
            s_lshr_b32 s8, s2, 3
            s_lshl_b32 s8, s8, 2
            s_add_u32 s8, s8, s40
            s_lshl_b32 s9, s4, 1
            s_add_u32 s9, s9, s6
            s_lshl_b32 s9, s9, 7
            s_add_u32 s9, s9, s8
            s_mul_i32 s9, s9, 2304
            v_min_u32 v2, 17, v{LANE}
            v_lshlrev_b32 v2, 7, v2
            s_mul_i32 s10, s4, 144
            s_add_u32 s10, s10, s8
            s_mul_i32 s10, s10, 3456
            s_mov_b32 s{sW+2}, {576*3456}
            s_mov_b32 s{sW+3}, 0x00020000
            s_mul_i32 s11, s6, 1536
            s_add_u32 s10, s10, s11
            s_cmp_lt_u32 s8, 16
            s_cselect_b32 s11, {128*3456}, 0
            v_and_b32 v3, 15, v{LANE}
            v_min_u32 v3, 13, v3
            v_lshlrev_b32 v3, 7, v3
            v_bfe_u32 v4, v{LANE}, 4, 1
            v_mad_u32_u24 v3, v4, s11, v3
            s_waitcnt lgkmcnt(0)
            buffer_load_dword v160, v2, s[{sX}:{sX+3}], s9 offen
            buffer_load_dword v160, v3, s[{sW}:{sW+3}], s10 offen
            """)
        A(f"""
        s_waitcnt lgkmcnt(0)
        ds_write_b128 v{CA}, v[10:13]
        ds_write_b128 v{CA}, v[10:13] offset:16
        ds_write_b128 v{CA}, v[10:13] offset:32
        s_load_dwordx2 s[4:5], s[0:1], 32
        s_load_dwordx2 s[6:7], s[0:1], 64
        """)
        srd(A, sG, 40, 576 * 9216)
        srd(A, sU, 48, 576 * 9216)
        srd(A, sD, 56, 4608 * 1152)
        A(f"""
        s_mov_b32 s10, 1152
        s_mov_b32 s11, 0x00020000
        s_waitcnt lgkmcnt(0)
        s_cmp_lt_u32 s40, 2
        s_cselect_b32 s8, s4, s6
        s_cselect_b32 s9, s5, s7
        s_cmp_lg_u32 s100, 3
        s_cbranch_scc1 K2_norgv
        s_lshl_b32 s4, s40, 10
        s_add_u32 m0, s4, {RGV}
        s_and_b32 s4, s4, 1024
        buffer_load_dwordx4 v{L16}, s[8:11], s4 offen lds
        K2_norgv:
        """)
        p1_addrs()
        att_setup(True)
        A.c("MoE stage 1: 96 rows x 64 columns of w_gate or w_up per wave; stage 2 (s64): 32 rows of w_down")
        A.c("staging slots a workgroup does not need get an empty descriptor")
        nm = OPT.get('nomoe2')
        A(f"""
        s_lshr_b32 s4, s2, 3
        s_mul_i32 s41, s3, 18
        s_add_u32 s41, s41, s4
        s_mul_i32 s42, s40, {WREG}
        s_mul_i32 s9, s40, 9216
        s_cmp_lt_u32 s4, 18
        s_cselect_b32 s{sD+2}, s{sD+2}, 0
        s_cselect_b32 s64, {0 if nm else 1}, 0
        s_mul_i32 s8, s41, 36864
        s_add_u32 s8, s8, s9
        s_add_u32 s9, s9, {DN}
        s_mul_i32 s5, s3, 27
        s_add_u32 s5, s5, s4
        s_sub_u32 s5, s5, 5
        s_max_i32 s5, s5, 0
        s_mul_i32 s58, s5, 3641
        s_lshr_b32 s58, s58, 16
        s_mul_i32 s10, s58, 18
        s_sub_u32 s5, s5, s10
        s_lshl_b32 s5, s5, 2
        s_add_u32 s5, s5, s40
        s_mul_i32 s59, s5, 24
        s_add_u32 s59, s59, s58
        s_lshl_b32 s59, s59, 9
        s_add_u32 s59, s59, {PG}
        s_sub_u32 s10, s58, 6
        s_cselect_b32 s58, s58, s10
        s_cselect_b64 s[{sG}:{sG+1}], s[{sG}:{sG+1}], s[{sU}:{sU+1}]
        s_mul_i32 s54, s58, {96*9216}
        s_lshl_b32 s5, s5, 7
        s_add_u32 s54, s54, s5
        s_mul_i32 s58, s58, 192
        v_lshrrev_b32 v8, 3, v{LANE}
        v_mul_u32_u24 v8, {9216-128}, v8
        v_add_u32 v{GUA}, v8, v{L16}
        s_cmp_lt_u32 s4, 5
        s_cselect_b32 s{sG+2}, 0, s{sG+2}
        s_cselect_b32 s59, {OOB}, s59
        """)
        A("s_setprio 3")
        sp(1, "setup")
        cs("setup")
        A("""
        s_cmp_eq_u32 s100, 3
        s_cbranch_scc1 K2_rg
        s_cmp_eq_u32 s100, 4
        s_cbranch_scc1 K2_idle2
        s_cmp_ge_u32 s69, 27
        s_cbranch_scc1 K2_idle
        s_cmp_eq_u32 s100, 2
        s_cbranch_scc1 K2_pv
        """)
        for vmode in (False, True):
            if vmode: A("K2_pv:")
            A.c("v tiles: D = x W (lane = channel, registers = tokens)" if vmode else "q / k tiles: D = W^T x^T (lane = token, registers = channels)")
            gemm(vmode)
        A.c("---- no second tile in this workgroup")
        A("K2_idle:")
        for c in range(9): A("s_barrier")
        A(tagload)
        gettag()
        A(f"s_mov_b32 s61, {OOB}")
        A("s_branch K2_p1done")
        A.c("---- no projection tile at all: re-pack one head half (s5) of one 72-channel block (s3) of w_o as MFMA fragments")
        A("K2_idle2:")
        A(f"""
        s_load_dwordx2 s[68:69], s[0:1], 16
        s_mov_b32 s70, {576*1152}
        s_mov_b32 s71, 0x00020000
        s_bfe_u32 s5, s2, 0x10003
        v_mul_u32_u24 v0, 6554, v{LANE}
        v_lshrrev_b32 v0, 16, v0
        v_mul_u32_u24 v1, {1152-160}, v0
        s_mul_i32 s6, s40, 144
        s_mul_i32 s7, s5, 18
        s_add_u32 s6, s6, s7
        s_mul_i32 s4, s6, 1152
        s_mul_i32 s10, s3, 144
        s_add_u32 s4, s4, s10
        v_add3_u32 v2, v1, v{L16}, s4
        s_mul_i32 s6, s6, 160
        s_mul_i32 s7, s7, 160
        s_mov_b32 s10, 0xdff7fdff
        s_mov_b32 s11, 0x7fdff7f
        s_waitcnt lgkmcnt(0)
        s_mov_b64 exec, s[10:11]
        """)
        for u in range(12):
            row = 36 * (u // 3) + 6 * (u % 3)
            A(f"s_add_u32 m0, s6, {row*160}")
            A(f"s_mov_b32 s67, {row*1152}")
            A(f"buffer_load_dwordx4 v2, s[68:71], s67 offen lds")
        A(f"""
        s_mov_b64 exec, -1
        v_lshrrev_b32 v4, 4, v{LANE}
        v_and_b32 v6, 1, v4
        v_bfe_u32 v7, v{LANE}, 2, 2
        v_lshrrev_b32 v5, 1, v4
        v_mul_u32_u24 v5, 36, v5
        v_lshl_add_u32 v5, v6, 2, v5
        v_add_u32 v5, v5, v7
        v_mul_u32_u24 v5, 160, v5
        v_add_u32 v5, s6, v5
        v_and_b32 v8, 3, v{LANE}
        v_and_b32 v9, 1, v{LANE}
        v_lshl_add_u32 v10, v8, 3, v5
        v_lshl_add_u32 v11, v9, 3, v5
        v_lshrrev_b32 v5, 1, v7
        v_lshl_add_u32 v5, v4, 2, v5
        v_mul_u32_u24 v5, 36, v5
        v_and_b32 v7, 1, v7
        v_add3_u32 v5, v5, v7, 16
        v_mul_u32_u24 v5, 160, v5
        v_add_u32 v5, s7, v5
        v_lshl_add_u32 v12, v8, 3, v5
        s_lshl_b32 s4, s40, 5
        v_add_u32 v12, s4, v12
        v_lshl_add_u32 v13, v9, 3, v5
        s_lshl_b32 s4, s3, 1
        s_add_u32 s4, s4, s5
        s_lshl_b32 s61, s4, 5
        s_add_u32 s61, s61, {F1 + 768*32}
        v_and_b32 v{FLA}, 7, v{LANE}
        v_lshlrev_b32 v{FLA}, 2, v{FLA}
        s_mul_i32 s4, s4, 46080
        s_add_u32 s7, s4, {WP + 40960}
        s_mul_i32 s6, s40, 10240
        s_add_u32 s6, s6, s4
        s_add_u32 s6, s6, {WP}
        s_lshl_b32 s10, s40, 10
        s_add_u32 s10, s10, s7
        s_add_u32 s7, s7, 4096
        s_waitcnt vmcnt(0)
        s_barrier
        """)
        A(tagload)
        for f in range(12):
            for a in range(2):
                if f < 10:
                    ks, T = divmod(f, 5)
                    A(f"ds_read_b64_tr_b16 {vr(16+4*f+2*a,2)}, v{10 if T < 4 else 11}{off((72*ks+8*a)*160+32*T)}")
                else:
                    A(f"ds_read_b64_tr_b16 {vr(16+4*f+2*a,2)}, v{2+f}{off(72*a*160+128*(f-10))}")
        gettag()
        A("s_waitcnt lgkmcnt(0)")
        for f in range(10):
            if f in (4, 8): A("s_add_u32 s6, s6, 4096")
            A(f"buffer_store_dwordx4 {vr(16+4*f,4)}, v{L16}, {ws}, s6 offen{off(1024*(f%4))} sc1")
        A(f"buffer_store_dwordx4 v[56:59], v{L16}, {ws}, s10 offen sc1")
        A(f"buffer_store_dwordx4 v[60:63], v{L16}, {ws}, s7 offen sc1")
        A("s_branch K2_p1done")
        A.c("---- router score and mix gate of 32 tokens per wave")
        A("K2_rg:")
        A(f"""
        v_lshrrev_b32 v1, 4, v{LANE}
        v_and_b32 v2, 31, v{LANE}
        v_and_b32 v3, 1, v{LANE}
        v_lshlrev_b32 v3, 11, v3
        v_lshl_add_u32 v3, v1, 4, v3
        v_add_u32 v{AW}, {RGV}, v3
        s_lshl_b32 s4, s71, 5
        v_add_u32 v{AW+1}, s4, v2
        v_cmp_lt_u32 vcc, 15, v2
        s_waitcnt vmcnt(0)
        """)
        for c in range(9):
            A("s_barrier")
            if c == 0: cs("B0")
            if c == 5: A(tagload)
            for n in (2 * c, 2 * c + 1):
                A(f"ds_read_b128 {vr(FR[n%2]+16,4)}, v{AW}{off(64*n)}")
                for a in range(2): A(xread(n, a, False))
            for n in (2 * c, 2 * c + 1):
                A(f"s_waitcnt lgkmcnt({3*(1-n%2)})")
                for a in range(2):
                    A(mf16(vr(ACC + 4 * a, 4), vr(FR[n % 2] + 16, 4), vr(FR[n % 2] + 4 * a, 4), "0" if n == 0 else vr(ACC + 4 * a, 4)))
        gettag()
        A("s_nop 3")
        cs("pass A")
        A(f"v_cndmask_b32 v{ACC}, v{ACC}, v{ACC+4}, vcc")
        A(f"v_cndmask_b32 v{ACC+1}, v{ACC+1}, v{ACC+5}, vcc")
        A(f"""
        s_mov_b32 s5, 0xffff0000
        v_cvt_pk_bf16_f32 v6, v{ACC+1}, v{ACC}
        v_lshlrev_b32 v4, 16, v6
        v_mul_f32 v4, {0x80000000 | LOG2E}, v4
        v_exp_f32 v4, v4
        v_ashrrev_i32 v7, 31, v6
        v_add_f32 v4, 1.0, v4
        v_rcp_f32 v4, v4
        v_or_b32 v7, 0x80000000, v7
        v_xor_b32 v6, v6, v7
        v_and_b32 v6, s5, v6
        v_sub_u32 v7, 0xffff, v{AW+1}
        v_or_b32 v6, v6, v7
        v_cvt_pk_bf16_f32 v4, v4, v4
        v_and_b32 v4, s5, v4
        v_mov_b32 v5, s{sTAG}
        v_lshlrev_b32 v7, 3, v{AW+1}
        s_mov_b32 s4, {GB}
        buffer_store_dwordx2 v[4:5], v7, {ws}, s4 offen sc1
        """)
        wave_top2_u32(A, 6, 7, 6, 7)
        A(f"""
        s_lshl_b32 s4, s71, 4
        s_add_u32 s4, s4, {RC}
        v_mov_b32 v8, s6
        v_mov_b32 v9, s{sTAG}
        v_mov_b32 v10, s7
        v_mov_b32 v11, s{sTAG}
        s_mov_b64 exec, 1
        buffer_store_dwordx4 v[8:11], off, {ws}, s4 sc1
        s_mov_b64 exec, -1
        s_mov_b32 s61, {OOB}
        """)
        sp(1, "astore")
        cs("a stores")
        A("K2_p1done:")
        A("s_mov_b32 s55, s61")
        presets()
        scratch_addrs(AS, WREG)
        tables()
        pflag(55)
        sp(1, "aflag")
        cs("flag")

    def ldK(p):
        return [f"buffer_load_dwordx4 {vr(KP[p%3]+6*i,4)}, v{KA}, {ws}, s{sT[2*p]} offen{off(256*i)} sc1" for i in range(2)]

    def ldV(j):
        return ["s_mov_b64 exec, s[62:63]"] + \
            [f"buffer_load_dwordx4 {vr(VV[j%NB]+4*i,4)}, v{(VA, VA2)[j%2]}, {ws}, s{sT[(j & ~1)+i]} offen sc1" for i in range(2)] + \
            ["s_mov_b64 exec, -1"]

    def ldKE(g):
        return [f"buffer_load_dwordx4 {vr(KE+4*g,4)}, v{KEA}, {ws}, s{sT[4*g]} offen sc1"]

    QT = 32

    def ldQ(rp):
        return [f"buffer_load_dwordx4 {vr(QT+8*rp+4*i,4)}, v{KA}, {ws}, s{56+rp} offen{off(256*i)} sc1" for i in range(2)]

    def items(j):
        return ([ldKE(j // 4)] if j % 4 == 0 else []) + ([[l] for l in ldK(j // 2)] if j % 2 == 0 else []) + [ldV(j)]

    def kmov(kt):
        b = KP[(kt // 2) % 3]
        return f"v_mov_b64 {vr(b+4,2)}, {vr(b+8 if kt % 2 else b,2)}"

    def m2b(kt, c):
        u = kt % 4
        return (f"v_mfma_f32_32x32x4_2b_bf16 {vr(S[c],32)}, {vr(KE+4*(kt//4)+2*(u%2),2)}, {vr(QE+2*c,2)}, 0"
                f" cbsz:1 abid:{u//2}")

    def mm(kt, c, b):
        d = vr(S[c] + 16 * b, 16)
        return mfma(d, vr(KP[(kt // 2) % 3] + (2 if kt % 2 else 4), 4), vr(QM + 4 * (c + 2 * b), 4), d)

    def sm(kt, c, b, i):
        return (f"v_smfmac_f32_32x32x32_bf16 {vr(O[c+2*b],16)}, {vr(VV[kt%NB]+4*i,4)}, "
                f"{vr(S[c]+16*b+8*i,8)}, v{IDX}")

    def moe_dma(n):
        if n < 12:
            return [f"s_add_u32 m0, s42, {1024*n}", f"s_add_u32 s67, s54, {8*9216*n}",
                    f"buffer_load_dwordx4 v{GUA}, s[{sG}:{sG+3}], s67 offen{OPT.get('gunt', ' nt')} lds"]
        n -= 12
        pre = [f"s_add_u32 m0, s9, {4096*(n//4)}", f"s_add_u32 s67, s8, {4096*(n//4)}"]
        return pre + [f"buffer_load_dwordx4 v{L16}, s[{sD}:{sD+3}], s67 offen{off(1024*(n%4))}{OPT.get('dnnt', ' nt')} lds"]

    def xsel_dma(k):
        if OPT.get("xm"):
            return [f"s_add_u32 m0, s42, {12288+1024*k}", "s_mov_b64 exec, 0xfff",
                    f"buffer_load_dwordx4 v{L16}, s[{sX}:{sX+3}], s{10+k} offen lds", "s_mov_b64 exec, -1"]
        return [f"s_add_u32 m0, s42, {12288+1024*k}", "s_nop 0",
                f"buffer_load_dwordx4 v{L16}, s[{sX}:{sX+3}], s{10+k} offen lds"]

    GQ = 190
    gqload = [f"buffer_load_dwordx2 {vr(d,2)}, v{a}, {ws}, s52 offen sc1" for d, a in ((250, 234), (GQ, GQA))]

    def owrite(t):
        return [f"ds_write_b128 v{SW}, {vr(O[t],4)}{off(2048*t)}",
                f"ds_write_b128 v{SW}, {vr(O[t]+4,4)}{off(2048*t+1024)}",
                f"ds_write_b64 v{SW}, {vr(O[t]+8,2)}{off((6144, 6152, 7168)[t])}"]

    def scratch_addrs(base, stride):
        A(f"s_mul_i32 s4, s40, {stride}")
        A(f"s_add_u32 s4, s4, {base}")
        A(f"v_add_u32 v{SW}, s4, v{L16}")
        for t in range(3):
            A(f"s_xor_b32 s4, s40, {t ^ 3}")
            A(f"s_mul_i32 s4, s4, {stride}")
            A(f"s_add_u32 s4, s4, {base}")
            A(f"v_add_u32 v{RD+t}, s4, v{L16}")
        A(f"""
        v_bfe_u32 v{PM}, v{LANE}, 4, 1
        v_lshlrev_b32 v{PM}, 14, v{PM}
        v_lshrrev_b32 v{PE}, 5, v{LANE}
        v_lshl_add_u32 v{PM}, v{PE}, 8, v{PM}
        v_and_b32 v{PE}, 0xff, v{L16}
        v_add_u32 v{PM}, v{PM}, v{PE}
        v_and_b32 v{PE}, 31, v{LANE}
        v_lshlrev_b32 v{PE}, 2, v{PE}
        s_lshl_b32 s4, s39, 6
        s_lshl_b32 s5, s37, 2
        s_add_u32 s4, s4, s5
        s_add_u32 s4, s4, s40
        s_lshl_b32 s5, s4, 1
        s_and_b32 s6, s40, 1
        s_sub_u32 s5, s5, s6
        s_lshl_b32 s5, s5, 13
        s_lshl_b32 s6, s43, 9
        s_add_u32 s5, s5, s6
        s_add_u32 s65, s5, {OM}
        s_lshl_b32 s4, s4, 4
        s_add_u32 s4, s4, s43
        s_lshl_b32 s4, s4, 7
        s_add_u32 s66, s4, {OE}
        s_lshl_b32 s4, s37, 10
        s_lshr_b32 s5, s40, 1
        s_lshl_b32 s5, s5, 9
        s_add_u32 s4, s4, s5
        s_and_b32 s5, s40, 1
        s_lshl_b32 s5, s5, 7
        s_add_u32 s4, s4, s5
        s_add_u32 s52, s4, {GB}
        s_lshl2_add_u32 s4, s37, s40
        s_lshl_b32 s4, s4, 7
        s_lshl2_add_u32 s4, s43, s4
        s_add_u32 s61, s4, {FO}
        v_mov_b32 v{CA}, {CNT + (0 if base == AS else 12)}
        v_mov_b32 v{ONE}, 1
        """)

    def attention(old):
        pend = []

        def issue(lines, tag):
            for l in lines:
                if l.startswith("buffer_"):
                    pend.append(tag)
            return lines

        def wait_for(tag):
            last = max(i for i, t in enumerate(pend) if t == tag)
            n = len(pend) - 1 - last
            del pend[:last + 1]
            return f"s_waitcnt vmcnt({n})"

        if old:
            sl0, sl1 = OPT.get("psleep", (20, 0))
            for x, p in enumerate(list(OPT.get("s1p", ())) + list(OPT.get("dnp", ()))):
                if p < 0:
                    for l in moe_dma(x): A(l)
            A.c("wave 1 watches the flags; the barrier releases the others")
            A(f"""
            s_cmp_lg_u32 s40, 1
            s_cbranch_scc1 K2_p1seen
    s_mov_b32 s5, {SPIN}
    """)
            A.c("flags that nobody has cached yet are written faster: back off first; workgroups without a projection")
            A.c("tile are far ahead of the others and watch a single line until it is complete")
            A(f"""
            s_cmp_lt_u32 s2, 224
            s_cbranch_scc0 K2_p1gate0
            """)
            if OPT.get("peek"):
                A(f"""
                s_mov_b64 exec, {OPT["peek"]}
                buffer_load_dword v12, v{PA}, {ws}, 0 offen sc1
                s_waitcnt vmcnt(0)
                v_cmp_ne_u32 vcc, s{sTAG}, v12
                s_mov_b64 exec, -1
                s_cbranch_vccz K2_p1poll
                """)
            A(f"""
            s_sleep {sl0}
            s_branch K2_p1poll
            K2_p1gate0:
            s_mov_b64 exec, {OPT.get("gex", 15)}
            K2_p1gate:
            s_sleep {OPT.get("gsl", 3)}
            buffer_load_dword v12, v{PA}, {ws}, 0 offen sc1
            s_sub_u32 s5, s5, 1
            s_cbranch_scc1 K2_p1open
            s_waitcnt vmcnt(0)
            v_cmp_ne_u32 vcc, s{sTAG}, v12
            s_cbranch_vccnz K2_p1gate
            K2_p1open:
            s_mov_b64 exec, -1
            s_mov_b32 s5, {SPIN}
            {f"s_sleep {OPT['gs2']}" if OPT.get("gs2") else ""}
    K2_p1poll:
    buffer_load_dword v12, v{PA}, {ws}, 0 offen sc1
    buffer_load_dword v13, v{PA+1}, {ws}, 0 offen sc1
    s_sub_u32 s5, s5, 1
    s_cbranch_scc1 K2_p1seen
    s_waitcnt vmcnt(0)
    v_cmp_ne_u32 vcc, s{sTAG}, v12
    v_cmp_ne_u32 s[6:7], s{sTAG}, v13
    s_or_b64 vcc, vcc, s[6:7]
    s_cbranch_scc0 K2_p1seen
    {f"s_sleep {sl1}" if sl1 else ""}
    s_branch K2_p1poll
    K2_p1seen:
            s_barrier
            """)
        sp(old, "polled")
        if old: cs("polled")
        pro = issue([f"buffer_load_dwordx4 {vr(QT+16,4)}, v{QEA}, {ws}, s60 offen sc1"] + ldKE(0), "qe") + \
            issue(ldK(0) + ldQ(0), "q0") + issue(ldQ(1), "q1") + issue(ldV(0)[:-1], "g0") + issue(ldV(1)[1:], "g1")
        NP = OPT.get("np", (3, 2))[not old]
        LATE = OPT.get("late", 0)
        if not LATE:
            for j in range(2, NP): pro += issue(sum(items(j), []), f"g{j}")
        for i, l in enumerate(pro):
            if old and i == OPT.get("xb", -1): A("s_barrier")
            A(l)
            if not old and l.startswith("buffer_") and OPT.get("ypace", 0): A(f"s_sleep {OPT.get('ypace', 1)}")
        if not old:
            A("v_mov_b64 v[250:251], -1\nv_mov_b64 v[252:253], -1")
        if old:
            if not LATE: A("s_barrier")
            cs("issued")
            csflush(0, 12)
        A(f"""
        v_mov_b32 v{IDX}, 0xdddddddd
        s_bitcmp0_b32 s36, 0
        s_cselect_b32 s4, -1, 0
        s_cselect_b32 s5, 0, -1
        s_bitcmp1_b32 s40, 0
        """)
        l = lab("K2_qsel")
        w0 = wait_for("qe")
        more = []
        if LATE:
            for j in range(2, NP): more += issue(sum(items(j), []), f"g{j}")
            if old: more.append("s_barrier")
        w1, w2 = wait_for("q0"), wait_for("q1")
        A(f"s_cbranch_scc1 {l}")
        for b0 in (1, 0):
            if b0 == 0: A(f"{l}:")
            A(w0)
            for c in range(2):
                A(f"v_and_b32 v{QE+2*c}, s4, v{QT+16+2*(c^b0)}")
                A(f"v_and_b32 v{QE+2*c+1}, s5, v{QT+17+2*(c^b0)}")
            A(m2b(0, 0))
            for x in more: A(x)
            if len(more) < 12: A(f"s_nop {11 - len(more)}")
            for rp in range(2):
                A((w1, w2)[rp])
                if rp == 0: A(kmov(0))
                for t in (2 * rp, 2 * rp + 1):
                    for ab in range(2):
                        A(f"v_mov_b64 {vr(QM+4*t+2*ab,2)}, {vr(QT+8*(t>>1)+4*ab+2*((t&1)^b0),2)}")
                A(mm(0, 0, rp))
            if b0 == 1: A(f"s_branch {l}_d")
        A(f"{l}_d:")
        A("s_nop 4")
        A(f"s_setprio {1 if old else 0}")
        sp(old, "first")
        MK, MK2 = OPT.get("mk", (1, 5))
        XS = OPT.get("xsel", 9)
        TP = OPT.get("top2", 12)
        gsched = {}
        nx = NP
        for kt in range(NP - 2, 16):
            for _ in range(2 if kt in OPT.get("ramp" if old else "yramp", (1, 3)) else 1):
                if nx <= min(15, kt + NB - 1):
                    gsched.setdefault(kt, []).append(nx); nx += 1
        dsched = {}
        d0, d1 = OPT.get("dma", (3, 29))
        order = range(21)
        for i, x in enumerate(order): dsched.setdefault(d0 + i * (d1 - d0) // 21, []).append(x)
        if "dma" not in OPT:
            s1p = OPT.get("s1p", (7, 10, 13, 16, 19, 22, 23, 23, 24, 25, 26, 27))
            dnp = OPT.get("dnp", (8, 11, 14, 17, 20, 21, 26, 27, 28))
            dsched = {}
            for x, p in enumerate(list(s1p) + list(dnp)): dsched.setdefault(p, []).append(x)
            assert len(s1p) == 12 and len(dnp) == 9
        assert all(len(v) == 1 for p, v in dsched.items() if p >= 28) and OPT.get("dpos", (0, 0)) == (0, 0)
        touch = {}
        for kt in range(16):
            for c in range(2):
                n = 2 * kt + c
                cur = S[c]
                nxt = (kt, 1) if c == 0 else (kt + 1, 0)
                prv = (kt - 1, 1) if c == 0 else (kt, 0)
                has_next = n < 31
                ins = {}
                def at(p, l): ins.setdefault(p, []).extend(l if isinstance(l, list) else [l])
                if n > 0:
                    at(1, sm(prv[0], prv[1], 1, 1))
                L2 = OPT.get("lchain") == 2
                if c == 0:
                    if L2: at(1, "s_memtime s[82:83]")
                    todo = [(it, f"g{j}") for j in gsched.get(kt, []) for it in items(j)]
                    if not old and OPT.get("vpair", 1) and kt >= 4 and todo:
                        j = gsched[kt][0]
                        assert len(gsched[kt]) == 1
                        todo = todo[:-1] if j % 2 == 0 else [(ldV(j - 1)[:-1] + ldV(j)[1:], f"g{j-1}")]
                    if old and kt == XS: todo += [(xsel_dma(0), "st10"), (xsel_dma(1), "st10")]
                    slots = OPT.get("slots", [(0, 16), (0, 24), (1, 16), (1, 24), (1, 25), (1, 31)]) if old else \
                        OPT.get("yslots", [(0, 2), (0, 14), (0, 26), (1, 8), (1, 22), (1, 30)])
                    place = {sl: td for sl, td in zip(slots, todo)}
                    assert len(todo) <= len(slots)
                if c == 0 and L2: at(1, "s_memtime s[84:85]")
                if c == 1 and L2: at(4, "s_memtime s[86:87]")
                if c == 1 and L2:
                    at(4, "s_memtime s[88:89]")
                    at(30, ["s_waitcnt lgkmcnt(0)"] + sum([[f"s_sub_u32 s{82+2*q}, s{82+2*q}, s80", f"v_writelane_b32 v{PA}, s{82+2*q}, {4*kt+q}"] for q in range(4)], []))
                ev = [(p, td) for (cc, p), td in place.items() if cc == c]
                if old and n in touch: ev.append((19, (touch[n], "moe")))
                if old and not OPT.get("nomoe"):
                    for i, x in enumerate(dsched.get(n, [])): ev.append((OPT.get("dpos", (0, 0))[c] + (0, 16, 24)[i], (moe_dma(x), f"st1{x//4}" if x < 12 else "moe")))
                if old and n == TP - 8:
                    ev.append((OPT.get("epos", 11), ([f"s_mov_b32 s4, {RC}", f"buffer_load_dwordx4 {vr(CAND,4)}, v{L16}, {ws}, s4 offen sc1"], "cand")))
                XP = OPT.get("xp", 24)
                if old and n == XP - 1:
                    at(8, f"ds_read_b32 v250, v{TA} offset:3072")
                if old and XP <= n < XP + 3:
                    k = n - XP
                    ev.append((OPT.get("epos", 11), ((["s_waitcnt lgkmcnt(0)"] if k == 0 else []) +
                                    [f"s_add_u32 m0, s97, {1008*k}", f"s_add_u32 s4, s34, {7*1152*k}",
                                     f"buffer_load_dwordx4 v250, s[{sX}:{sX+3}], s4 offen lds"], "moe")))
                if not old and n == MK:
                    ev.append((18, ([f"buffer_store_dwordx4 v[250:253], v{PM}, {ws}, s65 offen sc1"], "mark")))
                    ev.append((20, ([f"buffer_store_dword v250, v{PE}, {ws}, s66 offen sc1"], "mark")))
                if not old and n == MK2: ev.append((18, ([gqload[0]], "gq")))
                if n == 0: ev.append((12, "g0"))
                if c == 1 and has_next and not (not old and OPT.get("vpair", 1) and kt >= 8 and kt % 2 == 0):
                    ev.append((OPT.get("wpos", 1), f"g{kt+1}"))
                for p, td in sorted(ev, key=lambda e: e[0]):
                    at(p, wait_for(td) if isinstance(td, str) else issue(*td))
                if c == 1 and has_next: at(10, kmov(kt + 1))
                if has_next:
                    at(4, m2b(*nxt))
                    at(20, mm(nxt[0], nxt[1], 0))
                    at(28, mm(nxt[0], nxt[1], 1))
                at(12, sm(kt, c, 0, 0))
                at(17, sm(kt, c, 0, 1))
                at(25, sm(kt, c, 1, 0))
                if OPT.get("lchain") == 1:
                    if c == 0: at(0, "s_memtime s[88:89]")
                    else: at(0, ["s_waitcnt lgkmcnt(0)", "s_sub_u32 s88, s88, s80", f"v_writelane_b32 v{PA}, s88, {kt}"])
                if not old and n == MK2:
                    assert "mark" not in pend
                    at(6, ["s_mov_b64 exec, 1", f"ds_add_u32 v{CA}, v{ONE} offset:12", "s_mov_b64 exec, -1"])
                if n == 24:
                    if old:
                        at(2, f"ds_read_b128 {vr(M0,4)}, v{TA}")
                        at(26, "s_waitcnt lgkmcnt(0)")
                        at(27, issue([gqload[old]], "gq"))
                    else:
                        assert "gq" not in pend
                        at(6, [f"v_cmp_ne_u32 vcc, s{sTAG}, v251", f"s_cbranch_vccnz K2_gqspin0", f"K2_gqok0:"])
                        at(9, f"v_mov_b32 v{GQ}, v250")
                if n == 30 and old:
                    at(0, ([wait_for("gq")] if "gq" in pend else []) + [f"v_cmp_ne_u32 vcc, s{sTAG}, v{GQ+1}", f"s_cbranch_vccnz K2_gqspin1", f"K2_gqok1:"])
                if old and n >= 27:
                    G, XF, WFs = 202, 148, [218, 222, 164, 168]
                    if n == 27:
                        at(8, f"v_mov_b32 v251, v{TAGV}")
                        at(14, f"v_mov_b32 v253, v{TAGV}")
                    elif n < 31:
                        u = n - 28
                        if f"st1{u}" in pend: at(1, wait_for(f"st1{u}"))
                        rp, mp, wn = OPT.get("s1", ((2,) * 9, (11, 16, 24, 31), (6, 0)))
                        at(rp[0], f"ds_read_b128 {vr(XF,4)}, v{M3} offset:{12288+64*u}")
                        for t in range(4):
                            for a in range(2):
                                at(rp[1 + 2 * t + a], f"ds_read_b64_tr_b16 {vr(WFs[t]+2*a,2)}, v{M0}{off(4096*u+512*a+32*t)}")
                        for t in range(4):
                            at(mp[t], ([f"s_waitcnt lgkmcnt({wn[t]})"] if t < len(wn) else []) +
                               [mf16(vr(G + 4 * t, 4), vr(XF, 4), vr(WFs[t], 4), "0" if u == 0 else vr(G + 4 * t, 4))])
                    else:
                        at(7, ["s_mov_b32 s10, 0", "s_mov_b32 s11, -1", "s_add_u32 s4, s59, 6144",
                               f"v_cndmask_b32 v250, v{G}, v{G+4}, s[10:11]",
                               f"buffer_store_dwordx2 v[250:251], v{M4}, {ws}, s59 offen sc1"])
                        at(9, [f"v_cndmask_b32 v252, v{G+8}, v{G+12}, s[10:11]",
                               f"buffer_store_dwordx2 v[252:253], v{M4}, {ws}, s4 offen sc1"])
                if n == 31:
                    for t, pp in zip((0, 2, 1), OPT.get("oow" if old else "ow", ((0, 4, 8), (13, 18, 23), (28, 30, 31)))):
                        for p, l in zip(pp, owrite(t)): at(p, l)
                if n == TP and old:
                    assert "cand" not in pend
                    B = Asm()
                    at(0, [f"v_cmp_ne_u32 vcc, s{sTAG}, v{CAND+1}", f"v_cmp_ne_u32 s[4:5], s{sTAG}, v{CAND+3}",
                           "s_or_b64 vcc, vcc, s[4:5]", "s_cbranch_scc1 K2_candspin", "K2_candok:"])
                    wave_max_u32(B, CAND, CAND + 1, 68)
                    B(f"s_nop 1\nv_cmp_ne_u32 vcc, s68, v{CAND}\ns_nop 1\nv_cndmask_b32 v{CAND}, v{CAND+2}, v{CAND}, vcc")
                    wave_max_u32(B, CAND, CAND + 1, 69)
                    B(f"""
                    s_nop 0
                    s_not_b32 s70, s68
                    s_not_b32 s71, s69
                    s_and_b32 s70, s70, 0x7ff
                    s_and_b32 s71, s71, 0x7ff
                    s_mul_i32 s10, s70, 1152
                    s_mul_i32 s11, s71, 1152
                    s_add_u32 s10, s10, s58
                    s_add_u32 s11, s11, s58
                    """)
                    p = -1
                    tail = []
                    for l in B.lines:
                        l = l.strip()
                        if l == "s_nop 1" and p + 2 <= 31:
                            p += 2
                        elif p + 2 > 31 or tail:
                            tail.append(l)
                        else:
                            at(p, l)
                    at(31, tail)
                sp(old, f"p{n}")
                for i in range(32):
                    A(f"v_exp_f32 v{cur+i}, v{cur+i}")
                    for l in ins.get(i, []):
                        if OPT.get("noload") and kt >= 2 and not l.startswith(("v_smfmac", "v_mfma_f32_32", "v_mov_b64", "K2_")): continue
    p1_compute()
    attention(True)
    if OPT.get("quit"):
        ST.flush(v=20)
        A("s_endpgm")
    if OPT.get("chain"): A("s_mov_b32 s96, 0")
    cs("loop end")
    A.c("---- MoE stage 2: fetch three partials per wave")
    PL = 184

    def pload():
        for q in range(3):
            A(f"buffer_load_dwordx2 {vr(PL+2*q,2)}, v{M4}, {ws}, s67 offen{off(512*q)} sc1")
    A(f"""
    s_and_b32 s4, s40, 1
    s_lshl_b32 s4, s4, 1
    s_lshr_b32 s5, s40, 1
    s_add_u32 s4, s4, s5
    s_lshl_b32 s5, s41, 2
    s_add_u32 s4, s4, s5
    s_mul_i32 s4, s4, 1536
    s_add_u32 s67, s4, {PG}
    s_cmp_eq_u32 s64, 0
    s_cbranch_scc1 K2_fin0
    """)
    pload()
    A("s_branch K2_fin0")

    A("K2_young2:")
    scratch_addrs(BS, 8192)
    A("s_barrier")
    tables_lane()
    tables_store()
    A(f"v_mov_b32 v234, v19\ns_waitcnt lgkmcnt(0)\ns_barrier\ns_barrier")
    if OPT.get("xb", -1) >= 0: A("s_barrier")
    if OPT.get("ydelay"): A(f"s_sleep {OPT['ydelay']}")
    attention(False)
    A("K2_fin0:")
    o = O[3]
    A.c("LDS executes a wave's operations in order: the count is bumped after this wave's writes, and reads issued")
    A.c("behind a count of 4 see every partial")
    A(f"""
    s_setprio 2
    s_mov_b32 s5, {LSPIN}
    s_mov_b64 exec, 1
    ds_add_u32 v{CA}, v{ONE}
    s_mov_b64 exec, -1
    K2_fin1:
    ds_read_b32 v0, v{CA}
    """)
    for t in range(3):
        A(f"ds_read_b128 {vr(O[t],4)}, v{RD+t}{off(2048*t)}")
        A(f"ds_read_b128 {vr(O[t]+4,4)}, v{RD+t}{off(2048*t+1024)}")
        A(f"ds_read_b64 {vr(O[t]+8,2)}, v{RD+t}{off((6144, 6152, 7168)[t])}")
    A("""
    s_waitcnt lgkmcnt(9)
    v_readfirstlane_b32 s4, v0
    s_cmp_lt_u32 s4, 4
    s_cbranch_scc1 K2_finwait
    K2_fin2:
    """)
    A(f"s_mov_b32 s4, {f32bits(2.0**-30)}")
    A(f"v_mov_b32 v9, {f32bits(2.0**60)}")
    for t in range(3):
        A(f"s_waitcnt lgkmcnt({3*(2-t)})")
        for i in ((4, 0, 1, 2, 3) if t == 2 else range(5)):
            A(f"v_pk_add_f32 {vr(o+2*i,2)}, {vr(o+2*i,2)}, {vr(O[t]+2*i,2)}")
            if t == 2 and i == 0: A(f"v_rcp_f32 v0, v{o+9}")
    A.c("safety check of the unshifted softmax: denominator in [2^-30, 2^60], numerators finite; else redo with the true max")

    def norm():
        return [f"v_mul_f32 v2, v{o+8}, v0", f"v_mul_f32 v3, v{o+8}, v0"] + \
            [f"v_pk_mul_f32 {vr(o+2*i,2)}, {vr(o+2*i,2)}, v[0:1] op_sel_hi:[1,0]" for i in range(4)] + \
            ["v_permlane32_swap_b32 v2, v3"] + [f"v_cvt_pk_bf16_f32 v{4+i}, v{o+2*i}, v{o+2*i+1}" for i in range(4)] + \
            ["v_cvt_pk_bf16_f32 v2, v2, v3"]
    A(f"""
    v_mul_f32 v0, v0, v{GQ}
    v_maximum3_f32 v10, abs(v{o}), abs(v{o+1}), abs(v{o+2})
    v_maximum3_f32 v11, abs(v{o+3}), abs(v{o+4}), abs(v{o+8})
    v_maximum3_f32 v12, abs(v{o+5}), abs(v{o+6}), abs(v{o+7})
    v_med3_f32 v8, v{o+9}, s4, v9
    v_maximum3_f32 v10, v10, v11, abs(v0)
    v_cmp_eq_f32 s[6:7], v8, v{o+9}
    v_maximum3_f32 v10, v10, v10, v12
    """)
    nm = norm()
    A(nm[0])
    A(f"v_cmp_gt_f32 vcc, {f32bits(2.0**90)}, v10")
    for l in nm[1:7]: A(l)
    A("s_and_b64 vcc, vcc, s[6:7]")
    for l in nm[7:9]: A(l)
    A("s_cmp_eq_u64 vcc, exec")
    for l in nm[9:]: A(l)
    A(f"""
    {"s_nop 0" if OPT.get("noload") else "s_cbranch_scc0 K2_slow"}
    K2_fin:
    buffer_store_dwordx4 v[4:7], v{PM}, {ws}, s65 offen sc1
    buffer_store_dword v2, v{PE}, {ws}, s66 offen sc1
    s_cmp_eq_u32 s39, 0
    s_cbranch_scc1 K2_old2
    s_mov_b64 exec, 1
    ds_add_u32 v{CA}, v{ONE} offset:4
    """)
    if gen1.DIAG:
        sp(0, "flag"); A("s_waitcnt vmcnt(0)")
    ST.flush(v=20)
    A("K2_end:")
    A("s_endpgm")

    A("K2_old2:")
    cs("fin")
    HPW, HPR, DNA, HA, HW, YA, FA, GA = range(208, 216)
    OUT, SG1, SG2, OEA, B1, SR, TV, SV = 240, 241, 242, 243, 248, 249, 252, 250
    ACC, OF, WF = 0, 20, 56
    XR, GV, T0 = 72, 244, 112
    srd(A, sO, 72, XB)
    gload = f"buffer_load_dwordx2 {vr(GV,2)}, v{GA}, {ws}, s52 offen sc1"
    A(f"""
    ds_read_b128 {vr(HPW,4)}, v{TA} offset:1024
    ds_read_b128 {vr(HW,4)}, v{TA} offset:2048
    ds_read_b128 {vr(OUT,4)}, v{TA} offset:3072
    ds_read_b64 {vr(B1,2)}, v{TA} offset:4096
    s_lshl_b32 s4, s32, 7
    s_add_u32 s52, s4, {GB}
    s_lshl_b32 s42, s40, 11
    s_add_u32 s66, s35, s42
    s_waitcnt vmcnt(2) lgkmcnt(0)
    s_cmp_eq_u32 s64, 0
    s_cbranch_scc1 K2_nop
    s_mov_b32 s5, {SPIN}
    K2_pchk:
    v_cmp_ne_u32 vcc, s{sTAG}, v{PL+1}
    v_cmp_ne_u32 s[8:9], s{sTAG}, v{PL+3}
    v_cmp_ne_u32 s[10:11], s{sTAG}, v{PL+5}
    s_or_b64 s[8:9], s[8:9], vcc
    s_or_b64 s[8:9], s[8:9], s[10:11]
    s_cbranch_scc0 K2_pok
    s_sleep 4
    """)
    pload()
    A(f"""
    s_sub_u32 s5, s5, 1
    s_waitcnt vmcnt(0)
    s_cbranch_scc0 K2_pchk
    K2_pok:
    v_add_f32 v10, v{PL}, v{PL+2}
    v_add_f32 v10, v10, v{PL+4}
    ds_write_b32 v{HPW}, v10
    K2_nop:
    """)
    arrive(1)
    A(gload)
    cs("partials")
    gwait(1)
    cs("gwait1")
    wpos = [0]

    def wodma(cnt, paced=True):
        for u in range(wpos[0], wpos[0] + cnt):
            if u == 11:
                A(f"s_sub_u32 s66, s66, s42\ns_mov_b32 s42, 0")
            A(f"s_add_u32 m0, s42, {8192*u}")
            A(f"s_add_u32 s67, s66, {8192*u}")
            for h in range(2):
                A(f"buffer_load_dwordx4 v{L16}, {ws}, s67 offen{off(1024*h)} sc1 lds")
            if paced: A(f"s_waitcnt vmcnt({OPT.get('wopace', 4)})")
        wpos[0] += cnt

    A.c("the half-A flag also tells that waves 4-7 have marked their slots")
    gwait(6)
    A(f"""
    s_mov_b64 exec, 1
    s_waitcnt vmcnt(1)
    buffer_store_dword v{TAGV}, off, {ws}, s61 sc1
    s_mov_b64 exec, -1
    s_cmp_eq_u32 s64, 0
    s_cbranch_scc0 K2_st2
    """)
    arrive(7)
    SPR = OPT.get("spr", 2)
    wodma(SPR + 2)
    wpos[0] = 0
    A("s_branch K2_nost2")
    A("K2_st2:")
    n0 = len(A.lines)
    A.c("---- MoE: h = silu(gate) * up, then this wave's w_down column tiles")
    A(f"""
    ds_read2st64_b32 v[10:11], v{HPR} offset0:0 offset1:1
    ds_read2st64_b32 v[12:13], v{HPR} offset0:2 offset1:3
    """)
    for t in range(5):
        for a in range(2):
            A(f"ds_read_b64_tr_b16 {vr(24+4*t+2*a,2)}, v{DNA}{off(4608*a+32*t)}")
    A(f"""
    s_waitcnt lgkmcnt(10)
    v_pk_add_f32 v[10:11], v[10:11], v[12:13]
    v_cvt_pk_bf16_f32 v11, v10, v11
    v_lshlrev_b32 v10, 16, v11
    v_mul_f32 v12, {0x80000000 | LOG2E}, v10
    v_exp_f32 v12, v12
    v_and_b32 v11, 0xffff0000, v11
    v_add_f32 v12, 1.0, v12
    v_rcp_f32 v12, v12
    s_mul_i32 s4, s41, 4608
    v_mul_f32 v10, v10, v12
    v_cvt_pk_bf16_f32 v10, 0, v10
    v_mul_f32 v10, v10, v11
    v_cvt_pk_bf16_f32 v10, v10, v10
    ds_write_b16 v{HW}, v10
    ds_read_b128 v[12:15], v{HA}
    """)
    for t in range(5, 10):
        for a in range(2):
            A(f"ds_read_b64_tr_b16 {vr(24+4*t+2*a,2)}, v{DNA}{off(4608*a+32*t)}")
    A(f"""
    s_add_u32 s5, s4, {YP}
    s_mov_b32 s10, 0
    s_mov_b32 s11, -1
    s_waitcnt lgkmcnt(10)
    """)
    Y = [128 + 4 * t for t in range(10)]
    for t in range(10):
        if t == 5: A("s_waitcnt lgkmcnt(0)")
        A(mf16(vr(Y[t], 4), "v[12:15]", vr(24 + 4 * t, 4), "0"))
        if OPT.get("gap") and t < 9: A(f"s_nop {OPT['gap']}")
    A("s_nop 1")
    for t in range(0, 10, 2):
        A(f"v_cndmask_b32 v{Y[t]}, v{Y[t]}, v{Y[t+1]}, s[10:11]")
        A(f"buffer_store_dword v{Y[t]}, v{YA}, {ws}, s5 offen{off(64*t)} sc1")
    body = A.lines[n0:]; del A.lines[n0:]
    marks = [i * len(body) // (SPR + 1) for i in range(SPR)]
    for i, l in enumerate(body):
        if i in marks: wodma(1, False)
        A.lines.append(l)
    arrive(7)
    STRICT = OPT.get("strict", 1)
    if not STRICT: wodma(2, False)
    A(f"""
    s_lshl_b32 s4, s41, 7
    s_lshl_b32 s5, s40, 2
    s_add_u32 s4, s4, s5
    s_add_u32 s4, s4, {FY}
    s_mov_b64 exec, 1
    s_waitcnt vmcnt({0 if STRICT else 4})
    buffer_store_dword v{TAGV}, off, {ws}, s4 sc1
    s_mov_b64 exec, -1
    """)
    if STRICT:
        if STRICT > 1: A("s_waitcnt vmcnt(0)")
        wodma(2)
    A("K2_nost2:")
    wodma(5 - SPR)
    cs("down")
    Y0 = WF
    nosel = OPT.get("nomoe2") or OPT.get("nosel")

    def yflag_load():
        A(f"buffer_load_dwordx4 {vr(Y0+48,4)}, v{T0+2}, {ws}, s65 offen sc1")

    def y_first():
        A(f"""
        s_lshr_b32 s6, s32, 2
        s_lshr_b32 s4, s70, 6
        s_cmp_eq_u32 s4, {"-1" if nosel else "s6"}
        s_cselect_b32 s64, 1, 0
        s_lshr_b32 s4, s71, 6
        s_cmp_eq_u32 s4, {"-1" if nosel else "s6"}
        s_cselect_b32 s4, 2, 0
        s_or_b32 s64, s64, s4
        s_cbranch_scc0 K2_noy0
        v_min_u32 v{T0+2}, 35, v{LANE}
        v_lshlrev_b32 v{T0+2}, 7, v{T0+2}
        s_mul_i32 s65, s40, {36*128}
        s_add_u32 s65, s65, {FY}
        """)
        yflag_load()
        A("K2_noy0:")

    def y_sum():
        A(f"""
        s_cmp_eq_u32 s64, 0
        s_cbranch_scc1 K2_noy1
        s_mov_b32 s5, {SPIN}
        K2_ypoll:
        v_cmp_ne_u32 vcc, s{sTAG}, v{Y0+48}
        v_cmp_ne_u32 s[8:9], s{sTAG}, v{Y0+49}
        v_cmp_ne_u32 s[10:11], s{sTAG}, v{Y0+50}
        s_or_b64 s[8:9], s[8:9], vcc
        v_cmp_ne_u32 vcc, s{sTAG}, v{Y0+51}
        s_or_b64 s[8:9], s[8:9], s[10:11]
        s_or_b64 s[8:9], s[8:9], vcc
        s_cbranch_scc0 K2_ypolled
        """)
        yflag_load()
        A(f"""
        s_sub_u32 s5, s5, 1
        s_waitcnt vmcnt(0)
        s_cbranch_scc0 K2_ypoll
        K2_ypolled:
        v_min_u32 v{T0}, 53, v{LANE}
        v_mul_u32_u24 v{T0+1}, 3641, v{T0}
        v_lshrrev_b32 v{T0+1}, 16, v{T0+1}
        v_mul_u32_u24 v{T0+1}, {4608-288}, v{T0+1}
        v_lshl_add_u32 v{T0}, v{T0}, 4, v{T0+1}
        """)
        A(f"""
        s_lshl_b32 s6, s33, 1
        s_mul_i32 s7, s40, {36*4608}
        s_add_u32 s6, s6, s7
        s_add_u32 s65, s6, {YP}
        s_bitcmp1_b32 s64, 0
        s_cselect_b32 s6, 0, 2304
        s_cselect_b32 s7, 0, 1024
        s_add_u32 s6, s6, s65
        v_add_u32 v{T0+1}, s7, v{TA}
        """)
        yloads()
        A("K2_noy1:")

    def yloads():
        for u in range(12):
            A(f"buffer_load_dwordx4 {vr(Y0+4*u,4)}, v{T0}, {ws}, s6 offen sc1")
            A(f"s_add_u32 s6, s6, {3*4608}")
            if OPT.get("space") and u % 2: A(f"s_waitcnt vmcnt({OPT['space']})")

    def y_sum2(later):
        A(f"""
        s_cmp_eq_u32 s64, 0
        s_cbranch_scc1 K2_noy2
        s_waitcnt vmcnt({later})
        K2_ysum:
        """)
        for u in range(1, 12):
            for hf in range(2):
                A(f"v_pk_add_f32 {vr(Y0+2*hf,2)}, {vr(Y0+2*hf,2)}, {vr(Y0+4*u+2*hf,2)}")
        A(f"""
        ds_write_b128 v{T0+1}, {vr(Y0,4)}
        s_cmp_lg_u32 s64, 3
        s_cbranch_scc1 K2_ydone
        s_mov_b32 s64, 2
        s_add_u32 s6, s65, 2304
        s_waitcnt lgkmcnt(0)
        v_add_u32 v{T0+1}, 1024, v{TA}
        """)
        yloads()
        A("s_waitcnt vmcnt(0)\ns_branch K2_ysum\nK2_ydone:")
        arrive(5)
        A("K2_noy2:")

    def poll():
        l = lab("K2_poll")
        A(f"""
        s_mov_b32 s5, {SPIN}
        {l}:
        buffer_load_dword v{T0}, v{FA}, {ws}, s100 offen sc1
        s_sub_u32 s5, s5, 1
        s_cbranch_scc1 {l}_d
        s_waitcnt vmcnt(0)
        v_cmp_ne_u32 vcc, s{sTAG}, v{T0}
        s_cbranch_vccnz {l}
        {l}_d:
        """)

    def oload(ks):
        if ks < 8:
            return [f"buffer_load_dwordx4 {vr(OF+4*ks,4)}, v{L16}, {ws}, s{98 if ks < 4 else 101} offen{off(1024*(ks%4))} sc1"]
        return [f"buffer_load_dword v{OF+32+c}, v{OEA}, {ws}, s99 offen{off(128*c)} sc1" for c in range(4)]

    gwait(7)
    wodma(3)
    assert OPT.get('wopace', 4) <= 6 and FOM == 1
    A(f"""
    s_mov_b32 s5, {SPIN}
    K2_gchk:
    v_cmp_ne_u32 vcc, s{sTAG}, v{GV+1}
    s_cbranch_vccz K2_gok
    {gload}
    s_sub_u32 s5, s5, 1
    s_waitcnt vmcnt(0)
    s_cbranch_scc0 K2_gchk
    K2_gok:
    v_sub_f32 v{GV}, 1.0, v{GV}
    v_cvt_pk_bf16_f32 v{GV+1}, v{GV}, 0
    v_lshlrev_b32 v{GV}, 16, v{GV+1}
    """)
    cs("flags")
    wodma(2, False)
    cs("wo dma")
    y_first()
    poll()
    A("s_waitcnt vmcnt(0)")
    cs("polled")
    arrive(2)
    y_sum()
    for ks in range(9):
        for l in oload(ks): A(l)
        if OPT.get("space") and ks % 2: A(f"s_waitcnt vmcnt({OPT['space']})")

    def wreads(ks, X):
        return [f"ds_read_b128 {vr(WF+20*ks+4*T,4)}, v{B1 if X else L16}{off(1024*(5*ks+T))}" for T in range(5)]

    def p3mm(ks, first=False):
        return [mf16(vr(ACC + 4 * T, 4), vr(WF + 20 * ks + 4 * T, 4), vr(OF + 4 * ks, 4), "0" if first else vr(ACC + 4 * T, 4)) for T in range(5)]

    A(f"""
    s_add_u32 s98, s98, {128*8192}
    s_add_u32 s101, s101, {128*8192}
    s_add_u32 s99, s99, {64*2048}
    s_add_u32 s6, s34, {7*1152}
    s_add_u32 s7, s34, {14*1152}
    s_mov_b64 s[62:63], s[6:7]
    """)
    gwait(2)
    for ks in range(3, 8):
        for l in wreads(ks, 0): A(l)
    y_sum2(12)
    A.c("---- a routed token of this wave's tile: its staged row of x becomes x + sigmoid(r) * y")
    YT = Y0
    for sel in range(2):
        A(f"""
        s_lshr_b32 s4, s{70+sel}, 4
        s_cmp_lg_u32 s4, {"-1" if nosel else "s32"}
        s_cbranch_scc1 K2_nosel{sel}
        """)
        gwait(5)
        A(f"""
        s_mov_b32 s4, {TB + 1024*sel}
        v_lshl_add_u32 v{T0+1}, v{LANE}, 3, s4
        s_and_b32 s4, s{70+sel}, 15
        s_mul_i32 s4, s4, 144
        s_add_u32 s4, s4, s97
        v_lshl_add_u32 v{T0}, v{LANE}, 2, s4
        """)
        for k in range(12):
            A(f"ds_read_b64 {vr(YT+2*k,2)}, v{T0+1}{off(5120*(k//3)+288*(k%3))}")
        A(f"""
        ds_read_b32 v{YT+25}, v{T0}
        s_ashr_i32 s6, s{68+sel}, 31
        s_not_b32 s6, s6
        s_or_b32 s6, s6, 0x80000000
        s_xor_b32 s6, s6, s{68+sel}
        s_and_b32 s6, s6, 0xffff0000
        v_mov_b32 v{T0+2}, {0x80000000 | LOG2E}
        v_mul_f32 v{T0+2}, s6, v{T0+2}
        v_exp_f32 v{T0+2}, v{T0+2}
        s_mov_b32 s6, -1
        v_add_f32 v{T0+2}, 1.0, v{T0+2}
        v_rcp_f32 v{T0+2}, v{T0+2}
        s_mov_b32 s7, 15
        s_waitcnt lgkmcnt(0)
        """)
        for st in (6, 3):
            for k in range(st):
                A(f"v_pk_add_f32 {vr(YT+2*k,2)}, {vr(YT+2*k,2)}, {vr(YT+2*(k+st),2)}")
        A(f"""
        v_lshlrev_b32 v{YT+24}, 16, v{YT+25}
        v_pk_add_f32 {vr(YT,2)}, {vr(YT,2)}, {vr(YT+2,2)}
        v_and_b32 v{YT+25}, 0xffff0000, v{YT+25}
        v_pk_add_f32 {vr(YT,2)}, {vr(YT,2)}, {vr(YT+4,2)}
        v_cvt_pk_bf16_f32 v{T0+2}, 0, v{T0+2}
        v_cvt_pk_bf16_f32 v{YT}, 0, v{YT}
        v_cvt_pk_bf16_f32 v{YT+1}, 0, v{YT+1}
        v_pk_mul_f32 {vr(YT,2)}, {vr(YT,2)}, {vr(T0+2,2)} op_sel_hi:[1,0]
        v_cvt_pk_bf16_f32 v{YT}, 0, v{YT}
        v_cvt_pk_bf16_f32 v{YT+1}, 0, v{YT+1}
        v_pk_add_f32 {vr(YT,2)}, {vr(YT,2)}, {vr(YT+24,2)}
        v_cvt_pk_bf16_f32 v{YT}, v{YT}, v{YT+1}
        s_mov_b64 exec, s[6:7]
        ds_write_b32 v{T0}, v{YT}
        s_mov_b64 exec, -1
        K2_nosel{sel}:
        """)
    cs("yred")
    for ks in (0, 1, 2, 8):
        for l in wreads(ks, 0): A(l)
    cs("preload")
    sp(1, "ready")
    gwait(OPT.get("win", 4), OPT.get("wsl", 2))
    A("s_setprio 0")
    A("s_waitcnt vmcnt(0)")
    sp(1, "window")
    cs("window")
    GATE = OPT.get("egate", 1)
    epoll = f"buffer_load_dword v{TV+1}, v{TV-1}, {ws}, s99 offen sc1"
    A.c("---- half A; its registers are refilled for half B as they come free")
    order = [8, 0, 1, 2, 3, 4, 5, 6, 7]
    for k in range(10):
        fill = wreads(order[k - 1], 1) if k else []
        if k == OPT.get("p0", 9): fill = oload(8) + fill
        if k == 8: fill = [f"ds_read_b64 {vr(OF+2*T,2)}, v{SG1 if T < 4 else SG2}{off(32*T)}" for T in range(5)] + fill
        mm5 = p3mm(order[k], k == 0) if k < 9 else [None] * 5
        for T in range(5):
            if mm5[T]: A(mm5[T])
            for l in fill[T * len(fill) // 5:(T + 1) * len(fill) // 5]: A(l)
    cs("mfma")
    sp(1, "pre1")

    A.c("---- add (1 - g) * b, with 1 - g in bf16 as one half of a dot product")
    A("s_waitcnt lgkmcnt(10)")
    for i in range(20):
        A(f"v_dot2c_f32_bf16 v{ACC+i}, v{OF+i//2}, v{GV + (1 - i % 2)}")
    A("s_nop 2")
    A.c("---- half B: the two-dimension words of every producer are watched first; the bulk is then fetched, used, and checked for empty words")
    if OPT.get("p0", 9) > 9:
        if OPT["p0"] > 10: A(f"s_sleep {OPT['p0'] - 10}")
        for l in oload(8): A(l)
    A(f"""
    s_mov_b32 s5, {SPIN}
    K2_epoll:
    s_waitcnt vmcnt(0)
    v_max3_u32 v{TV}, v{OF+32}, v{OF+33}, v{OF+34}
    v_max_u32 v{TV}, v{TV}, v{OF+35}
    v_cmp_eq_u32 vcc, -1, v{TV}
    s_cbranch_vccz K2_eseen
    {f"s_sleep {OPT['esleep']}" if OPT.get("esleep") else ""}
    """)
    for l in oload(8): A(l)
    A(f"""
    s_sub_u32 s5, s5, 1
    s_cbranch_scc0 K2_epoll
    s_mov_b32 s5, 0
    s_waitcnt vmcnt(0)
    K2_eseen:
    """)
    sp(1, "eseen")
    for ks in range(8):
        for l in oload(ks): A(l)
    A("s_waitcnt lgkmcnt(0)")
    for l in p3mm(8): A(l)
    A.c("the sums continue in the registers that step freed, so this pass can simply be repeated")
    AC2 = WF + 160
    A(f"K2_main:\nv_mov_b32 v{TV}, 0")
    for ks in range(8):
        A(f"s_waitcnt vmcnt({7-ks})")
        f = OF + 4 * ks
        for T in range(5):
            A(mf16(vr(AC2 + 4 * T, 4), vr(WF + 20 * ks + 4 * T, 4), vr(f, 4), vr((AC2 if ks else ACC) + 4 * T, 4)))
            if T < 2: A(f"v_max3_u32 v{TV}, v{TV}, v{f+2*T}, v{f+2*T+1}")
            if T == 2 and ks == 7: A(f"v_cmp_eq_u32 vcc, -1, v{TV}")
    A("s_cbranch_vccnz K2_redo")
    A("K2_out:")
    if not OPT.get("chain"): sp(1, "fpolled")
    cs("halfB")
    A("s_nop 0")
    for i in range(10):
        A(f"v_cvt_pk_bf16_f32 v{XR+i}, v{AC2+2*i}, v{AC2+2*i+1}")
        if i % 2: A(f"ds_write_b64 v{SG1 if i < 8 else SG2}, {vr(XR+i-1,2)}{off(16*(i-1))}")
    for n in range(3):
        A(f"ds_read_b128 {vr(WF+4*n,4)}, v{SR}{off(1008*n)}")
    for n in range(3):
        if n == 2: A("s_mov_b64 exec, 0x3ffff")
        A(f"s_waitcnt lgkmcnt({2-n})")
        A(f"buffer_store_dwordx4 {vr(WF+4*n,4)}, v{OUT}, s[{sO}:{sO+3}], s{(34, 62, 63)[n]} offen{OPT.get('ost', '')}")
    A.c("the owner of the first routed token saw all 144 stage-2 flags, so every workgroup has taken its tag: hand d_debug back as zero")
    A(f"""
    s_lshr_b32 s4, s70, 4
    s_cmp_lg_u32 s4, s32
    s_cbranch_scc1 K2_fini
    v_mov_b32 v{TV}, 0
    buffer_store_dword v{TV}, off, s[{sDBG}:{sDBG+3}], 0 sc1
    K2_fini:
    """)
    if gen1.DIAG: A("s_mov_b64 exec, -1")
    cs("epilogue")
    if gen1.DIAG: A("s_waitcnt vmcnt(0)")
    cs("drain")
    csflush(1, 100)
    ST.flush(v=100)
    A("s_endpgm")
    A("K2_redo:\ns_sub_u32 s5, s5, 1\ns_cbranch_scc1 K2_out")
    for ks in range(8):
        for l in oload(ks): A(l)
    A("s_branch K2_main")

    A.c("---- slow path: two passes over all keys with the true row maximum (own q tile)")
    A("K2_slow:")
    M, KA, VA, VA2, KEA = 40, 42, 43, 44, 45
    lane_addrs(KA, VA, VA2, KEA)
    A(f"""
    s_and_b32 s4, s40, 1
    s_lshl_b32 s4, s4, 3
    s_add_u32 s59, s57, s4
    buffer_load_dwordx2 {vr(QE,2)}, v{KEA}, {ws}, s59 offen sc1
    buffer_load_dwordx2 {vr(QM,2)}, v{KA}, {ws}, s59 offen sc1
    buffer_load_dwordx2 {vr(QM+2,2)}, v{KA}, {ws}, s59 offen offset:256 sc1
    v_and_b32 v4, 31, v{LANE}
    v_or_b32 v5, 4, v4
    v_cmp_eq_u32 vcc, 21, v5
    v_mov_b32 v6, 0x3f803f80
    s_bitcmp0_b32 s36, 0
    v_cndmask_b32 v{VV[0]}, 0, v6, vcc
    s_cselect_b32 s4, -1, 0
    s_cselect_b32 s5, 0, -1
    """)
    for i in range(1, 8):
        A(f"v_mov_b32 v{VV[0]+i}, v{VV[0]}")
    for i in range(16):
        A(f"v_mov_b32 v{o+i}, 0")
    A(f"""
    v_mov_b32 v{M}, 0xff800000
    s_waitcnt vmcnt(0)
    v_and_b32 v{QE}, s4, v{QE}
    v_and_b32 v{QE+1}, s5, v{QE+1}
    """)
    for pas in range(2):
        A("s_mov_b32 s10, 0")
        A(f"K2_slow{pas}:")
        A(f"""
        s_lshr_b32 s8, s10, 1
        s_mul_i32 s8, s8, {2*R}
        s_add_u32 s8, s8, 36864
        s_and_b32 s9, s10, 1
        s_lshl_b32 s11, s9, 3
        s_add_u32 s11, s11, s8
        s_mul_i32 s9, s9, {2*VS}
        s_add_u32 s8, s8, s9
        s_add_u32 s9, s8, {R}
        buffer_load_dwordx2 {vr(KP[0],2)}, v{KA}, {ws}, s11 offen sc1
        buffer_load_dwordx2 {vr(KP[0]+2,2)}, v{KA}, {ws}, s11 offen offset:256 sc1
        buffer_load_dwordx2 {vr(KE,2)}, v{KEA}, {ws}, s11 offen sc1
        """)
        if pas:
            A(f"""
            s_mov_b64 exec, s[62:63]
            buffer_load_dwordx4 {vr(VV[0],4)}, v{VA}, {ws}, s8 offen sc1
            buffer_load_dwordx4 {vr(VV[0]+4,4)}, v{VA}, {ws}, s9 offen sc1
            s_mov_b64 exec, -1
            """)
        A(f"""
        s_waitcnt vmcnt(0)
        v_mfma_f32_32x32x4_2b_bf16 v[0:31], {vr(KE,2)}, {vr(QE,2)}, 0
        s_nop 15
        s_nop 3
        {mfma("v[0:15]", vr(KP[0],4), vr(QM,4), "v[0:15]")}
        s_nop 15
        """)
        if not pas:
            for i in range(8):
                A(f"v_max3_f32 v{M}, v{M}, v{2*i}, v{2*i+1}")
        else:
            for i in range(16):
                A(f"v_sub_f32 v{i}, v{i}, v{M}")
            for i in range(16):
                A(f"v_exp_f32 v{i}, v{i}")
            A("s_nop 1")
            A(f"v_smfmac_f32_32x32x32_bf16 {vr(o,16)}, {vr(VV[0],4)}, v[0:7], v{IDX}")
            A(f"v_smfmac_f32_32x32x32_bf16 {vr(o,16)}, {vr(VV[0]+4,4)}, v[8:15], v{IDX}")
            A("s_nop 15")
        A(f"""
        s_add_u32 s10, s10, 1
        s_cmp_lt_u32 s10, 64
        s_cbranch_scc1 K2_slow{pas}
        """)
        if not pas:
            A(f"""
            v_mov_b32 v{M+1}, v{M}
            s_nop 1
            v_permlane32_swap_b32 v{M}, v{M+1}
            s_nop 1
            v_max_f32 v{M}, v{M}, v{M+1}
            """)
    A(f"v_rcp_f32 v0, v{o+9}\ns_nop 0\nv_mul_f32 v0, v0, v{GQ}")
    for l in norm(): A(l)
    for r in (2, 4, 5, 6, 7): A(f"v_min_u32 v{r}, -2, v{r}")
    A("s_branch K2_fin")
    for r in range(2):
        A(f"""
        K2_gqspin{r}:
        s_mov_b32 s6, {SPIN}
        K2_gqspin{r}1:
        {gqload[r]}
        s_sub_u32 s6, s6, 1
        s_waitcnt vmcnt(0)
        s_cbranch_scc1 K2_gqok{r}
        v_cmp_ne_u32 vcc, s{sTAG}, v{(251, GQ+1)[r]}
        s_cbranch_vccnz K2_gqspin{r}1
        s_branch K2_gqok{r}
        """)
    A.c("---- partials still missing: watch the count alone, then read again")
    A(f"""
    K2_finwait:
    s_sub_u32 s5, s5, 1
    s_cbranch_scc1 K2_fin2
    ds_read_b32 v0, v{CA}
    s_waitcnt lgkmcnt(0)
    v_readfirstlane_b32 s4, v0
    s_cmp_lt_u32 s4, {OPT.get("fw", 3)}
    s_cbranch_scc0 K2_fin1
    {"s_sleep 1" if OPT.get("fsl") else ""}
    s_branch K2_finwait
    """)
    A.c("---- router candidates not published yet (rare): wait for them")
    A(f"""
    K2_candspin:
    s_mov_b32 s6, {SPIN}
    s_mov_b32 s7, {RC}
    K2_candspin1:
    buffer_load_dwordx4 {vr(CAND,4)}, v{L16}, {ws}, s7 offen sc1
    s_sub_u32 s6, s6, 1
    s_waitcnt vmcnt(0)
    s_cbranch_scc1 K2_candok
    v_cmp_ne_u32 vcc, s{sTAG}, v{CAND+1}
    v_cmp_ne_u32 s[4:5], s{sTAG}, v{CAND+3}
    s_or_b64 vcc, vcc, s[4:5]
    s_cbranch_scc1 K2_candspin1
    s_branch K2_candok
    """)
    A("K2_codeend:")
    A("s_endpgm")
    return CNT + 48


HEADER = """; out = g * MHA(x) + (1 - g) * (x + top-2 routed SwiGLU FFN(x)),  g = sigmoid(x . gate_w);  S = 2048, D = 576, H = 32, F = 4608
;
;     wave whose check fails recomputes its rows in two passes with the true row maximum (K2_slow).
; {value, tag} pairs, or slots marked empty earlier in the launch. The tag is new in every launch (successor of a word
"""


def build():
    global R, VS
    VS, R = OPT.get('pitch', (9216, 110592))
    assert 64 * R <= GB and R >= 73728 + 4 * VS
    A = Asm()
    A('.amdgcn_target "amdgcn-amd-amdhsa--gfx950"')
    A(".text")
    lds = k23(A)
    A('.section .rodata,"a"')
    A(".p2align 6")
    A.raw(descriptor(NAME, 256, 256))
    head = (HEADER +
            f"; @launch grid=(256,1,1) block=(512,1,1) lds={lds}\n")
    return head + A.text()


if __name__ == "__main__":
    out = sys.argv[1]
    gen1.DIAG = len(sys.argv) > 2 and sys.argv[2] == "diag"
    if len(sys.argv) > 3:
        OPT = eval(sys.argv[3]); gen1.OPT = OPT
    open(out, "w").write(build())
```
